```python
import torch

def _softmax(x, axis=-1):
    return torch.softmax(x, dim=axis)
def _gelu(x):
    return torch.nn.functional.gelu(x, approximate="tanh")
def _silu(x):
    return torch.nn.functional.silu(x)
def _sigmoid(x):
    return torch.sigmoid(x)
def _layernorm(x, axis=-1, eps=1e-5):
    m = x.mean(dim=axis, keepdim=True)
    v = x.var(dim=axis, keepdim=True, unbiased=False)
    return (x - m) / torch.sqrt(v + eps)
def _scatter_add(tgt, idx, src, axis=0):
    return tgt.clone().index_add_(axis, idx, src)
def _segment_sum(src, seg, n):
    out = torch.zeros((n,) + src.shape[1:], dtype=src.dtype)
    return out.index_add_(0, seg, src)
def _pad(x, pw):
    flat = tuple(v for pair in reversed(pw) for v in pair)
    return torch.nn.functional.pad(x, flat)

kernel_name = 'interleave_layers__softmax_full_mha__glu_gated_swiglu__prompt'

def setup_inputs():

    _w = (lambda a: (lambda t: t.to(torch.bfloat16) if t.is_floating_point() else t)(torch.as_tensor(a)))
    def _A_setup():
        B, S, D = 1, 2048, 576
        return {
            "x": _w((lambda *s: torch.randn(*s, dtype=torch.bfloat16) * 0.05)(B, S, D)),
            "wqkv": _w((lambda *s: torch.randn(*s, dtype=torch.bfloat16) * 0.05)(D, 3 * D)),
            "wo": _w((lambda *s: torch.randn(*s, dtype=torch.bfloat16) * 0.05)(D, D)),
        }
    _A_in = _A_setup()

    def _B_setup():
        B, S, D, F = 1, 2048, 576, 4608
        return {
            "x": _w((lambda *s: torch.randn(*s, dtype=torch.bfloat16) * 0.05)(B, S, D)),
            "w1": _w((lambda *s: torch.randn(*s, dtype=torch.bfloat16) * 0.4)(D, F) * (2.0 / D) ** 0.5),
            "w3": _w((lambda *s: torch.randn(*s, dtype=torch.bfloat16) * 0.4)(D, F) * (2.0 / D) ** 0.5),
            "w2": _w((lambda *s: torch.randn(*s, dtype=torch.bfloat16) * 0.4)(F, D) * (2.0 / F) ** 0.5),
        }
    _B_in = _B_setup()

    return {
        "A_x": _A_in["x"],
        "A_wqkv": _A_in["wqkv"],
        "A_wo": _A_in["wo"],
        "B_x": _B_in["x"],
        "B_w1": _B_in["w1"],
        "B_w3": _B_in["w3"],
        "B_w2": _B_in["w2"],
    }

def reference(A_x, A_wqkv, A_wo, B_x, B_w1, B_w3, B_w2):
    def _A_ref(x, wqkv, wo):
        B, S, D = x.shape
        H = 32; Dh = D // H
        qkv = (lambda x, *d: x.permute(*d))((x @ wqkv).reshape(B, S, 3, H, Dh), 2, 0, 3, 1, 4)
        q, k, v = qkv[0], qkv[1], qkv[2]
        scale = Dh ** -0.5
        scores = torch.einsum("bhqd,bhkd->bhqk", q, k) * scale
        p = _softmax(scores, axis=-1)
        o = torch.einsum("bhqk,bhkd->bhqd", p, v)
        return (lambda x, *d: x.permute(*d))(o, 0, 2, 1, 3).reshape(B, S, D) @ wo

    def _B_ref(x, w1, w3, w2):
        gate = torch.einsum("bsd,df->bsf", x, w1)
        up = torch.einsum("bsd,df->bsf", x, w3)
        h = _silu(gate) * up
        out = torch.einsum("bsf,fd->bsd", h, w2)
        return out

    x = A_x
    x = x + _A_ref(_layernorm(x, axis=-1), A_wqkv, A_wo)
    x = x + _B_ref(_layernorm(x, axis=-1), B_w1, B_w3, B_w2)
    x = x + _A_ref(_layernorm(x, axis=-1), A_wqkv, A_wo)
    x = x + _B_ref(_layernorm(x, axis=-1), B_w1, B_w3, B_w2)
    return x
```

```python
import re

class I:
    __slots__ = ("text", "kind", "tag", "wait", "meta")
    def __init__(self, text, kind="", tag=None, wait=None):
        self.text = text; self.kind = kind; self.tag = tag; self.wait = wait

def v(n, c=1):
    return f"v{n}" if c == 1 else f"v[{n}:{n+c-1}]"
def a(n, c=1):
    return f"a{n}" if c == 1 else f"a[{n}:{n+c-1}]"
def s(n, c=1):
    return f"s{n}" if c == 1 else f"s[{n}:{n+c-1}]"
def r(n, c=1):
    if n >= 256:
        return a(n - 256, c)
    assert n + c <= 256
    return v(n, c)

_reg_re = re.compile(r"^-?\|?([vas])(?:(\d+)|\[(\d+):(\d+)\])\|?$")
def parse_reg(tok):
    tok = tok.strip()
    m = re.match(r"^(?:neg|abs)\((.*)\)$", tok)
    if m: tok = m.group(1)
    if tok == "vcc": return [("s", 106), ("s", 107)]
    if tok == "exec": return [("s", 126), ("s", 127)]
    if tok == "m0": return [("s", 124)]
    m = _reg_re.match(tok)
    if not m: return []
    f = m.group(1)
    if m.group(2) is not None:
        lo = hi = int(m.group(2))
    else:
        lo, hi = int(m.group(3)), int(m.group(4))
    return [(f, i) for i in range(lo, hi + 1)]

TRANS = ("v_exp_f32", "v_log_f32", "v_rcp_f32", "v_rsq_f32", "v_sqrt_f32", "v_sin_f32", "v_cos_f32")
def analyze(text):
    t = text.split(";")[0].strip()
    parts = t.split(None, 1)
    op = parts[0]
    ops = []
    mods = []
    if len(parts) > 1:
        depth = 0; cur = ""
        for ch in parts[1] + ",":
            if ch in "[(": depth += 1
            elif ch in "])": depth -= 1
            if ch == "," and depth == 0:
                p = cur.split()
                if p:
                    ops.append(p[0]); mods += p[1:]
                cur = ""
            else:
                cur += ch
    R = [parse_reg(o) for o in ops]
    d = dict(op=op, wr=set(), rd=set(), cls="other", mods=mods, passes=0, srcC=set(), srcAB=set(), D=None)
    def rd(*idx):
        for i in idx:
            if i < len(R): d["rd"].update(R[i])
    def wr(*idx):
        for i in idx:
            if i < len(R): d["wr"].update(R[i])
    n = len(R)
    if op.startswith("v_mfma"):
        d["cls"] = "mfma"
        wr(0); rd(1, 2, 3)
        d["srcC"] = set(R[3]); d["srcAB"] = set(R[1]) | set(R[2]); d["D"] = tuple(R[0]); d["C"] = tuple(R[3])
        d["passes"] = 8 if "32x32x16" in op or "32x32x8" in op else (4 if "16x16x32" in op or "16x16x16" in op else 16)
    elif op.startswith("v_cmp"):
        d["cls"] = "valu"; wr(0); rd(*range(1, n))
    elif op.startswith("v_readfirstlane") or op.startswith("v_readlane"):
        d["cls"] = "valu"; d["rdlane"] = True; wr(0); rd(*range(1, n))
    elif op.startswith("v_permlane"):
        d["cls"] = "valu"; d["perml"] = True; wr(0, 1); rd(0, 1)
    elif op.startswith("v_"):
        d["cls"] = "valu"
        wr(0); rd(*range(1, n))
        if op.startswith(("v_fmac", "v_dot2c", "v_pk_fmac")) or "UNUSED_PRESERVE" in t: rd(0)
        if op.startswith(("v_add_co", "v_sub_co", "v_addc_co")): wr(1)
        if op.startswith("v_cndmask") and n == 3: d["rd"].update(parse_reg("vcc"))
        if op.startswith(TRANS): d["trans"] = True
        if any(m.startswith(("row_", "quad_perm", "wave_")) for m in mods): d["dpp"] = True
    elif op.startswith("ds_read") or op.startswith("ds_bpermute") or op.startswith("ds_swizzle"):
        d["cls"] = "ds"; wr(0); rd(*range(1, n))
    elif op.startswith("ds_"):
        d["cls"] = "ds"; rd(*range(n))
    elif op.startswith("buffer_load") or op.startswith("global_load"):
        d["cls"] = "vmem"
        if "lds" in mods or "_lds_" in op:
            rd(*range(n)); d["rd"].update(parse_reg("m0")); d["ldsdma"] = True
        else:
            wr(0); rd(*range(1, n))
    elif op.startswith("buffer_") or op.startswith("global_"):
        d["cls"] = "vmem"; rd(*range(n))
        if ("x4" in op or "x3" in op) and "store" in op:
            d["widestore"] = set(R[0]) if op.startswith("buffer") else set(R[1])
    elif op.startswith("s_"):
        d["cls"] = "salu"
        if op.startswith(("s_cmp", "s_cbranch", "s_branch", "s_waitcnt", "s_barrier", "s_nop", "s_endpgm", "s_setprio", "s_sleep", "s_bitcmp")):
            rd(*range(n))
        else:
            wr(0); rd(*range(1, n))
            if "saveexec" in op: d["wr"].update(parse_reg("exec"))
    return d

def states_of(text):
    t = text.strip()
    m = re.match(r"s_nop\s+(\d+)", t)
    if m: return int(m.group(1)) + 1
    return 1

def need_states(p, c):
    need = 0
    pw = p["wr"]
    vw = {x for x in pw if x[0] in "va"}
    sw = {x for x in pw if x[0] == "s"}
    if p["cls"] == "valu":
        if c["cls"] == "mfma" and vw & c["rd"]: need = max(need, 2)
        if c.get("perml") and vw & c["rd"]: need = max(need, 2)
        if c.get("dpp") and vw & c["rd"]: need = max(need, 2)
        if c.get("rdlane") and vw & c["rd"]: need = max(need, 1)
        if p.get("trans") and c["cls"] in ("valu", "mfma") and not c.get("trans") and vw & (c["rd"]): need = max(need, 1)
        if p.get("trans") and c["cls"] in ("vmem", "ds") and vw & c["rd"]: need = max(need, 1)
        if sw:
            if c["cls"] == "vmem" and sw & c["rd"]: need = max(need, 5)
            if c["cls"] == "valu" and sw & c["rd"]: need = max(need, 4 if c.get("rdlane") else 2)
            if c["cls"] == "salu" and sw & c["rd"]: need = max(need, 1)
    if p["cls"] == "salu":
        if ("s", 124) in sw and c.get("ldsdma"): need = max(need, 1)
    if p["cls"] == "mfma":
        ps = p["passes"]
        big = {2: 5, 4: 8, 8: 12, 16: 20}[ps]
        ovl = {2: 4, 4: 6, 8: 10, 16: 18}[ps]
        war = {2: 1, 4: 3, 8: 7, 16: 15}[ps]
        if c["cls"] == "mfma":
            if vw & c["srcAB"]: need = max(need, big)
            if vw & c["srcC"]:
                if not (p["D"] == c["C"] and p["passes"] == c["passes"]): need = max(need, ovl)
            elif vw & c["wr"]: need = max(need, ovl)
        elif c["cls"] in ("valu", "vmem", "ds"):
            if vw & (c["rd"] | c["wr"]): need = max(need, big)
            if c["cls"] == "valu" and p["srcC"] & c["wr"]: need = max(need, war)
            if c["cls"] in ("vmem", "ds") and p["srcC"] & c["wr"]: need = max(need, war)
    if p.get("widestore") and c["cls"] in ("valu", "mfma") and p["widestore"] & c["wr"]: need = max(need, 2)
    if p.get("widestore") and c["cls"] in ("ds", "vmem") and p["widestore"] & c["wr"]: need = max(need, 1)
    return need

class Asm:
    def __init__(self):
        self.ins = []
    def __call__(self, text, tag=None):
        for line in text.strip().split("\n"):
            line = line.strip()
            if not line or line.startswith(";"): continue
            self.ins.append(I(line, tag=tag))
        return self
    def label(self, name):
        self.ins.append(I(name + ":", kind="label"))
    def raw(self, text):
        self.ins.append(I(text, kind="raw"))
    def wait(self, *tags):
        self.ins.append(I("", kind="wait", wait=tags))
    def waitall(self, vm=True, lgkm=True):
        self.ins.append(I("", kind="waitall", wait=(vm, lgkm)))
    def fence(self):
        self.ins.append(I("", kind="fence"))
    def save(self, name):
        self.ins.append(I("", kind="save", tag=name))
    def restore(self, name):
        self.ins.append(I("", kind="restore", tag=name))
    def extend(self, other):
        self.ins += other.ins

def interleave(main, fill, slots, start=0):
    out = []
    fi = 0
    seen = 0
    for ins in main:
        out.append(ins)
        b = slots(ins)
        if b > 0:
            seen += 1
            if seen <= start: continue
            while fi < len(fill) and b > 0:
                f, c = fill[fi]
                if c > b and b < slots(ins): break
                out.append(f); b -= c; fi += 1
    rest = [f for f, c in fill[fi:]]
    return out, rest

def cost(ins):
    if ins.kind in ("wait", "waitall", "fence", "label", "raw", "save", "restore"): return 0
    op = ins.text.split()[0]
    if op.startswith(TRANS): return 8
    if op.startswith("v_mfma"): return 8
    if op.startswith("v_"): return 4
    if op.startswith("s_"): return 1
    return 4

def finalize(asm):
    out = []
    vmq = []; lgq = []
    smem_out = False
    snaps = {}
    hist = []
    def push(text):
        an = analyze(text)
        need = 0
        dist = 0
        for p, st in reversed(hist):
            n = need_states(p, an)
            if n > dist: need = max(need, n - dist)
            dist += st
            if dist > 24: break
        while need > 0:
            k = min(need, 16)
            out.append(f"    s_nop {k-1}")
            hist.append((analyze(f"s_nop {k-1}"), k))
            need -= k
        out.append("    " + text)
        hist.append((an, states_of(text)))
        if len(hist) > 40: del hist[:10]
        return an
    for ins in asm.ins:
        if ins.kind == "label":
            out.append(ins.text); continue
        if ins.kind == "raw":
            out.append(ins.text); continue
        if ins.kind == "save":
            snaps[ins.tag] = (None if vmq is None else list(vmq), None if lgq is None else list(lgq), smem_out, list(hist))
            continue
        if ins.kind == "restore":
            a_, b_, smem_out, h_ = snaps[ins.tag]
            vmq = None if a_ is None else list(a_); lgq = None if b_ is None else list(b_)
            hist[:] = h_
            continue
        if ins.kind == "fence":
            vmq = None; lgq = None
            continue
        if ins.kind == "waitall":
            vm, lg = ins.wait
            p = []
            if vm and (vmq is None or vmq): p.append("vmcnt(0)")
            if lg and (lgq is None or lgq or smem_out): p.append("lgkmcnt(0)")
            if vm: vmq = []
            if lg: lgq = []; smem_out = False
            if p: push("s_waitcnt " + " ".join(p))
            continue
        if ins.kind == "wait":
            p = []
            assert vmq is not None and lgq is not None, "wait by tag after fence without waitall"
            idx = max([i for i, t in enumerate(vmq) if t in ins.wait], default=-1)
            if idx >= 0:
                n = len(vmq) - 1 - idx
                if n <= 63:
                    p.append(f"vmcnt({n})")
                    vmq = vmq[idx + 1:]
                else:
                    raise Exception("vmcnt overflow")
            idx = max([i for i, t in enumerate(lgq) if t in ins.wait], default=-1)
            if idx >= 0:
                n = len(lgq) - 1 - idx
                if smem_out: n = 0
                if n > 15: n = 15
                p.append(f"lgkmcnt({n})")
                lgq = lgq[len(lgq) - n:] if n else []
                if n == 0: smem_out = False
            if p: push("s_waitcnt " + " ".join(p))
            continue
        an = push(ins.text)
        op = an["op"]
        if an["cls"] == "vmem" and not op.startswith(("buffer_wbl2", "buffer_inv")):
            if vmq is not None:
                vmq.append(ins.tag)
                if len(vmq) > 63: vmq = vmq[-63:]
        elif an["cls"] == "ds":
            if lgq is not None: lgq.append(ins.tag)
        elif op.startswith(("s_load", "s_memtime", "s_buffer_load", "s_memrealtime")):
            smem_out = True
            if lgq is not None: lgq.append(ins.tag)
        elif op == "s_waitcnt":
            m = re.search(r"vmcnt\((\d+)\)", ins.text)
            if m:
                n = int(m.group(1))
                if vmq is None:
                    if n == 0: vmq = []
                else: vmq = vmq[len(vmq) - n:] if n and len(vmq) > n else ([] if n == 0 else vmq)
            m = re.search(r"lgkmcnt\((\d+)\)", ins.text)
            if m:
                n = int(m.group(1))
                if n == 0: lgq = []; smem_out = False
                elif lgq is not None and not smem_out and len(lgq) > n: lgq = lgq[len(lgq) - n:]
    return "\n".join(out) + "\n"
```

```python
from asmlib import *
import gen as G
from t1 import *
QSCALE = (18 ** -0.5) * LOG2E

def k1_main(A, NT, swapped, sfx):
    xreg = lambda j, ks: (256 + 4 * ks) if ks < 36 else 8
    t1 = T1(1, xreg, lambda t, j: 64 + 16 * t, 32, 8, lambda t: t, 2, swapped)
    def issue(c):
        for t in range(NT):
            if c < 9:
                dma(A, 20, t * G.T1S + c * 4096, 21, t * G.T1S + c * 4096, 1, f"c{c}")
            else:
                dma(A, 22, t * G.T1S + 36 * 1024, None, t * G.T1S + 36 * 1024, 1, f"c{c}")
        if c < 9:
            A(f"s_add_u32 s30, s23, {c*4096}")
            for q in range(4):
                A(f"buffer_load_dwordx4 {r(xreg(0, 4*c+q), 4)}, v1, s[4:7], s30 offen offset:{q*1024}", tag=f"c{c}")
    AHEAD = 7
    for c in range(AHEAD): issue(c)
    A.wait("st")
    stats_compute(A, 16, 5, 6, 12)
    A("v_cmp_gt_u32 vcc, 512, v1")
    build_xext(A, 5, 8, 12)
    A("v_rsq_f32 v6, v6")
    items = [(t, ks) for ks in range(37) for t in range(NT)]
    DIST = NT + 2 if NT + 2 <= 7 else 7
    nextc = AHEAD
    def pre_read(i):
        t, ks = items[i]
        if t == 0 and ks % 4 == 0:
            A.wait(f"c{ks//4}")
            A("s_barrier")
        t1.read(A, i, t, ks)
    for i in range(DIST): pre_read(i)
    for i, (t, ks) in enumerate(items):
        if i + DIST < len(items): pre_read(i + DIST)
        A.wait(f"wf{i}")
        t1.mfmas(A, i, t, ks)
        if t == NT - 1 and ks % 4 == 3 and nextc < 10:
            issue(nextc); nextc += 1

def gen_k1():
    name = "k1_kernel"
    A = G.begin(name)
    A("""
    s_load_dwordx2 s[82:83], s[0:1], 72
    s_cmp_ge_u32 s2, 256
    s_cbranch_scc1 K1_END
    s_and_b32 s24, s2, 7               ; x
    s_lshr_b32 s25, s2, 3              ; j
    s_lshr_b32 s26, s24, 1
    s_lshl_b32 s26, s26, 2
    s_and_b32 s27, s25, 3
    s_add_u32 s26, s26, s27            ; rg
    s_and_b32 s27, s24, 1
    s_lshl_b32 s27, s27, 3
    s_lshr_b32 s28, s25, 2
    s_add_u32 s27, s27, s28            ; cg
    s_cmp_ge_u32 s27, 15
    s_cbranch_scc1 K1_END
    """)
    G.wave_id(A, 3)
    A("""
    v_and_b32 v1, 63, v0
    v_lshlrev_b32 v1, 4, v1
    v_mov_b32 v2, v1
    v_add_u32 v3, 0x10000, v1
    v_add_u32 v4, 0x20000, v1
    s_lshl_b32 s26, s26, 2
    s_add_u32 s26, s26, s3             ; rb
    s_lshl_b32 s21, s3, 10
    s_lshl_b32 s28, s27, 2
    s_mul_i32 s29, s27, 3
    s_add_u32 s29, s29, 9              ; 36+3(cg-9)
    s_cmp_ge_u32 s27, 9
    s_cselect_b32 s28, s29, s28
    """)
    A(f"""
    s_mul_i32 s22, s28, {G.T1S}
    s_add_u32 s22, s22, {G.WQ}
    s_add_u32 s20, s22, s21            ; + wave*1024
    s_mul_i32 s23, s26, 36864
    s_add_u32 s23, s23, {G.XF}
    s_lshl_b32 s29, s26, 11
    s_add_u32 s29, s29, {G.ST}
    """)
    A.waitall()
    G.srd(A, 4, 82, G.WS_USED)
    stats_load(A, 1, 29, 16, 12)
    A(f"""
    s_lshr_b32 s31, s26, 4
    s_mul_i32 s31, s31, {G.KVC}
    s_add_u32 s31, s31, {G.KV}
    s_cmp_ge_u32 s27, 9
    s_cbranch_scc1 K1_V
    """)
    A.save("v")
    k1_main(A, 4, False, "a")
    A("s_cmp_eq_u32 s27, 8")
    A("s_cbranch_scc1 K1_EXT")
    A.save("ext")
    A(f"""
    s_and_b32 s32, s27, 3
    s_lshl_b32 s32, s32, 3
    s_lshl_b32 s33, s26, 10
    s_add_u32 s33, s33, {G.QM}
    s_and_b32 s34, s26, 15
    s_lshl_b32 s34, s34, 10
    s_add_u32 s34, s34, s31
    s_cmp_lt_u32 s27, 4
    s_cselect_b32 s33, s33, s34
    s_mov_b32 s35, {G.KVH}
    s_cselect_b32 s35, 65536, s35
    s_mov_b32 s36, {hex(G.f32(QSCALE))}
    s_cselect_b32 s36, s36, 1.0
    s_mul_i32 s32, s32, s35
    s_add_u32 s33, s33, s32
    v_mul_f32 v6, s36, v6
    """)
    for t in range(4):
        acc = 64 + 16 * t
        for i in range(16): A(f"v_mul_f32 v{acc+i}, v{acc+i}, v6")
        for i in range(8): A(f"v_cvt_pk_bf16_f32 v{128+8*t+i}, v{acc+2*i}, v{acc+2*i+1}")
        for e in range(2):
            A(f"buffer_store_dwordx4 v[{128+8*t+4*e}:{128+8*t+4*e+3}], v1, s[4:7], s33 offen")
            A("s_add_u32 s33, s33, s35")
    A("s_branch K1_END")
    A.label("K1_EXT")
    A.restore("ext")
    A(f"""
    v_and_b32 v12, 31, v0
    v_bfe_u32 v13, v0, 5, 1
    v_lshlrev_b32 v14, 2, v12
    v_mul_u32_u24 v15, 16384, v13
    v_add_u32 v14, v14, v15            ; q voffset
    v_lshlrev_b32 v15, 4, v12
    s_mov_b32 s32, {2*G.KVH}
    v_mul_lo_u32 v13, v13, s32
    v_add_u32 v15, v15, v13            ; k voffset
    s_lshl_b32 s33, s26, 7
    s_add_u32 s33, s33, {G.QE}
    s_bfe_u32 s34, s26, 0x20002        ; (rb>>2)&3
    s_lshl_b32 s34, s34, 9
    s_and_b32 s35, s26, 3
    s_lshl_b32 s35, s35, 2
    s_add_u32 s34, s34, s35
    s_add_u32 s34, s34, s31
    s_add_u32 s34, s34, 16384
    v_mul_f32 v7, {hex(G.f32(QSCALE))}, v6
    """)
    for t in range(4):
        acc = 64 + 16 * t
        sc = 7 if t < 2 else 6
        e = t & 1
        for i in range(16): A(f"v_mul_f32 v{acc+i}, v{acc+i}, v{sc}")
        for i in range(8): A(f"v_cvt_pk_bf16_f32 v{128+8*t+i}, v{acc+2*i}, v{acc+2*i+1}")
        for i in range(8):
            g, par = i >> 1, i & 1
            hd = 16 * e + 4 * g + par
            if t < 2:
                A(f"s_add_u32 s30, s33, {hd*8192}")
                A(f"buffer_store_dword v{128+8*t+i}, v14, s[4:7], s30 offen")
            else:
                A(f"s_add_u32 s30, s34, {hd*G.KVH}")
                A(f"buffer_store_dword v{128+8*t+i}, v15, s[4:7], s30 offen")
    A("s_branch K1_END")
    A.label("K1_V")
    A.restore("v")
    k1_main(A, 3, True, "v")
    A(f"""
    v_and_b32 v12, 31, v0
    v_lshlrev_b32 v13, 2, v12
    s_lshl_b32 s32, s3, 7
    s_add_u32 s32, s32, {3*G.T1S}
    v_add_u32 v13, s32, v13
    ds_write_b32 v13, v6
    v_bfe_u32 v14, v0, 5, 1            ; h
    v_lshlrev_b32 v13, 4, v14
    v_add_u32 v13, s32, v13
    """)
    A.waitall(vm=False)
    for g in range(4):
        A(f"ds_read_b128 v[{16+4*g}:{19+4*g}], v13 offset:{g*32}")
    A(f"""
    s_sub_u32 s32, s27, 9
    s_mul_i32 s32, s32, 96
    v_add_u32 v12, s32, v12
    v_mul_u32_u24 v14, 304, v14
    s_and_b32 s33, s26, 15
    s_mul_i32 s33, s33, 1216
    s_add_u32 s33, s33, s31
    s_add_u32 s33, s33, 18432
    s_mov_b32 s34, {G.KVH}
    """)
    A.waitall(vm=False)
    for t in range(3):
        acc = 64 + 16 * t
        A(f"""
        v_mul_u32_u24 v13, 3641, v12
        v_lshrrev_b32 v13, 16, v13         ; head
        v_mul_u32_u24 v15, 18, v13
        v_sub_u32 v15, v12, v15            ; d
        v_mul_lo_u32 v13, v13, s34
        v_lshlrev_b32 v15, 4, v15
        v_add3_u32 v{7+t}, v13, v15, v14
        v_add_u32 v12, 32, v12
        """)
        for i in range(16): A(f"v_mul_f32 v{acc+i}, v{acc+i}, v{16+i}")
        for i in range(8): A(f"v_cvt_pk_bf16_f32 v{128+8*t+i}, v{acc+2*i}, v{acc+2*i+1}")
        for e in range(2):
            A(f"buffer_store_dwordx4 v[{128+8*t+4*e}:{128+8*t+4*e+3}], v{7+t}, s[4:7], s33 offen offset:{e*608}")
    A.label("K1_END")
    A("s_endpgm")
    G.end(A, name, 400, 256)
    return (name, 256, 256, 4 * G.T1S)
```

```python
from asmlib import *
import gen as G

def gen_k2():
    name = "k2_kernel"
    A = G.begin(name)
    VK, VV = 2, 6
    QMr, QEr = 12, 16
    NEG, Sr, Pr, Or = 48, 64, 96, 112
    KMr, VRr, KEr = 128, 140, 164
    T = 172
    A("""
    s_load_dwordx2 s[82:83], s[0:1], 72
    s_cmp_ge_u32 s2, 256
    s_cbranch_scc1 K2_END
    s_and_b32 s24, s2, 7
    s_lshl_b32 s24, s24, 2
    s_bfe_u32 s25, s2, 0x20003
    s_add_u32 s24, s24, s25            ; head
    s_lshr_b32 s25, s2, 5              ; qblk
    """)
    G.wave_id(A, 3)
    A(f"""
    v_and_b32 v1, 63, v0
    v_lshlrev_b32 v1, 4, v1
    s_lshl_b32 s25, s25, 3
    s_add_u32 s25, s25, s3             ; qtile
    s_lshl_b32 s26, s24, 6
    s_add_u32 s26, s26, s25            ; head*64+qtile
    s_lshl_b32 s27, s26, 10
    s_add_u32 s27, s27, {G.QM}
    s_lshl_b32 s28, s26, 7
    s_add_u32 s28, s28, {G.QE}
    s_lshl_b32 s21, s3, 10
    s_mul_i32 s20, s24, {G.KVH}
    s_add_u32 s20, s20, {G.KV}
    s_add_u32 s20, s20, s21
    v_and_b32 v{T}, 31, v0
    v_lshlrev_b32 v{T+1}, 2, v{T}
    s_mov_b32 s40, 0
    """)
    A.waitall()
    G.srd(A, 4, 82, G.WS_USED)
    A(f"buffer_load_dwordx4 v[{QMr}:{QMr+3}], v1, s[4:7], s27 offen", tag="q")
    A(f"buffer_load_dword v{T+2}, v{T+1}, s[4:7], s28 offen", tag="q")
    jmax = [4, 9, 13, 18]
    for j in range(19):
        p = min(pp for pp in range(4) if j <= jmax[pp])
        A(f"s_add_u32 s30, s20, {j*8192}")
        A(f"s_add_u32 m0, s21, {j*8192}")
        A("buffer_load_dwordx4 v1, s[4:7], s30 offen lds", tag=f"c{p}")
    A(f"""
    v_bfe_u32 v{T+3}, v0, 2, 1
    v_lshlrev_b32 v{T+3}, 3, v{T+3}
    v_bfe_u32 v{T+4}, v0, 3, 1
    v_lshlrev_b32 v{T+4}, 2, v{T+4}
    v_and_b32 v{T+5}, 3, v0
    v_add3_u32 v{T+3}, v{T+3}, v{T+4}, v{T+5}     ; d(i) for i<16
    v_min_u32 v{T+4}, 18, v{T}
    v_cmp_gt_u32 vcc, 16, v{T}
    v_cndmask_b32 v{T+3}, v{T+4}, v{T+3}, vcc
    v_lshlrev_b32 v{T+3}, 4, v{T+3}
    v_bfe_u32 v{T+4}, v0, 5, 1
    v_mul_u32_u24 v{T+4}, 304, v{T+4}
    v_add_u32 v{T+3}, v{T+3}, v{T+4}
    """)
    for p in range(4):
        A(f"v_add_u32 v{VK+p}, {p*G.KVC}, v1")
        A(f"v_add_u32 v{VV+p}, {p*G.KVC + 18432}, v{T+3}")
    for i in range(32): A(f"v_mov_b32 v{QEr+i}, 0")
    A.wait("q")
    A(f"v_cmp_gt_u32 vcc, 512, v1")
    for j in range(4):
        A(f"v_cndmask_b32 v{QEr+4*j+j}, 0, v{T+2}, vcc")
        A(f"v_cndmask_b32 v{QEr+16+4*j+j}, v{T+2}, 0, vcc")
    def rdK(t):
        p = t >> 4
        A(f"ds_read_b128 v[{KMr+4*(t%3)}:{KMr+4*(t%3)+3}], v{VK+p} offset:{(t&15)*1024}", tag=f"k{t}")
        if t % 8 == 0:
            g = (t >> 3) & 1
            A(f"ds_read_b128 v[{KEr+4*g}:{KEr+4*g+3}], v{VK+p} offset:{16384+g*1024}", tag=f"k{t}")
    def rdV(t):
        p = t >> 4
        b = VRr + 8 * (t % 3)
        A(f"ds_read_b128 v[{b}:{b+3}], v{VV+p} offset:{(t&15)*1216}", tag=f"v{t}")
        A(f"ds_read_b128 v[{b+4}:{b+7}], v{VV+p} offset:{(t&15)*1216+608}", tag=f"v{t}")
    def qk1(t, c):
        s_ = Sr + 16 * (t & 1)
        A(f"v_mfma_f32_32x32x16_bf16 v[{s_}:{s_+15}], v[{KMr+4*(t%3)}:{KMr+4*(t%3)+3}], v[{QMr}:{QMr+3}], {c}")
    def qk2(t):
        s_ = Sr + 16 * (t & 1); g = (t >> 3) & 1; q = QEr + 4 * (t & 7)
        A(f"v_mfma_f32_32x32x16_bf16 v[{s_}:{s_+15}], v[{KEr+4*g}:{KEr+4*g+3}], v[{q}:{q+3}], v[{s_}:{s_+15}]")
    def pv(t, half):
        b = VRr + 8 * (t % 3) + 4 * half; p_ = Pr + 8 * (t & 1) + 4 * half
        c = "0" if (t == 0 and half == 0) else f"v[{Or}:{Or+15}]"
        A(f"v_mfma_f32_32x32x16_bf16 v[{Or}:{Or+15}], v[{b}:{b+3}], v[{p_}:{p_+3}], {c}")
    def maxreduce(dst, s_, first):
        i0 = 0
        if first:
            A(f"v_max3_f32 v{dst}, v{s_}, v{s_+1}, v{s_+2}")
            A(f"v_max_f32 v{dst}, v{dst}, v{s_+3}")
            i0 = 4
        for i in range(i0, 16, 2):
            A(f"v_max3_f32 v{dst}, v{dst}, v{s_+i}, v{s_+i+1}")
    def setneg(dst):
        A(f"v_mov_b32 v{T+7}, v{dst}")
        A(f"v_permlane32_swap_b32 v{dst}, v{T+7}")
        A(f"v_max_f32 v{dst}, v{dst}, v{T+7}")
        for i in range(16): A(f"v_sub_f32 v{NEG+i}, 0, v{dst}")
    NEGC = f"v[{NEG}:{NEG+15}]"
    A.wait("c0")
    A("s_barrier")
    rdK(0)
    A.wait("k0")
    qk1(0, "0"); qk2(0)
    maxreduce(T + 6, Sr, True)
    setneg(T + 6)
    A.label("K2_MAIN")
    rdK(0); rdK(1)
    A.wait("k0")
    qk1(0, NEGC); qk2(0)
    for t in range(64):
        s_ = Sr + 16 * (t & 1); p_ = Pr + 8 * (t & 1)
        if t + 2 < 64:
            if (t + 2) % 16 == 0:
                A.wait(f"c{(t+2)//16}")
                A("s_barrier")
            rdK(t + 2)
        rdV(t)
        def exps(a, b):
            for i in range(a, b): A(f"v_exp_f32 v{s_+i}, v{s_+i}")
        def cvts(a, b):
            for i in range(a, b): A(f"v_cvt_pk_bf16_f32 v{p_+i}, v{s_+2*i}, v{s_+2*i+1}")
        if t + 1 < 64:
            A.wait(f"k{t+1}")
            qk1(t + 1, NEGC)
        exps(0, 4)
        if t + 1 < 64: qk2(t + 1)
        exps(4, 8); cvts(0, 2)
        if t > 0:
            A.wait(f"v{t-1}")
            pv(t - 1, 0)
        exps(8, 12); cvts(2, 4)
        if t > 0: pv(t - 1, 1)
        exps(12, 16); cvts(4, 8)
    A.wait("v63")
    pv(63, 0); pv(63, 1)
    A(f"""
    s_mov_b32 s41, {hex(G.f32(2.0**60))}
    v_cmp_gt_f32 vcc, s41, v{Or+10}
    s_cmp_eq_u64 vcc, -1
    s_cbranch_scc1 K2_OUT
    s_cmp_lg_u32 s40, 0
    s_cbranch_scc1 K2_OUT
    """)
    A.save("out")
    A(f"""
    s_mov_b32 s40, 1
    s_mov_b32 s42, 0
    v_mov_b32 v{T+6}, 0xff800000
    v_mov_b32 v{T+8}, v{VK}
    """)
    A.label("K2_FB")
    for t in range(16):
        A(f"ds_read_b128 v[{KMr}:{KMr+3}], v{T+8} offset:{t*1024}")
        A(f"ds_read_b128 v[{KEr}:{KEr+3}], v{T+8} offset:{16384+(t>>3)*1024}")
        A.waitall(vm=False)
        q = QEr + 4 * (t & 7)
        A(f"v_mfma_f32_32x32x16_bf16 v[{Sr}:{Sr+15}], v[{KMr}:{KMr+3}], v[{QMr}:{QMr+3}], 0")
        A(f"v_mfma_f32_32x32x16_bf16 v[{Sr}:{Sr+15}], v[{KEr}:{KEr+3}], v[{q}:{q+3}], v[{Sr}:{Sr+15}]")
        maxreduce(T + 6, Sr, False)
    A(f"""
    v_add_u32 v{T+8}, {G.KVC}, v{T+8}
    s_add_u32 s42, s42, 1
    s_cmp_lt_u32 s42, 4
    s_cbranch_scc1 K2_FB
    """)
    setneg(T + 6)
    A("s_nop 7")
    A("s_branch K2_MAIN")
    A.label("K2_OUT")
    A.restore("out")
    A(f"""
    v_rcp_f32 v{T+6}, v{Or+10}
    v_bfe_u32 v{T}, v0, 4, 1
    v_mul_u32_u24 v{T}, 18432, v{T}
    v_and_b32 v{T+1}, 15, v0
    v_lshlrev_b32 v{T+1}, 4, v{T+1}
    v_add_u32 v{T}, v{T}, v{T+1}
    v_bfe_u32 v{T+1}, v0, 5, 1
    v_lshlrev_b32 v{T+1}, 8, v{T+1}
    v_add_u32 v{T+1}, v{T}, v{T+1}
    s_mul_i32 s30, s25, 36864
    s_add_u32 s30, s30, {G.OF}
    s_lshl_b32 s31, s24, 9
    s_add_u32 s31, s31, s30
    s_lshr_b32 s32, s24, 2
    s_lshl_b32 s32, s32, 8
    s_and_b32 s33, s24, 3
    s_lshl_b32 s33, s33, 2
    s_add_u32 s32, s32, s33
    s_add_u32 s32, s32, s30
    s_add_u32 s32, s32, 16384
    """)
    for i in range(10): A(f"v_mul_f32 v{Or+i}, v{Or+i}, v{T+6}")
    for i in range(5): A(f"v_cvt_pk_bf16_f32 v{Pr+i}, v{Or+2*i}, v{Or+2*i+1}")
    A(f"buffer_store_dwordx4 v[{Pr}:{Pr+3}], v{T+1}, s[4:7], s31 offen")
    A("s_mov_b32 exec_hi, 0")
    A(f"buffer_store_dword v{Pr+4}, v{T}, s[4:7], s32 offen")
    A.label("K2_END")
    A("s_endpgm")
    G.end(A, name, 184)
    return (name, 256, 512, 152 * 1024)
```

```python
from asmlib import *
import gen as G
from t1 import *

def gen_k4():
    name = "k4_kernel"
    A = G.begin(name)
    def xreg(j, ks):
        if ks == 36: return 16 + 4 * j
        idx = j * 36 + ks
        if idx < 64: return 256 + 4 * idx
        return 24 + 4 * (idx - 64)
    accset = {0: 0, 1: 1, 2: 2, 3: 3, 4: 0, 5: 1, 6: 2, 7: 3, 8: 0}
    slot = {0: 0, 1: 1, 2: 2, 3: 3, 4: 0, 5: 1, 6: 2, 7: 3, 8: 0}
    accreg = lambda t, j: 88 + 32 * accset[t] + 16 * j
    t1 = T1(2, xreg, accreg, 56, 8, lambda t: slot[t], 2)
    A("""
    s_load_dwordx2 s[82:83], s[0:1], 72
    s_cmp_ge_u32 s2, 256
    s_cbranch_scc1 K4_END
    s_and_b32 s24, s2, 7
    s_lshl_b32 s24, s24, 2
    s_bfe_u32 s25, s2, 0x20003
    s_add_u32 s24, s24, s25            ; cb (0..31)
    s_lshr_b32 s25, s2, 5              ; rb8
    """)
    G.wave_id(A, 3)
    A(f"""
    v_and_b32 v1, 63, v0
    v_lshlrev_b32 v1, 4, v1
    v_mov_b32 v2, v1
    v_add_u32 v3, 0x10000, v1
    v_add_u32 v4, 0x20000, v1
    s_lshl_b32 s26, s25, 3
    s_lshl_b32 s27, s3, 1
    s_add_u32 s26, s26, s27
    s_lshl_b32 s21, s3, 10
    s_mul_i32 s22, s24, {9*G.T1S}
    s_add_u32 s22, s22, {G.W13}
    s_add_u32 s20, s22, s21
    s_mul_i32 s23, s26, 36864
    s_add_u32 s23, s23, {G.XF}
    s_lshl_b32 s29, s26, 11
    s_add_u32 s29, s29, {G.ST}
    v_bfe_u32 v5, v0, 4, 1
    v_mul_u32_u24 v5, {144*1024}, v5
    v_and_b32 v10, 15, v0
    v_lshlrev_b32 v10, 4, v10
    v_add_u32 v5, v5, v10
    v_bfe_u32 v10, v0, 5, 1
    v_lshlrev_b32 v10, 8, v10
    v_add_u32 v5, v5, v10
    s_mul_i32 s31, s26, {2*144*1024}
    s_mul_i32 s32, s24, {9*512}
    s_add_u32 s31, s31, s32
    s_add_u32 s31, s31, {G.HF}
    """)
    A.waitall()
    G.srd(A, 4, 82, G.WS_USED)
    stats_load(A, 2, 29, 216, 10)
    def dma_tile_chunk(B, t, c, tag):
        if c < 9:
            dma(B, 20, t * G.T1S + c * 4096, 21, slot[t] * G.T1S + c * 4096, 1, tag)
        else:
            dma(B, 22, t * G.T1S + 36 * 1024, None, slot[t] * G.T1S + 36 * 1024, 1, tag)
    def issue(B, c):
        for t in range(3): dma_tile_chunk(B, t, c, f"c{c}")
        if c < 9:
            for j in range(2):
                B(f"s_add_u32 s30, s23, {j*36864 + c*4096}")
                for q in range(4):
                    B(f"buffer_load_dwordx4 {r(xreg(j, 4*c+q), 4)}, v1, s[4:7], s30 offen offset:{q*1024}", tag=f"c{c}")
    AHEAD = 5
    for c in range(AHEAD): issue(A, c)
    A.wait("st")
    A("v_cmp_gt_u32 vcc, 512, v1")
    for j in range(2):
        stats_compute(A, 216 + 16 * j, 12, 8 + j, 10)
        build_xext(A, 12, 16 + 4 * j, 13)
        A(f"v_rsq_f32 v{6+j}, v{8+j}")
        A(f"v_mul_f32 v{6+j}, {hex(G.f32(-LOG2E))}, v{6+j}")
    def epilogue(t):
        E = Asm()
        for j in range(2):
            acc = accreg(t, j)
            tm = 216 + 20 * j
            for i in range(8): E(f"v_mul_f32 v{tm+i}, v{acc+i}, v{6+j}")
            for i in range(8): E(f"v_exp_f32 v{tm+i}, v{tm+i}")
            for i in range(8): E(f"v_mul_f32 v{tm+8+i}, v{acc+i}, v{acc+8+i}")
            for i in range(8): E(f"v_fma_f32 v{tm+i}, v{tm+i}, v{8+j}, v{8+j}")
            for i in range(8): E(f"v_rcp_f32 v{tm+i}, v{tm+i}")
            for i in range(8): E(f"v_mul_f32 v{tm+8+i}, v{tm+8+i}, v{tm+i}")
            for i in range(4): E(f"v_cvt_pk_bf16_f32 v{tm+16+i}, v{tm+8+2*i}, v{tm+9+2*i}")
            E(f"s_add_u32 s33, s31, {j*2*144*1024 + t*512}")
            E(f"buffer_store_dwordx4 v[{tm+16}:{tm+19}], v5, s[4:7], s33 offen")
        return E.ins
    items = [(t, ks) for ks in range(37) for t in range(3)] + [(t, ks) for t in range(3, 9) for ks in range(37)]
    DIST = 6
    M = Asm()
    marks = {}
    nextc = [AHEAD]
    def pre_read(i):
        t, ks = items[i]
        if t == 0 and ks % 4 == 0:
            M.wait(f"c{ks//4}"); M("s_barrier")
        if t >= 3 and ks == 0:
            M.wait(f"t{t}"); M("s_barrier")
            if t in (5, 6):
                marks[("dma", t + 2)] = len(M.ins)
        t1.read(M, i, t, ks)
    for i in range(DIST): pre_read(i)
    for i, (t, ks) in enumerate(items):
        if i + DIST < len(items): pre_read(i + DIST)
        if ks == 0 and t >= 3: marks[("tile", t)] = len(M.ins)
        M.wait(f"wf{i}")
        t1.mfmas(M, i, t, ks)
        if t == 2 and ks % 4 == 3:
            if nextc[0] < 10:
                issue(M, nextc[0]); nextc[0] += 1
            elif nextc[0] < 12:
                for c in range(5 * (nextc[0] - 10), 5 * (nextc[0] - 9)): dma_tile_chunk(M, 3, c, "t3")
                nextc[0] += 1
        if t == 3 and ks == 2:
            M("s_barrier")
            marks[("dma", 4)] = len(M.ins)
    def dmas(t):
        B = Asm()
        for c in range(10): dma_tile_chunk(B, t, c, f"t{t}")
        return B.ins
    segs = sorted(set(marks.values()))
    fills = {}
    def addfill(pos, lst): fills.setdefault(pos, []).extend(lst)
    addfill(marks[("tile", 3)], epilogue(0))
    addfill(marks[("dma", 4)], dmas(4) + epilogue(1) + dmas(5))
    addfill(marks[("tile", 4)], dmas(6) + epilogue(2) + epilogue(3))
    addfill(marks[("dma", 7)], dmas(7))
    addfill(marks[("tile", 5)], epilogue(4))
    addfill(marks[("dma", 8)], dmas(8))
    addfill(marks[("tile", 6)], epilogue(5))
    addfill(marks[("tile", 7)], epilogue(6))
    addfill(marks[("tile", 8)], epilogue(7))
    out = []
    pending = []
    skip = 0
    for idx, ins in enumerate(M.ins):
        if idx in fills:
            pending += fills[idx]
            if any(idx == marks.get(("tile", t)) for t in range(3, 9)): skip = 3
        out.append(ins)
        if ins.text.startswith("v_mfma"):
            if skip > 0:
                skip -= 1; continue
            b = 20
            while pending and b > 0:
                c = cost(pending[0])
                if "lds" in pending[0].text.split(): c = 12
                if c > b and b < 20: break
                out.append(pending.pop(0)); b -= c
    A.ins += out
    A.ins += pending
    A.ins += epilogue(8)
    A.label("K4_END")
    A("s_endpgm")
    check_order(A.ins, accreg)
    waited = set()
    for i in A.ins:
        if i.kind == "wait": waited.update(i.wait)
        elif i.kind == "" and i.tag is not None:
            assert i.tag not in waited, f"tag {i.tag} issued after its wait"
    G.end(A, name, 512, 256)
    return (name, 256, 256, 4 * G.T1S)

def check_order(ins, accreg):
    pend = {}
    for k, i in enumerate(ins):
        t = i.text
        if t.startswith("v_mfma"):
            an = analyze(t)
            d = an["D"][0][1]
            if t.rstrip().endswith(", 0"):
                assert not pend.get(d), f"acc v{d} restarted before epilogue read it"
            pend[d] = set(range(d, d + 16))
        elif t.startswith("v_"):
            an = analyze(t)
            for f, n in an["rd"]:
                if f == "v":
                    for d in pend: pend[d].discard(n)
```

```python
from asmlib import *
import gen as G
LOG2E = 1.4426950408889634

def stats_load(A, nrb, s_row_base, vdst, vtmp, sc=''):
    A(f"v_and_b32 v{vtmp}, 31, v0")
    A(f"v_lshlrev_b32 v{vtmp}, 6, v{vtmp}")
    for j in range(nrb):
        for q in range(4):
            A(f"buffer_load_dwordx4 v[{vdst+16*j+4*q}:{vdst+16*j+4*q+3}], v{vtmp}, s[4:7], s{s_row_base} offen offset:{j*2048+q*16}{sc}", tag="st")

def stats_compute(A, b, vmean, vve, t):
    A(f"""
    v_add_f32 v{t}, v{b}, v{b+4}
    v_add_f32 v{t+1}, v{b+2}, v{b+6}
    v_add_f32 v{t}, v{t}, v{b+8}
    v_add_f32 v{t+1}, v{t+1}, v{b+10}
    v_add_f32 v{t}, v{t}, v{b+12}
    v_add_f32 v{t+1}, v{t+1}, v{b+14}
    v_mul_f32 v{t}, {hex(G.f32(64/576))}, v{t}
    v_mul_f32 v{t+1}, {hex(G.f32(80/576))}, v{t+1}
    v_add_f32 v{vmean}, v{t}, v{t+1}
    v_mov_b32 v{t}, 0
    v_mov_b32 v{t+1}, 0
    """)
    for p in range(8):
        A(f"v_sub_f32 v{b+2*p}, v{b+2*p}, v{vmean}")
        A(f"v_fmac_f32 v{t+(p&1)}, v{b+2*p}, v{b+2*p}")
    A(f"v_mul_f32 v{t}, {hex(G.f32(64.0))}, v{t}")
    A(f"v_mul_f32 v{t+1}, {hex(G.f32(80.0))}, v{t+1}")
    A(f"v_add_f32 v{t}, v{t}, v{t+1}")
    for p in range(8):
        A(f"v_add_f32 v{t}, v{t}, v{b+2*p+1}")
    A(f"v_mov_b32 v{t+1}, {hex(G.f32(1e-5))}")
    A(f"v_mov_b32 v{vve}, {hex(G.f32(1/576))}")
    A(f"v_fma_f32 v{vve}, v{t}, v{vve}, v{t+1}")

def build_xext(A, vmean, dst, t):
    A(f"""
    v_cvt_pk_bf16_f32 v{t}, v{vmean}, v{vmean}
    v_lshlrev_b32 v{t}, 16, v{t}
    v_sub_f32 v{t+2}, v{vmean}, v{t}
    v_cvt_pk_bf16_f32 v{t+1}, v{t+2}, v{t+2}
    v_lshlrev_b32 v{t+1}, 16, v{t+1}
    v_sub_f32 v{t+2}, v{t+2}, v{t+1}
    v_cvt_pk_bf16_f32 v{dst}, v{t}, v{t}
    v_cvt_pk_bf16_f32 v{dst+1}, v{t+1}, v{t}
    v_cvt_pk_bf16_f32 v{dst+2}, v{t+1}, v{t+2}
    v_mov_b32 v{dst+3}, 0
    v_cndmask_b32 v{dst}, 0, v{dst}, vcc
    v_cndmask_b32 v{dst+1}, 0, v{dst+1}, vcc
    v_cndmask_b32 v{dst+2}, 0, v{dst+2}, vcc
    """)

def dma(A, s_src, src_off, s_ldsw, lds_off, vlane, tag, stmp=30):
    A(f"s_add_u32 s{stmp}, s{s_src}, {src_off}")
    if s_ldsw is None:
        A(f"s_mov_b32 m0, {lds_off}")
    else:
        A(f"s_add_u32 m0, s{s_ldsw}, {lds_off}")
    A(f"buffer_load_dwordx4 v{vlane}, s[4:7], s{stmp} offen lds", tag=tag)

class T1:
    def __init__(self, nrb, xreg, accreg, wring, R, slot_of, vldsaddr, swapped=False):
        self.nrb = nrb; self.xreg = xreg; self.accreg = accreg; self.wring = wring; self.R = R
        self.slot_of = slot_of; self.vl = vldsaddr; self.swapped = swapped
    def read(self, A, i, tile, ks):
        off = self.slot_of(tile) * G.T1S + ks * 1024
        w = self.wring + 4 * (i % self.R)
        win = off >> 16
        A(f"ds_read_b128 v[{w}:{w+3}], v{self.vl + win} offset:{off & 0xffff}", tag=f"wf{i}")
    def mfmas(self, A, i, tile, ks):
        w = self.wring + 4 * (i % self.R)
        for j in range(self.nrb):
            acc = self.accreg(tile, j)
            x = self.xreg(j, ks)
            c = "0" if ks == 0 else r(acc, 16)
            if self.swapped:
                A(f"v_mfma_f32_32x32x16_bf16 {r(acc,16)}, {r(x,4)}, v[{w}:{w+3}], {c}")
            else:
                A(f"v_mfma_f32_32x32x16_bf16 {r(acc,16)}, v[{w}:{w+3}], {r(x,4)}, {c}")
```

```python
from asmlib import *
import gen as G

def t2_path(A, NT, KS, pfx, DEPTH):
    nsteps = (KS + 3) // 4
    partial_last = (KS % 4) != 0
    ACC = 32
    RES = 16
    VA, VW = 2, 6
    NL = 4 + NT
    buf = lambda st, i: 256 + (st % DEPTH) * 36 + 4 * i
    for t in range(NT):
        so, im = (28, t * 1024) if t < 4 else (29, 0)
        A(f"buffer_load_dwordx2 v[{RES+2*t}:{RES+2*t+1}], v11, s[4:7], s{so} offen offset:{im}", tag="res")
    def loads(st):
        for i in range(4):
            A(f"buffer_load_dwordx4 {r(buf(st, i), 4)}, v{VA+i}, s[4:7], s20 offen", tag=f"l{st}")
        for t in range(NT):
            A(f"buffer_load_dwordx4 {r(buf(st, 4+t), 4)}, v{VW+t}, s[4:7], s21 offen", tag=f"l{st}")
        A("s_add_u32 s20, s20, 4096")
        A("s_add_u32 s21, s21, 4096")
    for st in range(min(DEPTH, nsteps)): loads(st)
    for st in range(nsteps):
        A.wait(f"l{st}")
        if partial_last and st == nsteps - 1:
            A(f"s_cmp_ge_u32 s3, {KS % 4}")
            A(f"s_cbranch_scc1 {pfx}_SKIP")
        M = Asm()
        for mt in range(4):
            for t in range(NT):
                acc = ACC + 4 * (mt * NT + t)
                c = "0" if st == 0 else f"v[{acc}:{acc+3}]"
                M(f"v_mfma_f32_16x16x32_bf16 v[{acc}:{acc+3}], {r(buf(st, 4+t), 4)}, {r(buf(st, mt), 4)}, {c}")
        A.extend(M)
        if st + DEPTH < nsteps: loads(st + DEPTH)
    if partial_last:
        A.label(f"{pfx}_SKIP")
    A("s_nop 7")
    for mt in range(4):
        for t in range(NT):
            acc = ACC + 4 * (mt * NT + t)
            A(f"ds_write_b128 v12, v[{acc}:{acc+3}] offset:{(mt*5+t)*1024}")
    A.waitall(vm=False)
    A("s_barrier")
    for src in range(4):
        for t in range(NT):
            d = ACC + 4 * (src * NT + t)
            A(f"ds_read_b128 v[{d}:{d+3}], v13 offset:{(src*20+t)*1024 if src < 3 else (t*1024)}" if src < 3 else
              f"ds_read_b128 v[{d}:{d+3}], v14 offset:{t*1024}", tag=f"rd{src}")
    A.wait("res")
    X = ACC + 16 * NT
    for t in range(NT):
        for j in range(2):
            A(f"v_lshlrev_b32 v{X+4*t+2*j}, 16, v{RES+2*t+j}")
            A(f"v_and_b32 v{X+4*t+2*j+1}, 0xffff0000, v{RES+2*t+j}")
    for src in range(4):
        A.wait(f"rd{src}")
        for i in range(4 * NT):
            A(f"v_add_f32 v{X+i}, v{X+i}, v{ACC+4*src*NT+i}")
    for i in range(2 * NT):
        A(f"v_cvt_pk_bf16_f32 v{RES+i}, v{X+2*i}, v{X+2*i+1}")
    A("s_cmp_lg_u32 s40, 0")
    A(f"s_cbranch_scc1 {pfx}_FINAL")
    A.save(pfx + "fin")
    for t in range(NT):
        so, im = (28, t * 1024) if t < 4 else (29, 0)
        A(f"buffer_store_dwordx2 v[{RES+2*t}:{RES+2*t+1}], v11, s[4:7], s{so} offen offset:{im}")
    for i in range(2 * NT):
        A(f"v_lshlrev_b32 v{X+2*i}, 16, v{RES+i}")
        A(f"v_and_b32 v{X+2*i+1}, 0xffff0000, v{RES+i}")
    def xreduce(dst):
        A(f"v_mov_b32 v28, v{dst}")
        A(f"v_permlane16_swap_b32 v{dst}, v28")
        A(f"v_add_f32 v{dst}, v{dst}, v28")
        A(f"v_mov_b32 v28, v{dst}")
        A(f"v_permlane32_swap_b32 v{dst}, v28")
        A(f"v_add_f32 v{dst}, v{dst}, v28")
    A(f"v_add_f32 v26, v{X}, v{X+1}")
    for i in range(2, 4 * NT): A(f"v_add_f32 v26, v26, v{X+i}")
    xreduce(26)
    A(f"v_mul_f32 v26, {hex(G.f32(1.0/(16*NT)))}, v26")
    A("v_mov_b32 v27, 0")
    for i in range(4 * NT):
        A(f"v_sub_f32 v{X+i}, v{X+i}, v26")
        A(f"v_fmac_f32 v27, v{X+i}, v{X+i}")
    xreduce(27)
    A("buffer_store_dwordx2 v[26:27], v15, s[4:7], s30 offen")
    A("s_endpgm")
    A.label(f"{pfx}_FINAL")
    A.restore(pfx + "fin")
    for t in range(NT):
        A(f"buffer_store_dwordx2 v[{RES+2*t}:{RES+2*t+1}], v29, s[8:11], s31 offen offset:{t*32}")
    A("s_endpgm")

def gen_t2(names, KS, ACT, WP, pfx, DEPTH=6):
    A = Asm()
    for i, (n, fl) in enumerate(names):
        A.raw(f".globl {n}\n.p2align 8\n.type {n},@function")
        A.label(n)
        A(f"s_mov_b32 s40, {fl}")
        if i < len(names) - 1: A(f"s_branch {pfx}_BODY")
    A.label(f"{pfx}_BODY")
    A(f"""
    s_load_dwordx2 s[82:83], s[0:1], 72
    s_load_dwordx2 s[78:79], s[0:1], 56
    s_cmp_ge_u32 s2, 256
    s_cbranch_scc1 {pfx}_END
    s_and_b32 s24, s2, 7
    s_lshr_b32 s25, s2, 3
    s_lshr_b32 s26, s24, 1
    s_lshl_b32 s26, s26, 3
    s_and_b32 s27, s25, 7
    s_add_u32 s26, s26, s27            ; rg
    s_and_b32 s27, s24, 1
    s_lshl_b32 s27, s27, 2
    s_lshr_b32 s28, s25, 3
    s_add_u32 s27, s27, s28            ; cg
    s_lshr_b32 s32, s27, 1
    s_mul_i32 s32, s32, 9
    s_and_b32 s33, s27, 1
    s_lshl_b32 s34, s33, 2
    s_add_u32 s32, s32, s34            ; nt0
    """)
    G.wave_id(A, 3)
    A(f"""
    v_and_b32 v1, 63, v0
    v_lshlrev_b32 v2, 4, v1
    v_add_u32 v3, {KS*1024}, v2
    v_add_u32 v4, {2*KS*1024}, v2
    v_add_u32 v5, {3*KS*1024}, v2
    v_mov_b32 v6, v2
    v_mov_b32 v7, v3
    v_mov_b32 v8, v4
    v_mov_b32 v9, v5
    v_add_u32 v10, {4*KS*1024}, v2
    s_lshl_b32 s34, s3, 10
    s_mul_i32 s20, s26, {4*KS*1024}
    s_add_u32 s20, s20, {ACT}
    s_add_u32 s20, s20, s34
    s_mul_i32 s21, s32, {KS*1024}
    s_add_u32 s21, s21, {WP}
    s_add_u32 s21, s21, s34
    v_and_b32 v11, 15, v1
    v_lshlrev_b32 v11, 4, v11
    v_lshrrev_b32 v12, 5, v1
    v_lshlrev_b32 v12, 9, v12
    v_add_u32 v11, v11, v12
    v_bfe_u32 v12, v1, 4, 1
    v_lshlrev_b32 v12, 3, v12
    v_add_u32 v11, v11, v12
    s_lshl_b32 s28, s26, 1
    s_lshr_b32 s29, s3, 1
    s_add_u32 s28, s28, s29            ; rb32
    s_mul_i32 s28, s28, 36
    s_add_u32 s28, s28, s32
    s_lshl_b32 s28, s28, 10
    s_and_b32 s29, s3, 1
    s_lshl_b32 s29, s29, 8
    s_add_u32 s28, s28, s29
    s_add_u32 s28, s28, {G.XF}
    s_add_u32 s29, s28, 4096
    s_mul_i32 s34, s3, 20480
    v_add_u32 v12, s34, v2
    s_mul_i32 s34, s3, 5120
    v_add_u32 v13, s34, v2
    v_add_u32 v14, 61440, v13
    v_and_b32 v15, 15, v1
    v_mul_u32_u24 v29, 1152, v15
    v_lshlrev_b32 v15, 6, v15
    s_lshl_b32 s34, s26, 2
    s_add_u32 s34, s34, s3             ; rb16
    s_lshl_b32 s30, s34, 10
    s_lshl_b32 s35, s27, 3
    s_add_u32 s30, s30, s35
    s_add_u32 s30, s30, {G.ST}
    v_lshrrev_b32 v28, 4, v1
    v_lshlrev_b32 v28, 3, v28
    v_add_u32 v29, v29, v28
    s_mul_i32 s31, s34, 18432
    s_lshl_b32 s35, s32, 5
    s_add_u32 s31, s31, s35
    """)
    A.waitall()
    G.srd(A, 4, 82, G.WS_USED)
    G.srd(A, 8, 78, G.S * G.D * 2)
    A("s_cmp_lg_u32 s33, 0")
    A(f"s_cbranch_scc1 {pfx}_N5")
    A.save("n5")
    t2_path(A, 4, KS, pfx + "A", DEPTH)
    A.label(f"{pfx}_N5")
    A.restore("n5")
    t2_path(A, 5, KS, pfx + "B", DEPTH)
    A.label(f"{pfx}_END")
    A("s_endpgm")
    text = finalize(A)
    first = True
    for n, fl in names:
        G.kernels.append((n, text if first else "", 256 + 36 * DEPTH, 256, 96))
        first = False
```

```python
import sys, math, struct
from asmlib import *

NAME = "interleave_layers__softmax_full_mha__glu_gated_swiglu__prompt"
S, D, H, DH, F = 2048, 576, 32, 18, 4608

def al(x): return (x + 4095) // 4096 * 4096
off = 0
def region(n):
    global off
    o = off; off = al(off + n); return o
XF  = region(64 * 36 * 1024)
ST  = region(2048 * 64)
QM  = region(32 * 64 * 1024)
QE  = region(32 * 64 * 128)
KVH = 151552
KVC = 37888
KV  = region(32 * KVH + 8192)
OF  = region(128 * 18 * 1024)
HF  = region(128 * 144 * 1024)
T1S = 37 * 1024
WQ  = region(54 * T1S)
W13 = region(288 * T1S)
WO  = region(36 * 18 * 1024)
W2  = region(36 * 144 * 1024)
WS_USED = off

def f32(x): return struct.unpack("<I", struct.pack("<f", x))[0]

kernels = []
launches = []

def begin(name):
    A = Asm()
    A.raw(f".globl {name}\n.p2align 8\n.type {name},@function")
    A.label(name)
    return A

def end(A, name, nv, acc=None, ns=96):
    acc = acc if acc is not None else (nv + 3) // 4 * 4
    kernels.append((name, finalize(A), nv, acc, ns))

def srd(A, d, lo, nbytes):
    A(f"""
    s_mov_b32 s{d}, s{lo}
    s_and_b32 s{d+1}, s{lo+1}, 0xffff
    s_mov_b32 s{d+2}, {nbytes}
    s_mov_b32 s{d+3}, 0x00020000
    """)

def wave_id(A, sreg, vtmp=1):
    A(f"v_lshrrev_b32 v{vtmp}, 6, v0")
    A(f"v_readfirstlane_b32 s{sreg}, v{vtmp}")

def k0_units(A, nunits, rowstride, fA, fB, fC, D1, D2, unit_src, unit_dst, colsum, ext_dst=None, row_mode=None):
    A("""
    v_and_b32 v1, 63, v0
    v_lshrrev_b32 v2, 5, v1          ; g>>1
    v_lshlrev_b32 v2, 3, v2          ; 8*(g>>1)
    v_bfe_u32 v3, v1, 2, 2           ; t>>2
    v_add_u32 v2, v2, v3             ; kk (r=0)
    """)
    if row_mode == "woext":
        A("""
        v_lshrrev_b32 v3, 1, v2
        v_mul_u32_u24 v3, 18, v3
        v_and_b32 v2, 1, v2
        v_add_u32 v2, v2, v3
        """)
        r1add = 36 * rowstride
    else:
        r1add = 4 * rowstride
    A(f"s_mov_b32 s22, {rowstride}")
    A("v_mul_lo_u32 v2, v2, s22")
    A(f"""
    v_bfe_u32 v3, v1, 4, 1
    v_mul_u32_u24 v3, {2*fA}, v3
    v_add_u32 v2, v2, v3
    v_and_b32 v3, 1, v1
    v_mul_u32_u24 v3, {2*fB}, v3
    v_add_u32 v2, v2, v3
    v_bfe_u32 v3, v1, 1, 1
    v_mul_u32_u24 v3, {2*fC}, v3
    v_add_u32 v2, v2, v3
    v_add_u32 v3, {r1add}, v2
    """)
    A(f"""
    v_bfe_u32 v4, v1, 4, 1
    s_mov_b32 s22, {D1}
    v_mul_lo_u32 v4, v4, s22
    v_and_b32 v5, 15, v1
    v_lshlrev_b32 v5, 4, v5
    v_add_u32 v4, v4, v5
    v_lshrrev_b32 v5, 5, v1
    v_mul_u32_u24 v5, {D2}, v5
    v_add_u32 v4, v4, v5
    """)
    A("""
    s_mul_i32 s22, s3, 9216
    v_lshlrev_b32 v5, 3, v1
    v_add_u32 v5, s22, v5
    v_mov_b32 v6, 0
    s_mov_b32 s23, 0x3f803f80
    """)
    for u in range(nunits):
        A(f"s_add_u32 s22, s20, {unit_src(u)}")
        A(f"buffer_load_dwordx2 v[{16+4*u}:{17+4*u}], v2, s[8:11], s22 offen", tag=f"ld{u}")
        A(f"buffer_load_dwordx2 v[{18+4*u}:{19+4*u}], v3, s[8:11], s22 offen", tag=f"ld{u}")
    for u in range(nunits):
        A.wait(f"ld{u}")
        A(f"ds_write_b64 v5, v[{16+4*u}:{17+4*u}] offset:{u*1024}", tag=f"w{u}")
        A(f"ds_write_b64 v5, v[{18+4*u}:{19+4*u}] offset:{u*1024+512}", tag=f"w{u}")
    for u in range(nunits):
        A.wait(f"w{u}")
        A(f"ds_read_b64_tr_b16 v[{56+4*u}:{57+4*u}], v5 offset:{u*1024}", tag=f"r{u}")
        A(f"ds_read_b64_tr_b16 v[{58+4*u}:{59+4*u}], v5 offset:{u*1024+512}", tag=f"r{u}")
    for u in range(nunits):
        A.wait(f"r{u}")
        A(f"s_add_u32 s22, s21, {unit_dst(u)}")
        A(f"buffer_store_dwordx4 v[{56+4*u}:{59+4*u}], v4, s[4:7], s22 offen")
        if colsum:
            for j in range(4):
                A(f"v_dot2_f32_bf16 v6, v{56+4*u+j}, s23, v6")
    if colsum:
        A("""
        s_lshl_b32 s22, s3, 8
        v_lshlrev_b32 v7, 2, v1
        v_add_u32 v7, s22, v7
        s_nop 2
        ds_write_b32 v7, v6 offset:40960
        """)
        A.waitall(vm=False)
        A("s_barrier")
        A("s_cmp_lg_u32 s3, 0")
        A("s_cbranch_scc1 K0_END")
        A("""
        v_and_b32 v7, 31, v1
        v_lshlrev_b32 v7, 2, v7
        """)
        for j in range(8):
            A(f"ds_read_b32 v{8+j}, v7 offset:{40960 + j*128}")
        A.waitall(vm=False)
        A("""
        v_add_f32 v8, v8, v9
        v_add_f32 v10, v10, v11
        v_add_f32 v12, v12, v13
        v_add_f32 v14, v14, v15
        v_add_f32 v8, v8, v10
        v_add_f32 v12, v12, v14
        v_add_f32 v8, v8, v12
        v_sub_f32 v8, 0, v8               ; c = -colsum
        v_cvt_pk_bf16_f32 v9, v8, v8
        v_lshlrev_b32 v9, 16, v9          ; c1
        v_sub_f32 v8, v8, v9
        v_cvt_pk_bf16_f32 v10, v8, v8
        v_lshlrev_b32 v10, 16, v10        ; c2
        v_sub_f32 v11, v8, v10
        v_cvt_pk_bf16_f32 v12, v9, v10
        v_cvt_pk_bf16_f32 v13, v9, v11
        v_cvt_pk_bf16_f32 v14, v10, v9
        v_mov_b32 v15, 0
        v_cmp_gt_u32 vcc, 32, v1
        v_cndmask_b32 v12, 0, v12, vcc
        v_cndmask_b32 v13, 0, v13, vcc
        v_cndmask_b32 v14, 0, v14, vcc
        """)
        A(f"s_add_u32 s22, s21, {ext_dst}")
        A("buffer_store_dwordx4 v[12:15], v4, s[4:7], s22 offen")
    A("s_branch K0_END")

def gen_k0():
    name = "k0_kernel"
    A = begin(name)
    A("""
    s_load_dwordx16 s[64:79], s[0:1], 0
    s_load_dwordx4 s[80:83], s[0:1], 64
    """)
    wave_id(A, 3)
    A.waitall()
    srd(A, 4, 82, WS_USED)
    jobs = [("x", 64), ("qkm", 32), ("qke", 4), ("v", 18), ("w1", 144), ("w3", 144), ("w2", 144), ("wom", 18), ("woe", 2)]
    base = 0
    A("s_mov_b32 s24, s2")
    for jn, cnt in jobs:
        A(f"s_cmp_lt_u32 s24, {cnt}")
        A(f"s_cbranch_scc1 K0_{jn}")
        A(f"s_sub_u32 s24, s24, {cnt}")
        base += cnt
    A("s_branch K0_END")
    njobs = base
    A.label("K0_x")
    srd(A, 8, 64, S * D * 2)
    A("""
    v_and_b32 v1, 63, v0
    v_and_b32 v2, 31, v1
    v_mul_u32_u24 v2, 1152, v2
    v_lshrrev_b32 v3, 5, v1
    v_lshlrev_b32 v3, 4, v3
    v_add_u32 v2, v2, v3
    v_lshlrev_b32 v4, 4, v1
    s_mul_i32 s20, s24, 36864          ; rb*32*1152
    s_mul_i32 s22, s3, 288
    s_add_u32 s20, s20, s22
    s_mul_i32 s21, s24, 36864          ; rb*36*1024
    s_mul_i32 s22, s3, 9216
    s_add_u32 s21, s21, s22
    """)
    A(f"s_add_u32 s21, s21, {XF}")
    for u in range(9):
        A(f"buffer_load_dwordx4 v[{16+4*u}:{19+4*u}], v2, s[8:11], s20 offen offset:{u*32}", tag=f"x{u}")
    for u in range(9):
        A.wait(f"x{u}")
        A(f"s_add_u32 s22, s21, {u*1024}")
        A(f"buffer_store_dwordx4 v[{16+4*u}:{19+4*u}], v4, s[4:7], s22 offen")
        for j in range(4):
            A(f"v_lshlrev_b32 v{56+8*u+2*j}, 16, v{16+4*u+j}")
            A(f"v_and_b32 v{57+8*u+2*j}, 0xffff0000, v{16+4*u+j}")
    for p, (lo, hi, n) in enumerate([(56, 88, 64), (88, 128, 80)]):
        sm = 6 + 2 * p
        A(f"v_add_f32 v{sm}, v{lo}, v{lo+1}")
        for i in range(lo + 2, hi): A(f"v_add_f32 v{sm}, v{sm}, v{i}")
        A(f"v_mov_b32 v10, v{sm}")
        A(f"v_permlane32_swap_b32 v{sm}, v10")
        A(f"v_add_f32 v{sm}, v{sm}, v10")
        A(f"v_mul_f32 v{sm}, {hex(f32(1.0/n))}, v{sm}")
        A(f"v_mov_b32 v{sm+1}, 0")
        for i in range(lo, hi):
            A(f"v_sub_f32 v{i}, v{i}, v{sm}")
            A(f"v_fmac_f32 v{sm+1}, v{i}, v{i}")
        A(f"v_mov_b32 v10, v{sm+1}")
        A(f"v_permlane32_swap_b32 v{sm+1}, v10")
        A(f"v_add_f32 v{sm+1}, v{sm+1}, v10")
    A(f"""
    v_and_b32 v2, 31, v1
    v_lshlrev_b32 v2, 6, v2
    s_lshl_b32 s22, s24, 11
    s_lshl_b32 s23, s3, 4
    s_add_u32 s22, s22, s23
    s_add_u32 s22, s22, {ST}
    buffer_store_dwordx4 v[6:9], v2, s[4:7], s22 offen
    s_branch K0_END
    """)
    T1src = lambda rs: (lambda u: u * 16 * rs)
    T1dst = lambda u: u * 1024
    A.label("K0_qkm")
    srd(A, 8, 66, D * 3 * D * 2)
    A(f"""
    v_lshrrev_b32 v1, 6, v0
    v_mul_u32_u24 v1, {KVC}, v1
    v_and_b32 v2, 63, v0
    v_mul_u32_u24 v2, 304, v2
    v_add_u32 v1, v1, v2
    s_mul_i32 s22, s24, {KVH}
    s_add_u32 s22, s22, {KV + 18432 + 288}
    v_mov_b32 v8, 0x3f803f80
    v_mov_b32 v9, 0x3f803f80
    v_mov_b32 v10, 0x3f803f80
    v_mov_b32 v11, 0x3f803f80
    buffer_store_dwordx4 v[8:11], v1, s[4:7], s22 offen
    s_lshr_b32 s22, s24, 4
    s_mul_i32 s20, s22, 1152
    s_and_b32 s23, s24, 15
    s_mul_i32 s23, s23, 72
    s_add_u32 s20, s20, s23
    s_mul_i32 s23, s3, {9*16*3456}
    s_add_u32 s20, s20, s23
    s_mul_i32 s21, s24, {T1S}
    s_mul_i32 s23, s3, 9216
    s_add_u32 s21, s21, s23
    s_add_u32 s21, s21, {WQ}
    """)
    k0_units(A, 9, 3456, 20, 8, 4, 256, 512, T1src(3456), T1dst, True, 36 * 1024)
    A.label("K0_qke")
    srd(A, 8, 66, D * 3 * D * 2)
    A(f"""
    s_mul_i32 s20, s24, {8*72}
    s_add_u32 s20, s20, 32
    s_mul_i32 s23, s3, {9*16*3456}
    s_add_u32 s20, s20, s23
    s_mul_i32 s21, s24, {T1S}
    s_mul_i32 s23, s3, 9216
    s_add_u32 s21, s21, s23
    s_add_u32 s21, s21, {WQ + 32*T1S}
    """)
    k0_units(A, 9, 3456, 144, 36, 72, 256, 512, T1src(3456), T1dst, True, 36 * 1024)
    A.label("K0_v")
    srd(A, 8, 66, D * 3 * D * 2)
    A(f"""
    s_lshl_b32 s20, s24, 6
    s_add_u32 s20, s20, 2304
    s_mul_i32 s23, s3, {9*16*3456}
    s_add_u32 s20, s20, s23
    s_mul_i32 s21, s24, {T1S}
    s_mul_i32 s23, s3, 9216
    s_add_u32 s21, s21, s23
    s_add_u32 s21, s21, {WQ + 36*T1S}
    """)
    k0_units(A, 9, 3456, 16, 4, 8, 256, 512, T1src(3456), T1dst, True, 36 * 1024)
    for nm, ptr, add in (("w1", 72, 0), ("w3", 74, 256)):
        A.label(f"K0_{nm}")
        srd(A, 8, ptr, D * F * 2)
        A(f"""
        s_lshl_b32 s20, s24, 6
        s_mul_i32 s23, s3, {9*16*9216}
        s_add_u32 s20, s20, s23
        s_mul_i32 s21, s24, {2*T1S}
        s_mul_i32 s23, s3, 9216
        s_add_u32 s21, s21, s23
        s_add_u32 s21, s21, {W13 + add}
        """)
        k0_units(A, 9, 9216, 16, 8, 4, T1S, 512, T1src(9216), T1dst, True, 36 * 1024)
    A.label("K0_w2")
    srd(A, 8, 76, D * F * 2)
    A(f"""
    s_mul_i32 s22, s24, 3641
    s_lshr_b32 s22, s22, 16             ; seg = j/18
    s_mul_i32 s23, s22, 18
    s_sub_u32 s23, s24, s23             ; strip
    s_mul_i32 s22, s22, 36
    s_mul_i32 s25, s3, 9
    s_add_u32 s22, s22, s25             ; U0
    s_mul_i32 s20, s22, {16*1152}
    s_lshl_b32 s25, s23, 6
    s_add_u32 s20, s20, s25
    s_lshl_b32 s21, s22, 9              ; U0*512
    s_mul_i32 s25, s23, {2*144*1024}
    s_add_u32 s21, s21, s25
    s_add_u32 s21, s21, {W2}
    """)
    k0_units(A, 9, 1152, 16, 4, 8, 144 * 1024, 256, lambda u: u * 16 * 1152, lambda u: u * 512, False)
    A.label("K0_wom")
    srd(A, 8, 68, D * D * 2)
    A(f"""
    s_mul_i32 s20, s3, {8*18*1152}
    s_lshl_b32 s25, s24, 6
    s_add_u32 s20, s20, s25
    s_lshl_b32 s21, s3, 12
    s_mul_i32 s25, s24, {2*18*1024}
    s_add_u32 s21, s21, s25
    s_add_u32 s21, s21, {WO}
    """)
    k0_units(A, 8, 1152, 16, 4, 8, 18 * 1024, 256, lambda u: u * 18 * 1152, lambda u: u * 512, False)
    A.label("K0_woe")
    srd(A, 8, 68, D * D * 2)
    A(f"""
    s_mul_i32 s20, s3, {144*1152}
    s_add_u32 s20, s20, {16*1152}
    s_mul_i32 s25, s24, {9*64}
    s_add_u32 s20, s20, s25
    s_lshl_b32 s21, s3, 9
    s_add_u32 s21, s21, {WO + 32*512}
    s_mul_i32 s25, s24, {9*2*18*1024}
    s_add_u32 s21, s21, s25
    """)
    k0_units(A, 9, 1152, 16, 4, 8, 18 * 1024, 256, lambda u: u * 64, lambda u: u * 2 * 18 * 1024, False, row_mode="woext")
    A.label("K0_END")
    A("s_endpgm")
    end(A, name, 128)
    launches.append((name, njobs, 256, 41984))

def emit(path):
    hdr = open(f"cdna_kernels/{NAME}.s.ref").read().split("; Override launch")[0]
    out = hdr
    for n, g, b, lds in launches:
        out += f"; @launch kernel={n} grid=({g},1,1) block=({b},1,1) lds={lds}\n"
    out += '.amdgcn_target "amdgcn-amd-amdhsa--gfx950"\n.text\n'
    for n, text, nv, acc, ns in kernels:
        out += text
    out += '.section .rodata,"a"\n'
    for n, text, nv, acc, ns in kernels:
        if n is None: continue
        out += f""".p2align 6
.amdhsa_kernel {n}
  .amdhsa_next_free_vgpr {nv}
  .amdhsa_next_free_sgpr {ns}
  .amdhsa_accum_offset {acc}
  .amdhsa_group_segment_fixed_size 0
  .amdhsa_kernarg_size 80
  .amdhsa_user_sgpr_count 2
  .amdhsa_user_sgpr_kernarg_segment_ptr 1
  .amdhsa_system_sgpr_workgroup_id_x 1
.end_amdhsa_kernel
"""
    open(path, "w").write(out)

if __name__ == "__main__":
    import gen as G2
    G2.main()
def main():
    import k1, k2, k4, t2
    gen_k0()
    L1 = k1.gen_k1(); L2 = k2.gen_k2()
    t2.gen_t2([("k3_kernel", 0)], 18, OF, WO, "K3")
    L3 = ("k3_kernel", 256, 256, 81920)
    L4 = k4.gen_k4()
    t2.gen_t2([("k5a_kernel", 0), ("k5b_kernel", 1)], 144, HF, W2, "K5")
    L5a = ("k5a_kernel", 256, 256, 81920); L5b = ("k5b_kernel", 256, 256, 81920)
    launches.extend([L1, L2, L3, L4, L5a, L1, L2, L3, L4, L5b])
    emit(sys.argv[1] if len(sys.argv) > 1 else f"cdna_kernels/{NAME}.s")
```

```python
import re

class I:
    __slots__ = ("text", "kind", "tag", "wait", "meta")
    def __init__(self, text, kind="", tag=None, wait=None):
        self.text = text; self.kind = kind; self.tag = tag; self.wait = wait

def v(n, c=1):
    return f"v{n}" if c == 1 else f"v[{n}:{n+c-1}]"
def a(n, c=1):
    return f"a{n}" if c == 1 else f"a[{n}:{n+c-1}]"
def s(n, c=1):
    return f"s{n}" if c == 1 else f"s[{n}:{n+c-1}]"
def r(n, c=1):
    if n >= 256:
        return a(n - 256, c)
    assert n + c <= 256
    return v(n, c)

_reg_re = re.compile(r"^-?\|?([vas])(?:(\d+)|\[(\d+):(\d+)\])\|?$")
def parse_reg(tok):
    tok = tok.strip()
    m = re.match(r"^(?:neg|abs)\((.*)\)$", tok)
    if m: tok = m.group(1)
    if tok == "vcc": return [("s", 106), ("s", 107)]
    if tok == "exec": return [("s", 126), ("s", 127)]
    if tok == "m0": return [("s", 124)]
    m = _reg_re.match(tok)
    if not m: return []
    f = m.group(1)
    if m.group(2) is not None:
        lo = hi = int(m.group(2))
    else:
        lo, hi = int(m.group(3)), int(m.group(4))
    return [(f, i) for i in range(lo, hi + 1)]

TRANS = ("v_exp_f32", "v_log_f32", "v_rcp_f32", "v_rsq_f32", "v_sqrt_f32", "v_sin_f32", "v_cos_f32")
def analyze(text):
    t = text.split(";")[0].strip()
    parts = t.split(None, 1)
    op = parts[0]
    ops = []
    mods = []
    if len(parts) > 1:
        depth = 0; cur = ""
        for ch in parts[1] + ",":
            if ch in "[(": depth += 1
            elif ch in "])": depth -= 1
            if ch == "," and depth == 0:
                p = cur.split()
                if p:
                    ops.append(p[0]); mods += p[1:]
                cur = ""
            else:
                cur += ch
    R = [parse_reg(o) for o in ops]
    d = dict(op=op, wr=set(), rd=set(), cls="other", mods=mods, passes=0, srcC=set(), srcAB=set(), D=None)
    def rd(*idx):
        for i in idx:
            if i < len(R): d["rd"].update(R[i])
    def wr(*idx):
        for i in idx:
            if i < len(R): d["wr"].update(R[i])
    n = len(R)
    if op.startswith("v_mfma"):
        d["cls"] = "mfma"
        wr(0); rd(1, 2, 3)
        d["srcC"] = set(R[3]); d["srcAB"] = set(R[1]) | set(R[2]); d["D"] = tuple(R[0]); d["C"] = tuple(R[3])
        d["passes"] = 8 if "32x32x16" in op or "32x32x8" in op else (4 if "16x16x32" in op or "16x16x16" in op else 16)
    elif op.startswith("v_cmp"):
        d["cls"] = "valu"; wr(0); rd(*range(1, n))
    elif op.startswith("v_readfirstlane") or op.startswith("v_readlane"):
        d["cls"] = "valu"; d["rdlane"] = True; wr(0); rd(*range(1, n))
    elif op.startswith("v_permlane"):
        d["cls"] = "valu"; d["perml"] = True; wr(0, 1); rd(0, 1)
    elif op.startswith("v_"):
        d["cls"] = "valu"
        wr(0); rd(*range(1, n))
        if op.startswith(("v_fmac", "v_dot2c", "v_pk_fmac")) or "UNUSED_PRESERVE" in t: rd(0)
        if op.startswith(("v_add_co", "v_sub_co", "v_addc_co")): wr(1)
        if op.startswith("v_cndmask") and n == 3: d["rd"].update(parse_reg("vcc"))
        if op.startswith(TRANS): d["trans"] = True
        if any(m.startswith(("row_", "quad_perm", "wave_")) for m in mods): d["dpp"] = True
    elif op.startswith("ds_read") or op.startswith("ds_bpermute") or op.startswith("ds_swizzle"):
        d["cls"] = "ds"; wr(0); rd(*range(1, n))
    elif op.startswith("ds_"):
        d["cls"] = "ds"; rd(*range(n))
    elif op.startswith("buffer_load") or op.startswith("global_load"):
        d["cls"] = "vmem"
        if "lds" in mods or "_lds_" in op:
            rd(*range(n)); d["rd"].update(parse_reg("m0")); d["ldsdma"] = True
        else:
            wr(0); rd(*range(1, n))
    elif op.startswith("buffer_") or op.startswith("global_"):
        d["cls"] = "vmem"; rd(*range(n))
        if ("x4" in op or "x3" in op) and "store" in op:
            d["widestore"] = set(R[0]) if op.startswith("buffer") else set(R[1])
    elif op.startswith("s_"):
        d["cls"] = "salu"
        if op.startswith(("s_cmp", "s_cbranch", "s_branch", "s_waitcnt", "s_barrier", "s_nop", "s_endpgm", "s_setprio", "s_sleep", "s_bitcmp")):
            rd(*range(n))
        else:
            wr(0); rd(*range(1, n))
            if "saveexec" in op: d["wr"].update(parse_reg("exec"))
    return d

def states_of(text):
    t = text.strip()
    m = re.match(r"s_nop\s+(\d+)", t)
    if m: return int(m.group(1)) + 1
    return 1

def need_states(p, c):
    need = 0
    pw = p["wr"]
    vw = {x for x in pw if x[0] in "va"}
    sw = {x for x in pw if x[0] == "s"}
    if p["cls"] == "valu":
        if c["cls"] == "mfma" and vw & c["rd"]: need = max(need, 2)
        if c.get("perml") and vw & c["rd"]: need = max(need, 2)
        if c.get("dpp") and vw & c["rd"]: need = max(need, 2)
        if c.get("rdlane") and vw & c["rd"]: need = max(need, 1)
        if p.get("trans") and c["cls"] in ("valu", "mfma") and not c.get("trans") and vw & (c["rd"]): need = max(need, 1)
        if p.get("trans") and c["cls"] in ("vmem", "ds") and vw & c["rd"]: need = max(need, 1)
        if sw:
            if c["cls"] == "vmem" and sw & c["rd"]: need = max(need, 5)
            if c["cls"] == "valu" and sw & c["rd"]: need = max(need, 4 if c.get("rdlane") else 2)
            if c["cls"] == "salu" and sw & c["rd"]: need = max(need, 1)
    if p["cls"] == "salu":
        if ("s", 124) in sw and c.get("ldsdma"): need = max(need, 1)
    if p["cls"] == "mfma":
        ps = p["passes"]
        big = {2: 5, 4: 8, 8: 12, 16: 20}[ps]
        ovl = {2: 4, 4: 6, 8: 10, 16: 18}[ps]
        war = {2: 1, 4: 3, 8: 7, 16: 15}[ps]
        if c["cls"] == "mfma":
            if vw & c["srcAB"]: need = max(need, big)
            if vw & c["srcC"]:
                if not (p["D"] == c["C"] and p["passes"] == c["passes"]): need = max(need, ovl)
            elif vw & c["wr"]: need = max(need, ovl)
        elif c["cls"] in ("valu", "vmem", "ds"):
            if vw & (c["rd"] | c["wr"]): need = max(need, big)
            if c["cls"] == "valu" and p["srcC"] & c["wr"]: need = max(need, war)
            if c["cls"] in ("vmem", "ds") and p["srcC"] & c["wr"]: need = max(need, war)
    if p.get("widestore") and c["cls"] in ("valu", "mfma") and p["widestore"] & c["wr"]: need = max(need, 2)
    if p.get("widestore") and c["cls"] in ("ds", "vmem") and p["widestore"] & c["wr"]: need = max(need, 1)
    return need

class Asm:
    def __init__(self):
        self.ins = []
    def __call__(self, text, tag=None):
        for line in text.strip().split("\n"):
            line = line.strip()
            if not line or line.startswith(";"): continue
            self.ins.append(I(line, tag=tag))
        return self
    def label(self, name):
        self.ins.append(I(name + ":", kind="label"))
    def raw(self, text):
        self.ins.append(I(text, kind="raw"))
    def wait(self, *tags):
        self.ins.append(I("", kind="wait", wait=tags))
    def waitall(self, vm=True, lgkm=True):
        self.ins.append(I("", kind="waitall", wait=(vm, lgkm)))
    def fence(self):
        self.ins.append(I("", kind="fence"))
    def save(self, name):
        self.ins.append(I("", kind="save", tag=name))
    def restore(self, name):
        self.ins.append(I("", kind="restore", tag=name))
    def stamp(self, i):
        import os
        if os.environ.get("STAMPS"):
            self.ins.append(I(f"s_memtime s[{44+2*i}:{45+2*i}]"))
    def extend(self, other):
        self.ins += other.ins

def interleave(main, fill, slots, start=0):
    out = []
    fi = 0
    seen = 0
    for ins in main:
        out.append(ins)
        b = slots(ins)
        if b > 0:
            seen += 1
            if seen <= start: continue
            while fi < len(fill) and b > 0:
                f, c = fill[fi]
                if c > b and b < slots(ins): break
                out.append(f); b -= c; fi += 1
    rest = [f for f, c in fill[fi:]]
    return out, rest

def cost(ins):
    if ins.kind in ("wait", "waitall", "fence", "label", "raw", "save", "restore"): return 0
    op = ins.text.split()[0]
    if op.startswith(TRANS): return 8
    if op.startswith("v_mfma"): return 8
    if op.startswith("v_"): return 4
    if op.startswith("s_"): return 1
    return 4

def finalize(asm):
    out = []
    vmq = []; lgq = []
    smem_out = False
    snaps = {}
    hist = []
    def push(text):
        an = analyze(text)
        need = 0
        dist = 0
        for p, st in reversed(hist):
            n = need_states(p, an)
            if n > dist: need = max(need, n - dist)
            dist += st
            if dist > 24: break
        while need > 0:
            k = min(need, 16)
            out.append(f"    s_nop {k-1}")
            hist.append((analyze(f"s_nop {k-1}"), k))
            need -= k
        out.append("    " + text)
        hist.append((an, states_of(text)))
        if len(hist) > 40: del hist[:10]
        return an
    for ins in asm.ins:
        if ins.kind == "label":
            out.append(ins.text); continue
        if ins.kind == "raw":
            out.append(ins.text); continue
        if ins.kind == "save":
            snaps[ins.tag] = (None if vmq is None else list(vmq), None if lgq is None else list(lgq), smem_out, list(hist))
            continue
        if ins.kind == "restore":
            a_, b_, smem_out, h_ = snaps[ins.tag]
            vmq = None if a_ is None else list(a_); lgq = None if b_ is None else list(b_)
            hist[:] = h_
            continue
        if ins.kind == "fence":
            vmq = None; lgq = None
            continue
        if ins.kind == "waitall":
            vm, lg = ins.wait
            p = []
            if vm and (vmq is None or vmq): p.append("vmcnt(0)")
            if lg and (lgq is None or lgq or smem_out): p.append("lgkmcnt(0)")
            if vm: vmq = []
            if lg: lgq = []; smem_out = False
            if p: push("s_waitcnt " + " ".join(p))
            continue
        if ins.kind == "wait":
            p = []
            assert vmq is not None and lgq is not None, "wait by tag after fence without waitall"
            idx = max([i for i, t in enumerate(vmq) if t in ins.wait], default=-1)
            if idx >= 0:
                n = len(vmq) - 1 - idx
                if n <= 63:
                    p.append(f"vmcnt({n})")
                    vmq = vmq[idx + 1:]
                else:
                    raise Exception("vmcnt overflow")
            idx = max([i for i, t in enumerate(lgq) if t in ins.wait], default=-1)
            if idx >= 0:
                n = len(lgq) - 1 - idx
                if smem_out: n = 0
                if n > 15: n = 15
                p.append(f"lgkmcnt({n})")
                lgq = lgq[len(lgq) - n:] if n else []
                if n == 0: smem_out = False
            if p: push("s_waitcnt " + " ".join(p))
            continue
        an = push(ins.text)
        op = an["op"]
        if an["cls"] == "vmem" and not op.startswith(("buffer_wbl2", "buffer_inv")):
            if vmq is not None:
                vmq.append(ins.tag)
                if len(vmq) > 63: vmq = vmq[-63:]
        elif an["cls"] == "ds":
            if lgq is not None: lgq.append(ins.tag)
        elif op.startswith(("s_load", "s_memtime", "s_buffer_load", "s_memrealtime")):
            smem_out = True
            if lgq is not None: lgq.append(ins.tag)
        elif op == "s_waitcnt":
            m = re.search(r"vmcnt\((\d+)\)", ins.text)
            if m:
                n = int(m.group(1))
                if vmq is None:
                    if n == 0: vmq = []
                else: vmq = vmq[len(vmq) - n:] if n and len(vmq) > n else ([] if n == 0 else vmq)
            m = re.search(r"lgkmcnt\((\d+)\)", ins.text)
            if m:
                n = int(m.group(1))
                if n == 0: lgq = []; smem_out = False
                elif lgq is not None and not smem_out and len(lgq) > n: lgq = lgq[len(lgq) - n:]
    return "\n".join(out) + "\n"

class Sched:
    def __init__(self, main):
        self.main = main
        self.rel = {}
    def release(self, pos, q, groups, **kw):
        self.rel.setdefault(pos, []).append((q, groups, kw))
    def run(self, gap=24, cap=24, vm_every=1, vm_cost=16, ds_cost=12, wait_cost=4):
        out = []
        vm = []; va = []
        every = vm_every; since = 99; skip = 0
        main = self.main
        follow = {}
        last = None
        for idx, ins in enumerate(main):
            if ins.text.startswith("v_mfma"):
                last = idx; follow[idx] = 0
            elif last is not None:
                if ins.kind == "wait": follow[last] += wait_cost
                elif ins.text.startswith("ds_"): follow[last] += ds_cost
                elif ins.text.startswith(("buffer_", "global_")): follow[last] += vm_cost
                else: follow[last] += cost(ins)
        for idx, ins in enumerate(main):
            for q, groups, kw in self.rel.get(idx, []):
                if q == "vm":
                    vm += groups
                    if "every" in kw: every = kw["every"]
                else:
                    va += groups
                    skip = max(skip, kw.get("skip", 0))
                    if "cap" in kw: cap = kw["cap"]
            out.append(ins)
            if ins.text.startswith("v_mfma"):
                b = gap - follow[idx]
                since += 1
                if vm and since >= every and (b >= vm_cost or every <= 1):
                    out += vm.pop(0); since = 0; b -= vm_cost
                if skip > 0:
                    skip -= 1; continue
                b = min(b, cap)
                while va:
                    c = sum(vm_cost if i.text.startswith("buffer_") else cost(i) for i in va[0])
                    if c > b: break
                    out += va.pop(0); b -= c
        rest = [i for g in vm for i in g] + [i for g in va for i in g]
        return out, rest

def groups_vm(ins):
    gs = []; cur = []
    for i in ins:
        cur.append(i)
        if i.text.startswith(("buffer_", "global_")):
            gs.append(cur); cur = []
    if cur: gs.append(cur)
    return gs
def groups_1(ins):
    gs = []; cur = []
    for i in ins:
        cur.append(i)
        if not i.text.startswith("s_"):
            gs.append(cur); cur = []
    if cur: gs.append(cur)
    return gs

def check_tags(ins):
    waited = set()
    for i in ins:
        if i.kind == "wait": waited.update(i.wait)
        elif i.kind == "" and i.tag is not None:
            assert i.tag not in waited, f"tag {i.tag} issued after its wait"
```

```python
from asmlib import *
import gen as G
from t1 import *
QSCALE = (18 ** -0.5) * LOG2E

def k1_main(A, NT, swapped, sfx):
    xreg = lambda j, ks: (256 + 4 * ks) if ks < 36 else 8
    t1 = T1(1, xreg, lambda t, j: 64 + 16 * t, 32, 8, lambda t: t, 2, swapped)
    def issue(c):
        for t in range(NT):
            if c < 9:
                dma(A, 20, t * G.T1S + c * 4096, 21, t * G.T1S + c * 4096, 1, f"c{c}")
            else:
                dma(A, 22, t * G.T1S + 36 * 1024, None, t * G.T1S + 36 * 1024, 1, f"c{c}")
        if c < 9:
            A(f"s_add_u32 s30, s23, {c*4096}")
            for q in range(4):
                A(f"buffer_load_dwordx4 {r(xreg(0, 4*c+q), 4)}, v1, s[4:7], s30 offen offset:{q*1024}", tag=f"c{c}")
    AHEAD = 7
    for c in range(AHEAD): issue(c)
    A.stamp(0)
    A.wait("st")
    stats_compute(A, 16, 5, 6, 12)
    A("v_cmp_gt_u32 vcc, 512, v1")
    build_xext(A, 5, 8, 12)
    A("v_rsq_f32 v6, v6")
    items = [(t, ks) for ks in range(37) for t in range(NT)]
    DIST = NT + 2 if NT + 2 <= 7 else 7
    nextc = AHEAD
    def pre_read(i):
        t, ks = items[i]
        if t == 0 and ks % 4 == 0:
            A.wait(f"c{ks//4}")
            A("s_barrier")
        t1.read(A, i, t, ks)
    for i in range(DIST): pre_read(i)
    for i, (t, ks) in enumerate(items):
        if i + DIST < len(items): pre_read(i + DIST)
        if t == 0 and ks % 4 == 0: A.stamp(1 + ks // 4)
        A.wait(f"wf{i}")
        t1.mfmas(A, i, t, ks)
        if t == NT - 1 and ks % 4 == 3 and nextc < 10:
            issue(nextc); nextc += 1

def gen_k1():
    name = "k1_kernel"
    A = G.begin(name)
    A("""
    s_load_dwordx2 s[82:83], s[0:1], 72
    s_cmp_ge_u32 s2, 256
    s_cbranch_scc1 K1_END
    s_and_b32 s24, s2, 7               ; x
    s_lshr_b32 s25, s2, 3              ; j
    s_lshr_b32 s26, s24, 1
    s_lshl_b32 s26, s26, 2
    s_and_b32 s27, s25, 3
    s_add_u32 s26, s26, s27            ; rg
    s_and_b32 s27, s24, 1
    s_lshl_b32 s27, s27, 3
    s_lshr_b32 s28, s25, 2
    s_add_u32 s27, s27, s28            ; cg
    s_cmp_ge_u32 s27, 15
    s_cbranch_scc1 K1_END
    """)
    G.wave_id(A, 3)
    A("""
    v_and_b32 v1, 63, v0
    v_lshlrev_b32 v1, 4, v1
    v_mov_b32 v2, v1
    v_add_u32 v3, 0x10000, v1
    v_add_u32 v4, 0x20000, v1
    s_lshl_b32 s26, s26, 2
    s_add_u32 s26, s26, s3             ; rb
    s_lshl_b32 s21, s3, 10
    s_lshl_b32 s28, s27, 2
    s_mul_i32 s29, s27, 3
    s_add_u32 s29, s29, 9              ; 36+3(cg-9)
    s_cmp_ge_u32 s27, 9
    s_cselect_b32 s28, s29, s28
    """)
    A(f"""
    s_mul_i32 s22, s28, {G.T1S}
    s_add_u32 s22, s22, {G.WQ}
    s_add_u32 s20, s22, s21            ; + wave*1024
    s_mul_i32 s23, s26, 36864
    s_add_u32 s23, s23, {G.XF}
    s_lshl_b32 s29, s26, 11
    s_add_u32 s29, s29, {G.ST}
    """)
    A.waitall()
    G.srd(A, 4, 82, G.WS_USED)
    stats_load(A, 1, 29, 16, 12)
    A(f"""
    s_lshr_b32 s31, s26, 3
    s_mul_i32 s31, s31, {G.KVG}
    s_add_u32 s31, s31, {G.KV}
    s_cmp_ge_u32 s27, 9
    s_cbranch_scc1 K1_V
    """)
    A.save("v")
    k1_main(A, 4, False, "a")
    A.stamp(11)
    A("s_cmp_eq_u32 s27, 8")
    A("s_cbranch_scc1 K1_EXT")
    A.save("ext")
    A(f"""
    s_and_b32 s32, s27, 3
    s_lshl_b32 s32, s32, 3
    s_lshl_b32 s33, s26, 10
    s_add_u32 s33, s33, {G.QM}
    s_and_b32 s34, s26, 7
    s_lshl_b32 s34, s34, 10
    s_add_u32 s34, s34, s31
    s_cmp_lt_u32 s27, 4
    s_cselect_b32 s33, s33, s34
    s_mov_b32 s35, {G.KVH}
    s_cselect_b32 s35, 65536, s35
    s_mov_b32 s36, {hex(G.f32(QSCALE))}
    s_cselect_b32 s36, s36, 1.0
    s_mul_i32 s32, s32, s35
    s_add_u32 s33, s33, s32
    v_mul_f32 v6, s36, v6
    """)
    for t in range(4):
        acc = 64 + 16 * t
        for i in range(16): A(f"v_mul_f32 v{acc+i}, v{acc+i}, v6")
        for i in range(8): A(f"v_cvt_pk_bf16_f32 v{128+8*t+i}, v{acc+2*i}, v{acc+2*i+1}")
        for e in range(2):
            A(f"buffer_store_dwordx4 v[{128+8*t+4*e}:{128+8*t+4*e+3}], v1, s[4:7], s33 offen")
            A("s_add_u32 s33, s33, s35")
    A("s_branch K1_END")
    A.label("K1_EXT")
    A.restore("ext")
    A(f"""
    v_and_b32 v12, 31, v0
    v_bfe_u32 v13, v0, 5, 1
    v_lshlrev_b32 v14, 2, v12
    v_mul_u32_u24 v15, 16384, v13
    v_add_u32 v14, v14, v15            ; q voffset
    v_lshlrev_b32 v15, 4, v12
    s_mov_b32 s32, {2*G.KVH}
    v_mul_lo_u32 v13, v13, s32
    v_add_u32 v15, v15, v13            ; k voffset
    s_lshl_b32 s33, s26, 7
    s_add_u32 s33, s33, {G.QE}
    s_bfe_u32 s34, s26, 0x10002        ; (rb>>2)&1
    s_lshl_b32 s34, s34, 9
    s_and_b32 s35, s26, 3
    s_lshl_b32 s35, s35, 2
    s_add_u32 s34, s34, s35
    s_add_u32 s34, s34, s31
    s_add_u32 s34, s34, 8192
    v_mul_f32 v7, {hex(G.f32(QSCALE))}, v6
    """)
    for t in range(4):
        acc = 64 + 16 * t
        sc = 7 if t < 2 else 6
        e = t & 1
        for i in range(16): A(f"v_mul_f32 v{acc+i}, v{acc+i}, v{sc}")
        for i in range(8): A(f"v_cvt_pk_bf16_f32 v{128+8*t+i}, v{acc+2*i}, v{acc+2*i+1}")
        for i in range(8):
            g, par = i >> 1, i & 1
            hd = 16 * e + 4 * g + par
            if t < 2:
                A(f"s_add_u32 s30, s33, {hd*8192}")
                A(f"buffer_store_dword v{128+8*t+i}, v14, s[4:7], s30 offen")
            else:
                A(f"s_add_u32 s30, s34, {hd*G.KVH}")
                A(f"buffer_store_dword v{128+8*t+i}, v15, s[4:7], s30 offen")
    A("s_branch K1_END")
    A.label("K1_V")
    A.restore("v")
    k1_main(A, 3, True, "v")
    A(f"""
    v_and_b32 v12, 31, v0
    v_lshlrev_b32 v13, 2, v12
    s_lshl_b32 s32, s3, 7
    s_add_u32 s32, s32, {3*G.T1S}
    v_add_u32 v13, s32, v13
    ds_write_b32 v13, v6
    v_bfe_u32 v14, v0, 5, 1            ; h
    v_lshlrev_b32 v13, 4, v14
    v_add_u32 v13, s32, v13
    """)
    A.waitall(vm=False)
    for g in range(4):
        A(f"ds_read_b128 v[{16+4*g}:{19+4*g}], v13 offset:{g*32}")
    A(f"""
    s_sub_u32 s32, s27, 9
    s_mul_i32 s32, s32, 96
    v_add_u32 v12, s32, v12
    v_mul_u32_u24 v14, 304, v14
    s_and_b32 s33, s26, 7
    s_mul_i32 s33, s33, 1216
    s_add_u32 s33, s33, s31
    s_add_u32 s33, s33, 9216
    s_mov_b32 s34, {G.KVH}
    """)
    A.waitall(vm=False)
    for t in range(3):
        acc = 64 + 16 * t
        A(f"""
        v_mul_u32_u24 v13, 3641, v12
        v_lshrrev_b32 v13, 16, v13         ; head
        v_mul_u32_u24 v15, 18, v13
        v_sub_u32 v15, v12, v15            ; d
        v_mul_lo_u32 v13, v13, s34
        v_lshlrev_b32 v15, 4, v15
        v_add3_u32 v{7+t}, v13, v15, v14
        v_add_u32 v12, 32, v12
        """)
        for i in range(16): A(f"v_mul_f32 v{acc+i}, v{acc+i}, v{16+i}")
        for i in range(8): A(f"v_cvt_pk_bf16_f32 v{128+8*t+i}, v{acc+2*i}, v{acc+2*i+1}")
        for e in range(2):
            A(f"buffer_store_dwordx4 v[{128+8*t+4*e}:{128+8*t+4*e+3}], v{7+t}, s[4:7], s33 offen offset:{e*608}")
    A.label("K1_END")
    A("s_endpgm")
    G.end(A, name, 400, 256)
    return (name, 256, 256, 4 * G.T1S)
```

```python
from asmlib import *
import gen as G
P = G.P

def gen_k2(name, side):
    A = G.begin(name)
    L = name[:3].upper()
    VK, VV = 2, 6
    QMr, QEr = 12, 16
    NEG, Sr, Pr, Or = 48, 64, 96, 112
    KMr, VRr, KEr = 128, 140, 164
    T = 172
    SD, SO = 192, 228
    SV = 184
    W2 = 2 * G.KVG
    SCR = 151552
    A(f"""
    s_load_dwordx2 s[82:83], s[0:1], 72
    """)
    if side: A("s_load_dwordx8 s[72:79], s[0:1], 32")
    A(f"""
    s_cmp_ge_u32 s2, 256
    s_cbranch_scc1 {L}_END
    s_and_b32 s24, s2, 7
    s_lshl_b32 s24, s24, 2
    s_bfe_u32 s25, s2, 0x20003
    s_add_u32 s24, s24, s25            ; head
    s_lshr_b32 s25, s2, 5              ; qblk
    """)
    G.wave_id(A, 3)
    A(f"""
    v_and_b32 v1, 63, v0
    v_lshlrev_b32 v1, 4, v1
    s_lshl_b32 s25, s25, 3
    s_add_u32 s25, s25, s3             ; qtile
    s_lshl_b32 s26, s24, 6
    s_add_u32 s26, s26, s25            ; head*64+qtile
    s_lshl_b32 s27, s26, 10
    s_add_u32 s27, s27, {G.QM}
    s_lshl_b32 s28, s26, 7
    s_add_u32 s28, s28, {G.QE}
    s_lshl_b32 s21, s3, 10
    s_mul_i32 s22, s24, {G.KVH}
    s_add_u32 s22, s22, {G.KV}
    s_add_u32 s20, s22, s21
    s_and_b32 s23, s21, 0xc00          ; (w&3)*1024
    s_add_u32 s22, s22, s23
    v_and_b32 v{T}, 31, v0
    v_lshlrev_b32 v{T+1}, 2, v{T}
    s_mov_b32 s40, 0
    """)
    A.waitall()
    G.srd(A, 4, 82, G.WS_USED)
    jmax = [2, 4, 6, 9, 11, 13, 16, 18]
    def dma_round(B, j):
        g = min(gg for gg in range(8) if j <= jmax[gg])
        a, b = (20, 21) if j < 18 else (22, 23)
        B(f"s_add_u32 s30, s{a}, {j*8192}")
        B(f"s_add_u32 m0, s{b}, {j*8192}")
        B("buffer_load_dwordx4 v1, s[4:7], s30 offen lds", tag=f"c{g}")
    dma_round(A, 0); dma_round(A, 1)
    A(f"buffer_load_dwordx4 v[{QMr}:{QMr+3}], v1, s[4:7], s27 offen", tag="q")
    A(f"buffer_load_dword v{T+2}, v{T+1}, s[4:7], s28 offen", tag="q")
    PRE = P.get("k2_pre", 5)
    for j in range(2, PRE): dma_round(A, j)
    A(f"""
    v_bfe_u32 v{T+3}, v0, 2, 1
    v_lshlrev_b32 v{T+3}, 3, v{T+3}
    v_bfe_u32 v{T+4}, v0, 3, 1
    v_lshlrev_b32 v{T+4}, 2, v{T+4}
    v_and_b32 v{T+5}, 3, v0
    v_add3_u32 v{T+3}, v{T+3}, v{T+4}, v{T+5}     ; d(i) for i<16
    v_min_u32 v{T+4}, 18, v{T}
    v_cmp_gt_u32 vcc, 16, v{T}
    v_cndmask_b32 v{T+3}, v{T+4}, v{T+3}, vcc
    v_lshlrev_b32 v{T+3}, 4, v{T+3}
    v_bfe_u32 v{T+4}, v0, 5, 1
    v_mul_u32_u24 v{T+4}, 304, v{T+4}
    v_add_u32 v{T+3}, v{T+3}, v{T+4}
    """)
    for p in range(4):
        A(f"v_add_u32 v{VK+p}, {p*W2}, v1")
        A(f"v_add_u32 v{VV+p}, {p*W2 + 9216}, v{T+3}")
    for i in range(32): A(f"v_mov_b32 v{QEr+i}, 0")
    if side:
        side_setup(A, L, SV, T, SCR)
    A.wait("q")
    A(f"v_cmp_gt_u32 vcc, 512, v1")
    for j in range(4):
        A(f"v_cndmask_b32 v{QEr+4*j+j}, 0, v{T+2}, vcc")
        A(f"v_cndmask_b32 v{QEr+16+4*j+j}, v{T+2}, 0, vcc")
    def rdK(t):
        p = t >> 4; g = (t >> 3) & 1
        A(f"ds_read_b128 v[{KMr+4*(t%3)}:{KMr+4*(t%3)+3}], v{VK+p} offset:{g*G.KVG + (t&7)*1024}", tag=f"k{t}")
        if t % 8 == 0:
            A(f"ds_read_b128 v[{KEr+4*g}:{KEr+4*g+3}], v{VK+p} offset:{g*G.KVG + 8192}", tag=f"k{t}")
    def rdV(t):
        p = t >> 4; g = (t >> 3) & 1
        b = VRr + 8 * (t % 3)
        A(f"ds_read_b128 v[{b}:{b+3}], v{VV+p} offset:{g*G.KVG + (t&7)*1216}", tag=f"v{t}")
        A(f"ds_read_b128 v[{b+4}:{b+7}], v{VV+p} offset:{g*G.KVG + (t&7)*1216+608}", tag=f"v{t}")
    def qk1(t, c):
        s_ = Sr + 16 * (t & 1)
        A(f"v_mfma_f32_32x32x16_bf16 v[{s_}:{s_+15}], v[{KMr+4*(t%3)}:{KMr+4*(t%3)+3}], v[{QMr}:{QMr+3}], {c}")
    def qk2(t):
        s_ = Sr + 16 * (t & 1); g = (t >> 3) & 1; q = QEr + 4 * (t & 7)
        A(f"v_mfma_f32_32x32x16_bf16 v[{s_}:{s_+15}], v[{KEr+4*g}:{KEr+4*g+3}], v[{q}:{q+3}], v[{s_}:{s_+15}]")
    def pv(t, half):
        b = VRr + 8 * (t % 3) + 4 * half; p_ = Pr + 8 * (t & 1) + 4 * half
        c = "0" if (t == 0 and half == 0) else f"v[{Or}:{Or+15}]"
        A(f"v_mfma_f32_32x32x16_bf16 v[{Or}:{Or+15}], v[{b}:{b+3}], v[{p_}:{p_+3}], {c}")
    def maxreduce(dst, s_, first):
        i0 = 0
        if first:
            A(f"v_max3_f32 v{dst}, v{s_}, v{s_+1}, v{s_+2}")
            A(f"v_max_f32 v{dst}, v{dst}, v{s_+3}")
            i0 = 4
        for i in range(i0, 16, 2):
            A(f"v_max3_f32 v{dst}, v{dst}, v{s_+i}, v{s_+i+1}")
    def setneg(dst):
        A(f"v_mov_b32 v{T+7}, v{dst}")
        A(f"v_permlane32_swap_b32 v{dst}, v{T+7}")
        A(f"v_max_f32 v{dst}, v{dst}, v{T+7}")
        for i in range(16): A(f"v_sub_f32 v{NEG+i}, 0, v{dst}")
    NEGC = f"v[{NEG}:{NEG+15}]"
    A.stamp(0)
    A.wait("c0")
    A.stamp(1)
    A("s_barrier")
    A.stamp(2)
    rdK(0)
    A.wait("k0")
    qk1(0, "0"); qk2(0)
    maxreduce(T + 6, Sr, True)
    setneg(T + 6)
    A.label(f"{L}_MAIN")
    if side: A(f"v_mov_b32 v{SV+4}, 0")
    rdK(0); rdK(1)
    A.wait("k0")
    qk1(0, NEGC); qk2(0)
    nextj = PRE
    U0, U1, US = P.get('k2_u0', 6), P.get('k2_u1', 15), 5
    for t in range(64):
        s_ = Sr + 16 * (t & 1); p_ = Pr + 8 * (t & 1)
        if t % 8 == 0: A.stamp(3 + t // 8)
        if t + 2 < 64:
            if (t + 2) % 8 == 0:
                A.wait(f"c{(t+2)//8}")
                A("s_barrier")
            rdK(t + 2)
        rdV(t)
        if nextj < 19:
            dma_round(A, nextj); nextj += 1
        if side:
            if t == 60:
                A(f"ds_write_b32 v{SV+5}, v{SV+4}", tag="cs")
                A.wait("cs")
                A("s_barrier")
            u, ph = divmod(t - U0, US)
            if 0 <= u < 9 and ph == 0:
                A(f"buffer_load_dwordx2 v[{SD+4*u}:{SD+4*u+1}], v{SV}, s[8:11], s34 offen", tag=f"sl{u}")
                A(f"buffer_load_dwordx2 v[{SD+4*u+2}:{SD+4*u+3}], v{SV+1}, s[8:11], s34 offen", tag=f"sl{u}")
                A("s_add_u32 s34, s34, s35" if u < 8 else "s_mov_b32 s34, s38")
            u, ph = divmod(t - U1, US)
            if 0 <= u < 9 and ph < 3:
                so = SO + 4 * (u & 1)
                if ph == 0:
                    A.wait(f"sl{u}")
                    A(f"ds_write_b64 v{SV+3}, v[{SD+4*u}:{SD+4*u+1}]", tag=f"sw{u}")
                    A(f"ds_write_b64 v{SV+3}, v[{SD+4*u+2}:{SD+4*u+3}] offset:512", tag=f"sw{u}")
                elif ph == 1:
                    A.wait(f"sw{u}")
                    A(f"ds_read_b64_tr_b16 v[{so}:{so+1}], v{SV+3}", tag=f"sr{u}")
                    A(f"ds_read_b64_tr_b16 v[{so+2}:{so+3}], v{SV+3} offset:512", tag=f"sr{u}")
                else:
                    A.wait(f"sr{u}")
                    A(f"buffer_store_dwordx4 v[{so}:{so+3}], v{SV+2}, s[12:15], s36 offen sc1")
                    A("s_add_u32 s36, s36, s37" if u < 8 else "s_mov_b32 s36, s39")
                    for j in range(4): A(f"v_dot2_f32_bf16 v{SV+4}, v{so+j}, s41, v{SV+4}")
        def exps(a, b):
            for i in range(a, b): A(f"v_exp_f32 v{s_+i}, v{s_+i}")
        def cvts(a, b):
            for i in range(a, b): A(f"v_cvt_pk_bf16_f32 v{p_+i}, v{s_+2*i}, v{s_+2*i+1}")
        if t + 1 < 64:
            A.wait(f"k{t+1}")
            qk1(t + 1, NEGC)
        exps(0, 4)
        if t + 1 < 64: qk2(t + 1)
        exps(4, 8); cvts(0, 2)
        if t > 0:
            A.wait(f"v{t-1}")
            pv(t - 1, 0)
        exps(8, 12); cvts(2, 4)
        if t > 0: pv(t - 1, 1)
        exps(12, 16); cvts(4, 8)
    A.wait("v63")
    pv(63, 0); pv(63, 1)
    A.stamp(11)
    A(f"""
    s_mov_b32 s42, {hex(G.f32(2.0**60))}
    v_cmp_gt_f32 vcc, s42, v{Or+10}
    s_cmp_eq_u64 vcc, -1
    s_cbranch_scc1 {L}_OUT
    s_cmp_lg_u32 s40, 0
    s_cbranch_scc1 {L}_OUT
    """)
    A.save("out")
    A(f"""
    s_mov_b32 s40, 1
    s_mov_b32 s42, 0
    v_mov_b32 v{T+6}, 0xff800000
    v_mov_b32 v{T+8}, v{VK}
    """)
    A.label(f"{L}_FB")
    for t in range(8):
        A(f"ds_read_b128 v[{KMr}:{KMr+3}], v{T+8} offset:{t*1024}")
        A(f"ds_read_b128 v[{KEr}:{KEr+3}], v{T+8} offset:8192")
        A.waitall(vm=False)
        q = QEr + 4 * t
        A(f"v_mfma_f32_32x32x16_bf16 v[{Sr}:{Sr+15}], v[{KMr}:{KMr+3}], v[{QMr}:{QMr+3}], 0")
        A(f"v_mfma_f32_32x32x16_bf16 v[{Sr}:{Sr+15}], v[{KEr}:{KEr+3}], v[{q}:{q+3}], v[{Sr}:{Sr+15}]")
        maxreduce(T + 6, Sr, False)
    A(f"""
    v_add_u32 v{T+8}, {G.KVG}, v{T+8}
    s_add_u32 s42, s42, 1
    s_cmp_lt_u32 s42, 8
    s_cbranch_scc1 {L}_FB
    """)
    setneg(T + 6)
    A("s_waitcnt vmcnt(0)")
    A("s_nop 7")
    A(f"s_branch {L}_MAIN")
    A.label(f"{L}_OUT")
    A.restore("out")
    A(f"""
    v_rcp_f32 v{T+6}, v{Or+10}
    v_bfe_u32 v{T}, v0, 4, 1
    v_mul_u32_u24 v{T}, 18432, v{T}
    v_and_b32 v{T+1}, 15, v0
    v_lshlrev_b32 v{T+1}, 4, v{T+1}
    v_add_u32 v{T}, v{T}, v{T+1}
    v_bfe_u32 v{T+1}, v0, 5, 1
    v_lshlrev_b32 v{T+1}, 8, v{T+1}
    v_add_u32 v{T+1}, v{T}, v{T+1}
    s_mul_i32 s30, s25, 36864
    s_add_u32 s30, s30, {G.OF}
    s_lshl_b32 s31, s24, 9
    s_add_u32 s31, s31, s30
    s_lshr_b32 s32, s24, 2
    s_lshl_b32 s32, s32, 8
    s_and_b32 s33, s24, 3
    s_lshl_b32 s33, s33, 2
    s_add_u32 s32, s32, s33
    s_add_u32 s32, s32, s30
    s_add_u32 s32, s32, 16384
    """)
    for i in range(10): A(f"v_mul_f32 v{Or+i}, v{Or+i}, v{T+6}")
    for i in range(5): A(f"v_cvt_pk_bf16_f32 v{Pr+i}, v{Or+2*i}, v{Or+2*i+1}")
    A(f"buffer_store_dwordx4 v[{Pr}:{Pr+3}], v{T+1}, s[4:7], s31 offen")
    A("s_mov_b32 exec_hi, 0")
    A(f"buffer_store_dword v{Pr+4}, v{T}, s[4:7], s32 offen")
    if side:
        A("s_mov_b32 exec_hi, -1")
        side_final(A, L, SV, Sr, SCR)
    A.label(f"{L}_END")
    A("s_endpgm")
    G.end(A, name, 240 if side else 184)
    return (name, 256, 512, SCR + (10240 if side else 0))

def side_setup(A, L, SV, T, SCR):
    t0, t1, t2 = T + 9, T + 10, T + 11
    A(f"""
    s_lshl_b32 s29, s2, 1
    s_lshr_b32 s30, s3, 2
    s_add_u32 s29, s29, s30
    s_and_b32 s31, s3, 3
    s_mov_b32 s41, 0x3f803f80
    s_mov_b32 s12, s4
    s_mov_b32 s13, s5
    s_mov_b32 s14, {G.WS_USED}
    s_mov_b32 s15, 0x00020000
    s_mov_b32 s10, {G.D*G.F*2}
    s_mov_b32 s11, 0x00020000
    v_and_b32 v{t0}, 63, v0
    v_lshrrev_b32 v{SV}, 5, v{t0}
    v_lshlrev_b32 v{SV}, 3, v{SV}
    v_bfe_u32 v{t1}, v{t0}, 2, 2
    v_add_u32 v{SV}, v{SV}, v{t1}              ; kk
    v_and_b32 v{SV+2}, 15, v{t0}
    v_lshlrev_b32 v{SV+2}, 4, v{SV+2}
    s_lshl_b32 s30, s3, 10
    s_add_u32 s30, s30, {SCR}
    v_lshlrev_b32 v{SV+3}, 3, v{t0}
    v_add_u32 v{SV+3}, s30, v{SV+3}
    s_lshl_b32 s30, s3, 8
    s_add_u32 s30, s30, {SCR + 8192}
    v_lshlrev_b32 v{SV+5}, 2, v{t0}
    v_add_u32 v{SV+5}, s30, v{SV+5}
    s_cmp_ge_u32 s29, 288
    s_cbranch_scc1 {L}_SW2
    ; ---- w1 / w3 ----
    s_cmp_ge_u32 s29, 144
    s_cselect_b32 s8, s74, s72
    s_cselect_b32 s9, s75, s73
    s_cselect_b32 s30, 144, 0
    s_cselect_b32 s36, 256, 0
    s_and_b32 s9, s9, 0xffff
    s_sub_u32 s29, s29, s30
    s_lshl_b32 s34, s29, 6
    s_mul_i32 s30, s31, {9*16*9216}
    s_add_u32 s34, s34, s30
    s_mov_b32 s35, {16*9216}
    s_mul_i32 s30, s29, {2*G.T1S}
    s_add_u32 s36, s36, s30
    s_mul_i32 s30, s31, 9216
    s_add_u32 s36, s36, s30
    s_add_u32 s36, s36, {G.W13}
    s_mov_b32 s37, 1024
    s_mov_b32 s43, 1
    s_mov_b32 s30, 9216
    s_mov_b32 s32, 16
    s_mov_b32 s33, 8
    s_mov_b32 s44, {G.T1S}             ; D1
    s_mov_b32 s45, 512                 ; D2
    s_branch {L}_SCOM
    """)
    A.label(f"{L}_SW2")
    A(f"""
    s_mov_b32 s8, s76
    s_and_b32 s9, s77, 0xffff
    s_cmp_ge_u32 s29, 432
    s_cselect_b32 s10, 0, s10
    s_cselect_b32 s14, 0, s14
    s_sub_u32 s29, s29, 288
    s_mul_i32 s30, s29, 3641
    s_lshr_b32 s30, s30, 16             ; seg
    s_mul_i32 s32, s30, 18
    s_sub_u32 s32, s29, s32             ; strip
    s_mul_i32 s30, s30, 36
    s_mul_i32 s33, s31, 9
    s_add_u32 s30, s30, s33             ; U0
    s_mul_i32 s34, s30, {16*1152}
    s_lshl_b32 s33, s32, 6
    s_add_u32 s34, s34, s33
    s_mov_b32 s35, {16*1152}
    s_lshl_b32 s36, s30, 9
    s_mul_i32 s33, s32, {2*144*1024}
    s_add_u32 s36, s36, s33
    s_add_u32 s36, s36, {G.W2}
    s_mov_b32 s37, 512
    s_mov_b32 s43, 0
    s_mov_b32 s30, 1152
    s_mov_b32 s32, 8
    s_mov_b32 s33, 16
    s_mov_b32 s44, {144*1024}
    s_mov_b32 s45, 256
    """)
    A.label(f"{L}_SCOM")
    A(f"""
    s_mov_b32 s38, s34
    s_mov_b32 s39, s36
    v_mul_lo_u32 v{SV}, v{SV}, s30
    v_bfe_u32 v{t1}, v{t0}, 4, 1
    v_lshlrev_b32 v{t2}, 5, v{t1}
    v_add_u32 v{SV}, v{SV}, v{t2}
    v_mul_lo_u32 v{t1}, v{t1}, s44
    v_add_u32 v{SV+2}, v{SV+2}, v{t1}
    v_and_b32 v{t1}, 1, v{t0}
    v_mul_lo_u32 v{t1}, v{t1}, s32
    v_add_u32 v{SV}, v{SV}, v{t1}
    v_bfe_u32 v{t1}, v{t0}, 1, 1
    v_mul_lo_u32 v{t1}, v{t1}, s33
    v_add_u32 v{SV}, v{SV}, v{t1}
    s_lshl_b32 s30, s30, 2
    v_add_u32 v{SV+1}, s30, v{SV}
    v_lshrrev_b32 v{t1}, 5, v{t0}
    v_mul_lo_u32 v{t1}, v{t1}, s45
    v_add_u32 v{SV+2}, v{SV+2}, v{t1}
    """)

def side_final(A, L, SV, R, SCR):
    A(f"""
    s_and_b32 s31, s3, 3
    s_cmp_lg_u32 s31, 0
    s_cbranch_scc1 {L}_END
    s_cmp_eq_u32 s43, 0
    s_cbranch_scc1 {L}_END
    v_and_b32 v{R}, 31, v0
    v_lshlrev_b32 v{R}, 2, v{R}
    s_lshl_b32 s30, s3, 8
    s_add_u32 s30, s30, {SCR + 8192}
    v_add_u32 v{R}, s30, v{R}
    """)
    for j in range(8):
        A(f"ds_read_b32 v{R+8+j}, v{R} offset:{j*128}")
    A.waitall(vm=False)
    b = R
    A(f"""
    v_add_f32 v{b+8}, v{b+8}, v{b+9}
    v_add_f32 v{b+10}, v{b+10}, v{b+11}
    v_add_f32 v{b+12}, v{b+12}, v{b+13}
    v_add_f32 v{b+14}, v{b+14}, v{b+15}
    v_add_f32 v{b+8}, v{b+8}, v{b+10}
    v_add_f32 v{b+12}, v{b+12}, v{b+14}
    v_add_f32 v{b+8}, v{b+8}, v{b+12}
    v_sub_f32 v{b+8}, 0, v{b+8}
    v_cvt_pk_bf16_f32 v{b+9}, v{b+8}, v{b+8}
    v_lshlrev_b32 v{b+9}, 16, v{b+9}
    v_sub_f32 v{b+8}, v{b+8}, v{b+9}
    v_cvt_pk_bf16_f32 v{b+10}, v{b+8}, v{b+8}
    v_lshlrev_b32 v{b+10}, 16, v{b+10}
    v_sub_f32 v{b+11}, v{b+8}, v{b+10}
    v_cvt_pk_bf16_f32 v{b+12}, v{b+9}, v{b+10}
    v_cvt_pk_bf16_f32 v{b+13}, v{b+9}, v{b+11}
    v_cvt_pk_bf16_f32 v{b+14}, v{b+10}, v{b+9}
    v_mov_b32 v{b+15}, 0
    v_cmp_gt_u32 vcc, 512, v1
    v_cndmask_b32 v{b+12}, 0, v{b+12}, vcc
    v_cndmask_b32 v{b+13}, 0, v{b+13}, vcc
    v_cndmask_b32 v{b+14}, 0, v{b+14}, vcc
    s_add_u32 s30, s39, {36*1024}
    buffer_store_dwordx4 v[{b+12}:{b+15}], v{SV+2}, s[12:15], s30 offen sc1
    """)
```

```python
from asmlib import *
import gen as G
from t1 import *
P = G.P

def gen_k4():
    name = "k4_kernel"
    A = G.begin(name)
    def xreg(j, ks):
        if ks == 36: return 16 + 4 * j
        idx = j * 36 + ks
        if idx < 64: return 256 + 4 * idx
        return 24 + 4 * (idx - 64)
    accset = {0: 0, 1: 1, 2: 2, 3: 3, 4: 0, 5: 1, 6: 2, 7: 3, 8: 0}
    slot = {0: 0, 1: 1, 2: 2, 3: 3, 4: 0, 5: 1, 6: 2, 7: 3, 8: 0}
    accreg = lambda t, j: 88 + 32 * accset[t] + 16 * j
    t1 = T1(2, xreg, accreg, 56, 8, lambda t: slot[t], 2)
    A("""
    s_load_dwordx2 s[82:83], s[0:1], 72
    s_cmp_ge_u32 s2, 256
    s_cbranch_scc1 K4_END
    s_and_b32 s24, s2, 7
    s_lshl_b32 s24, s24, 2
    s_bfe_u32 s25, s2, 0x20003
    s_add_u32 s24, s24, s25            ; cb (0..31)
    s_lshr_b32 s25, s2, 5              ; rb8
    """)
    G.wave_id(A, 3)
    A(f"""
    v_and_b32 v1, 63, v0
    v_lshlrev_b32 v1, 4, v1
    v_mov_b32 v2, v1
    v_add_u32 v3, 0x10000, v1
    v_add_u32 v4, 0x20000, v1
    s_lshl_b32 s26, s25, 3
    s_lshl_b32 s27, s3, 1
    s_add_u32 s26, s26, s27
    s_lshl_b32 s21, s3, 10
    s_mul_i32 s22, s24, {9*G.T1S}
    s_add_u32 s22, s22, {G.W13}
    s_add_u32 s20, s22, s21
    s_mul_i32 s23, s26, 36864
    s_add_u32 s23, s23, {G.XF}
    s_lshl_b32 s29, s26, 11
    s_add_u32 s29, s29, {G.ST}
    v_bfe_u32 v5, v0, 4, 1
    v_mul_u32_u24 v5, {144*1024}, v5
    v_and_b32 v10, 15, v0
    v_lshlrev_b32 v10, 4, v10
    v_add_u32 v5, v5, v10
    v_bfe_u32 v10, v0, 5, 1
    v_lshlrev_b32 v10, 8, v10
    v_add_u32 v5, v5, v10
    s_mul_i32 s31, s26, {2*144*1024}
    s_mul_i32 s32, s24, {9*512}
    s_add_u32 s31, s31, s32
    s_add_u32 s31, s31, {G.HF}
    """)
    A.waitall()
    G.srd(A, 4, 82, G.WS_USED)
    def dma_tile_chunk(B, t, c, tag):
        if c < 9:
            dma(B, 20, t * G.T1S + c * 4096, 21, slot[t] * G.T1S + c * 4096, 1, tag)
        else:
            dma(B, 22, t * G.T1S + 36 * 1024, None, slot[t] * G.T1S + 36 * 1024, 1, tag)
    def issue(B, c):
        for t in range(3): dma_tile_chunk(B, t, c, f"c{c}")
        if c < 9:
            for q in range(4):
                for j in range(2):
                    B(f"s_add_u32 s30, s23, {j*36864 + c*4096}")
                    B(f"buffer_load_dwordx4 {r(xreg(j, 4*c+q), 4)}, v1, s[4:7], s30 offen offset:{q*1024}", tag=f"x{4*c+q}")
    AHEAD = P.get("k4_ahead", 2)
    issue(A, 0)
    stats_load(A, 2, 29, 216, 10)
    for c in range(1, AHEAD): issue(A, c)
    SC = Asm()
    SC.wait("st")
    SC("v_cmp_gt_u32 vcc, 512, v1")
    for j in range(2):
        stats_compute(SC, 216 + 16 * j, 12, 8 + j, 10)
        build_xext(SC, 12, 16 + 4 * j, 13)
        SC(f"v_rsq_f32 v{6+j}, v{8+j}")
        SC(f"v_mul_f32 v{6+j}, {hex(G.f32(-LOG2E))}, v{6+j}")
    def epilogue(t):
        E = Asm()
        for j in range(2):
            acc = accreg(t, j)
            tm = 216 + 20 * j
            for i in range(8): E(f"v_mul_f32 v{tm+i}, v{acc+i}, v{6+j}")
            for i in range(8): E(f"v_exp_f32 v{tm+i}, v{tm+i}")
            for i in range(8): E(f"v_mul_f32 v{tm+8+i}, v{acc+i}, v{acc+8+i}")
            for i in range(8): E(f"v_fma_f32 v{tm+i}, v{tm+i}, v{8+j}, v{8+j}")
            for i in range(8): E(f"v_rcp_f32 v{tm+i}, v{tm+i}")
            for i in range(8): E(f"v_mul_f32 v{tm+8+i}, v{tm+8+i}, v{tm+i}")
            for i in range(4): E(f"v_cvt_pk_bf16_f32 v{tm+16+i}, v{tm+8+2*i}, v{tm+9+2*i}")
            E(f"s_add_u32 s33, s31, {j*2*144*1024 + t*512}")
            E(f"buffer_store_dwordx4 v[{tm+16}:{tm+19}], v5, s[4:7], s33 offen sc1")
        return E.ins
    items = [(t, ks) for ks in range(37) for t in range(3)] + [(t, ks) for t in range(3, 9) for ks in range(37)]
    DIST = 6
    M = Asm()
    marks = {}
    def pre_read(i):
        t, ks = items[i]
        if t == 0 and ks % 4 == 0:
            M.wait(f"c{ks//4}"); M("s_barrier")
        if t >= 3 and ks == 0:
            M.wait(f"t{t}"); M("s_barrier")
            if t in (5, 6):
                marks[("dma", t + 2)] = len(M.ins)
        t1.read(M, i, t, ks)
    for i in range(DIST): pre_read(i)
    for i, (t, ks) in enumerate(items):
        if t == 0 and ks % 4 == 0: marks[("chunk", ks // 4)] = len(M.ins)
        if i + DIST < len(items): pre_read(i + DIST)
        if ks == 0 and t >= 3:
            M.stamp(t + 2)
            marks[("tile", t)] = len(M.ins)
        if t == 0 and ks in (0, 8, 16, 24, 32): M.stamp(ks // 8)
        M.wait(f"wf{i}", f"x{ks}")
        t1.mfmas(M, i, t, ks)
        if t == 3 and ks == 2:
            M("s_barrier")
            marks[("dma", 4)] = len(M.ins)
    def dmas(t):
        B = Asm()
        for c in range(10): dma_tile_chunk(B, t, c, f"t{t}")
        return groups_vm(B.ins)
    S_ = Sched(M.ins)
    for c in range(AHEAD, 10):
        B = Asm(); issue(B, c)
        S_.release(marks[("chunk", c - AHEAD)], "vm", groups_vm(B.ins), every=P.get("k4_e0", 1))
    S_.release(marks[("chunk", 10 - AHEAD)], "vm", dmas(3))
    S_.release(marks[("chunk", 1)], "va", groups_1(SC.ins))
    EV = P.get("k4_e1", 3)
    S_.release(marks[("tile", 3)], "va", groups_1(epilogue(0) + epilogue(1) + epilogue(2)), skip=3)
    S_.release(marks[("dma", 4)], "vm", dmas(4) + dmas(5) + dmas(6), every=EV)
    S_.release(marks[("dma", 7)], "vm", dmas(7))
    S_.release(marks[("dma", 8)], "vm", dmas(8))
    for t in range(4, 9):
        S_.release(marks[("tile", t)], "va", groups_1(epilogue(t - 1)), skip=3)
    out, rest = S_.run(cap=P.get("k4_cap", 24), vm_cost=P.get("k4_vmc", 16))
    A.ins += out
    A.ins += rest
    A.stamp(11)
    A.ins += epilogue(8)
    A.stamp(12)
    A.label("K4_END")
    A("s_endpgm")
    check_order(A.ins, accreg)
    check_tags(A.ins)
    G.end(A, name, 512, 256)
    return (name, 256, 256, 4 * G.T1S)

def check_order(ins, accreg):
    pend = {}
    for k, i in enumerate(ins):
        t = i.text
        if t.startswith("v_mfma"):
            an = analyze(t)
            d = an["D"][0][1]
            if t.rstrip().endswith(", 0"):
                assert not pend.get(d), f"acc v{d} restarted before epilogue read it"
            pend[d] = set(range(d, d + 16))
        elif t.startswith("v_"):
            an = analyze(t)
            for f, n in an["rd"]:
                if f == "v":
                    for d in pend: pend[d].discard(n)
```

```python
from asmlib import *
import gen as G

def t2_path(A, NT, KS, pfx, DEPTH):
    nsteps = (KS + 3) // 4
    partial_last = (KS % 4) != 0
    ACC = 32
    RES = 16
    VA, VW = 2, 6
    NL = 4 + NT
    buf = lambda st, i: 256 + (st % DEPTH) * 36 + 4 * i
    for t in range(NT):
        so, im = (28, t * 1024) if t < 4 else (29, 0)
        A(f"buffer_load_dwordx2 v[{RES+2*t}:{RES+2*t+1}], v11, s[4:7], s{so} offen offset:{im}", tag="res")
    import os
    if os.environ.get("STAMPS"):
        A.wait("res")
        A.stamp(13)
    def loads(st):
        for i in range(4):
            A(f"buffer_load_dwordx4 {r(buf(st, i), 4)}, v{VA+i}, s[4:7], s20 offen", tag=f"l{st}")
        for t in range(NT):
            A(f"buffer_load_dwordx4 {r(buf(st, 4+t), 4)}, v{VW+t}, s[4:7], s21 offen", tag=f"l{st}")
        A("s_add_u32 s20, s20, 4096")
        A("s_add_u32 s21, s21, 4096")
    for st in range(min(DEPTH, nsteps)): loads(st)
    A.stamp(0)
    for st in range(nsteps):
        A.wait(f"l{st}")
        if st in (0, 1, 2, 4, 8, 16, 24, 32): A.stamp(1 + (0, 1, 2, 4, 8, 16, 24, 32).index(st))
        if partial_last and st == nsteps - 1:
            A(f"s_cmp_ge_u32 s3, {KS % 4}")
            A(f"s_cbranch_scc1 {pfx}_SKIP")
        M = Asm()
        for mt in range(4):
            for t in range(NT):
                acc = ACC + 4 * (mt * NT + t)
                c = "0" if st == 0 else f"v[{acc}:{acc+3}]"
                M(f"v_mfma_f32_16x16x32_bf16 v[{acc}:{acc+3}], {r(buf(st, 4+t), 4)}, {r(buf(st, mt), 4)}, {c}")
        A.extend(M)
        if st + DEPTH < nsteps: loads(st + DEPTH)
    if partial_last:
        A.label(f"{pfx}_SKIP")
    A("s_nop 7")
    A.stamp(9)
    for mt in range(4):
        for t in range(NT):
            acc = ACC + 4 * (mt * NT + t)
            A(f"ds_write_b128 v12, v[{acc}:{acc+3}] offset:{(mt*5+t)*1024}")
    A.waitall(vm=False)
    A("s_barrier")
    A.stamp(10)
    for src in range(4):
        for t in range(NT):
            d = ACC + 4 * (src * NT + t)
            A(f"ds_read_b128 v[{d}:{d+3}], v13 offset:{(src*20+t)*1024 if src < 3 else (t*1024)}" if src < 3 else
              f"ds_read_b128 v[{d}:{d+3}], v14 offset:{t*1024}", tag=f"rd{src}")
    A.wait("res")
    X = ACC + 16 * NT
    for t in range(NT):
        for j in range(2):
            A(f"v_lshlrev_b32 v{X+4*t+2*j}, 16, v{RES+2*t+j}")
            A(f"v_and_b32 v{X+4*t+2*j+1}, 0xffff0000, v{RES+2*t+j}")
    for src in range(4):
        A.wait(f"rd{src}")
        for i in range(4 * NT):
            A(f"v_add_f32 v{X+i}, v{X+i}, v{ACC+4*src*NT+i}")
    for i in range(2 * NT):
        A(f"v_cvt_pk_bf16_f32 v{RES+i}, v{X+2*i}, v{X+2*i+1}")
    A.stamp(11)
    A("s_cmp_lg_u32 s40, 0")
    A(f"s_cbranch_scc1 {pfx}_FINAL")
    A.save(pfx + "fin")
    for t in range(NT):
        so, im = (28, t * 1024) if t < 4 else (29, 0)
        A(f"buffer_store_dwordx2 v[{RES+2*t}:{RES+2*t+1}], v11, s[4:7], s{so} offen offset:{im} sc1")
    for i in range(2 * NT):
        A(f"v_lshlrev_b32 v{X+2*i}, 16, v{RES+i}")
        A(f"v_and_b32 v{X+2*i+1}, 0xffff0000, v{RES+i}")
    def xreduce(dst):
        A(f"v_mov_b32 v28, v{dst}")
        A(f"v_permlane16_swap_b32 v{dst}, v28")
        A(f"v_add_f32 v{dst}, v{dst}, v28")
        A(f"v_mov_b32 v28, v{dst}")
        A(f"v_permlane32_swap_b32 v{dst}, v28")
        A(f"v_add_f32 v{dst}, v{dst}, v28")
    A(f"v_add_f32 v26, v{X}, v{X+1}")
    for i in range(2, 4 * NT): A(f"v_add_f32 v26, v26, v{X+i}")
    xreduce(26)
    A(f"v_mul_f32 v26, {hex(G.f32(1.0/(16*NT)))}, v26")
    A("v_mov_b32 v27, 0")
    for i in range(4 * NT):
        A(f"v_sub_f32 v{X+i}, v{X+i}, v26")
        A(f"v_fmac_f32 v27, v{X+i}, v{X+i}")
    xreduce(27)
    A("buffer_store_dwordx2 v[26:27], v15, s[4:7], s30 offen sc1")
    A("s_endpgm")
    A.label(f"{pfx}_FINAL")
    A.restore(pfx + "fin")
    for t in range(NT):
        A(f"buffer_store_dwordx2 v[{RES+2*t}:{RES+2*t+1}], v29, s[8:11], s31 offen offset:{t*32}")
    A("s_endpgm")

def gen_t2(names, KS, ACT, WP, pfx, DEPTH=6):
    A = Asm()
    for i, (n, fl) in enumerate(names):
        A.raw(f".globl {n}\n.p2align 8\n.type {n},@function")
        A.label(n)
        A(f"s_mov_b32 s40, {fl}")
        if i < len(names) - 1: A(f"s_branch {pfx}_BODY")
    A.label(f"{pfx}_BODY")
    A(f"""
    s_load_dwordx2 s[82:83], s[0:1], 72
    s_load_dwordx2 s[78:79], s[0:1], 56
    s_cmp_ge_u32 s2, 256
    s_cbranch_scc1 {pfx}_END
    s_and_b32 s24, s2, 7
    s_lshr_b32 s25, s2, 3
    s_lshr_b32 s26, s24, 1
    s_lshl_b32 s26, s26, 3
    s_and_b32 s27, s25, 7
    s_add_u32 s26, s26, s27            ; rg
    s_and_b32 s27, s24, 1
    s_lshl_b32 s27, s27, 2
    s_lshr_b32 s28, s25, 3
    s_add_u32 s27, s27, s28            ; cg
    s_lshr_b32 s32, s27, 1
    s_mul_i32 s32, s32, 9
    s_and_b32 s33, s27, 1
    s_lshl_b32 s34, s33, 2
    s_add_u32 s32, s32, s34            ; nt0
    """)
    G.wave_id(A, 3)
    A(f"""
    v_and_b32 v1, 63, v0
    v_lshlrev_b32 v2, 4, v1
    v_add_u32 v3, {KS*1024}, v2
    v_add_u32 v4, {2*KS*1024}, v2
    v_add_u32 v5, {3*KS*1024}, v2
    v_mov_b32 v6, v2
    v_mov_b32 v7, v3
    v_mov_b32 v8, v4
    v_mov_b32 v9, v5
    v_add_u32 v10, {4*KS*1024}, v2
    s_lshl_b32 s34, s3, 10
    s_mul_i32 s20, s26, {4*KS*1024}
    s_add_u32 s20, s20, {ACT}
    s_add_u32 s20, s20, s34
    s_mul_i32 s21, s32, {KS*1024}
    s_add_u32 s21, s21, {WP}
    s_add_u32 s21, s21, s34
    v_and_b32 v11, 15, v1
    v_lshlrev_b32 v11, 4, v11
    v_lshrrev_b32 v12, 5, v1
    v_lshlrev_b32 v12, 9, v12
    v_add_u32 v11, v11, v12
    v_bfe_u32 v12, v1, 4, 1
    v_lshlrev_b32 v12, 3, v12
    v_add_u32 v11, v11, v12
    s_lshl_b32 s28, s26, 1
    s_lshr_b32 s29, s3, 1
    s_add_u32 s28, s28, s29            ; rb32
    s_mul_i32 s28, s28, 36
    s_add_u32 s28, s28, s32
    s_lshl_b32 s28, s28, 10
    s_and_b32 s29, s3, 1
    s_lshl_b32 s29, s29, 8
    s_add_u32 s28, s28, s29
    s_add_u32 s28, s28, {G.XF}
    s_add_u32 s29, s28, 4096
    s_mul_i32 s34, s3, 20480
    v_add_u32 v12, s34, v2
    s_mul_i32 s34, s3, 5120
    v_add_u32 v13, s34, v2
    v_add_u32 v14, 61440, v13
    v_and_b32 v15, 15, v1
    v_mul_u32_u24 v29, 1152, v15
    v_lshlrev_b32 v15, 6, v15
    s_lshl_b32 s34, s26, 2
    s_add_u32 s34, s34, s3             ; rb16
    s_lshl_b32 s30, s34, 10
    s_lshl_b32 s35, s27, 3
    s_add_u32 s30, s30, s35
    s_add_u32 s30, s30, {G.ST}
    v_lshrrev_b32 v28, 4, v1
    v_lshlrev_b32 v28, 3, v28
    v_add_u32 v29, v29, v28
    s_mul_i32 s31, s34, 18432
    s_lshl_b32 s35, s32, 5
    s_add_u32 s31, s31, s35
    """)
    A.waitall()
    A.stamp(12)
    G.srd(A, 4, 82, G.WS_USED)
    G.srd(A, 8, 78, G.S * G.D * 2)
    A("s_cmp_lg_u32 s33, 0")
    A(f"s_cbranch_scc1 {pfx}_N5")
    A.save("n5")
    t2_path(A, 4, KS, pfx + "A", DEPTH)
    A.label(f"{pfx}_N5")
    A.restore("n5")
    t2_path(A, 5, KS, pfx + "B", DEPTH)
    A.label(f"{pfx}_END")
    A("s_endpgm")
    text = finalize(A)
    first = True
    for n, fl in names:
        G.kernels.append((n, text if first else "", 256 + 36 * DEPTH, 256, 96))
        first = False
```

```python
import sys, math, struct
from asmlib import *

NAME = "interleave_layers__softmax_full_mha__glu_gated_swiglu__prompt"
S, D, H, DH, F = 2048, 576, 32, 18, 4608

def al(x): return (x + 4095) // 4096 * 4096
off = 0
def region(n):
    global off
    o = off; off = al(off + n); return o
XF  = region(64 * 36 * 1024)
ST  = region(2048 * 64)
QM  = region(32 * 64 * 1024)
QE  = region(32 * 64 * 128)
KVH = 151552
KVG = 18944
KV  = region(32 * KVH + 8192)
OF  = region(128 * 18 * 1024)
HF  = region(128 * 144 * 1024)
T1S = 37 * 1024
WQ  = region(54 * T1S)
W13 = region(288 * T1S)
WO  = region(36 * 18 * 1024)
W2  = region(36 * 144 * 1024)
WS_USED = off

def f32(x): return struct.unpack("<I", struct.pack("<f", x))[0]

import os, json
P = json.loads(os.environ.get("GP", "{}"))
kernels = []
launches = []

def begin(name):
    A = Asm()
    A.raw(f".globl {name}\n.p2align 8\n.type {name},@function")
    A.label(name)
    return A

def end(A, name, nv, acc=None, ns=96):
    acc = acc if acc is not None else (nv + 3) // 4 * 4
    kernels.append((name, finalize(A), nv, acc, ns))

def srd(A, d, lo, nbytes):
    A(f"""
    s_mov_b32 s{d}, s{lo}
    s_and_b32 s{d+1}, s{lo+1}, 0xffff
    s_mov_b32 s{d+2}, {nbytes}
    s_mov_b32 s{d+3}, 0x00020000
    """)

def wave_id(A, sreg, vtmp=1):
    A(f"v_lshrrev_b32 v{vtmp}, 6, v0")
    A(f"v_readfirstlane_b32 s{sreg}, v{vtmp}")

def k0_units(A, nunits, rowstride, fA, fB, fC, D1, D2, unit_src, unit_dst, colsum, ext_dst=None, row_mode=None):
    A("""
    v_and_b32 v1, 63, v0
    v_lshrrev_b32 v2, 5, v1          ; g>>1
    v_lshlrev_b32 v2, 3, v2          ; 8*(g>>1)
    v_bfe_u32 v3, v1, 2, 2           ; t>>2
    v_add_u32 v2, v2, v3             ; kk (r=0)
    """)
    if row_mode == "woext":
        A("""
        v_lshrrev_b32 v3, 1, v2
        v_mul_u32_u24 v3, 18, v3
        v_and_b32 v2, 1, v2
        v_add_u32 v2, v2, v3
        """)
        r1add = 36 * rowstride
    else:
        r1add = 4 * rowstride
    A(f"s_mov_b32 s22, {rowstride}")
    A("v_mul_lo_u32 v2, v2, s22")
    A(f"""
    v_bfe_u32 v3, v1, 4, 1
    v_mul_u32_u24 v3, {2*fA}, v3
    v_add_u32 v2, v2, v3
    v_and_b32 v3, 1, v1
    v_mul_u32_u24 v3, {2*fB}, v3
    v_add_u32 v2, v2, v3
    v_bfe_u32 v3, v1, 1, 1
    v_mul_u32_u24 v3, {2*fC}, v3
    v_add_u32 v2, v2, v3
    v_add_u32 v3, {r1add}, v2
    """)
    A(f"""
    v_bfe_u32 v4, v1, 4, 1
    s_mov_b32 s22, {D1}
    v_mul_lo_u32 v4, v4, s22
    v_and_b32 v5, 15, v1
    v_lshlrev_b32 v5, 4, v5
    v_add_u32 v4, v4, v5
    v_lshrrev_b32 v5, 5, v1
    v_mul_u32_u24 v5, {D2}, v5
    v_add_u32 v4, v4, v5
    """)
    A("""
    s_mul_i32 s22, s3, 9216
    v_lshlrev_b32 v5, 3, v1
    v_add_u32 v5, s22, v5
    v_mov_b32 v6, 0
    s_mov_b32 s23, 0x3f803f80
    """)
    for u in range(nunits):
        A(f"s_add_u32 s22, s20, {unit_src(u)}")
        A(f"buffer_load_dwordx2 v[{16+4*u}:{17+4*u}], v2, s[8:11], s22 offen", tag=f"ld{u}")
        A(f"buffer_load_dwordx2 v[{18+4*u}:{19+4*u}], v3, s[8:11], s22 offen", tag=f"ld{u}")
    for u in range(nunits):
        A.wait(f"ld{u}")
        A(f"ds_write_b64 v5, v[{16+4*u}:{17+4*u}] offset:{u*1024}", tag=f"w{u}")
        A(f"ds_write_b64 v5, v[{18+4*u}:{19+4*u}] offset:{u*1024+512}", tag=f"w{u}")
    for u in range(nunits):
        A.wait(f"w{u}")
        A(f"ds_read_b64_tr_b16 v[{56+4*u}:{57+4*u}], v5 offset:{u*1024}", tag=f"r{u}")
        A(f"ds_read_b64_tr_b16 v[{58+4*u}:{59+4*u}], v5 offset:{u*1024+512}", tag=f"r{u}")
    for u in range(nunits):
        A.wait(f"r{u}")
        A(f"s_add_u32 s22, s21, {unit_dst(u)}")
        A(f"buffer_store_dwordx4 v[{56+4*u}:{59+4*u}], v4, s[4:7], s22 offen")
        if colsum:
            for j in range(4):
                A(f"v_dot2_f32_bf16 v6, v{56+4*u+j}, s23, v6")
    if colsum:
        A("""
        s_lshl_b32 s22, s3, 8
        v_lshlrev_b32 v7, 2, v1
        v_add_u32 v7, s22, v7
        s_nop 2
        ds_write_b32 v7, v6 offset:40960
        """)
        A.waitall(vm=False)
        A("s_barrier")
        A("s_cmp_lg_u32 s3, 0")
        A("s_cbranch_scc1 K0_END")
        A("""
        v_and_b32 v7, 31, v1
        v_lshlrev_b32 v7, 2, v7
        """)
        for j in range(8):
            A(f"ds_read_b32 v{8+j}, v7 offset:{40960 + j*128}")
        A.waitall(vm=False)
        A("""
        v_add_f32 v8, v8, v9
        v_add_f32 v10, v10, v11
        v_add_f32 v12, v12, v13
        v_add_f32 v14, v14, v15
        v_add_f32 v8, v8, v10
        v_add_f32 v12, v12, v14
        v_add_f32 v8, v8, v12
        v_sub_f32 v8, 0, v8               ; c = -colsum
        v_cvt_pk_bf16_f32 v9, v8, v8
        v_lshlrev_b32 v9, 16, v9          ; c1
        v_sub_f32 v8, v8, v9
        v_cvt_pk_bf16_f32 v10, v8, v8
        v_lshlrev_b32 v10, 16, v10        ; c2
        v_sub_f32 v11, v8, v10
        v_cvt_pk_bf16_f32 v12, v9, v10
        v_cvt_pk_bf16_f32 v13, v9, v11
        v_cvt_pk_bf16_f32 v14, v10, v9
        v_mov_b32 v15, 0
        v_cmp_gt_u32 vcc, 32, v1
        v_cndmask_b32 v12, 0, v12, vcc
        v_cndmask_b32 v13, 0, v13, vcc
        v_cndmask_b32 v14, 0, v14, vcc
        """)
        A(f"s_add_u32 s22, s21, {ext_dst}")
        A("buffer_store_dwordx4 v[12:15], v4, s[4:7], s22 offen")
    A("s_branch K0_END")

def gen_k0():
    name = "k0_kernel"
    A = begin(name)
    A("""
    s_load_dwordx16 s[64:79], s[0:1], 0
    s_load_dwordx4 s[80:83], s[0:1], 64
    """)
    wave_id(A, 3)
    A.waitall()
    srd(A, 4, 82, WS_USED)
    jobs = [("x", 64), ("qkm", 32), ("qke", 4), ("v", 18), ("wom", 18), ("woe", 2)]
    SIDE = P.get("side", 1)
    if not SIDE: jobs += [("w1", 144), ("w3", 144), ("w2", 144)]
    base = 0
    A("s_mov_b32 s24, s2")
    for jn, cnt in jobs:
        A(f"s_cmp_lt_u32 s24, {cnt}")
        A(f"s_cbranch_scc1 K0_{jn}")
        A(f"s_sub_u32 s24, s24, {cnt}")
        base += cnt
    A("s_branch K0_END")
    njobs = base
    A.label("K0_x")
    srd(A, 8, 64, S * D * 2)
    A("""
    v_and_b32 v1, 63, v0
    v_and_b32 v2, 31, v1
    v_mul_u32_u24 v2, 1152, v2
    v_lshrrev_b32 v3, 5, v1
    v_lshlrev_b32 v3, 4, v3
    v_add_u32 v2, v2, v3
    v_lshlrev_b32 v4, 4, v1
    s_mul_i32 s20, s24, 36864          ; rb*32*1152
    s_mul_i32 s22, s3, 288
    s_add_u32 s20, s20, s22
    s_mul_i32 s21, s24, 36864          ; rb*36*1024
    s_mul_i32 s22, s3, 9216
    s_add_u32 s21, s21, s22
    """)
    A(f"s_add_u32 s21, s21, {XF}")
    for u in range(9):
        A(f"buffer_load_dwordx4 v[{16+4*u}:{19+4*u}], v2, s[8:11], s20 offen offset:{u*32}", tag=f"x{u}")
    for u in range(9):
        A.wait(f"x{u}")
        A(f"s_add_u32 s22, s21, {u*1024}")
        A(f"buffer_store_dwordx4 v[{16+4*u}:{19+4*u}], v4, s[4:7], s22 offen")
        for j in range(4):
            A(f"v_lshlrev_b32 v{56+8*u+2*j}, 16, v{16+4*u+j}")
            A(f"v_and_b32 v{57+8*u+2*j}, 0xffff0000, v{16+4*u+j}")
    for p, (lo, hi, n) in enumerate([(56, 88, 64), (88, 128, 80)]):
        sm = 6 + 2 * p
        A(f"v_add_f32 v{sm}, v{lo}, v{lo+1}")
        for i in range(lo + 2, hi): A(f"v_add_f32 v{sm}, v{sm}, v{i}")
        A(f"v_mov_b32 v10, v{sm}")
        A(f"v_permlane32_swap_b32 v{sm}, v10")
        A(f"v_add_f32 v{sm}, v{sm}, v10")
        A(f"v_mul_f32 v{sm}, {hex(f32(1.0/n))}, v{sm}")
        A(f"v_mov_b32 v{sm+1}, 0")
        for i in range(lo, hi):
            A(f"v_sub_f32 v{i}, v{i}, v{sm}")
            A(f"v_fmac_f32 v{sm+1}, v{i}, v{i}")
        A(f"v_mov_b32 v10, v{sm+1}")
        A(f"v_permlane32_swap_b32 v{sm+1}, v10")
        A(f"v_add_f32 v{sm+1}, v{sm+1}, v10")
    A(f"""
    v_and_b32 v2, 31, v1
    v_lshlrev_b32 v2, 6, v2
    s_lshl_b32 s22, s24, 11
    s_lshl_b32 s23, s3, 4
    s_add_u32 s22, s22, s23
    s_add_u32 s22, s22, {ST}
    buffer_store_dwordx4 v[6:9], v2, s[4:7], s22 offen
    s_branch K0_END
    """)
    T1src = lambda rs: (lambda u: u * 16 * rs)
    T1dst = lambda u: u * 1024
    A.label("K0_qkm")
    srd(A, 8, 66, D * 3 * D * 2)
    A(f"""
    v_lshrrev_b32 v1, 5, v0
    v_mul_u32_u24 v1, {KVG}, v1
    v_and_b32 v2, 31, v0
    v_mul_u32_u24 v2, 304, v2
    v_add_u32 v1, v1, v2
    s_mul_i32 s22, s24, {KVH}
    s_add_u32 s22, s22, {KV + 9216 + 288}
    v_mov_b32 v8, 0x3f803f80
    v_mov_b32 v9, 0x3f803f80
    v_mov_b32 v10, 0x3f803f80
    v_mov_b32 v11, 0x3f803f80
    buffer_store_dwordx4 v[8:11], v1, s[4:7], s22 offen
    s_lshr_b32 s22, s24, 4
    s_mul_i32 s20, s22, 1152
    s_and_b32 s23, s24, 15
    s_mul_i32 s23, s23, 72
    s_add_u32 s20, s20, s23
    s_mul_i32 s23, s3, {9*16*3456}
    s_add_u32 s20, s20, s23
    s_mul_i32 s21, s24, {T1S}
    s_mul_i32 s23, s3, 9216
    s_add_u32 s21, s21, s23
    s_add_u32 s21, s21, {WQ}
    """)
    k0_units(A, 9, 3456, 20, 8, 4, 256, 512, T1src(3456), T1dst, True, 36 * 1024)
    A.label("K0_qke")
    srd(A, 8, 66, D * 3 * D * 2)
    A(f"""
    s_mul_i32 s20, s24, {8*72}
    s_add_u32 s20, s20, 32
    s_mul_i32 s23, s3, {9*16*3456}
    s_add_u32 s20, s20, s23
    s_mul_i32 s21, s24, {T1S}
    s_mul_i32 s23, s3, 9216
    s_add_u32 s21, s21, s23
    s_add_u32 s21, s21, {WQ + 32*T1S}
    """)
    k0_units(A, 9, 3456, 144, 36, 72, 256, 512, T1src(3456), T1dst, True, 36 * 1024)
    A.label("K0_v")
    srd(A, 8, 66, D * 3 * D * 2)
    A(f"""
    s_lshl_b32 s20, s24, 6
    s_add_u32 s20, s20, 2304
    s_mul_i32 s23, s3, {9*16*3456}
    s_add_u32 s20, s20, s23
    s_mul_i32 s21, s24, {T1S}
    s_mul_i32 s23, s3, 9216
    s_add_u32 s21, s21, s23
    s_add_u32 s21, s21, {WQ + 36*T1S}
    """)
    k0_units(A, 9, 3456, 16, 4, 8, 256, 512, T1src(3456), T1dst, True, 36 * 1024)
    for nm, ptr, add in (() if SIDE else (("w1", 72, 0), ("w3", 74, 256))):
        A.label(f"K0_{nm}")
        srd(A, 8, ptr, D * F * 2)
        A(f"""
        s_lshl_b32 s20, s24, 6
        s_mul_i32 s23, s3, {9*16*9216}
        s_add_u32 s20, s20, s23
        s_mul_i32 s21, s24, {2*T1S}
        s_mul_i32 s23, s3, 9216
        s_add_u32 s21, s21, s23
        s_add_u32 s21, s21, {W13 + add}
        """)
        k0_units(A, 9, 9216, 16, 8, 4, T1S, 512, T1src(9216), T1dst, True, 36 * 1024)
    if not SIDE:
        A.label("K0_w2")
        srd(A, 8, 76, D * F * 2)
        A(f"""
        s_mul_i32 s22, s24, 3641
        s_lshr_b32 s22, s22, 16             ; seg = j/18
        s_mul_i32 s23, s22, 18
        s_sub_u32 s23, s24, s23             ; strip
        s_mul_i32 s22, s22, 36
        s_mul_i32 s25, s3, 9
        s_add_u32 s22, s22, s25             ; U0
        s_mul_i32 s20, s22, {16*1152}
        s_lshl_b32 s25, s23, 6
        s_add_u32 s20, s20, s25
        s_lshl_b32 s21, s22, 9              ; U0*512
        s_mul_i32 s25, s23, {2*144*1024}
        s_add_u32 s21, s21, s25
        s_add_u32 s21, s21, {W2}
        """)
        k0_units(A, 9, 1152, 16, 4, 8, 144 * 1024, 256, lambda u: u * 16 * 1152, lambda u: u * 512, False)
    A.label("K0_wom")
    srd(A, 8, 68, D * D * 2)
    A(f"""
    s_mul_i32 s20, s3, {8*18*1152}
    s_lshl_b32 s25, s24, 6
    s_add_u32 s20, s20, s25
    s_lshl_b32 s21, s3, 12
    s_mul_i32 s25, s24, {2*18*1024}
    s_add_u32 s21, s21, s25
    s_add_u32 s21, s21, {WO}
    """)
    k0_units(A, 8, 1152, 16, 4, 8, 18 * 1024, 256, lambda u: u * 18 * 1152, lambda u: u * 512, False)
    A.label("K0_woe")
    srd(A, 8, 68, D * D * 2)
    A(f"""
    s_mul_i32 s20, s3, {144*1152}
    s_add_u32 s20, s20, {16*1152}
    s_mul_i32 s25, s24, {9*64}
    s_add_u32 s20, s20, s25
    s_lshl_b32 s21, s3, 9
    s_add_u32 s21, s21, {WO + 32*512}
    s_mul_i32 s25, s24, {9*2*18*1024}
    s_add_u32 s21, s21, s25
    """)
    k0_units(A, 9, 1152, 16, 4, 8, 18 * 1024, 256, lambda u: u * 64, lambda u: u * 2 * 18 * 1024, False, row_mode="woext")
    A.label("K0_END")
    A("s_endpgm")
    end(A, name, 128)
    launches.append((name, njobs, 256, 41984))

def emit(path):
    hdr = open(f"cdna_kernels/{NAME}.s.ref").read().split("; Override launch")[0]
    out = hdr
    for n, g, b, lds in launches:
        out += f"; @launch kernel={n} grid=({g},1,1) block=({b},1,1) lds={lds}\n"
    out += '.amdgcn_target "amdgcn-amd-amdhsa--gfx950"\n.text\n'
    for n, text, nv, acc, ns in kernels:
        out += text
    out += '.section .rodata,"a"\n'
    for n, text, nv, acc, ns in kernels:
        if n is None: continue
        out += f""".p2align 6
.amdhsa_kernel {n}
  .amdhsa_next_free_vgpr {nv}
  .amdhsa_next_free_sgpr {ns}
  .amdhsa_accum_offset {acc}
  .amdhsa_group_segment_fixed_size 0
  .amdhsa_kernarg_size 80
  .amdhsa_user_sgpr_count 2
  .amdhsa_user_sgpr_kernarg_segment_ptr 1
  .amdhsa_system_sgpr_workgroup_id_x 1
.end_amdhsa_kernel
"""
    open(path, "w").write(out)

if __name__ == "__main__":
    import gen as G2
    G2.main()
def main():
    import k1, k2, k4, t2
    gen_k0()
    L1 = k1.gen_k1(); L2 = k2.gen_k2("k2_kernel", False)
    L2a = k2.gen_k2("k2a_kernel", True) if P.get("side", 1) else L2
    t2.gen_t2([("k3_kernel", 0)], 18, OF, WO, "K3")
    L3 = ("k3_kernel", 256, 256, 81920)
    L4 = k4.gen_k4()
    t2.gen_t2([("k5a_kernel", 0), ("k5b_kernel", 1)], 144, HF, W2, "K5")
    L5a = ("k5a_kernel", 256, 256, 81920); L5b = ("k5b_kernel", 256, 256, 81920)
    launches.extend([L1, L2a, L3, L4, L5a, L1, L2, L3, L4, L5b])
    emit(sys.argv[1] if len(sys.argv) > 1 else f"cdna_kernels/{NAME}.s")
```

```python
import re

class I:
    __slots__ = ("text", "kind", "tag", "wait", "meta")
    def __init__(self, text, kind="", tag=None, wait=None):
        self.text = text; self.kind = kind; self.tag = tag; self.wait = wait

def v(n, c=1):
    return f"v{n}" if c == 1 else f"v[{n}:{n+c-1}]"
def a(n, c=1):
    return f"a{n}" if c == 1 else f"a[{n}:{n+c-1}]"
def s(n, c=1):
    return f"s{n}" if c == 1 else f"s[{n}:{n+c-1}]"
def r(n, c=1):
    if n >= 256:
        return a(n - 256, c)
    assert n + c <= 256
    return v(n, c)

_reg_re = re.compile(r"^-?\|?([vas])(?:(\d+)|\[(\d+):(\d+)\])\|?$")
def parse_reg(tok):
    tok = tok.strip()
    m = re.match(r"^(?:neg|abs)\((.*)\)$", tok)
    if m: tok = m.group(1)
    if tok == "vcc": return [("s", 106), ("s", 107)]
    if tok == "exec": return [("s", 126), ("s", 127)]
    if tok == "m0": return [("s", 124)]
    m = _reg_re.match(tok)
    if not m: return []
    f = m.group(1)
    if m.group(2) is not None:
        lo = hi = int(m.group(2))
    else:
        lo, hi = int(m.group(3)), int(m.group(4))
    return [(f, i) for i in range(lo, hi + 1)]

TRANS = ("v_exp_f32", "v_log_f32", "v_rcp_f32", "v_rsq_f32", "v_sqrt_f32", "v_sin_f32", "v_cos_f32")
def analyze(text):
    t = text.split(";")[0].strip()
    parts = t.split(None, 1)
    op = parts[0]
    ops = []
    mods = []
    if len(parts) > 1:
        depth = 0; cur = ""
        for ch in parts[1] + ",":
            if ch in "[(": depth += 1
            elif ch in "])": depth -= 1
            if ch == "," and depth == 0:
                p = cur.split()
                if p:
                    ops.append(p[0]); mods += p[1:]
                cur = ""
            else:
                cur += ch
    R = [parse_reg(o) for o in ops]
    d = dict(op=op, wr=set(), rd=set(), cls="other", mods=mods, passes=0, srcC=set(), srcAB=set(), D=None)
    def rd(*idx):
        for i in idx:
            if i < len(R): d["rd"].update(R[i])
    def wr(*idx):
        for i in idx:
            if i < len(R): d["wr"].update(R[i])
    n = len(R)
    if op.startswith("v_mfma"):
        d["cls"] = "mfma"
        wr(0); rd(1, 2, 3)
        d["srcC"] = set(R[3]); d["srcAB"] = set(R[1]) | set(R[2]); d["D"] = tuple(R[0]); d["C"] = tuple(R[3])
        d["passes"] = 8 if "32x32x16" in op or "32x32x8" in op else (4 if "16x16x32" in op or "16x16x16" in op else 16)
    elif op.startswith("v_cmp"):
        d["cls"] = "valu"; wr(0); rd(*range(1, n))
    elif op.startswith("v_readfirstlane") or op.startswith("v_readlane"):
        d["cls"] = "valu"; d["rdlane"] = True; wr(0); rd(*range(1, n))
    elif op.startswith("v_permlane"):
        d["cls"] = "valu"; d["perml"] = True; wr(0, 1); rd(0, 1)
    elif op.startswith("v_"):
        d["cls"] = "valu"
        wr(0); rd(*range(1, n))
        if op.startswith(("v_fmac", "v_dot2c", "v_pk_fmac")) or "UNUSED_PRESERVE" in t: rd(0)
        if op.startswith(("v_add_co", "v_sub_co", "v_addc_co")): wr(1)
        if op.startswith("v_cndmask") and n == 3: d["rd"].update(parse_reg("vcc"))
        if op.startswith(TRANS): d["trans"] = True
        if any(m.startswith(("row_", "quad_perm", "wave_")) for m in mods): d["dpp"] = True
    elif op.startswith("ds_read") or op.startswith("ds_bpermute") or op.startswith("ds_swizzle"):
        d["cls"] = "ds"; wr(0); rd(*range(1, n))
    elif op.startswith("ds_"):
        d["cls"] = "ds"; rd(*range(n))
    elif op.startswith("buffer_load") or op.startswith("global_load"):
        d["cls"] = "vmem"
        if "lds" in mods or "_lds_" in op:
            rd(*range(n)); d["rd"].update(parse_reg("m0")); d["ldsdma"] = True
        else:
            wr(0); rd(*range(1, n))
    elif op.startswith("buffer_") or op.startswith("global_"):
        d["cls"] = "vmem"; rd(*range(n))
        if ("x4" in op or "x3" in op) and "store" in op:
            d["widestore"] = set(R[0]) if op.startswith("buffer") else set(R[1])
    elif op.startswith("s_"):
        d["cls"] = "salu"
        if op.startswith(("s_cmp", "s_cbranch", "s_branch", "s_waitcnt", "s_barrier", "s_nop", "s_endpgm", "s_setprio", "s_sleep", "s_bitcmp")):
            rd(*range(n))
        else:
            wr(0); rd(*range(1, n))
            if "saveexec" in op: d["wr"].update(parse_reg("exec"))
    return d

def states_of(text):
    t = text.strip()
    m = re.match(r"s_nop\s+(\d+)", t)
    if m: return int(m.group(1)) + 1
    return 1

def need_states(p, c):
    need = 0
    pw = p["wr"]
    vw = {x for x in pw if x[0] in "va"}
    sw = {x for x in pw if x[0] == "s"}
    if p["cls"] == "valu":
        if c["cls"] == "mfma" and vw & c["rd"]: need = max(need, 2)
        if c.get("perml") and vw & c["rd"]: need = max(need, 2)
        if c.get("dpp") and vw & c["rd"]: need = max(need, 2)
        if c.get("rdlane") and vw & c["rd"]: need = max(need, 1)
        if p.get("trans") and c["cls"] in ("valu", "mfma") and not c.get("trans") and vw & (c["rd"]): need = max(need, 1)
        if p.get("trans") and c["cls"] in ("vmem", "ds") and vw & c["rd"]: need = max(need, 1)
        if sw:
            if c["cls"] == "vmem" and sw & c["rd"]: need = max(need, 5)
            if c["cls"] == "valu" and sw & c["rd"]: need = max(need, 4 if c.get("rdlane") else 2)
            if c["cls"] == "salu" and sw & c["rd"]: need = max(need, 1)
    if p["cls"] == "salu":
        if ("s", 124) in sw and c.get("ldsdma"): need = max(need, 1)
    if p["cls"] == "mfma":
        ps = p["passes"]
        big = {2: 5, 4: 8, 8: 12, 16: 20}[ps]
        ovl = {2: 4, 4: 6, 8: 10, 16: 18}[ps]
        war = {2: 1, 4: 3, 8: 7, 16: 15}[ps]
        if c["cls"] == "mfma":
            if vw & c["srcAB"]: need = max(need, big)
            if vw & c["srcC"]:
                if not (p["D"] == c["C"] and p["passes"] == c["passes"]): need = max(need, ovl)
            elif vw & c["wr"]: need = max(need, ovl)
        elif c["cls"] in ("valu", "vmem", "ds"):
            if vw & (c["rd"] | c["wr"]): need = max(need, big)
            if c["cls"] == "valu" and p["srcC"] & c["wr"]: need = max(need, war)
            if c["cls"] in ("vmem", "ds") and p["srcC"] & c["wr"]: need = max(need, war)
    if p.get("widestore") and c["cls"] in ("valu", "mfma") and p["widestore"] & c["wr"]: need = max(need, 2)
    if p.get("widestore") and c["cls"] in ("ds", "vmem") and p["widestore"] & c["wr"]: need = max(need, 1)
    return need

class Asm:
    def __init__(self):
        self.ins = []
    def __call__(self, text, tag=None):
        for line in text.strip().split("\n"):
            line = line.strip()
            if not line or line.startswith(";"): continue
            self.ins.append(I(line, tag=tag))
        return self
    def label(self, name):
        self.ins.append(I(name + ":", kind="label"))
    def raw(self, text):
        self.ins.append(I(text, kind="raw"))
    def wait(self, *tags):
        self.ins.append(I("", kind="wait", wait=tags))
    def waitall(self, vm=True, lgkm=True):
        self.ins.append(I("", kind="waitall", wait=(vm, lgkm)))
    def fence(self):
        self.ins.append(I("", kind="fence"))
    def save(self, name):
        self.ins.append(I("", kind="save", tag=name))
    def restore(self, name):
        self.ins.append(I("", kind="restore", tag=name))
    def stamp(self, i):
        import os
        if os.environ.get("STAMPS"):
            op = "s_memrealtime" if os.environ.get("STAMPS") == "rt" else "s_memtime"
            self.ins.append(I(f"{op} s[{44+2*i}:{45+2*i}]"))
    def extend(self, other):
        self.ins += other.ins

def interleave(main, fill, slots, start=0):
    out = []
    fi = 0
    seen = 0
    for ins in main:
        out.append(ins)
        b = slots(ins)
        if b > 0:
            seen += 1
            if seen <= start: continue
            while fi < len(fill) and b > 0:
                f, c = fill[fi]
                if c > b and b < slots(ins): break
                out.append(f); b -= c; fi += 1
    rest = [f for f, c in fill[fi:]]
    return out, rest

def cost(ins):
    if ins.kind in ("wait", "waitall", "fence", "label", "raw", "save", "restore"): return 0
    op = ins.text.split()[0]
    if op.startswith(TRANS): return 8
    if op.startswith("v_mfma"): return 8
    if op.startswith("v_"): return 4
    if op.startswith("s_"): return 1
    return 4

def finalize(asm):
    out = []
    vmq = []; lgq = []
    smem_out = False
    snaps = {}
    hist = []
    def push(text):
        an = analyze(text)
        need = 0
        dist = 0
        for p, st in reversed(hist):
            n = need_states(p, an)
            if n > dist: need = max(need, n - dist)
            dist += st
            if dist > 24: break
        while need > 0:
            k = min(need, 16)
            out.append(f"    s_nop {k-1}")
            hist.append((analyze(f"s_nop {k-1}"), k))
            need -= k
        out.append("    " + text)
        hist.append((an, states_of(text)))
        if len(hist) > 40: del hist[:10]
        return an
    for ins in asm.ins:
        if ins.kind == "label":
            out.append(ins.text); continue
        if ins.kind == "raw":
            out.append(ins.text); continue
        if ins.kind == "save":
            snaps[ins.tag] = (None if vmq is None else list(vmq), None if lgq is None else list(lgq), smem_out, list(hist))
            continue
        if ins.kind == "restore":
            a_, b_, smem_out, h_ = snaps[ins.tag]
            vmq = None if a_ is None else list(a_); lgq = None if b_ is None else list(b_)
            hist[:] = h_
            continue
        if ins.kind == "fence":
            vmq = None; lgq = None
            continue
        if ins.kind == "waitall":
            vm, lg = ins.wait
            p = []
            if vm and (vmq is None or vmq): p.append("vmcnt(0)")
            if lg and (lgq is None or lgq or smem_out): p.append("lgkmcnt(0)")
            if vm: vmq = []
            if lg: lgq = []; smem_out = False
            if p: push("s_waitcnt " + " ".join(p))
            continue
        if ins.kind == "wait":
            p = []
            assert vmq is not None and lgq is not None, "wait by tag after fence without waitall"
            idx = max([i for i, t in enumerate(vmq) if t in ins.wait], default=-1)
            if idx >= 0:
                n = len(vmq) - 1 - idx
                if n <= 63:
                    p.append(f"vmcnt({n})")
                    vmq = vmq[idx + 1:]
                else:
                    raise Exception("vmcnt overflow")
            idx = max([i for i, t in enumerate(lgq) if t in ins.wait], default=-1)
            if idx >= 0:
                n = len(lgq) - 1 - idx
                if smem_out: n = 0
                if n > 15: n = 15
                p.append(f"lgkmcnt({n})")
                lgq = lgq[len(lgq) - n:] if n else []
                if n == 0: smem_out = False
            if p: push("s_waitcnt " + " ".join(p))
            continue
        an = push(ins.text)
        op = an["op"]
        if an["cls"] == "vmem" and not op.startswith(("buffer_wbl2", "buffer_inv")):
            if vmq is not None:
                vmq.append(ins.tag)
                if len(vmq) > 63: vmq = vmq[-63:]
        elif an["cls"] == "ds":
            if lgq is not None: lgq.append(ins.tag)
        elif op.startswith(("s_load", "s_memtime", "s_buffer_load", "s_memrealtime")):
            smem_out = True
            if lgq is not None: lgq.append(ins.tag)
        elif op == "s_waitcnt":
            m = re.search(r"vmcnt\((\d+)\)", ins.text)
            if m:
                n = int(m.group(1))
                if vmq is None:
                    if n == 0: vmq = []
                else: vmq = vmq[len(vmq) - n:] if n and len(vmq) > n else ([] if n == 0 else vmq)
            m = re.search(r"lgkmcnt\((\d+)\)", ins.text)
            if m:
                n = int(m.group(1))
                if n == 0: lgq = []; smem_out = False
                elif lgq is not None and not smem_out and len(lgq) > n: lgq = lgq[len(lgq) - n:]
    return "\n".join(out) + "\n"

class Sched:
    def __init__(self, main):
        self.main = main
        self.rel = {}
    def release(self, pos, q, groups, **kw):
        self.rel.setdefault(pos, []).append((q, groups, kw))
    def run(self, gap=24, cap=24, vm_every=1, vm_cost=16, ds_cost=12, wait_cost=4):
        out = []
        vm = []; va = []
        every = vm_every; credit = 1.0; skip = 0
        main = self.main
        follow = {}
        last = None
        for idx, ins in enumerate(main):
            if ins.text.startswith("v_mfma"):
                last = idx; follow[idx] = 0
            elif last is not None:
                if ins.kind == "wait": follow[last] += wait_cost
                elif ins.text.startswith("ds_"): follow[last] += ds_cost
                elif ins.text.startswith(("buffer_", "global_")): follow[last] += vm_cost
                else: follow[last] += cost(ins)
        for idx, ins in enumerate(main):
            for q, groups, kw in self.rel.get(idx, []):
                if q == "vm":
                    if kw.get("front"): vm = list(groups) + vm
                    else: vm += groups
                    if "every" in kw: every = kw["every"]
                else:
                    va += groups
                    skip = max(skip, kw.get("skip", 0))
                    if "cap" in kw: cap = kw["cap"]
            out.append(ins)
            if ins.text.startswith("v_mfma"):
                b = gap - follow[idx]
                credit = min(credit + 1.0 / every, 2.0) if vm else 1.0
                if vm and credit >= 1.0 and (b >= vm_cost or every <= 1):
                    out += vm.pop(0); credit -= 1.0; b -= vm_cost
                if skip > 0:
                    skip -= 1; continue
                b = min(b, cap)
                while va:
                    c = sum(vm_cost if i.text.startswith("buffer_") else cost(i) for i in va[0])
                    if c > b: break
                    out += va.pop(0); b -= c
        rest = [i for g in vm for i in g] + [i for g in va for i in g]
        return out, rest

def groups_vm(ins):
    gs = []; cur = []
    for i in ins:
        cur.append(i)
        if i.text.startswith(("buffer_", "global_")):
            gs.append(cur); cur = []
    if cur: gs.append(cur)
    return gs
def groups_1(ins):
    gs = []; cur = []
    for i in ins:
        cur.append(i)
        if not i.text.startswith("s_"):
            gs.append(cur); cur = []
    if cur: gs.append(cur)
    return gs

def check_tags(ins):
    waited = set()
    for i in ins:
        if i.kind == "wait": waited.update(i.wait)
        elif i.kind == "" and i.tag is not None:
            assert i.tag not in waited, f"tag {i.tag} issued after its wait"

def est(ins):
    if ins.kind == "wait" or ins.kind == "waitall": return 4
    if ins.kind: return 0
    t = ins.text
    if t.startswith("v_mfma_f32_32x32"): return 32
    if t.startswith("v_mfma"): return 16
    if t.startswith("ds_write_b128"): return 40
    if t.startswith("ds_"): return 14
    if t.startswith(("buffer_", "global_")): return 16
    if t.startswith("s_barrier"): return 40
    return cost(ins)

def pace(main, groups, interval, first=0):
    out = []; groups = list(groups); acc = interval - first; blocked = False
    for ins in main:
        out.append(ins)
        if ins.text.startswith("s_cbranch") : blocked = True
        if ins.kind == "label": blocked = False
        if ins.text.startswith("s_cmp"): continue
        acc += est(ins)
        if groups and acc >= interval and not blocked:
            out += groups.pop(0); acc = 0
    return out, groups
```

```python
from asmlib import *
import gen as G
from t1 import *
import k4 as K4M
P = G.P
QSCALE = (18 ** -0.5) * LOG2E
SK = P.get("sk", 1)
RED = 2 * G.T1S
LDS_BYTES = 163840


def signal(A, nflag_sgpr, store_tag):
    A.wait(store_tag)
    A("s_barrier")
    lab = f"SIG{signal.n}"; signal.n += 1
    A("s_cmp_lg_u32 s3, 0")
    A(f"s_cbranch_scc1 {lab}")
    A.raw("    s_mov_b64 exec, 1")
    A.raw("    v_mov_b32 v30, 0")
    A.raw("    v_mov_b32 v31, 1")
    A.raw(f"    buffer_store_dword v31, v30, s[4:7], s{nflag_sgpr} offen sc1")
    A.raw("    s_mov_b64 exec, -1")
    A.label(lab)
signal.n = 0

def poll(A, base_sgpr, n, allwaves=False):
    lab = f"POLL{poll.n}"; poll.n += 1
    if not allwaves:
        A("s_cmp_lg_u32 s3, 0")
        A(f"s_cbranch_scc1 {lab}_D")
    R = A.raw
    R(f"    v_and_b32 v30, {n-1}, v0")
    R("    v_lshlrev_b32 v30, 2, v30")
    R("    s_mov_b32 s39, 0x100000")
    R(f"{lab}:")
    R(f"    buffer_load_dword v31, v30, s[4:7], s{base_sgpr} offen sc1")
    R("    s_waitcnt vmcnt(0)")
    R("    v_cmp_eq_u32 vcc, 1, v31")
    R("    s_nop 1")
    R("    s_cmp_eq_u64 vcc, -1")
    R(f"    s_cbranch_scc1 {lab}_D")
    R(f"    s_sleep {P.get('sleep', 1)}")
    R("    s_sub_u32 s39, s39, 1")
    R("    s_cmp_lg_u32 s39, 0")
    R(f"    s_cbranch_scc1 {lab}")
    A.label(f"{lab}_D")
    if not allwaves: A("s_barrier")
poll.n = 0

def t2_decode(A):
    A("""
    s_and_b32 s24, s2, 7
    s_lshr_b32 s25, s2, 3
    s_lshr_b32 s80, s24, 1
    s_lshl_b32 s80, s80, 3
    s_and_b32 s27, s25, 7
    s_add_u32 s80, s80, s27            ; rg
    s_and_b32 s81, s24, 1
    s_lshl_b32 s81, s81, 2
    s_lshr_b32 s28, s25, 3
    s_add_u32 s81, s81, s28            ; cg
    s_lshr_b32 s82, s81, 1
    s_mul_i32 s82, s82, 9
    s_and_b32 s83, s81, 1
    s_lshl_b32 s34, s83, 2
    s_add_u32 s82, s82, s34            ; nt0
    """)

def t2_setup(A, KS, ACT, WP, xin, xout):
    A(f"""
    v_and_b32 v1, 63, v0
    v_lshlrev_b32 v1, 4, v1
    s_mov_b32 s34, s3
    """)
    for i in range(4):
        A(f"s_mul_i32 s35, s34, {KS*1024}")
        A(f"v_add_u32 v{2+i}, s35, v1")
        if i > 0:
            A(f"s_mul_i32 s35, s34, 15360")
            A(f"s_add_u32 s35, s35, {RED + (i-1)*5120}")
            A(f"v_add_u32 v{11+i}, s35, v1")
        A("s_add_u32 s34, s34, 1")
        A("s_and_b32 s34, s34, 3")
    A(f"""
    v_mov_b32 v6, v1
    v_add_u32 v7, {KS*1024}, v1
    v_add_u32 v8, {2*KS*1024}, v1
    v_add_u32 v9, {3*KS*1024}, v1
    v_add_u32 v10, {4*KS*1024}, v1
    s_lshl_b32 s34, s3, 10
    s_mul_i32 s20, s80, {4*KS*1024}
    s_add_u32 s20, s20, {ACT}
    s_add_u32 s20, s20, s34
    s_mul_i32 s21, s82, {KS*1024}
    s_add_u32 s21, s21, {WP}
    s_add_u32 s21, s21, s34
    v_and_b32 v11, 15, v0
    v_lshlrev_b32 v11, 4, v11
    v_bfe_u32 v28, v0, 5, 1
    v_lshlrev_b32 v28, 9, v28
    v_add_u32 v11, v11, v28
    v_bfe_u32 v28, v0, 4, 1
    v_lshlrev_b32 v28, 3, v28
    v_add_u32 v11, v11, v28
    s_lshl_b32 s28, s80, 1
    s_lshr_b32 s29, s3, 1
    s_add_u32 s28, s28, s29            ; rb32
    s_mul_i32 s28, s28, 36
    s_add_u32 s28, s28, s82
    s_lshl_b32 s28, s28, 10
    s_and_b32 s29, s3, 1
    s_lshl_b32 s29, s29, 8
    s_add_u32 s28, s28, s29
    s_add_u32 s28, s28, s42
    s_add_u32 s22, s28, {xout*G.XSZ}
    s_add_u32 s23, s22, 4096
    s_add_u32 s28, s28, {xin*G.XSZ}
    s_add_u32 s29, s28, 4096
    s_mul_i32 s34, s3, 15360
    s_add_u32 s34, s34, {RED}
    v_add_u32 v27, s34, v1
    v_and_b32 v15, 15, v0
    v_mul_u32_u24 v29, 1152, v15
    v_lshlrev_b32 v15, 6, v15
    s_lshl_b32 s34, s80, 2
    s_add_u32 s34, s34, s3             ; rb16
    s_lshl_b32 s30, s34, 10
    s_lshl_b32 s35, s81, 3
    s_add_u32 s30, s30, s35
    s_add_u32 s30, s30, s43
    s_add_u32 s36, s30, {xout*G.SSZ}
    v_bfe_u32 v28, v0, 4, 2
    v_lshlrev_b32 v28, 3, v28
    v_add_u32 v29, v29, v28
    s_mul_i32 s31, s34, 18432
    s_lshl_b32 s35, s82, 5
    s_add_u32 s31, s31, s35
    """)

DEPTH = 6
def t2_buf(st, i): return 256 + (st % DEPTH) * 36 + 4 * i
def t2_wload(A, NT, st):
    off = st * 4096
    A(f"s_add_u32 s37, s21, {off}")
    for t in range(NT):
        A(f"buffer_load_dwordx4 {r(t2_buf(st, 4+t), 4)}, v{6+t}, s[4:7], s37 offen", tag=f"l{st}")
def t2_aload(A, st, sc):
    A(f"s_add_u32 s37, s20, {st*4096}")
    for i in range(4):
        A(f"buffer_load_dwordx4 {r(t2_buf(st, i), 4)}, v{2+i}, s[4:7], s37 offen{sc}", tag=f"l{st}")

def t2_main(A, NT, KS, pfx, wpre, sc, extra_vm, mid_hook, st0):
    nsteps = (KS + 3) // 4
    partial_last = (KS % 4) != 0
    ACC, RES = 32, 16
    def stage_loads(st):
        B = Asm()
        if st >= wpre: t2_wload(B, NT, st)
        t2_aload(B, st, sc)
        return B.ins
    PRE = min(P.get("t2_pre", 2), nsteps)
    for st in range(PRE): A.ins += stage_loads(st)
    for t in range(NT):
        so, im = (28, t * 1024) if t < 4 else (29, 0)
        A(f"buffer_load_dwordx2 v[{RES+2*t}:{RES+2*t+1}], v11, s[4:7], s{so} offen offset:{im}{sc}", tag="res")
    M = Asm(); marks = {}
    for st in range(nsteps):
        marks[st] = len(M.ins)
        M.wait(f"l{st}")
        if st == 0 and st0 is not None: M.stamp(st0)
        if partial_last and st == nsteps - 1:
            M(f"s_cmp_ge_u32 s3, {KS % 4}")
            M(f"s_cbranch_scc1 {pfx}_SKIP")
        for mt in range(4):
            for t in range(NT):
                acc = ACC + 4 * (mt * NT + t)
                c = "0" if st == 0 else f"v[{acc}:{acc+3}]"
                M(f"v_mfma_f32_16x16x32_bf16 v[{acc}:{acc+3}], {r(t2_buf(st, 4+t), 4)}, {r(t2_buf(st, mt), 4)}, {c}")
    S_ = Sched(M.ins)
    first = []
    for st in range(PRE, min(DEPTH - 1, nsteps)): first += groups_vm(stage_loads(st))
    S_.release(0, "vm", first, every=1)
    for st in range(nsteps):
        n = st + DEPTH - 1
        if n < nsteps and n >= min(DEPTH - 1, nsteps):
            S_.release(marks[st], "vm", groups_vm(stage_loads(n)))
    out, rest = S_.run(gap=8, vm_every=1)
    check_tags(out + rest)
    assert not rest
    T = Asm()
    lastld = max(i for i, x in enumerate(out) if x.text.startswith("buffer_load"))
    A.ins += out[:lastld + 1]
    T.ins += out[lastld + 1:]
    if partial_last: T.label(f"{pfx}_SKIP")
    T("s_nop 7")
    for mt in range(1, 4):
        for t in range(NT):
            acc = ACC + 4 * (mt * NT + t)
            T(f"ds_write_b128 v{11+mt}, v[{acc}:{acc+3}] offset:{t*1024}")
    T.wait("res")
    X = ACC + 16 * NT
    for t in range(NT):
        for j in range(2):
            T(f"v_lshlrev_b32 v{X+4*t+2*j}, 16, v{RES+2*t+j}")
            T(f"v_and_b32 v{X+4*t+2*j+1}, 0xffff0000, v{RES+2*t+j}")
    for i in range(4 * NT): T(f"v_add_f32 v{X+i}, v{X+i}, v{ACC+i}")
    T.waitall(vm=False)
    T("s_barrier")
    tl, left = pace(T.ins, extra_vm or [], P.get("t2_pace", 70), first=P.get("t2_first", 100))
    A.ins += tl
    if left: print(pfx, "tail leftover", len(left))
    for g in left: A.ins += g
    left = []
    for k in range(3):
        for t in range(NT):
            d = ACC + 4 * ((k + 1) * NT + t)
            A(f"ds_read_b128 v[{d}:{d+3}], v27 offset:{k*5120+t*1024}", tag=f"rd{k}")
    for k in range(3):
        A.wait(f"rd{k}")
        for i in range(4 * NT):
            A(f"v_add_f32 v{X+i}, v{X+i}, v{ACC+4*(k+1)*NT+i}")
    for i in range(2 * NT):
        A(f"v_cvt_pk_bf16_f32 v{RES+i}, v{X+2*i}, v{X+2*i+1}")
    return X, RES, left

def t2_store(A, NT, X, RES):
    for t in range(NT):
        so, im = (22, t * 1024) if t < 4 else (23, 0)
        A(f"buffer_store_dwordx2 v[{RES+2*t}:{RES+2*t+1}], v11, s[4:7], s{so} offen offset:{im} sc1", tag="out")
    for i in range(2 * NT):
        A(f"v_lshlrev_b32 v{X+2*i}, 16, v{RES+i}")
        A(f"v_and_b32 v{X+2*i+1}, 0xffff0000, v{RES+i}")
    def xreduce(dst):
        A(f"v_mov_b32 v28, v{dst}")
        A(f"v_permlane16_swap_b32 v{dst}, v28")
        A(f"v_add_f32 v{dst}, v{dst}, v28")
        A(f"v_mov_b32 v28, v{dst}")
        A(f"v_permlane32_swap_b32 v{dst}, v28")
        A(f"v_add_f32 v{dst}, v{dst}, v28")
    A(f"v_add_f32 v26, v{X}, v{X+1}")
    A(f"v_add_f32 v27, v{X+2}, v{X+3}")
    for i in range(4, 4 * NT): A(f"v_add_f32 v{26+(i&1)}, v{26+(i&1)}, v{X+i}")
    A("v_add_f32 v26, v26, v27")
    xreduce(26)
    A(f"v_mul_f32 v26, {hex(G.f32(1.0/(16*NT)))}, v26")
    A("v_mov_b32 v27, 0")
    for i in range(4 * NT):
        A(f"v_sub_f32 v{X+i}, v{X+i}, v26")
        A(f"v_fmac_f32 v27, v{X+i}, v{X+i}")
    xreduce(27)
    A("buffer_store_dwordx2 v[26:27], v15, s[4:7], s36 offen sc1", tag="out")

def tile_dmas(tiles, slot_of, s_srcw, s_src, s_ldsw, tag):
    B = Asm()
    for t in tiles:
        for c in range(10):
            if c < 9: dma(B, s_srcw, t * G.T1S + c * 4096, s_ldsw, slot_of(t) * G.T1S + c * 4096, 1, tag(t), stmp=38)
            else: dma(B, s_src, t * G.T1S + 36 * 1024, None, slot_of(t) * G.T1S + 36 * 1024, 1, tag(t), stmp=38)
    return groups_vm(B.ins)

def k4_decode(A):
    A(f"""
    s_and_b32 s84, s2, 7
    s_lshl_b32 s84, s84, 2
    s_bfe_u32 s25, s2, 0x20003
    s_add_u32 s84, s84, s25            ; cb
    s_lshr_b32 s85, s2, 5              ; rb8
    s_lshl_b32 s78, s3, 10
    s_mul_i32 s76, s84, {9*G.T1S}
    s_add_u32 s76, s76, {G.W13}
    s_add_u32 s77, s76, s78
    """)

def k4_phase(A, tail_vm):
    def xreg(j, ks):
        if ks == 36: return 16 + 4 * j
        idx = j * 36 + ks
        if idx < 64: return 256 + 4 * idx
        return 24 + 4 * (idx - 64)
    sl = {0: 0, 1: 1, 2: 2, 3: 3, 4: 0, 5: 1, 6: 2, 7: 3, 8: 0}
    accreg = lambda t, j: 88 + 32 * sl[t] + 16 * j
    t1 = T1(2, xreg, accreg, 56, 8, lambda t: sl[t], 2)
    A(f"""
    v_mov_b32 v2, v1
    v_add_u32 v3, 0x10000, v1
    v_add_u32 v4, 0x20000, v1
    s_lshl_b32 s26, s85, 3
    s_lshl_b32 s27, s3, 1
    s_add_u32 s26, s26, s27
    s_mul_i32 s23, s26, 36864
    s_add_u32 s23, s23, s42
    s_add_u32 s23, s23, {G.XSZ}
    s_lshl_b32 s29, s26, 11
    s_add_u32 s29, s29, s43
    s_add_u32 s29, s29, {G.SSZ}
    v_bfe_u32 v5, v0, 4, 1
    v_mul_u32_u24 v5, {144*1024}, v5
    v_and_b32 v10, 15, v0
    v_lshlrev_b32 v10, 4, v10
    v_add_u32 v5, v5, v10
    v_bfe_u32 v10, v0, 5, 1
    v_lshlrev_b32 v10, 8, v10
    v_add_u32 v5, v5, v10
    s_mul_i32 s31, s26, {2*144*1024}
    s_mul_i32 s32, s84, {9*512}
    s_add_u32 s31, s31, s32
    s_add_u32 s31, s31, {G.HF}
    s_lshl_b32 s24, s26, 4
    s_add_u32 s24, s24, s41
    s_mul_i32 s79, s82, {144*1024}
    s_add_u32 s79, s79, {G.W2}
    s_add_u32 s79, s79, s78
    """)
    if SK: k5_decode(A)
    if not SK: A.stamp(2)
    poll(A, 24, 8, True)
    A.wait("w0", "w1", "w2", "t3")
    if not SK: A.stamp(3)
    def xl(B, ks):
        for j in range(2):
            B(f"s_add_u32 s30, s23, {j*36864 + (ks//4)*4096}")
            B(f"buffer_load_dwordx4 {r(xreg(j, ks), 4)}, v1, s[4:7], s30 offen offset:{(ks%4)*1024} sc1", tag=f"x{ks}")
    AHEAD = P.get("k4_ahead", 6)
    for ks in range(2): xl(A, ks)
    stats_load(A, 2, 29, 216, 10, " sc1")
    for ks in range(2, AHEAD): xl(A, ks)
    A("s_barrier")
    SC = Asm()
    SC.wait("st")
    SC("v_cmp_gt_u32 vcc, 512, v1")
    for j in range(2):
        stats_compute(SC, 216 + 16 * j, 12, 8 + j, 10)
        build_xext(SC, 12, 16 + 4 * j, 13)
        SC(f"v_rsq_f32 v{6+j}, v{8+j}")
        SC(f"v_mul_f32 v{6+j}, {hex(G.f32(-LOG2E))}, v{6+j}")
    def epilogue(t):
        E = Asm()
        for j in range(2):
            acc = accreg(t, j)
            tm = 216 + 20 * j
            for i in range(8): E(f"v_mul_f32 v{tm+i}, v{acc+i}, v{6+j}")
            for i in range(8): E(f"v_exp_f32 v{tm+i}, v{tm+i}")
            for i in range(8): E(f"v_mul_f32 v{tm+8+i}, v{acc+i}, v{acc+8+i}")
            for i in range(8): E(f"v_fma_f32 v{tm+i}, v{tm+i}, v{8+j}, v{8+j}")
            for i in range(8): E(f"v_rcp_f32 v{tm+i}, v{tm+i}")
            for i in range(8): E(f"v_mul_f32 v{tm+8+i}, v{tm+8+i}, v{tm+i}")
            for i in range(4): E(f"v_cvt_pk_bf16_f32 v{tm+16+i}, v{tm+8+2*i}, v{tm+9+2*i}")
            E(f"s_add_u32 s33, s31, {j*2*144*1024 + t*512}")
            E(f"buffer_store_dwordx4 v[{tm+16}:{tm+19}], v5, s[4:7], s33 offen sc1", tag="hout")
        return E.ins
    items = [(t, ks) for ks in range(37) for t in range(3)] + [(t, ks) for t in range(3, 9) for ks in range(37)]
    DIST = 6
    M = Asm(); marks = {}
    def pre_read(i):
        t, ks = items[i]
        if t >= 4 and ks == 0:
            M.wait(f"t{t}"); M("s_barrier")
            if t in (5, 6): marks[("dma", t + 2)] = len(M.ins)
        t1.read(M, i, t, ks)
    for i in range(DIST): pre_read(i)
    for i, (t, ks) in enumerate(items):
        if t == 0: marks[("ks", ks)] = len(M.ins)
        if t == 8: marks[("ks8", ks)] = len(M.ins)
        if i + DIST < len(items): pre_read(i + DIST)
        if ks == 0 and t >= 3:
            if t in (3, 6): M.stamp(5 if t == 3 else 6)
            marks[("tile", t)] = len(M.ins)
        M.wait(f"wf{i}", f"x{ks}")
        if i == 0: M.stamp(4)
        t1.mfmas(M, i, t, ks)
        if t == 3 and ks == 2:
            M("s_barrier")
            marks[("dma", 4)] = len(M.ins)
        if SK and t == 8 and ks == 8:
            M("s_barrier")
            marks[("q2",)] = len(M.ins)
    dm = lambda ts: tile_dmas(ts, lambda t: sl[t], 77, 76, 78, lambda t: f"t{t}")
    S_ = Sched(M.ins)
    B = Asm()
    for ks in range(AHEAD, 36): xl(B, ks)
    S_.release(0, "vm", groups_vm(B.ins), every=P.get("k4_e0", 2.5))
    S_.release(marks[("ks", 4)], "va", groups_1(SC.ins))
    S_.release(marks[("tile", 3)], "va", groups_1(epilogue(0) + epilogue(1) + epilogue(2)), skip=3)
    S_.release(marks[("dma", 4)], "vm", dm([4, 5, 6]), every=3)
    S_.release(marks[("dma", 7)], "vm", dm([7]))
    S_.release(marks[("dma", 8)], "vm", dm([8]))
    for t in range(4, 9):
        S_.release(marks[("tile", t)], "va", groups_1(epilogue(t - 1)), skip=3)
    def w2pre(st):
        B = Asm()
        for t in range(5):
            B(f"s_add_u32 s37, s79, {t*144*1024 + st*4096}")
            B(f"buffer_load_dwordx4 {r(t2_buf(st, 4+t), 4)}, v1, s[4:7], s37 offen", tag=f"l{st}")
        return groups_vm(B.ins)
    if SK:
        S_.release(marks[("ks8", 0)], "vm", k5_unit(0) + k5_unit(1) + k5_unit(2), every=2)
        S_.release(marks[("q2",)], "vm", k5_unit(3) + k5_unit(4) + k5_unit(5))
        out, rest = S_.run(cap=24, vm_cost=16)
        e8 = epilogue(8)
    else:
        S_.release(marks[("ks8", 9)], "vm", w2pre(0) + w2pre(4), every=2)
        S_.release(marks[("ks8", 18)], "vm", w2pre(1))
        S_.release(marks[("ks8", 27)], "vm", w2pre(2))
        out, rest = S_.run(cap=24, vm_cost=16)
        e8, left = pace(epilogue(8), w2pre(3), 40)
        assert not left
    lst = out + rest + e8
    K4M.check_order(lst, accreg)
    check_tags(lst)
    A.ins += lst
    A.stamp(7)

def k5_decode(A):
    A(f"""
    s_and_b32 s82, s2, 3
    s_bfe_u32 s80, s2, 0x10002
    s_lshl_b32 s80, s80, 3
    s_bfe_u32 s81, s2, 0x30003
    s_add_u32 s80, s80, s81            ; rg128
    s_lshr_b32 s81, s2, 6              ; cgp
    s_mul_i32 s79, s81, {9*144*1024}
    s_mul_i32 s83, s82, {36*1024}
    s_add_u32 s79, s79, s83
    s_add_u32 s79, s79, s78
    s_add_u32 s79, s79, {G.W2}
    s_add_u32 s19, s79, {4*144*1024}
    s_bitcmp1_b32 s82, 0               ; nh
    s_cselect_b32 s83, s79, s19
    s_cselect_b32 s19, s19, s79
    s_mov_b32 s79, s83
    s_mul_i32 s83, s3, 5120
    """)
def k5_reg(u): return ((u + 2) % 8) * 20480
def k5_unit(u, nt=5):
    B = Asm()
    for t in range(nt):
        dma(B, 79 if u < 9 else 19, t * 144 * 1024 + (u % 9) * 4096, 83, k5_reg(u) + t * 1024, 1, f"d{u}", stmp=38)
    return groups_vm(B.ins)

def flag_store(A, sgpr):
    lab = f"SIG{signal.n}"; signal.n += 1
    A("s_cmp_lg_u32 s3, 0")
    A(f"s_cbranch_scc1 {lab}")
    A.raw("    s_mov_b64 exec, 1")
    A.raw("    v_mov_b32 v30, 0")
    A.raw("    v_mov_b32 v31, 1")
    A.raw(f"    buffer_store_dword v31, v30, s[4:7], s{sgpr} offen sc1")
    A.raw("    s_mov_b64 exec, -1")
    A.label(lab)

def k5_path(A, nh, qt, NTAIL):
    NA, NB = (5, 4) if nh == 0 else (4, 5)
    ACCA, ACCB, WR, R, PB = 32, 72, 120, 12, 200
    def hreg(st, j):
        return 256 + 8 * st + 4 * j if st < 32 else 168 + 8 * (st - 32) + 4 * j
    def hl(B, st):
        B(f"s_add_u32 s30, s20, {(st//4)*4096}")
        for j in range(2):
            B(f"buffer_load_dwordx4 {r(hreg(st, j), 4)}, v{5+j}, s[4:7], s30 offen offset:{(st%4)*1024} sc1", tag=f"h{st}")
    AHEAD = P.get("k5_ahead", 8)
    for st in range(AHEAD): hl(A, st)
    A("s_barrier")
    items = [(0, st, t) for st in range(36) for t in range(NA)] + [(1, st, t) for st in range(36) for t in range(NB)]
    DIST = P.get("k5_dist", 9)
    M = Asm(); marks = {}
    def rd(i):
        ps, st, t = items[i]
        u = ps * 9 + st // 4
        if t == 0 and st % 4 == 0 and u % 2 == 0 and u >= 2:
            M.wait(f"d{u}", f"d{u+1}")
            if u == 12: M.wait("pa")
            M("s_barrier")
            if u == 12: flag_store(M, 24)
            marks[("B", u // 2)] = len(M.ins)
        off = k5_reg(u) + (st % 4) * 5120 + t * 1024
        w = WR + 4 * (i % R)
        M(f"ds_read_b128 v[{w}:{w+3}], v{2 + (off >> 16)} offset:{off & 0xffff}", tag=f"wf{i}")
    for i in range(DIST): rd(i)
    WG_ = 3
    for i, (ps, st, t) in enumerate(items):
        if t == 0: marks[("st", ps, st)] = len(M.ins)
        if (ps, st, t) == (1, 0, 0): M.stamp(13)
        if i + DIST < len(items): rd(i + DIST)
        tags = []
        if i % WG_ == 0: tags.append(f"wf{min(i + WG_ - 1, len(items) - 1)}")
        if ps == 0 and t == 0: tags.append(f"h{st}")
        if tags: M.wait(*tags)
        w = WR + 4 * (i % R)
        for j in range(2):
            acc = (ACCA + 4 * (j * NA + t)) if ps == 0 else (ACCB + 4 * (j * NB + t))
            c = "0" if st == 0 else f"v[{acc}:{acc+3}]"
            M(f"v_mfma_f32_16x16x32_bf16 v[{acc}:{acc+3}], v[{w}:{w+3}], {r(hreg(st, j), 4)}, {c}")
    S_ = Sched(M.ins)
    for st in range(AHEAD, 36):
        B = Asm(); hl(B, st)
        S_.release(marks[("st", 0, st - AHEAD)], "vm", groups_vm(B.ins), every=P.get("k5_e", 1.5))
    nxt = 8
    for k in range(1, 9):
        g = []
        while nxt <= min(2 * k + P.get('k5_lead', 4), 17):
            g += k5_unit(nxt, NA if nxt < 9 else NB); nxt += 1
        if g: S_.release(marks[("B", k)], "vm", g)
    def pstore(acc, n, sbase, tag):
        B = Asm()
        for t in range(n):
            if t == 4:
                B(f"s_add_u32 s30, s{sbase}, 4096")
                B(f"buffer_store_dwordx4 v[{acc+4*t}:{acc+4*t+3}], v1, s[4:7], s30 offen sc1", tag=tag)
            else:
                B(f"buffer_store_dwordx4 v[{acc+4*t}:{acc+4*t+3}], v1, s[4:7], s{sbase} offen offset:{t*1024} sc1", tag=tag)
        return groups_vm(B.ins)
    def pload(dst, n, k, tag):
        A(f"s_add_u32 s30, s21, {k*20480}")
        A(f"s_add_u32 s37, s21, {k*20480 + 4096}")
        for t in range(n):
            so, im = (30, t * 1024) if t < 4 else (37, 0)
            A(f"buffer_load_dwordx4 v[{dst+4*t}:{dst+4*t+3}], v1, s[4:7], s{so} offen offset:{im} sc1", tag=tag)
    RES = 16
    B = Asm()
    for t in range(NB):
        so, im = (28, t * 1024) if t < 4 else (29, 0)
        B(f"buffer_load_dwordx2 v[{RES+2*t}:{RES+2*t+1}], v11, s[4:7], s{so} offen offset:{im} sc1", tag="res")
    S_.release(marks[("st", 1, 1)], "vm", pstore(ACCA, NA, 16, "pa") + pstore(ACCA + 4 * NA, NA, 17, "pa") + groups_vm(B.ins), front=True)
    out, rest = S_.run(gap=8, vm_cost=8)
    assert not rest
    check_tags(out)
    A.ins += out
    A.stamp(10)
    A("s_nop 7")
    for g in pstore(ACCB + 4 * NB, NB, 18, "pb"): A.ins += g
    poll(A, 25, 2, True)
    if P.get("k5_wflag", 1):
        A.raw("    s_mov_b64 exec, 1")
        A.raw("    v_mov_b32 v30, 0")
        A.raw("    v_mov_b32 v31, 1")
        A.raw("    buffer_store_dword v31, v30, s[4:7], s26 offen sc1")
        A.raw("    s_mov_b64 exec, -1")
    pload(PB, NB, 0, "p0"); pload(PB + 20, NB, 1, "p1")
    if P.get("k5_wflag", 1):
        A("s_barrier")
    else:
        A("s_barrier")
        flag_store(A, 26)
    X = 32
    for t in range(NB):
        for j in range(2):
            A(f"v_lshlrev_b32 v{X+4*t+2*j}, 16, v{RES+2*t+j}")
            A(f"v_and_b32 v{X+4*t+2*j+1}, 0xffff0000, v{RES+2*t+j}")
    for i in range(4 * NB): A(f"v_add_f32 v{X+i}, v{X+i}, v{ACCB+i}")
    for g in qt()[:NTAIL]: A.ins += g
    poll(A, 27, 1, True)
    A.stamp(2)
    pload(WR, NB, 2, "p2")
    for k, b in ((0, PB), (1, PB + 20), (2, WR)):
        A.wait(f"p{k}")
        for i in range(4 * NB): A(f"v_add_f32 v{X+i}, v{X+i}, v{b+i}")
    for i in range(2 * NB):
        A(f"v_cvt_pk_bf16_f32 v{RES+i}, v{X+2*i}, v{X+2*i+1}")
    A.stamp(3)
    pfx = f"K5{nh}"
    A("s_cmp_lg_u32 s40, 0")
    A(f"s_cbranch_scc1 {pfx}_FINAL")
    A.save(pfx + "fin")
    t2_store(A, NB, X, RES)
    A("s_branch K5_DONE")
    A.save(pfx + "done")
    A.label(f"{pfx}_FINAL")
    A.restore(pfx + "fin")
    for t in range(NB):
        A(f"buffer_store_dwordx2 v[{RES+2*t}:{RES+2*t+1}], v29, s[8:11], s31 offen offset:{t*32}")
    A("s_endpgm")

def k5_phase(A, qt, NTAIL, NMID):
    A(f"""
    s_lshl_b32 s24, s85, 5
    s_add_u32 s24, s24, s84
    s_lshl_b32 s24, s24, 2
    s_add_u32 s24, s24, s41
    s_add_u32 s24, s24, 1024
    """)
    signal(A, 24, "hout")
    A.stamp(8)
    for g in k5_unit(6) + k5_unit(7): A.ins += g
    k1_decode(A, None)
    A(f"""
    s_lshr_b32 s32, s82, 1             ; mt_own
    s_and_b32 s33, s82, 1              ; nh
    s_lshl_b32 s34, s80, 2
    s_add_u32 s34, s34, s3
    s_mul_i32 s20, s34, {2*144*1024}
    s_mul_i32 s21, s82, {36*1024}
    s_add_u32 s20, s20, s21
    s_add_u32 s20, s20, {G.HF}
    s_mul_i32 s35, s32, {144*1024}
    v_add_u32 v5, s35, v1
    s_xor_b32 s35, s32, 1
    s_mul_i32 s35, s35, {144*1024}
    v_add_u32 v6, s35, v1
    s_lshl_b32 s27, s80, 2
    s_add_u32 s27, s27, s81            ; tile
    s_mul_i32 s21, s27, {4*61440}
    s_mul_i32 s35, s3, 5120
    s_add_u32 s21, s21, s35
    s_add_u32 s21, s21, {G.PART}
    s_mul_i32 s35, s32, 20480
    s_add_u32 s35, s35, s21
    s_xor_b32 s36, s82, 1
    s_mul_i32 s36, s36, 61440
    s_add_u32 s16, s35, s36
    s_xor_b32 s36, s82, 3
    s_mul_i32 s36, s36, 61440
    s_add_u32 s17, s35, s36
    s_xor_b32 s36, s82, 2
    s_mul_i32 s36, s36, 61440
    s_add_u32 s18, s21, s36
    s_add_u32 s18, s18, 40960
    s_mul_i32 s36, s82, 61440
    s_add_u32 s21, s21, s36
    s_lshl_b32 s35, s27, 5
    s_add_u32 s35, s35, s41
    s_add_u32 s35, s35, 4096
    s_lshl_b32 s36, s33, 3
    s_lshl_b32 s37, s32, 2
    s_add_u32 s24, s35, s36
    s_add_u32 s24, s24, s37
    s_add_u32 s26, s24, 16
    s_xor_b32 s27, s26, 4
    s_xor_b32 s36, s36, 8
    s_add_u32 s12, s35, s36
    s_mul_i32 s13, s81, 9
    s_lshl_b32 s35, s33, 2
    s_add_u32 s13, s13, s35            ; nt0
    v_and_b32 v11, 15, v0
    v_lshlrev_b32 v11, 4, v11
    v_bfe_u32 v28, v0, 5, 1
    v_lshlrev_b32 v28, 9, v28
    v_add_u32 v11, v11, v28
    v_bfe_u32 v28, v0, 4, 1
    v_lshlrev_b32 v28, 3, v28
    v_add_u32 v11, v11, v28
    s_mul_i32 s28, s34, 36
    s_add_u32 s28, s28, s13
    s_lshl_b32 s28, s28, 10
    s_lshl_b32 s29, s32, 8
    s_add_u32 s28, s28, s29
    s_add_u32 s28, s28, s42
    s_add_u32 s22, s28, {2*G.XSZ}
    s_add_u32 s23, s22, 4096
    s_add_u32 s28, s28, {G.XSZ}
    s_add_u32 s29, s28, 4096
    v_and_b32 v15, 15, v0
    v_mul_u32_u24 v29, 1152, v15
    v_lshlrev_b32 v15, 6, v15
    s_lshl_b32 s35, s34, 1
    s_add_u32 s35, s35, s32            ; rb16
    s_lshl_b32 s36, s35, 10
    s_lshl_b32 s37, s81, 1
    s_add_u32 s37, s37, s33
    s_lshl_b32 s37, s37, 3
    s_add_u32 s36, s36, s37
    s_add_u32 s36, s36, s43
    s_add_u32 s36, s36, {2*G.SSZ}
    v_bfe_u32 v28, v0, 4, 2
    v_lshlrev_b32 v28, 3, v28
    v_add_u32 v29, v29, v28
    s_mul_i32 s31, s35, 18432
    s_lshl_b32 s37, s13, 5
    s_add_u32 s31, s31, s37
    s_lshr_b32 s25, s80, 1
    s_lshl_b32 s25, s25, 2
    s_add_u32 s25, s25, s82
    s_lshl_b32 s25, s25, 5
    s_add_u32 s25, s25, s41
    s_add_u32 s25, s25, 1024
    """)
    if P.get("k5_wflag", 1):
        A(f"""
        s_sub_u32 s26, s24, s41
        s_sub_u32 s26, s26, 4096
        s_lshr_b32 s27, s26, 5
        s_lshl_b32 s27, s27, 6             ; tile*64
        s_and_b32 s26, s26, 12
        s_lshl_b32 s26, s26, 2             ; idx*16
        s_add_u32 s26, s26, s27
        s_lshl_b32 s27, s3, 2
        s_add_u32 s26, s26, s27
        s_add_u32 s26, s26, s41
        s_add_u32 s26, s26, 16384
        s_xor_b32 s27, s26, 16
        """)
    poll(A, 25, 8, True)
    A.wait(*[f"d{u}" for u in range(8)])
    A("s_mov_b32 s25, s12")
    A.stamp(9)
    A("s_cmp_lg_u32 s33, 0")
    A("s_cbranch_scc1 K5_N1")
    A.save("k5n1")
    k5_path(A, 0, qt, NTAIL)
    A.label("K5_N1"); A.restore("k5n1")
    k5_path(A, 1, qt, NTAIL)
    A.label("K5_DONE")
    A.restore("K51done")
    A("s_lshl_b32 s24, s80, 2")
    A("s_add_u32 s24, s24, s81")
    A("s_lshl_b32 s24, s24, 2")
    A("s_add_u32 s24, s24, s82")
    A("s_lshl_b32 s24, s24, 2")
    A("s_add_u32 s24, s24, s41")
    A("s_add_u32 s24, s24, 2048")
    for g in qt()[NTAIL:NTAIL+NMID]: A.ins += g
    signal(A, 24, "out")
    A.stamp(11)
    A("s_cmp_ge_u32 s87, 15")
    A("s_cbranch_scc1 CH_END")
    for g in qt()[NTAIL+NMID:]: A.ins += g

def k1_decode(A, endlab):
    A(f"""
    s_and_b32 s24, s2, 7
    s_lshr_b32 s25, s2, 3
    s_lshr_b32 s86, s24, 1
    s_lshl_b32 s86, s86, 2
    s_and_b32 s27, s25, 3
    s_add_u32 s86, s86, s27            ; rg
    s_and_b32 s87, s24, 1
    s_lshl_b32 s87, s87, 3
    s_lshr_b32 s38, s25, 2
    s_add_u32 s87, s87, s38            ; cg
    s_lshl_b32 s78, s3, 10
    s_lshl_b32 s38, s87, 2
    s_mul_i32 s39, s87, 3
    s_add_u32 s39, s39, 9
    s_cmp_ge_u32 s87, 9
    s_cselect_b32 s38, s39, s38
    s_mul_i32 s76, s38, {G.T1S}
    s_add_u32 s76, s76, {G.WQ}
    s_add_u32 s77, s76, s78
    """)

def k1_main(A, NT, swapped, sc):
    xreg = lambda j, ks: (256 + 4 * ks) if ks < 36 else 8
    t1 = T1(1, xreg, lambda t, j: 64 + 16 * t, 32, 8, lambda t: t, 2, swapped)
    def xl(B, ks):
        B(f"s_add_u32 s30, s23, {(ks//4)*4096}")
        B(f"buffer_load_dwordx4 {r(xreg(0, ks), 4)}, v1, s[4:7], s30 offen offset:{(ks%4)*1024}{sc}", tag=f"x{ks}")
    AHEAD = P.get("k1_ahead", 10)
    for ks in range(2): xl(A, ks)
    stats_load(A, 1, 29, 16, 12, sc)
    for ks in range(2, AHEAD): xl(A, ks)
    A("s_barrier")
    SC = Asm()
    SC.wait("st")
    stats_compute(SC, 16, 5, 6, 12)
    SC("v_cmp_gt_u32 vcc, 512, v1")
    build_xext(SC, 5, 8, 12)
    SC("v_rsq_f32 v6, v6")
    items = [(t, ks) for ks in range(37) for t in range(NT)]
    DIST = 6
    M = Asm(); marks = {}
    for i in range(DIST): t1.read(M, i, *items[i])
    for i, (t, ks) in enumerate(items):
        if t == 0: marks[ks] = len(M.ins)
        if i + DIST < len(items): t1.read(M, i + DIST, *items[i + DIST])
        M.wait(f"wf{i}", f"x{ks}")
        if i == 0: M.stamp(14)
        t1.mfmas(M, i, t, ks)
    S_ = Sched(M.ins)
    B = Asm()
    for ks in range(AHEAD, 36): xl(B, ks)
    S_.release(0, "vm", groups_vm(B.ins), every=P.get("k1_e0", 2.5))
    S_.release(marks[3], "va", groups_1(SC.ins))
    out, rest = S_.run(cap=24, vm_cost=8)
    assert not rest
    check_tags(out)
    A.ins += out
    A.stamp(15)

def k1_phase(A, L, xidx, do_poll):
    sc = " sc1" if do_poll else ""
    A(f"""
    v_mov_b32 v2, v1
    v_add_u32 v3, 0x10000, v1
    v_add_u32 v4, 0x20000, v1
    s_lshl_b32 s26, s86, 2
    s_add_u32 s26, s26, s3             ; rb
    s_mov_b32 s27, s87
    s_mul_i32 s23, s26, 36864
    s_add_u32 s23, s23, s42
    s_add_u32 s23, s23, {xidx*G.XSZ}
    s_lshl_b32 s29, s26, 11
    s_add_u32 s29, s29, s43
    s_add_u32 s29, s29, {xidx*G.SSZ}
    s_lshr_b32 s31, s26, 3
    s_mul_i32 s31, s31, {G.KVG}
    s_add_u32 s31, s31, {G.KV}
    s_lshr_b32 s24, s26, 1
    s_lshl_b32 s24, s24, 5
    s_add_u32 s24, s24, s41
    s_add_u32 s24, s24, 2048
    """)
    if do_poll:
        if SK:
            A("s_lshl_b32 s24, s86, 6")
            A("s_add_u32 s24, s24, s41")
            A("s_add_u32 s24, s24, 2048")
        A.stamp(12)
        poll(A, 24, 16 if SK else 8, True)
        A.wait("q0", "q1", "q2", "q3")
    A(f"s_cmp_ge_u32 s27, 9")
    A(f"s_cbranch_scc1 {L}_V")
    A.save(L + "v")
    def pre():
        if not do_poll:
            pass
    k1_main_w(A, 4, False, sc, do_poll)
    A("s_cmp_eq_u32 s27, 8")
    A(f"s_cbranch_scc1 {L}_EXT")
    A.save(L + "ext")
    ST_ = P.get("k1_st", "")
    A(f"""
    s_and_b32 s32, s27, 3
    s_lshl_b32 s32, s32, 3
    s_lshl_b32 s33, s26, 10
    s_add_u32 s33, s33, {G.QM}
    s_and_b32 s34, s26, 7
    s_lshl_b32 s34, s34, 10
    s_add_u32 s34, s34, s31
    s_cmp_lt_u32 s27, 4
    s_cselect_b32 s33, s33, s34
    s_mov_b32 s35, {G.KVH}
    s_cselect_b32 s35, 65536, s35
    s_mov_b32 s36, {hex(G.f32(QSCALE))}
    s_cselect_b32 s36, s36, 1.0
    s_mul_i32 s32, s32, s35
    s_add_u32 s33, s33, s32
    v_mul_f32 v6, s36, v6
    """)
    for t in range(4):
        acc = 64 + 16 * t
        for e in range(2):
            for i in range(8): A(f"v_mul_f32 v{acc+8*e+i}, v{acc+8*e+i}, v6")
            for i in range(4): A(f"v_cvt_pk_bf16_f32 v{128+8*t+4*e+i}, v{acc+8*e+2*i}, v{acc+8*e+2*i+1}")
            A(f"buffer_store_dwordx4 v[{128+8*t+4*e}:{128+8*t+4*e+3}], v1, s[4:7], s33 offen{ST_}")
            A("s_add_u32 s33, s33, s35")
    A("s_endpgm")
    A.label(f"{L}_EXT")
    A.restore(L + "ext")
    A(f"""
    v_and_b32 v12, 31, v0
    v_bfe_u32 v13, v0, 5, 1
    v_lshlrev_b32 v14, 2, v12
    v_mul_u32_u24 v15, 16384, v13
    v_add_u32 v14, v14, v15
    v_lshlrev_b32 v15, 4, v12
    s_mov_b32 s32, {2*G.KVH}
    v_mul_lo_u32 v13, v13, s32
    v_add_u32 v15, v15, v13
    s_lshl_b32 s33, s26, 7
    s_add_u32 s33, s33, {G.QE}
    s_bfe_u32 s34, s26, 0x10002
    s_lshl_b32 s34, s34, 9
    s_and_b32 s35, s26, 3
    s_lshl_b32 s35, s35, 2
    s_add_u32 s34, s34, s35
    s_add_u32 s34, s34, s31
    s_add_u32 s34, s34, 8192
    v_mul_f32 v7, {hex(G.f32(QSCALE))}, v6
    """)
    for t in range(4):
        acc = 64 + 16 * t
        sc_ = 7 if t < 2 else 6
        e = t & 1
        for i in range(16): A(f"v_mul_f32 v{acc+i}, v{acc+i}, v{sc_}")
        for i in range(8): A(f"v_cvt_pk_bf16_f32 v{128+8*t+i}, v{acc+2*i}, v{acc+2*i+1}")
        for i in range(8):
            g, par = i >> 1, i & 1
            hd = 16 * e + 4 * g + par
            if t < 2:
                A(f"s_add_u32 s30, s33, {hd*8192}")
                A(f"buffer_store_dword v{128+8*t+i}, v14, s[4:7], s30 offen")
            else:
                A(f"s_add_u32 s30, s34, {hd*G.KVH}")
                A(f"buffer_store_dword v{128+8*t+i}, v15, s[4:7], s30 offen")
    A("s_endpgm")
    A.label(f"{L}_V")
    A.restore(L + "v")
    k1_main_w(A, 3, True, sc, do_poll)
    A(f"""
    v_and_b32 v12, 31, v0
    v_lshlrev_b32 v13, 2, v12
    s_lshl_b32 s32, s3, 7
    s_add_u32 s32, s32, {4*G.T1S}
    v_add_u32 v13, s32, v13
    ds_write_b32 v13, v6
    v_bfe_u32 v14, v0, 5, 1
    v_lshlrev_b32 v13, 4, v14
    v_add_u32 v13, s32, v13
    """)
    A.waitall(vm=False)
    for g in range(4):
        A(f"ds_read_b128 v[{16+4*g}:{19+4*g}], v13 offset:{g*32}")
    A(f"""
    s_sub_u32 s32, s27, 9
    s_mul_i32 s32, s32, 96
    v_add_u32 v12, s32, v12
    v_mul_u32_u24 v14, 304, v14
    s_and_b32 s33, s26, 7
    s_mul_i32 s33, s33, 1216
    s_add_u32 s33, s33, s31
    s_add_u32 s33, s33, 9216
    s_mov_b32 s34, {G.KVH}
    """)
    A.waitall(vm=False)
    for t in range(3):
        acc = 64 + 16 * t
        A(f"""
        v_mul_u32_u24 v13, 3641, v12
        v_lshrrev_b32 v13, 16, v13
        v_mul_u32_u24 v15, 18, v13
        v_sub_u32 v15, v12, v15
        v_mul_lo_u32 v13, v13, s34
        v_lshlrev_b32 v15, 4, v15
        v_add3_u32 v{7+t}, v13, v15, v14
        v_add_u32 v12, 32, v12
        """)
        for i in range(16): A(f"v_mul_f32 v{acc+i}, v{acc+i}, v{16+i}")
        for i in range(8): A(f"v_cvt_pk_bf16_f32 v{128+8*t+i}, v{acc+2*i}, v{acc+2*i+1}")
        for e in range(2):
            A(f"buffer_store_dwordx4 v[{128+8*t+4*e}:{128+8*t+4*e+3}], v{7+t}, s[4:7], s33 offen offset:{e*608}{ST_}")
    A("s_endpgm")

def k1_main_w(A, NT, swapped, sc, prefetched):
    if prefetched:
        k1_main(A, NT, swapped, sc)
    else:
        k1_main_stream(A, NT, swapped)

def k1_main_stream(A, NT, swapped):
    xreg = lambda j, ks: (256 + 4 * ks) if ks < 36 else 8
    t1 = T1(1, xreg, lambda t, j: 64 + 16 * t, 32, 8, lambda t: t, 2, swapped)
    def issue(B, c):
        for t in range(NT):
            if c < 9: dma(B, 77, t * G.T1S + c * 4096, 78, t * G.T1S + c * 4096, 1, f"c{c}", stmp=38)
            else: dma(B, 76, t * G.T1S + 36 * 1024, None, t * G.T1S + 36 * 1024, 1, f"c{c}", stmp=38)
        if c < 9:
            for q in range(4):
                B(f"s_add_u32 s30, s23, {c*4096}")
                B(f"buffer_load_dwordx4 {r(xreg(0, 4*c+q), 4)}, v1, s[4:7], s30 offen offset:{q*1024}", tag=f"x{4*c+q}")
    AHEAD = P.get("k1s_ahead", 3)
    issue(A, 0)
    stats_load(A, 1, 29, 16, 12, "")
    for c in range(1, AHEAD): issue(A, c)
    SC = Asm()
    SC.wait("st")
    stats_compute(SC, 16, 5, 6, 12)
    SC("v_cmp_gt_u32 vcc, 512, v1")
    build_xext(SC, 5, 8, 12)
    SC("v_rsq_f32 v6, v6")
    items = [(t, ks) for ks in range(37) for t in range(NT)]
    DIST = 6
    M = Asm(); marks = {}
    def pre_read(i):
        t, ks = items[i]
        if t == 0 and ks % 4 == 0:
            M.wait(f"c{ks//4}"); M("s_barrier")
        t1.read(M, i, t, ks)
    for i in range(DIST): pre_read(i)
    for i, (t, ks) in enumerate(items):
        if t == 0: marks[ks] = len(M.ins)
        if i + DIST < len(items): pre_read(i + DIST)
        M.wait(f"wf{i}", f"x{ks}")
        if i == 0: M.stamp(14)
        t1.mfmas(M, i, t, ks)
    S_ = Sched(M.ins)
    for c in range(AHEAD, 10):
        B = Asm(); issue(B, c)
        S_.release(marks[4 * (c - AHEAD)], "vm", groups_vm(B.ins), every=1)
    S_.release(marks[3], "va", groups_1(SC.ins))
    out, rest = S_.run(cap=24, vm_cost=16)
    assert not rest
    check_tags(out)
    A.ins += out
    A.stamp(15)

def gen_k1s():
    name = "k1_kernel"
    A = G.begin(name)
    A(f"""
    s_load_dwordx2 s[12:13], s[0:1], 72
    s_cmp_ge_u32 s2, 256
    s_cbranch_scc1 K1S_END
    s_mov_b32 s42, {G.XF}
    s_mov_b32 s43, {G.ST}
    s_mov_b32 s41, 0
    """)
    G.wave_id(A, 3)
    k1_decode(A, "K1S_END")
    A("""
    s_cmp_ge_u32 s87, 15
    s_cbranch_scc1 K1S_END
    v_and_b32 v1, 63, v0
    v_lshlrev_b32 v1, 4, v1
    """)
    A.waitall()
    G.srd(A, 4, 12, G.WS_USED)
    k1_phase(A, "K1S", 0, False)
    A.label("K1S_END")
    A("s_endpgm")
    G.end(A, name, 400, 256)
    return (name, 256, 256, LDS_BYTES)

def gen_chain():
    A = Asm()
    names = [("kca_kernel", 0), ("kcb_kernel", 1)]
    for i, (n, fl) in enumerate(names):
        A.raw(f".globl {n}\n.p2align 8\n.type {n},@function")
        A.label(n)
        A(f"s_mov_b32 s40, {fl}")
        A(f"s_mov_b32 s41, {G.FLG + fl*8192}")
        A(f"s_mov_b32 s42, {G.XF + 2*fl*G.XSZ}")
        A(f"s_mov_b32 s43, {G.ST + 2*fl*G.SSZ}")
        if i < len(names) - 1: A("s_branch CH_BODY")
    A.label("CH_BODY")
    A("""
    s_load_dwordx2 s[12:13], s[0:1], 72
    s_load_dwordx2 s[14:15], s[0:1], 56
    s_cmp_ge_u32 s2, 256
    s_cbranch_scc1 CH_END
    """)
    G.wave_id(A, 3)
    t2_decode(A)
    t2_setup(A, 18, G.OF, G.WO, 0, 1)
    k4_decode(A)
    A.waitall()
    G.srd(A, 4, 12, G.WS_USED)
    G.srd(A, 8, 14, G.S * G.D * 2)
    sl4 = lambda t: t
    NTAIL = P.get("t2_ntail", 16)
    A("s_cmp_lg_u32 s83, 0")
    A("s_cbranch_scc1 K3_N5")
    A.save("k3n5")
    wt = lambda: tile_dmas([0, 1, 2, 3], sl4, 77, 76, 78, lambda t: f"w{t}" if t < 3 else "t3")
    for NT, pfx in ((4, "K3A"), (5, "K3B")):
        if NT == 5:
            A.label("K3_N5"); A.restore("k3n5")
        X, RES, left = t2_main(A, NT, 18, pfx, 0, "", wt()[:NTAIL], None, 0)
        assert not left
        t2_store(A, NT, X, RES)
        if NT == 4: A("s_branch K3_DONE")
    A.label("K3_DONE")
    A("s_lshl_b32 s24, s80, 3")
    A("s_add_u32 s24, s24, s81")
    A("s_lshl_b32 s24, s24, 2")
    A("s_add_u32 s24, s24, s41")
    NMID = P.get("t2_nmid", 4)
    assert NTAIL + NMID <= 20
    for g in wt()[NTAIL:NTAIL+NMID]: A.ins += g
    signal(A, 24, "out")
    A.stamp(1)
    for g in wt()[NTAIL+NMID:]: A.ins += g
    k4_phase(A, None)
    qt = lambda: tile_dmas([0, 1, 2, 3], sl4, 77, 76, 78, lambda t: f"q{t}")
    if SK:
        k5_phase(A, qt, P.get("k5_ntail", 0), P.get("k5_nmid", 4))
    else:
        A("s_lshl_b32 s24, s85, 5")
        A("s_add_u32 s24, s24, s84")
        A("s_lshl_b32 s24, s24, 2")
        A("s_add_u32 s24, s24, s41")
        A("s_add_u32 s24, s24, 1024")
        t2_setup(A, 144, G.HF, G.W2, 1, 2)
        signal(A, 24, "hout")
        A.stamp(8)
        k1_decode(A, None)
        A("s_lshr_b32 s25, s80, 2")
        A("s_lshl_b32 s25, s25, 7")
        A("s_add_u32 s25, s25, s41")
        A("s_add_u32 s25, s25, 1024")
        WPRE = 5
        poll(A, 25, 32, True)
        A.stamp(9)
        A("s_cmp_lg_u32 s83, 0")
        A("s_cbranch_scc1 K5_N5")
        A.save("k5n5")
        qt = lambda: tile_dmas([0, 1, 2, 3], sl4, 77, 76, 78, lambda t: f"q{t}")
        for NT, pfx in ((4, "K5A"), (5, "K5B")):
            if NT == 5:
                A.label("K5_N5"); A.restore("k5n5")
            X, RES, left = t2_main(A, NT, 144, pfx, WPRE, " sc1", qt()[:NTAIL], None, None)
            assert not left
            A.stamp(10)
            A("s_cmp_lg_u32 s40, 0")
            A(f"s_cbranch_scc1 {pfx}_FINAL")
            A.save(pfx + "fin")
            t2_store(A, NT, X, RES)
            A("s_branch K5_DONE")
            A.save(pfx + "done")
            A.label(f"{pfx}_FINAL")
            A.restore(pfx + "fin")
            for t in range(NT):
                A(f"buffer_store_dwordx2 v[{RES+2*t}:{RES+2*t+1}], v29, s[8:11], s31 offen offset:{t*32}")
            A("s_endpgm")
        A.label("K5_DONE")
        A.restore("K5Bdone")
        A("s_lshl_b32 s24, s80, 3")
        A("s_add_u32 s24, s24, s81")
        A("s_lshl_b32 s24, s24, 2")
        A("s_add_u32 s24, s24, s41")
        A("s_add_u32 s24, s24, 2048")
        for g in qt()[NTAIL:NTAIL+NMID]: A.ins += g
        signal(A, 24, "out")
        A.stamp(11)
        A("s_cmp_ge_u32 s87, 15")
        A("s_cbranch_scc1 CH_END")
        for g in qt()[NTAIL+NMID:]: A.ins += g
    k1_phase(A, "K1C", 2, True)
    A.label("CH_END")
    A("s_endpgm")
    text = finalize(A)
    first = True
    for n, fl in names:
        G.kernels.append((n, text if first else "", 512, 256, 96))
        first = False
    return [(n, 256, 256, LDS_BYTES) for n, fl in names]
```

```python
import sys, math, struct
from asmlib import *

NAME = "interleave_layers__softmax_full_mha__glu_gated_swiglu__prompt"
S, D, H, DH, F = 2048, 576, 32, 18, 4608

def al(x): return (x + 4095) // 4096 * 4096
off = 0
def region(n):
    global off
    o = off; off = al(off + n); return o
XSZ = 64 * 36 * 1024
SSZ = 2048 * 64
XF  = region(4 * XSZ)
ST  = region(4 * SSZ)
FLG = region(32768)
QM  = region(32 * 64 * 1024)
QE  = region(32 * 64 * 128)
KVH = 151552
KVG = 18944
KV  = region(32 * KVH + 8192)
OF  = region(128 * 18 * 1024)
HF  = region(128 * 144 * 1024)
T1S = 37 * 1024
WQ  = region(54 * T1S)
W13 = region(288 * T1S)
WO  = region(36 * 18 * 1024)
W2  = region(36 * 144 * 1024)
PART = region(64 * 4 * 3 * 4 * 5120)
WS_USED = off

def f32(x): return struct.unpack("<I", struct.pack("<f", x))[0]

import os, json
P = json.loads(os.environ.get("GP", "{}"))
kernels = []
launches = []

def begin(name):
    A = Asm()
    A.raw(f".globl {name}\n.p2align 8\n.type {name},@function")
    A.label(name)
    return A

def end(A, name, nv, acc=None, ns=96):
    acc = acc if acc is not None else (nv + 3) // 4 * 4
    kernels.append((name, finalize(A), nv, acc, ns))

def srd(A, d, lo, nbytes):
    A(f"""
    s_mov_b32 s{d}, s{lo}
    s_and_b32 s{d+1}, s{lo+1}, 0xffff
    s_mov_b32 s{d+2}, {nbytes}
    s_mov_b32 s{d+3}, 0x00020000
    """)

def wave_id(A, sreg, vtmp=1):
    A(f"v_lshrrev_b32 v{vtmp}, 6, v0")
    A(f"v_readfirstlane_b32 s{sreg}, v{vtmp}")

def k0_units(A, nunits, rowstride, fA, fB, fC, D1, D2, unit_src, unit_dst, colsum, ext_dst=None, row_mode=None):
    A("""
    v_and_b32 v1, 63, v0
    v_lshrrev_b32 v2, 5, v1          ; g>>1
    v_lshlrev_b32 v2, 3, v2          ; 8*(g>>1)
    v_bfe_u32 v3, v1, 2, 2           ; t>>2
    v_add_u32 v2, v2, v3             ; kk (r=0)
    """)
    if row_mode == "woext":
        A("""
        v_lshrrev_b32 v3, 1, v2
        v_mul_u32_u24 v3, 18, v3
        v_and_b32 v2, 1, v2
        v_add_u32 v2, v2, v3
        """)
        r1add = 36 * rowstride
    else:
        r1add = 4 * rowstride
    A(f"s_mov_b32 s22, {rowstride}")
    A("v_mul_lo_u32 v2, v2, s22")
    A(f"""
    v_bfe_u32 v3, v1, 4, 1
    v_mul_u32_u24 v3, {2*fA}, v3
    v_add_u32 v2, v2, v3
    v_and_b32 v3, 1, v1
    v_mul_u32_u24 v3, {2*fB}, v3
    v_add_u32 v2, v2, v3
    v_bfe_u32 v3, v1, 1, 1
    v_mul_u32_u24 v3, {2*fC}, v3
    v_add_u32 v2, v2, v3
    v_add_u32 v3, {r1add}, v2
    """)
    A(f"""
    v_bfe_u32 v4, v1, 4, 1
    s_mov_b32 s22, {D1}
    v_mul_lo_u32 v4, v4, s22
    v_and_b32 v5, 15, v1
    v_lshlrev_b32 v5, 4, v5
    v_add_u32 v4, v4, v5
    v_lshrrev_b32 v5, 5, v1
    v_mul_u32_u24 v5, {D2}, v5
    v_add_u32 v4, v4, v5
    """)
    A("""
    s_mul_i32 s22, s3, 9216
    v_lshlrev_b32 v5, 3, v1
    v_add_u32 v5, s22, v5
    v_mov_b32 v6, 0
    s_mov_b32 s23, 0x3f803f80
    """)
    for u in range(nunits):
        A(f"s_add_u32 s22, s20, {unit_src(u)}")
        A(f"buffer_load_dwordx2 v[{16+4*u}:{17+4*u}], v2, s[8:11], s22 offen", tag=f"ld{u}")
        A(f"buffer_load_dwordx2 v[{18+4*u}:{19+4*u}], v3, s[8:11], s22 offen", tag=f"ld{u}")
    for u in range(nunits):
        A.wait(f"ld{u}")
        A(f"ds_write_b64 v5, v[{16+4*u}:{17+4*u}] offset:{u*1024}", tag=f"w{u}")
        A(f"ds_write_b64 v5, v[{18+4*u}:{19+4*u}] offset:{u*1024+512}", tag=f"w{u}")
    for u in range(nunits):
        A.wait(f"w{u}")
        A(f"ds_read_b64_tr_b16 v[{56+4*u}:{57+4*u}], v5 offset:{u*1024}", tag=f"r{u}")
        A(f"ds_read_b64_tr_b16 v[{58+4*u}:{59+4*u}], v5 offset:{u*1024+512}", tag=f"r{u}")
    for u in range(nunits):
        A.wait(f"r{u}")
        A(f"s_add_u32 s22, s21, {unit_dst(u)}")
        A(f"buffer_store_dwordx4 v[{56+4*u}:{59+4*u}], v4, s[4:7], s22 offen")
        if colsum:
            for j in range(4):
                A(f"v_dot2_f32_bf16 v6, v{56+4*u+j}, s23, v6")
    if colsum:
        A("""
        s_lshl_b32 s22, s3, 8
        v_lshlrev_b32 v7, 2, v1
        v_add_u32 v7, s22, v7
        s_nop 2
        ds_write_b32 v7, v6 offset:40960
        """)
        A.waitall(vm=False)
        A("s_barrier")
        A("s_cmp_lg_u32 s3, 0")
        A("s_cbranch_scc1 K0_END")
        A("""
        v_and_b32 v7, 31, v1
        v_lshlrev_b32 v7, 2, v7
        """)
        for j in range(8):
            A(f"ds_read_b32 v{8+j}, v7 offset:{40960 + j*128}")
        A.waitall(vm=False)
        A("""
        v_add_f32 v8, v8, v9
        v_add_f32 v10, v10, v11
        v_add_f32 v12, v12, v13
        v_add_f32 v14, v14, v15
        v_add_f32 v8, v8, v10
        v_add_f32 v12, v12, v14
        v_add_f32 v8, v8, v12
        v_sub_f32 v8, 0, v8               ; c = -colsum
        v_cvt_pk_bf16_f32 v9, v8, v8
        v_lshlrev_b32 v9, 16, v9          ; c1
        v_sub_f32 v8, v8, v9
        v_cvt_pk_bf16_f32 v10, v8, v8
        v_lshlrev_b32 v10, 16, v10        ; c2
        v_sub_f32 v11, v8, v10
        v_cvt_pk_bf16_f32 v12, v9, v10
        v_cvt_pk_bf16_f32 v13, v9, v11
        v_cvt_pk_bf16_f32 v14, v10, v9
        v_mov_b32 v15, 0
        v_cmp_gt_u32 vcc, 32, v1
        v_cndmask_b32 v12, 0, v12, vcc
        v_cndmask_b32 v13, 0, v13, vcc
        v_cndmask_b32 v14, 0, v14, vcc
        """)
        A(f"s_add_u32 s22, s21, {ext_dst}")
        A("buffer_store_dwordx4 v[12:15], v4, s[4:7], s22 offen")
    A("s_branch K0_END")

def gen_k0():
    name = "k0_kernel"
    A = begin(name)
    A("""
    s_load_dwordx16 s[64:79], s[0:1], 0
    s_load_dwordx4 s[80:83], s[0:1], 64
    """)
    wave_id(A, 3)
    A.waitall()
    srd(A, 4, 82, WS_USED)
    jobs = [("x", 64), ("qkm", 32), ("qke", 4), ("v", 18), ("wom", 18), ("woe", 2)]
    SIDE = P.get("side", 1)
    if not SIDE: jobs += [("w1", 144), ("w3", 144), ("w2", 144)]
    base = 0
    A("s_mov_b32 s24, s2")
    for jn, cnt in jobs:
        A(f"s_cmp_lt_u32 s24, {cnt}")
        A(f"s_cbranch_scc1 K0_{jn}")
        A(f"s_sub_u32 s24, s24, {cnt}")
        base += cnt
    A("s_branch K0_END")
    njobs = base
    A.label("K0_x")
    srd(A, 8, 64, S * D * 2)
    A("""
    v_and_b32 v1, 63, v0
    v_and_b32 v2, 31, v1
    v_mul_u32_u24 v2, 1152, v2
    v_lshrrev_b32 v3, 5, v1
    v_lshlrev_b32 v3, 4, v3
    v_add_u32 v2, v2, v3
    v_lshlrev_b32 v4, 4, v1
    s_mul_i32 s20, s24, 36864          ; rb*32*1152
    s_mul_i32 s22, s3, 288
    s_add_u32 s20, s20, s22
    s_mul_i32 s21, s24, 36864          ; rb*36*1024
    s_mul_i32 s22, s3, 9216
    s_add_u32 s21, s21, s22
    """)
    A(f"s_add_u32 s21, s21, {XF}")
    for u in range(9):
        A(f"buffer_load_dwordx4 v[{16+4*u}:{19+4*u}], v2, s[8:11], s20 offen offset:{u*32}", tag=f"x{u}")
    for u in range(9):
        A.wait(f"x{u}")
        A(f"s_add_u32 s22, s21, {u*1024}")
        A(f"buffer_store_dwordx4 v[{16+4*u}:{19+4*u}], v4, s[4:7], s22 offen")
        for j in range(4):
            A(f"v_lshlrev_b32 v{56+8*u+2*j}, 16, v{16+4*u+j}")
            A(f"v_and_b32 v{57+8*u+2*j}, 0xffff0000, v{16+4*u+j}")
    for p, (lo, hi, n) in enumerate([(56, 88, 64), (88, 128, 80)]):
        sm = 6 + 2 * p
        A(f"v_add_f32 v{sm}, v{lo}, v{lo+1}")
        for i in range(lo + 2, hi): A(f"v_add_f32 v{sm}, v{sm}, v{i}")
        A(f"v_mov_b32 v10, v{sm}")
        A(f"v_permlane32_swap_b32 v{sm}, v10")
        A(f"v_add_f32 v{sm}, v{sm}, v10")
        A(f"v_mul_f32 v{sm}, {hex(f32(1.0/n))}, v{sm}")
        A(f"v_mov_b32 v{sm+1}, 0")
        for i in range(lo, hi):
            A(f"v_sub_f32 v{i}, v{i}, v{sm}")
            A(f"v_fmac_f32 v{sm+1}, v{i}, v{i}")
        A(f"v_mov_b32 v10, v{sm+1}")
        A(f"v_permlane32_swap_b32 v{sm+1}, v10")
        A(f"v_add_f32 v{sm+1}, v{sm+1}, v10")
    A(f"""
    v_and_b32 v2, 31, v1
    v_lshlrev_b32 v2, 6, v2
    s_lshl_b32 s22, s24, 11
    s_lshl_b32 s23, s3, 4
    s_add_u32 s22, s22, s23
    s_add_u32 s22, s22, {ST}
    buffer_store_dwordx4 v[6:9], v2, s[4:7], s22 offen
    s_branch K0_END
    """)
    T1src = lambda rs: (lambda u: u * 16 * rs)
    T1dst = lambda u: u * 1024
    A.label("K0_qkm")
    srd(A, 8, 66, D * 3 * D * 2)
    A(f"""
    v_lshrrev_b32 v1, 5, v0
    v_mul_u32_u24 v1, {KVG}, v1
    v_and_b32 v2, 31, v0
    v_mul_u32_u24 v2, 304, v2
    v_add_u32 v1, v1, v2
    s_mul_i32 s22, s24, {KVH}
    s_add_u32 s22, s22, {KV + 9216 + 288}
    v_mov_b32 v8, 0x3f803f80
    v_mov_b32 v9, 0x3f803f80
    v_mov_b32 v10, 0x3f803f80
    v_mov_b32 v11, 0x3f803f80
    buffer_store_dwordx4 v[8:11], v1, s[4:7], s22 offen
    s_lshr_b32 s22, s24, 4
    s_mul_i32 s20, s22, 1152
    s_and_b32 s23, s24, 15
    s_mul_i32 s23, s23, 72
    s_add_u32 s20, s20, s23
    s_mul_i32 s23, s3, {9*16*3456}
    s_add_u32 s20, s20, s23
    s_mul_i32 s21, s24, {T1S}
    s_mul_i32 s23, s3, 9216
    s_add_u32 s21, s21, s23
    s_add_u32 s21, s21, {WQ}
    """)
    k0_units(A, 9, 3456, 20, 8, 4, 256, 512, T1src(3456), T1dst, True, 36 * 1024)
    A.label("K0_qke")
    srd(A, 8, 66, D * 3 * D * 2)
    A(f"""
    s_mul_i32 s20, s24, {8*72}
    s_add_u32 s20, s20, 32
    s_mul_i32 s23, s3, {9*16*3456}
    s_add_u32 s20, s20, s23
    s_mul_i32 s21, s24, {T1S}
    s_mul_i32 s23, s3, 9216
    s_add_u32 s21, s21, s23
    s_add_u32 s21, s21, {WQ + 32*T1S}
    """)
    k0_units(A, 9, 3456, 144, 36, 72, 256, 512, T1src(3456), T1dst, True, 36 * 1024)
    A.label("K0_v")
    srd(A, 8, 66, D * 3 * D * 2)
    A(f"""
    s_lshl_b32 s20, s24, 6
    s_add_u32 s20, s20, 2304
    s_mul_i32 s23, s3, {9*16*3456}
    s_add_u32 s20, s20, s23
    s_mul_i32 s21, s24, {T1S}
    s_mul_i32 s23, s3, 9216
    s_add_u32 s21, s21, s23
    s_add_u32 s21, s21, {WQ + 36*T1S}
    """)
    k0_units(A, 9, 3456, 16, 4, 8, 256, 512, T1src(3456), T1dst, True, 36 * 1024)
    for nm, ptr, add in (() if SIDE else (("w1", 72, 0), ("w3", 74, 256))):
        A.label(f"K0_{nm}")
        srd(A, 8, ptr, D * F * 2)
        A(f"""
        s_lshl_b32 s20, s24, 6
        s_mul_i32 s23, s3, {9*16*9216}
        s_add_u32 s20, s20, s23
        s_mul_i32 s21, s24, {2*T1S}
        s_mul_i32 s23, s3, 9216
        s_add_u32 s21, s21, s23
        s_add_u32 s21, s21, {W13 + add}
        """)
        k0_units(A, 9, 9216, 16, 8, 4, T1S, 512, T1src(9216), T1dst, True, 36 * 1024)
    if not SIDE:
        A.label("K0_w2")
        srd(A, 8, 76, D * F * 2)
        A(f"""
        s_mul_i32 s22, s24, 3641
        s_lshr_b32 s22, s22, 16             ; seg = j/18
        s_mul_i32 s23, s22, 18
        s_sub_u32 s23, s24, s23             ; strip
        s_mul_i32 s22, s22, 36
        s_mul_i32 s25, s3, 9
        s_add_u32 s22, s22, s25             ; U0
        s_mul_i32 s20, s22, {16*1152}
        s_lshl_b32 s25, s23, 6
        s_add_u32 s20, s20, s25
        s_lshl_b32 s21, s22, 9              ; U0*512
        s_mul_i32 s25, s23, {2*144*1024}
        s_add_u32 s21, s21, s25
        s_add_u32 s21, s21, {W2}
        """)
        k0_units(A, 9, 1152, 16, 4, 8, 144 * 1024, 256, lambda u: u * 16 * 1152, lambda u: u * 512, False)
    A.label("K0_wom")
    srd(A, 8, 68, D * D * 2)
    A(f"""
    s_mul_i32 s20, s3, {8*18*1152}
    s_lshl_b32 s25, s24, 6
    s_add_u32 s20, s20, s25
    s_lshl_b32 s21, s3, 12
    s_mul_i32 s25, s24, {2*18*1024}
    s_add_u32 s21, s21, s25
    s_add_u32 s21, s21, {WO}
    """)
    k0_units(A, 8, 1152, 16, 4, 8, 18 * 1024, 256, lambda u: u * 18 * 1152, lambda u: u * 512, False)
    A.label("K0_woe")
    srd(A, 8, 68, D * D * 2)
    A(f"""
    v_lshlrev_b32 v1, 4, v0
    v_mov_b32 v8, 0
    v_mov_b32 v9, 0
    v_mov_b32 v10, 0
    v_mov_b32 v11, 0
    s_lshl_b32 s22, s24, 13
    s_add_u32 s22, s22, {FLG}
    buffer_store_dwordx4 v[8:11], v1, s[4:7], s22 offen
    s_add_u32 s22, s22, 4096
    buffer_store_dwordx4 v[8:11], v1, s[4:7], s22 offen
    s_add_u32 s22, s22, 12288
    buffer_store_dwordx4 v[8:11], v1, s[4:7], s22 offen
    """)
    A(f"""
    s_mul_i32 s20, s3, {144*1152}
    s_add_u32 s20, s20, {16*1152}
    s_mul_i32 s25, s24, {9*64}
    s_add_u32 s20, s20, s25
    s_lshl_b32 s21, s3, 9
    s_add_u32 s21, s21, {WO + 32*512}
    s_mul_i32 s25, s24, {9*2*18*1024}
    s_add_u32 s21, s21, s25
    """)
    k0_units(A, 9, 1152, 16, 4, 8, 18 * 1024, 256, lambda u: u * 64, lambda u: u * 2 * 18 * 1024, False, row_mode="woext")
    A.label("K0_END")
    A("s_endpgm")
    end(A, name, 128)
    launches.append((name, njobs, 256, 41984))

def emit(path):
    hdr = open(f"cdna_kernels/{NAME}.s.ref").read().split("; Override launch")[0]
    out = hdr
    for n, g, b, lds in launches:
        out += f"; @launch kernel={n} grid=({g},1,1) block=({b},1,1) lds={lds}\n"
    out += '.amdgcn_target "amdgcn-amd-amdhsa--gfx950"\n.text\n'
    for n, text, nv, acc, ns in kernels:
        out += text
    out += '.section .rodata,"a"\n'
    for n, text, nv, acc, ns in kernels:
        if n is None: continue
        out += f""".p2align 6
.amdhsa_kernel {n}
  .amdhsa_next_free_vgpr {nv}
  .amdhsa_next_free_sgpr {ns}
  .amdhsa_accum_offset {acc}
  .amdhsa_group_segment_fixed_size 0
  .amdhsa_kernarg_size 80
  .amdhsa_user_sgpr_count 2
  .amdhsa_user_sgpr_kernarg_segment_ptr 1
  .amdhsa_system_sgpr_workgroup_id_x 1
.end_amdhsa_kernel
"""
    open(path, "w").write(out)

if __name__ == "__main__":
    import gen as G2
    G2.main()
def main():
    import k2, chain
    gen_k0()
    L1 = chain.gen_k1s(); L2 = k2.gen_k2("k2_kernel", False)
    L2a = k2.gen_k2("k2a_kernel", True) if P.get("side", 1) else L2
    CA, CB = chain.gen_chain()
    launches.extend([L1, L2a, CA, L2, CB])
    emit(sys.argv[1] if len(sys.argv) > 1 else f"cdna_kernels/{NAME}.s")
```

```python
from asmlib import *
import gen as G
from t1 import *
import k4 as K4M
P = G.P
QSCALE = (18 ** -0.5) * LOG2E
SK = P.get("sk", 1)
FSH = P.get("fsh", 5)
RED = 2 * G.T1S
LDS_BYTES = 163840


def signal(A, nflag_sgpr, store_tag):
    A.wait(store_tag)
    if P.get("st3") and signal.n == 0: A.stamp(15)
    A("s_barrier")
    lab = f"SIG{signal.n}"; signal.n += 1
    A("s_cmp_lg_u32 s3, 0")
    A(f"s_cbranch_scc1 {lab}")
    A.raw("    s_mov_b64 exec, 1")
    A.raw("    v_mov_b32 v30, 0")
    A.raw("    v_mov_b32 v31, 1")
    A.raw(f"    s_lshl_b32 s38, s{nflag_sgpr}, {FSH}")
    A.raw(f"    s_add_u32 s38, s38, {G.FLG}")
    A.raw(f"    buffer_store_dword v31, v30, s[4:7], s38 offen sc1")
    A.raw("    s_mov_b64 exec, -1")
    A.label(lab)
signal.n = 0

def poll(A, base_sgpr, n, allwaves=False):
    lab = f"POLL{poll.n}"; poll.n += 1
    if not allwaves:
        A("s_cmp_lg_u32 s3, 0")
        A(f"s_cbranch_scc1 {lab}_D")
    R = A.raw
    R(f"    v_and_b32 v30, {n-1}, v0")
    R(f"    v_lshlrev_b32 v30, {2+FSH}, v30")
    R(f"    s_lshl_b32 s38, s{base_sgpr}, {FSH}")
    R(f"    s_add_u32 s38, s38, {G.FLG}")
    R("    s_mov_b32 s39, 0x100000")
    R(f"{lab}:")
    R(f"    buffer_load_dword v31, v30, s[4:7], s38 offen sc1")
    R("    s_waitcnt vmcnt(0)")
    R("    v_cmp_eq_u32 vcc, 1, v31")
    R("    s_nop 1")
    R("    s_cmp_eq_u64 vcc, -1")
    R(f"    s_cbranch_scc1 {lab}_D")
    R(f"    s_sleep {P.get('sleep', 1)}")
    R("    s_sub_u32 s39, s39, 1")
    R("    s_cmp_lg_u32 s39, 0")
    R(f"    s_cbranch_scc1 {lab}")
    A.label(f"{lab}_D")
    if not allwaves: A("s_barrier")
poll.n = 0

def t2_decode(A):
    A("""
    s_and_b32 s24, s2, 7
    s_lshr_b32 s25, s2, 3
    s_lshr_b32 s80, s24, 1
    s_lshl_b32 s80, s80, 3
    s_and_b32 s27, s25, 7
    s_add_u32 s80, s80, s27            ; rg
    s_and_b32 s81, s24, 1
    s_lshl_b32 s81, s81, 2
    s_lshr_b32 s28, s25, 3
    s_add_u32 s81, s81, s28            ; cg
    s_lshr_b32 s82, s81, 1
    s_mul_i32 s82, s82, 9
    s_and_b32 s83, s81, 1
    s_lshl_b32 s34, s83, 2
    s_add_u32 s82, s82, s34            ; nt0
    """)

def t2_setup(A, KS, ACT, WP, xin, xout):
    A(f"""
    v_and_b32 v1, 63, v0
    v_lshlrev_b32 v1, 4, v1
    s_mov_b32 s34, s3
    """)
    for i in range(4):
        A(f"s_mul_i32 s35, s34, {KS*1024}")
        A(f"v_add_u32 v{2+i}, s35, v1")
        if i > 0:
            A(f"s_mul_i32 s35, s34, 15360")
            A(f"s_add_u32 s35, s35, {RED + (i-1)*5120}")
            A(f"v_add_u32 v{11+i}, s35, v1")
        A("s_add_u32 s34, s34, 1")
        A("s_and_b32 s34, s34, 3")
    A(f"""
    v_mov_b32 v6, v1
    v_add_u32 v7, {KS*1024}, v1
    v_add_u32 v8, {2*KS*1024}, v1
    v_add_u32 v9, {3*KS*1024}, v1
    v_add_u32 v10, {4*KS*1024}, v1
    s_lshl_b32 s34, s3, 10
    s_mul_i32 s20, s80, {4*KS*1024}
    s_add_u32 s20, s20, {ACT}
    s_add_u32 s20, s20, s34
    s_mul_i32 s21, s82, {KS*1024}
    s_add_u32 s21, s21, {WP}
    s_add_u32 s21, s21, s34
    v_and_b32 v11, 15, v0
    v_lshlrev_b32 v11, 4, v11
    v_bfe_u32 v28, v0, 5, 1
    v_lshlrev_b32 v28, 9, v28
    v_add_u32 v11, v11, v28
    v_bfe_u32 v28, v0, 4, 1
    v_lshlrev_b32 v28, 3, v28
    v_add_u32 v11, v11, v28
    s_lshl_b32 s28, s80, 1
    s_lshr_b32 s29, s3, 1
    s_add_u32 s28, s28, s29            ; rb32
    s_mul_i32 s28, s28, 36
    s_add_u32 s28, s28, s82
    s_lshl_b32 s28, s28, 10
    s_and_b32 s29, s3, 1
    s_lshl_b32 s29, s29, 8
    s_add_u32 s28, s28, s29
    s_add_u32 s28, s28, s42
    s_add_u32 s22, s28, {xout*G.XSZ}
    s_add_u32 s23, s22, 4096
    s_add_u32 s28, s28, {xin*G.XSZ}
    s_add_u32 s29, s28, 4096
    s_mul_i32 s34, s3, 15360
    s_add_u32 s34, s34, {RED}
    v_add_u32 v27, s34, v1             ; lds read addr
    v_and_b32 v15, 15, v0
    v_mul_u32_u24 v29, 1152, v15
    v_lshlrev_b32 v15, 6, v15
    s_lshl_b32 s34, s80, 2
    s_add_u32 s34, s34, s3             ; rb16
    s_lshl_b32 s30, s34, 10
    s_lshl_b32 s35, s81, 3
    s_add_u32 s30, s30, s35
    s_add_u32 s30, s30, s43
    s_add_u32 s36, s30, {xout*G.SSZ}
    v_bfe_u32 v28, v0, 4, 2
    v_lshlrev_b32 v28, 3, v28
    v_add_u32 v29, v29, v28
    s_mul_i32 s31, s34, 18432
    s_lshl_b32 s35, s82, 5
    s_add_u32 s31, s31, s35
    """)

DEPTH = 6
def t2_buf(st, i): return 256 + (st % DEPTH) * 36 + 4 * i
def t2_wload(A, NT, st):
    off = st * 4096
    A(f"s_add_u32 s37, s21, {off}")
    for t in range(NT):
        A(f"buffer_load_dwordx4 {r(t2_buf(st, 4+t), 4)}, v{6+t}, s[4:7], s37 offen", tag=f"l{st}")
def t2_aload(A, st, sc):
    A(f"s_add_u32 s37, s20, {st*4096}")
    for i in range(4):
        A(f"buffer_load_dwordx4 {r(t2_buf(st, i), 4)}, v{2+i}, s[4:7], s37 offen{sc}", tag=f"l{st}")

def t2_main(A, NT, KS, pfx, wpre, sc, extra_vm, mid_hook, st0):
    nsteps = (KS + 3) // 4
    partial_last = (KS % 4) != 0
    ACC, RES = 32, 16
    def stage_loads(st):
        B = Asm()
        if st >= wpre: t2_wload(B, NT, st)
        t2_aload(B, st, sc)
        return B.ins
    PRE = min(P.get("t2_pre", 2), nsteps)
    for st in range(PRE): A.ins += stage_loads(st)
    for t in range(NT):
        so, im = (28, t * 1024) if t < 4 else (29, 0)
        A(f"buffer_load_dwordx2 v[{RES+2*t}:{RES+2*t+1}], v11, s[4:7], s{so} offen offset:{im}{sc}", tag="res")
    M = Asm(); marks = {}
    for st in range(nsteps):
        marks[st] = len(M.ins)
        M.wait(f"l{st}")
        if st == 0 and st0 is not None: M.stamp(st0)
        if partial_last and st == nsteps - 1:
            M(f"s_cmp_ge_u32 s3, {KS % 4}")
            M(f"s_cbranch_scc1 {pfx}_SKIP")
        for mt in range(4):
            for t in range(NT):
                acc = ACC + 4 * (mt * NT + t)
                c = "0" if st == 0 else f"v[{acc}:{acc+3}]"
                M(f"v_mfma_f32_16x16x32_bf16 v[{acc}:{acc+3}], {r(t2_buf(st, 4+t), 4)}, {r(t2_buf(st, mt), 4)}, {c}")
    S_ = Sched(M.ins)
    first = []
    for st in range(PRE, min(DEPTH - 1, nsteps)): first += groups_vm(stage_loads(st))
    S_.release(0, "vm", first, every=1)
    for st in range(nsteps):
        n = st + DEPTH - 1
        if n < nsteps and n >= min(DEPTH - 1, nsteps):
            S_.release(marks[st], "vm", groups_vm(stage_loads(n)))
    out, rest = S_.run(gap=8, vm_every=1)
    check_tags(out + rest)
    assert not rest
    T = Asm()
    lastld = max(i for i, x in enumerate(out) if x.text.startswith("buffer_load"))
    A.ins += out[:lastld + 1]
    T.ins += out[lastld + 1:]
    if partial_last: T.label(f"{pfx}_SKIP")
    T("s_nop 7")
    if P.get("st3"): T.stamp(11)
    for mt in range(1, 4):
        for t in range(NT):
            acc = ACC + 4 * (mt * NT + t)
            T(f"ds_write_b128 v{11+mt}, v[{acc}:{acc+3}] offset:{t*1024}")
    T.wait("res")
    X = ACC + 16 * NT
    for t in range(NT):
        for j in range(2):
            T(f"v_lshlrev_b32 v{X+4*t+2*j}, 16, v{RES+2*t+j}")
            T(f"v_and_b32 v{X+4*t+2*j+1}, 0xffff0000, v{RES+2*t+j}")
    for i in range(4 * NT): T(f"v_add_f32 v{X+i}, v{X+i}, v{ACC+i}")
    T.waitall(vm=False)
    T("s_barrier")
    tl, left = pace(T.ins, extra_vm or [], P.get("t2_pace", 70), first=P.get("t2_first", 100))
    A.ins += tl
    if left: print(pfx, "tail leftover", len(left))
    for g in left: A.ins += g
    left = []
    if P.get("st3"): A.stamp(12)
    for k in range(3):
        for t in range(NT):
            d = ACC + 4 * ((k + 1) * NT + t)
            A(f"ds_read_b128 v[{d}:{d+3}], v27 offset:{k*5120+t*1024}", tag=f"rd{k}")
    for k in range(3):
        A.wait(f"rd{k}")
        for i in range(4 * NT):
            A(f"v_add_f32 v{X+i}, v{X+i}, v{ACC+4*(k+1)*NT+i}")
    for i in range(2 * NT):
        A(f"v_cvt_pk_bf16_f32 v{RES+i}, v{X+2*i}, v{X+2*i+1}")
    return X, RES, left

def t2_store(A, NT, X, RES):
    for t in range(NT):
        so, im = (22, t * 1024) if t < 4 else (23, 0)
        A(f"buffer_store_dwordx2 v[{RES+2*t}:{RES+2*t+1}], v11, s[4:7], s{so} offen offset:{im} sc1", tag="out")
    for i in range(2 * NT):
        A(f"v_lshlrev_b32 v{X+2*i}, 16, v{RES+i}")
        A(f"v_and_b32 v{X+2*i+1}, 0xffff0000, v{RES+i}")
    def xreduce(dst):
        A(f"v_mov_b32 v28, v{dst}")
        A(f"v_permlane16_swap_b32 v{dst}, v28")
        A(f"v_add_f32 v{dst}, v{dst}, v28")
        A(f"v_mov_b32 v28, v{dst}")
        A(f"v_permlane32_swap_b32 v{dst}, v28")
        A(f"v_add_f32 v{dst}, v{dst}, v28")
    A(f"v_add_f32 v26, v{X}, v{X+1}")
    A(f"v_add_f32 v27, v{X+2}, v{X+3}")
    for i in range(4, 4 * NT): A(f"v_add_f32 v{26+(i&1)}, v{26+(i&1)}, v{X+i}")
    A("v_add_f32 v26, v26, v27")
    xreduce(26)
    A(f"v_mul_f32 v26, {hex(G.f32(1.0/(16*NT)))}, v26")
    A("v_mov_b32 v27, 0")
    for i in range(4 * NT):
        A(f"v_sub_f32 v{X+i}, v{X+i}, v26")
        A(f"v_fmac_f32 v27, v{X+i}, v{X+i}")
    xreduce(27)
    A("buffer_store_dwordx2 v[26:27], v15, s[4:7], s36 offen sc1", tag="out")

def tile_dmas(tiles, slot_of, s_srcw, s_src, s_ldsw, tag):
    B = Asm()
    for t in tiles:
        for c in range(10):
            if c < 9: dma(B, s_srcw, t * G.T1S + c * 4096, s_ldsw, slot_of(t) * G.T1S + c * 4096, 1, tag(t), stmp=38)
            else: dma(B, s_src, t * G.T1S + 36 * 1024, None, slot_of(t) * G.T1S + 36 * 1024, 1, tag(t), stmp=38)
    return groups_vm(B.ins)

def k4_decode(A):
    A(f"""
    s_and_b32 s84, s2, 7
    s_lshl_b32 s84, s84, 2
    s_bfe_u32 s25, s2, 0x20003
    s_add_u32 s84, s84, s25            ; cb
    s_lshr_b32 s85, s2, 5              ; rb8
    s_lshl_b32 s78, s3, 10
    s_mul_i32 s76, s84, {9*G.T1S}
    s_add_u32 s76, s76, {G.W13}
    s_add_u32 s77, s76, s78
    """)

def k4_phase(A, tail_vm):
    def xreg(j, ks):
        if ks == 36: return 16 + 4 * j
        idx = j * 36 + ks
        if idx < 64: return 256 + 4 * idx
        return 24 + 4 * (idx - 64)
    sl = {0: 0, 1: 1, 2: 2, 3: 3, 4: 0, 5: 1, 6: 2, 7: 3, 8: 0}
    accreg = lambda t, j: 88 + 32 * sl[t] + 16 * j
    t1 = T1(2, xreg, accreg, 56, 8, lambda t: sl[t], 2)
    A(f"""
    v_mov_b32 v2, v1
    v_add_u32 v3, 0x10000, v1
    v_add_u32 v4, 0x20000, v1
    s_lshl_b32 s26, s85, 3
    s_lshl_b32 s27, s3, 1
    s_add_u32 s26, s26, s27
    s_mul_i32 s23, s26, 36864
    s_add_u32 s23, s23, s42
    s_add_u32 s23, s23, {G.XSZ}
    s_lshl_b32 s29, s26, 11
    s_add_u32 s29, s29, s43
    s_add_u32 s29, s29, {G.SSZ}
    v_bfe_u32 v5, v0, 4, 1
    v_mul_u32_u24 v5, {144*1024}, v5
    v_and_b32 v10, 15, v0
    v_lshlrev_b32 v10, 4, v10
    v_add_u32 v5, v5, v10
    v_bfe_u32 v10, v0, 5, 1
    v_lshlrev_b32 v10, 8, v10
    v_add_u32 v5, v5, v10
    s_mul_i32 s31, s26, {2*144*1024}
    s_mul_i32 s32, s84, {9*512}
    s_add_u32 s31, s31, s32
    s_add_u32 s31, s31, {G.HF}
    s_lshl_b32 s24, s26, 4
    s_add_u32 s24, s24, s41
    s_mul_i32 s79, s82, {144*1024}
    s_add_u32 s79, s79, {G.W2}
    s_add_u32 s79, s79, s78
    """)
    if SK: k5_decode(A)
    if not SK: A.stamp(2)
    poll(A, 24, 8, True)
    A.wait("w0", "w1", "w2", "t3")
    if not SK: A.stamp(3)
    def xl(B, ks):
        for j in range(2):
            B(f"s_add_u32 s30, s23, {j*36864 + (ks//4)*4096}")
            B(f"buffer_load_dwordx4 {r(xreg(j, ks), 4)}, v1, s[4:7], s30 offen offset:{(ks%4)*1024} sc1", tag=f"x{ks}")
    AHEAD = P.get("k4_ahead", 6)
    for ks in range(2): xl(A, ks)
    stats_load(A, 2, 29, 216, 10, " sc1")
    for ks in range(2, AHEAD): xl(A, ks)
    A("s_barrier")
    SC = Asm()
    SC.wait("st")
    SC("v_cmp_gt_u32 vcc, 512, v1")
    for j in range(2):
        stats_compute(SC, 216 + 16 * j, 12, 8 + j, 10)
        build_xext(SC, 12, 16 + 4 * j, 13)
        SC(f"v_rsq_f32 v{6+j}, v{8+j}")
        SC(f"v_mul_f32 v{6+j}, {hex(G.f32(-LOG2E))}, v{6+j}")
    def epilogue(t):
        E = Asm()
        for j in range(2):
            acc = accreg(t, j)
            tm = 216 + 20 * j
            for i in range(8): E(f"v_mul_f32 v{tm+i}, v{acc+i}, v{6+j}")
            for i in range(8): E(f"v_exp_f32 v{tm+i}, v{tm+i}")
            for i in range(8): E(f"v_mul_f32 v{tm+8+i}, v{acc+i}, v{acc+8+i}")
            for i in range(8): E(f"v_fma_f32 v{tm+i}, v{tm+i}, v{8+j}, v{8+j}")
            for i in range(8): E(f"v_rcp_f32 v{tm+i}, v{tm+i}")
            for i in range(8): E(f"v_mul_f32 v{tm+8+i}, v{tm+8+i}, v{tm+i}")
            for i in range(4): E(f"v_cvt_pk_bf16_f32 v{tm+16+i}, v{tm+8+2*i}, v{tm+9+2*i}")
            E(f"s_add_u32 s33, s31, {j*2*144*1024 + t*512}")
            E(f"buffer_store_dwordx4 v[{tm+16}:{tm+19}], v5, s[4:7], s33 offen sc1", tag="hout" if t > 6 else "hE")
        return E.ins
    items = [(t, ks) for ks in range(37) for t in range(3)] + [(t, ks) for t in range(3, 9) for ks in range(37)]
    DIST = 6
    M = Asm(); marks = {}
    def pre_read(i):
        t, ks = items[i]
        if t >= 4 and ks == 0:
            M.wait(f"t{t}"); M("s_barrier")
            if t in (5, 6): marks[("dma", t + 2)] = len(M.ins)
        t1.read(M, i, t, ks)
    for i in range(DIST): pre_read(i)
    for i, (t, ks) in enumerate(items):
        if t == 0: marks[("ks", ks)] = len(M.ins)
        if t == 8: marks[("ks8", ks)] = len(M.ins)
        if i + DIST < len(items): pre_read(i + DIST)
        if ks == 0 and t >= 3:
            if t in (3, 6): M.stamp(5 if t == 3 else 6)
            marks[("tile", t)] = len(M.ins)
        M.wait(f"wf{i}", f"x{ks}")
        if i == 0: M.stamp(4)
        t1.mfmas(M, i, t, ks)
        if t == 3 and ks == 2:
            M("s_barrier")
            marks[("dma", 4)] = len(M.ins)
        if SK and t == 8 and ks == 8:
            M.wait("hE")
            M("s_barrier")
            flag_store(M, 13, 14)
            M("v_and_b32 v14, 7, v0")
            M(f"v_lshlrev_b32 v14, {2+FSH}, v14")
            marks[("q2",)] = len(M.ins)
        if SK and t == 8 and ks == 36:
            M("buffer_load_dword v15, v14, s[4:7], s15 offen sc1", tag="fe")
    dm = lambda ts: tile_dmas(ts, lambda t: sl[t], 77, 76, 78, lambda t: f"t{t}")
    S_ = Sched(M.ins)
    B = Asm()
    for ks in range(AHEAD, 36): xl(B, ks)
    S_.release(0, "vm", groups_vm(B.ins), every=P.get("k4_e0", 2.5))
    S_.release(marks[("ks", 4)], "va", groups_1(SC.ins))
    S_.release(marks[("tile", 3)], "va", groups_1(epilogue(0) + epilogue(1) + epilogue(2)), skip=3)
    S_.release(marks[("dma", 4)], "vm", dm([4, 5, 6]), every=3)
    S_.release(marks[("dma", 7)], "vm", dm([7]))
    S_.release(marks[("dma", 8)], "vm", dm([8]))
    for t in range(4, 9):
        S_.release(marks[("tile", t)], "va", groups_1(epilogue(t - 1)), skip=3)
    def w2pre(st):
        B = Asm()
        for t in range(5):
            B(f"s_add_u32 s37, s79, {t*144*1024 + st*4096}")
            B(f"buffer_load_dwordx4 {r(t2_buf(st, 4+t), 4)}, v1, s[4:7], s37 offen", tag=f"l{st}")
        return groups_vm(B.ins)
    if SK:
        S_.release(marks[("ks8", 0)], "vm", k5_unit(0) + k5_unit(1), every=2)
        S_.release(marks[("q2",)], "vm", k5_unit(2) + k5_unit(3))
        out, rest = S_.run(cap=24, vm_cost=16)
        e8 = epilogue(8)
    else:
        S_.release(marks[("ks8", 9)], "vm", w2pre(0) + w2pre(4), every=2)
        S_.release(marks[("ks8", 18)], "vm", w2pre(1))
        S_.release(marks[("ks8", 27)], "vm", w2pre(2))
        out, rest = S_.run(cap=24, vm_cost=16)
        e8, left = pace(epilogue(8), w2pre(3), 40)
        assert not left
    lst = out + rest + e8
    K4M.check_order(lst, accreg)
    check_tags(lst)
    A.ins += lst
    A.stamp(7)

TS = 144 * 1024
ORD = [0, 1, 2, 5, 6, 7, 3, 4, 8]
K5P = [37888, 66560, 95232, 123904, 0]
def k5_decode(A):
    A(f"""
    s_and_b32 s82, s2, 3
    s_bfe_u32 s80, s2, 0x10002
    s_lshl_b32 s80, s80, 3
    s_bfe_u32 s81, s2, 0x30003
    s_add_u32 s80, s80, s81            ; rg128
    s_lshr_b32 s81, s2, 6              ; cgp
    s_mul_i32 s79, s81, {9*TS}
    s_mul_i32 s83, s82, {36*1024}
    s_add_u32 s79, s79, s83
    s_mul_i32 s83, s3, 9216
    s_add_u32 s79, s79, s83
    s_add_u32 s79, s79, {G.W2}
    s_add_u32 s83, s79, {4*TS}
    s_sub_u32 s19, s79, {5*TS}
    s_bitcmp1_b32 s82, 0               ; nh
    s_cselect_b32 s19, s79, s19
    s_cselect_b32 s79, s79, s83
    s_mul_i32 s83, s3, 7168
    s_lshl_b32 s14, s3, 11
    s_lshr_b32 s15, s80, 1
    s_lshl_b32 s15, s15, 2
    s_add_u32 s15, s15, s82
    s_lshl_b32 s15, s15, 5
    s_add_u32 s15, s15, s41
    s_add_u32 s15, s15, 3072
    s_lshl_b32 s15, s15, {FSH}
    s_add_u32 s15, s15, {G.FLG}
    s_lshl_b32 s13, s85, 5
    s_add_u32 s13, s13, s84
    s_lshl_b32 s13, s13, 2
    s_add_u32 s13, s13, s41
    s_add_u32 s13, s13, 3072
    """)
def k5_unit(u):
    B = Asm()
    if u < 9:
        for j in range(7):
            dma(B, 79 if j < 5 else 19, j * TS + ORD[u] * 1024, 83, K5P[u % 5] + j * 1024, 1, f"d{u}", stmp=38)
    else:
        for qq in range(3):
            for j in range(7, 9):
                dma(B, 19, j * TS + ORD[3 * (u - 9) + qq] * 1024, 14, K5P[u % 5] + qq * 8192 + (j - 7) * 1024, 1, f"d{u}", stmp=38)
    return groups_vm(B.ins)

def flagchk(A, lab, tag, vreg, vaddr, sbase):
    A.wait(tag)
    A(f"v_cmp_eq_u32 vcc, 1, v{vreg}")
    A("s_cmp_eq_u64 vcc, -1")
    A(f"s_cbranch_scc1 {lab}_OK")
    R = A.raw
    R("    s_mov_b32 s39, 0x100000")
    R(f"{lab}:")
    R("    s_sleep 1")
    R(f"    buffer_load_dword v{vreg}, v{vaddr}, s[4:7], s{sbase} offen sc1")
    R("    s_waitcnt vmcnt(0)")
    R(f"    v_cmp_eq_u32 vcc, 1, v{vreg}")
    R("    s_nop 1")
    R("    s_cmp_eq_u64 vcc, -1")
    R(f"    s_cbranch_scc1 {lab}_OK")
    R("    s_sub_u32 s39, s39, 1")
    R("    s_cmp_lg_u32 s39, 0")
    R(f"    s_cbranch_scc1 {lab}")
    A.label(f"{lab}_OK")

def flag_store(A, sgpr, vt=30):
    lab = f"SIG{signal.n}"; signal.n += 1
    A("s_cmp_lg_u32 s3, 0")
    A(f"s_cbranch_scc1 {lab}")
    A.raw("    s_mov_b64 exec, 1")
    A.raw(f"    v_mov_b32 v{vt}, 0")
    A.raw(f"    v_mov_b32 v{vt+1}, 1")
    A.raw(f"    s_lshl_b32 s38, s{sgpr}, {FSH}")
    A.raw(f"    s_add_u32 s38, s38, {G.FLG}")
    A.raw(f"    buffer_store_dword v{vt+1}, v{vt}, s[4:7], s38 offen sc1")
    A.raw("    s_mov_b64 exec, -1")
    A.label(lab)

def k5_hreg(st, j):
    return 256 + 8 * st + 4 * j if st < 32 else 168 + 8 * (st - 32) + 4 * j
def k5_hl(B, st):
    ph = 9 * (st % 4) + ORD[st // 4]
    for j in range(2):
        B(f"s_add_u32 s30, s20, {(ph//4)*4096}")
        B(f"buffer_load_dwordx4 {r(k5_hreg(st, j), 4)}, v{5+j}, s[4:7], s30 offen offset:{(ph%4)*1024} sc1", tag=f"h{st}")

def k5_path(A, nh, qtile, AHEAD):
    NO, NB = (5, 4) if nh == 0 else (4, 5)
    ACC, WR, R, PB = 32, 120, 12, 200
    acc = lambda j, sl: ACC + 36 * j + 4 * sl
    hreg = k5_hreg
    items = [(0, st, sl) for st in range(36) for sl in range(7)] + [(1, st, sl) for st in range(36) for sl in (7, 8)]
    DIST = P.get("k5_dist", 9)
    M = Asm(); marks = {}
    def rd(i):
        ps, st, sl = items[i]
        if ps == 0:
            u = st // 4; first = (st % 4 == 0 and sl == 0)
            off = K5P[u % 5] + (st % 4) * 7168 + sl * 1024
        else:
            u = 9 + st // 12; first = (st % 12 == 0 and sl == 7)
            off = K5P[u % 5] + ((st // 4) % 3) * 8192 + (st % 4) * 2048 + (sl - 7) * 1024
        if first and u >= 2:
            M.wait(f"d{u}")
            M("s_barrier")
            marks[("B", u)] = len(M.ins)
        w = WR + 4 * (i % R)
        M(f"ds_read_b128 v[{w}:{w+3}], v{2 + (off >> 16)} offset:{off & 0xffff}", tag=f"wf{i}")
    for i in range(DIST): rd(i)
    WG_ = 3
    CHK = 24 - AHEAD
    for i, (ps, st, sl) in enumerate(items):
        if sl in (0, 7):
            if (ps, st) == (0, CHK - P.get("k5_fl", 3)):
                M("buffer_load_dword v31, v30, s[4:7], s25 offen sc1", tag="fl")
            if (ps, st) == (0, CHK):
                flagchk(M, f"K5L{nh}", "fl", 31, 30, 25)
            marks[("st", ps, st)] = len(M.ins)
        if (ps, st, sl) == (1, 0, 7): M.stamp(13)
        if i + DIST < len(items): rd(i + DIST)
        tags = []
        if i % WG_ == 0: tags.append(f"wf{min(i + WG_ - 1, len(items) - 1)}")
        if ps == 0 and sl == 0: tags.append(f"h{st}")
        if tags: M.wait(*tags)
        w = WR + 4 * (i % R)
        for j in range(2):
            a_ = acc(j, sl)
            c = "0" if st == 0 else f"v[{a_}:{a_+3}]"
            M(f"v_mfma_f32_16x16x32_bf16 v[{a_}:{a_+3}], v[{w}:{w+3}], {r(hreg(st, j), 4)}, {c}")
    S_ = Sched(M.ins)
    for st in range(AHEAD, 36):
        B = Asm(); k5_hl(B, st)
        S_.release(marks[("st", 0, st - AHEAD)], "vm", [B.ins[:2], B.ins[2:]], every=P.get("k5_e", 3), front=True)
    for u in range(5, 12):
        S_.release(marks[("B", u - 3)], "vm", k5_unit(u))
    S_.release(marks[("B", 10)], "vm", qtile(3))
    S_.release(marks[("B", 11)], "vm", qtile(0))
    def pieces(n): return [(0, 2), (2, 2)] if n == 4 else [(0, 2), (2, 1), (3, 2)]
    def pstore(a0, n, sbase, sel, tag):
        B = Asm()
        for pi, (t0, k) in enumerate(pieces(n)):
            if pi not in sel: continue
            b = a0 + 4 * t0
            for i in range(2 * k): B(f"v_cvt_pk_bf16_f32 v{b+i}, v{b+2*i}, v{b+2*i+1}")
            if k == 2: B(f"buffer_store_dwordx4 v[{b}:{b+3}], v1, s[4:7], s{sbase} offen offset:{pi*1024} sc1", tag=tag)
            else: B(f"buffer_store_dwordx2 v[{b}:{b+1}], v1, s[4:7], s{sbase} offen offset:{pi*1024} sc1", tag=tag)
        return B.ins
    def pload(dst, k, tag):
        B = Asm()
        B(f"s_add_u32 s37, s21, {k*12288}")
        for pi, (t0, kk) in enumerate(pieces(NB)):
            d = dst + 4 * pi
            if kk == 2: B(f"buffer_load_dwordx4 v[{d}:{d+3}], v1, s[4:7], s37 offen offset:{pi*1024} sc1", tag=tag)
            else: B(f"buffer_load_dwordx2 v[{d}:{d+1}], v1, s[4:7], s37 offen offset:{pi*1024} sc1", tag=tag)
        return B.ins
    def pregs(dst):
        return [dst + 4 * pi + i for pi, (t0, kk) in enumerate(pieces(NB)) for i in range(2 * kk)]
    def check(regs):
        B = Asm()
        B(f"v_max3_u32 v30, v{regs[0]}, v{regs[1]}, v{regs[2]}")
        rest_ = regs[3:]
        while len(rest_) >= 2:
            B(f"v_max3_u32 v30, v30, v{rest_[0]}, v{rest_[1]}"); rest_ = rest_[2:]
        if rest_: B(f"v_max_u32 v30, v30, v{rest_[0]}")
        B("v_cmp_eq_u32 vcc, -1, v30")
        B("s_cmp_eq_u64 vcc, 0")
        return B.ins
    RES = 16
    B = Asm()
    for t in range(NB):
        so, im = (28, t * 1024) if t < 4 else (29, 0)
        B(f"buffer_load_dwordx2 v[{RES+2*t}:{RES+2*t+1}], v11, s[4:7], s{so} offen offset:{im} sc1", tag="res")
    S_.release(marks[("st", 0, 30)], "vm", groups_vm(B.ins))
    np_ = len(pieces(NB))
    allp = range(3)
    S_.release(marks[("st", 1, 2)], "va", groups_1(pstore(acc(0, 0), NO, 16, allp, "pa") + pstore(acc(1, 0), NO, 17, allp, "pa")
                                                  + pstore(acc(1, NO), NB, 18, range(np_ - 1), "pa")))
    out, rest = S_.run(gap=8, vm_cost=8)
    assert not rest, len(rest)
    check_tags(out)
    A.ins += out
    A.stamp(10)
    A.ins += pstore(acc(1, NO), NB, 18, [np_ - 1], "pb")
    A.ins += pload(PB, 0, "p0") + pload(PB + 12, 1, "p0") + pload(PB + 24, 2, "p2")
    A("s_barrier")
    X = WR
    A.wait("res")
    for t in range(NB):
        for j in range(2):
            A(f"v_lshlrev_b32 v{X+4*t+2*j}, 16, v{RES+2*t+j}")
            A(f"v_and_b32 v{X+4*t+2*j+1}, 0xffff0000, v{RES+2*t+j}")
    for i in range(4 * NB): A(f"v_add_f32 v{X+i}, v{X+i}, v{acc(0, NO)+i}")
    def addp(b):
        for i, rg in enumerate(pregs(b)):
            A(f"v_lshlrev_b32 v30, 16, v{rg}")
            A(f"v_and_b32 v31, 0xffff0000, v{rg}")
            A(f"v_add_f32 v{X+2*i}, v{X+2*i}, v30")
            A(f"v_add_f32 v{X+2*i+1}, v{X+2*i+1}, v31")
    def spin(lab, regs, loads, tag):
        A("s_mov_b32 s39, 0x20000")
        A.wait(tag)
        A.label(lab)
        A.ins += check(regs)
        A(f"s_cbranch_scc1 {lab}_OK")
        A.save(lab)
        A(f"s_sleep {P.get('k5_sleep', 1)}")
        A.ins += loads
        A("s_waitcnt vmcnt(0)")
        A("s_sub_u32 s39, s39, 1")
        A("s_cmp_lg_u32 s39, 0")
        A(f"s_cbranch_scc1 {lab}")
        A.label(f"{lab}_OK")
        A.restore(lab)
    spin(f"K5SA{nh}", pregs(PB) + pregs(PB + 12), pload(PB, 0, None) + pload(PB + 12, 1, None), "p0")
    addp(PB); addp(PB + 12)
    spin(f"K5SB{nh}", pregs(PB + 24), pload(PB + 24, 2, None), "p2")
    A.stamp(2)
    addp(PB + 24)
    for i in range(2 * NB):
        A(f"v_cvt_pk_bf16_f32 v{RES+i}, v{X+2*i}, v{X+2*i+1}")
    A.stamp(3)
    pfx = f"K5{nh}"
    A("s_cmp_lg_u32 s40, 0")
    A(f"s_cbranch_scc1 {pfx}_FINAL")
    A.save(pfx + "fin")
    t2_store(A, NB, X, RES)
    A("s_branch K5_DONE")
    A.save(pfx + "done")
    A.label(f"{pfx}_FINAL")
    A.restore(pfx + "fin")
    for t in range(NB):
        A(f"buffer_store_dwordx2 v[{RES+2*t}:{RES+2*t+1}], v29, s[8:11], s31 offen offset:{t*32}")
    A("s_endpgm")

def k5_phase(A, qtile, NMID):
    AHEAD = P.get("k5_ahead", 6)
    A(f"""
    s_lshr_b32 s32, s82, 1             ; mt_own
    s_and_b32 s33, s82, 1              ; nh
    s_lshl_b32 s34, s80, 2
    s_add_u32 s34, s34, s3
    s_mul_i32 s20, s34, {2*144*1024}
    s_mul_i32 s21, s82, {36*1024}
    s_add_u32 s20, s20, s21
    s_add_u32 s20, s20, {G.HF}
    s_mul_i32 s35, s32, {144*1024}
    v_add_u32 v5, s35, v1
    s_xor_b32 s35, s32, 1
    s_mul_i32 s35, s35, {144*1024}
    v_add_u32 v6, s35, v1
    """)
    flagchk(A, "K5E", "fe", 15, 14, 15)
    for st in range(AHEAD): k5_hl(A, st)
    A("s_sub_u32 s24, s13, 2048")
    A.wait("d0", "d1", "d2", "d3")
    signal(A, 24, "hout")
    A.stamp(8)
    for g in k5_unit(4): A.ins += g
    k1_decode(A, None)
    A(f"""
    s_lshl_b32 s27, s80, 2
    s_add_u32 s27, s27, s81            ; tile
    s_mul_i32 s21, s27, {4*36864}
    s_mul_i32 s35, s3, 3072
    s_add_u32 s21, s21, s35
    s_add_u32 s21, s21, {G.PART}
    s_mul_i32 s35, s32, 12288
    s_add_u32 s35, s35, s21
    s_xor_b32 s36, s82, 1
    s_mul_i32 s36, s36, 36864
    s_add_u32 s16, s35, s36
    s_xor_b32 s36, s82, 3
    s_mul_i32 s36, s36, 36864
    s_add_u32 s17, s35, s36
    s_xor_b32 s36, s82, 2
    s_mul_i32 s36, s36, 36864
    s_add_u32 s18, s21, s36
    s_add_u32 s18, s18, 24576
    s_mul_i32 s36, s82, 36864
    s_add_u32 s21, s21, s36
    s_mul_i32 s13, s81, 9
    s_lshl_b32 s35, s33, 2
    s_add_u32 s13, s13, s35            ; nt0
    v_and_b32 v11, 15, v0
    v_lshlrev_b32 v11, 4, v11
    v_bfe_u32 v28, v0, 5, 1
    v_lshlrev_b32 v28, 9, v28
    v_add_u32 v11, v11, v28
    v_bfe_u32 v28, v0, 4, 1
    v_lshlrev_b32 v28, 3, v28
    v_add_u32 v11, v11, v28
    s_mul_i32 s28, s34, 36
    s_add_u32 s28, s28, s13
    s_lshl_b32 s28, s28, 10
    s_lshl_b32 s29, s32, 8
    s_add_u32 s28, s28, s29
    s_add_u32 s28, s28, s42
    s_add_u32 s22, s28, {2*G.XSZ}
    s_add_u32 s23, s22, 4096
    s_add_u32 s28, s28, {G.XSZ}
    s_add_u32 s29, s28, 4096
    v_and_b32 v15, 15, v0
    v_mul_u32_u24 v29, 1152, v15
    v_lshlrev_b32 v15, 6, v15
    s_lshl_b32 s35, s34, 1
    s_add_u32 s35, s35, s32            ; rb16
    s_lshl_b32 s36, s35, 10
    s_lshl_b32 s37, s81, 1
    s_add_u32 s37, s37, s33
    s_lshl_b32 s37, s37, 3
    s_add_u32 s36, s36, s37
    s_add_u32 s36, s36, s43
    s_add_u32 s36, s36, {2*G.SSZ}
    v_bfe_u32 v28, v0, 4, 2
    v_lshlrev_b32 v28, 3, v28
    v_add_u32 v29, v29, v28
    s_mul_i32 s31, s35, 18432
    s_lshl_b32 s37, s13, 5
    s_add_u32 s31, s31, s37
    s_sub_u32 s25, s15, {2048 << FSH}
    v_mov_b32 v30, v14
    """)
    A.stamp(9)
    A("s_cmp_lg_u32 s33, 0")
    A("s_cbranch_scc1 K5_N1")
    A.save("k5n1")
    k5_path(A, 0, qtile, AHEAD)
    A.label("K5_N1"); A.restore("k5n1")
    k5_path(A, 1, qtile, AHEAD)
    A.label("K5_DONE")
    A.restore("K51done")
    A("s_lshl_b32 s24, s80, 2")
    A("s_add_u32 s24, s24, s81")
    A("s_lshl_b32 s24, s24, 2")
    A("s_add_u32 s24, s24, s82")
    A("s_lshl_b32 s24, s24, 2")
    A("s_add_u32 s24, s24, s41")
    A("s_add_u32 s24, s24, 2048")
    rest = qtile(1) + qtile(2)
    for g in rest[:NMID]: A.ins += g
    signal(A, 24, "out")
    A.stamp(11)
    A("s_cmp_ge_u32 s87, 15")
    A("s_cbranch_scc1 CH_END")
    for g in rest[NMID:]: A.ins += g

def k1_decode(A, endlab):
    A(f"""
    s_and_b32 s24, s2, 7
    s_lshr_b32 s25, s2, 3
    s_lshr_b32 s86, s24, 1
    s_lshl_b32 s86, s86, 2
    s_and_b32 s27, s25, 3
    s_add_u32 s86, s86, s27            ; rg
    s_and_b32 s87, s24, 1
    s_lshl_b32 s87, s87, 3
    s_lshr_b32 s38, s25, 2
    s_add_u32 s87, s87, s38            ; cg
    s_lshl_b32 s78, s3, 10
    s_lshl_b32 s38, s87, 2
    s_mul_i32 s39, s87, 3
    s_add_u32 s39, s39, 9
    s_cmp_ge_u32 s87, 9
    s_cselect_b32 s38, s39, s38
    s_mul_i32 s76, s38, {G.T1S}
    s_add_u32 s76, s76, {G.WQ}
    s_add_u32 s77, s76, s78
    """)

def k1_main(A, NT, swapped, sc):
    xreg = lambda j, ks: (256 + 4 * ks) if ks < 36 else 8
    t1 = T1(1, xreg, lambda t, j: 64 + 16 * t, 32, 8, lambda t: t, 2, swapped)
    def xl(B, ks):
        B(f"s_add_u32 s30, s23, {(ks//4)*4096}")
        B(f"buffer_load_dwordx4 {r(xreg(0, ks), 4)}, v1, s[4:7], s30 offen offset:{(ks%4)*1024}{sc}", tag=f"x{ks}")
    AHEAD = P.get("k1_ahead", 10)
    for ks in range(2): xl(A, ks)
    stats_load(A, 1, 29, 16, 12, sc)
    for ks in range(2, AHEAD): xl(A, ks)
    A("s_barrier")
    SC = Asm()
    SC.wait("st")
    stats_compute(SC, 16, 5, 6, 12)
    SC("v_cmp_gt_u32 vcc, 512, v1")
    build_xext(SC, 5, 8, 12)
    SC("v_rsq_f32 v6, v6")
    items = [(t, ks) for ks in range(37) for t in range(NT)]
    DIST = 6
    M = Asm(); marks = {}
    for i in range(DIST): t1.read(M, i, *items[i])
    for i, (t, ks) in enumerate(items):
        if t == 0: marks[ks] = len(M.ins)
        if i + DIST < len(items): t1.read(M, i + DIST, *items[i + DIST])
        M.wait(f"wf{i}", f"x{ks}")
        if i == 0: M.stamp(14)
        t1.mfmas(M, i, t, ks)
    S_ = Sched(M.ins)
    B = Asm()
    for ks in range(AHEAD, 36): xl(B, ks)
    S_.release(0, "vm", groups_vm(B.ins), every=P.get("k1_e0", 2.5))
    S_.release(marks[3], "va", groups_1(SC.ins))
    out, rest = S_.run(cap=24, vm_cost=8)
    assert not rest
    check_tags(out)
    A.ins += out
    A.stamp(15)

def k1_phase(A, L, xidx, do_poll):
    sc = " sc1" if do_poll else ""
    A(f"""
    v_mov_b32 v2, v1
    v_add_u32 v3, 0x10000, v1
    v_add_u32 v4, 0x20000, v1
    s_lshl_b32 s26, s86, 2
    s_add_u32 s26, s26, s3             ; rb
    s_mov_b32 s27, s87
    s_mul_i32 s23, s26, 36864
    s_add_u32 s23, s23, s42
    s_add_u32 s23, s23, {xidx*G.XSZ}
    s_lshl_b32 s29, s26, 11
    s_add_u32 s29, s29, s43
    s_add_u32 s29, s29, {xidx*G.SSZ}
    s_lshr_b32 s31, s26, 3
    s_mul_i32 s31, s31, {G.KVG}
    s_add_u32 s31, s31, {G.KV}
    s_lshr_b32 s24, s26, 1
    s_lshl_b32 s24, s24, 5
    s_add_u32 s24, s24, s41
    s_add_u32 s24, s24, 2048
    """)
    if do_poll:
        if SK:
            A("s_lshl_b32 s24, s86, 6")
            A("s_add_u32 s24, s24, s41")
            A("s_add_u32 s24, s24, 2048")
        A.stamp(12)
        poll(A, 24, 16 if SK else 8, True)
        A.wait("q0", "q1", "q2", "q3")
    A(f"s_cmp_ge_u32 s27, 9")
    A(f"s_cbranch_scc1 {L}_V")
    A.save(L + "v")
    def pre():
        if not do_poll:
            pass
    k1_main_w(A, 4, False, sc, do_poll)
    A("s_cmp_eq_u32 s27, 8")
    A(f"s_cbranch_scc1 {L}_EXT")
    A.save(L + "ext")
    ST_ = P.get("k1_st", "")
    A(f"""
    s_and_b32 s32, s27, 3
    s_lshl_b32 s32, s32, 3
    s_lshl_b32 s33, s26, 10
    s_add_u32 s33, s33, {G.QM}
    s_and_b32 s34, s26, 7
    s_lshl_b32 s34, s34, 10
    s_add_u32 s34, s34, s31
    s_cmp_lt_u32 s27, 4
    s_cselect_b32 s33, s33, s34
    s_mov_b32 s35, {G.KVH}
    s_cselect_b32 s35, 65536, s35
    s_mov_b32 s36, {hex(G.f32(QSCALE))}
    s_cselect_b32 s36, s36, 1.0
    s_mul_i32 s32, s32, s35
    s_add_u32 s33, s33, s32
    v_mul_f32 v6, s36, v6
    """)
    for t in range(4):
        acc = 64 + 16 * t
        for e in range(2):
            for i in range(8): A(f"v_mul_f32 v{acc+8*e+i}, v{acc+8*e+i}, v6")
            for i in range(4): A(f"v_cvt_pk_bf16_f32 v{128+8*t+4*e+i}, v{acc+8*e+2*i}, v{acc+8*e+2*i+1}")
            A(f"buffer_store_dwordx4 v[{128+8*t+4*e}:{128+8*t+4*e+3}], v1, s[4:7], s33 offen{ST_}")
            A("s_add_u32 s33, s33, s35")
    A("s_endpgm")
    A.label(f"{L}_EXT")
    A.restore(L + "ext")
    A(f"""
    v_and_b32 v12, 31, v0
    v_bfe_u32 v13, v0, 5, 1
    v_lshlrev_b32 v14, 2, v12
    v_mul_u32_u24 v15, 16384, v13
    v_add_u32 v14, v14, v15
    v_lshlrev_b32 v15, 4, v12
    s_mov_b32 s32, {2*G.KVH}
    v_mul_lo_u32 v13, v13, s32
    v_add_u32 v15, v15, v13
    s_lshl_b32 s33, s26, 7
    s_add_u32 s33, s33, {G.QE}
    s_bfe_u32 s34, s26, 0x10002
    s_lshl_b32 s34, s34, 9
    s_and_b32 s35, s26, 3
    s_lshl_b32 s35, s35, 2
    s_add_u32 s34, s34, s35
    s_add_u32 s34, s34, s31
    s_add_u32 s34, s34, 8192
    v_mul_f32 v7, {hex(G.f32(QSCALE))}, v6
    """)
    for t in range(4):
        acc = 64 + 16 * t
        sc_ = 7 if t < 2 else 6
        e = t & 1
        for i in range(16): A(f"v_mul_f32 v{acc+i}, v{acc+i}, v{sc_}")
        for i in range(8): A(f"v_cvt_pk_bf16_f32 v{128+8*t+i}, v{acc+2*i}, v{acc+2*i+1}")
        for i in range(8):
            g, par = i >> 1, i & 1
            hd = 16 * e + 4 * g + par
            if t < 2:
                A(f"s_add_u32 s30, s33, {hd*8192}")
                A(f"buffer_store_dword v{128+8*t+i}, v14, s[4:7], s30 offen")
            else:
                A(f"s_add_u32 s30, s34, {hd*G.KVH}")
                A(f"buffer_store_dword v{128+8*t+i}, v15, s[4:7], s30 offen")
    A("s_endpgm")
    A.label(f"{L}_V")
    A.restore(L + "v")
    k1_main_w(A, 3, True, sc, do_poll)
    A(f"""
    v_and_b32 v12, 31, v0
    v_lshlrev_b32 v13, 2, v12
    s_lshl_b32 s32, s3, 7
    s_add_u32 s32, s32, {4*G.T1S}
    v_add_u32 v13, s32, v13
    ds_write_b32 v13, v6
    v_bfe_u32 v14, v0, 5, 1
    v_lshlrev_b32 v13, 4, v14
    v_add_u32 v13, s32, v13
    """)
    A.waitall(vm=False)
    for g in range(4):
        A(f"ds_read_b128 v[{16+4*g}:{19+4*g}], v13 offset:{g*32}")
    A(f"""
    s_sub_u32 s32, s27, 9
    s_mul_i32 s32, s32, 96
    v_add_u32 v12, s32, v12
    v_mul_u32_u24 v14, 304, v14
    s_and_b32 s33, s26, 7
    s_mul_i32 s33, s33, 1216
    s_add_u32 s33, s33, s31
    s_add_u32 s33, s33, 9216
    s_mov_b32 s34, {G.KVH}
    """)
    A.waitall(vm=False)
    for t in range(3):
        acc = 64 + 16 * t
        A(f"""
        v_mul_u32_u24 v13, 3641, v12
        v_lshrrev_b32 v13, 16, v13
        v_mul_u32_u24 v15, 18, v13
        v_sub_u32 v15, v12, v15
        v_mul_lo_u32 v13, v13, s34
        v_lshlrev_b32 v15, 4, v15
        v_add3_u32 v{7+t}, v13, v15, v14
        v_add_u32 v12, 32, v12
        """)
        for i in range(16): A(f"v_mul_f32 v{acc+i}, v{acc+i}, v{16+i}")
        for i in range(8): A(f"v_cvt_pk_bf16_f32 v{128+8*t+i}, v{acc+2*i}, v{acc+2*i+1}")
        for e in range(2):
            A(f"buffer_store_dwordx4 v[{128+8*t+4*e}:{128+8*t+4*e+3}], v{7+t}, s[4:7], s33 offen offset:{e*608}{ST_}")
    A("s_endpgm")

def k1_main_w(A, NT, swapped, sc, prefetched):
    if prefetched:
        k1_main(A, NT, swapped, sc)
    else:
        k1_main_stream(A, NT, swapped)

def k1_main_stream(A, NT, swapped):
    xreg = lambda j, ks: (256 + 4 * ks) if ks < 36 else 8
    t1 = T1(1, xreg, lambda t, j: 64 + 16 * t, 32, 8, lambda t: t, 2, swapped)
    def issue(B, c):
        for t in range(NT):
            if c < 9: dma(B, 77, t * G.T1S + c * 4096, 78, t * G.T1S + c * 4096, 1, f"c{c}", stmp=38)
            else: dma(B, 76, t * G.T1S + 36 * 1024, None, t * G.T1S + 36 * 1024, 1, f"c{c}", stmp=38)
        if c < 9:
            for q in range(4):
                B(f"s_add_u32 s30, s23, {c*4096}")
                B(f"buffer_load_dwordx4 {r(xreg(0, 4*c+q), 4)}, v1, s[4:7], s30 offen offset:{q*1024}", tag=f"x{4*c+q}")
    AHEAD = P.get("k1s_ahead", 3)
    issue(A, 0)
    stats_load(A, 1, 29, 16, 12, "")
    for c in range(1, AHEAD): issue(A, c)
    SC = Asm()
    SC.wait("st")
    stats_compute(SC, 16, 5, 6, 12)
    SC("v_cmp_gt_u32 vcc, 512, v1")
    build_xext(SC, 5, 8, 12)
    SC("v_rsq_f32 v6, v6")
    items = [(t, ks) for ks in range(37) for t in range(NT)]
    DIST = 6
    M = Asm(); marks = {}
    def pre_read(i):
        t, ks = items[i]
        if t == 0 and ks % 4 == 0:
            M.wait(f"c{ks//4}"); M("s_barrier")
        t1.read(M, i, t, ks)
    for i in range(DIST): pre_read(i)
    for i, (t, ks) in enumerate(items):
        if t == 0: marks[ks] = len(M.ins)
        if i + DIST < len(items): pre_read(i + DIST)
        M.wait(f"wf{i}", f"x{ks}")
        if i == 0: M.stamp(14)
        t1.mfmas(M, i, t, ks)
    S_ = Sched(M.ins)
    for c in range(AHEAD, 10):
        B = Asm(); issue(B, c)
        S_.release(marks[4 * (c - AHEAD)], "vm", groups_vm(B.ins), every=1)
    S_.release(marks[3], "va", groups_1(SC.ins))
    out, rest = S_.run(cap=24, vm_cost=16)
    assert not rest
    check_tags(out)
    A.ins += out
    A.stamp(15)

def gen_ks():
    name = "ks_kernel"
    A = G.begin(name)
    A("""
    s_load_dwordx16 s[64:79], s[0:1], 0
    s_load_dwordx4 s[80:83], s[0:1], 64
    s_cmp_ge_u32 s2, 256
    s_cbranch_scc1 KS_END
    """)
    G.wave_id(A, 3)
    A.waitall()
    G.srd(A, 4, 82, G.WS_USED)
    G.srd(A, 12, 80, 256)
    B = Asm()
    nj = G.k0_body(B)
    sec = ""
    for i in B.ins:
        if i.kind == "label": sec = i.text
        if i.text.startswith("buffer_store") and not sec.startswith("K0_wo") and "v[8:11]" not in i.text: i.text += " sc1"
    A.extend(B)
    A.fence()
    A.waitall()
    A.stamp(0)
    A(f"""
    s_cmp_ge_u32 s2, {nj}
    s_cbranch_scc1 KS_NOSIG
    s_barrier
    s_cmp_lg_u32 s3, 0
    s_cbranch_scc1 KS_NOSIG
    s_mov_b64 exec, 1
    v_mov_b32 v30, 0
    v_mov_b32 v31, 1
    buffer_atomic_add v31, v30, s[12:15], s19 offen
    s_mov_b64 exec, -1
    """)
    A.label("KS_NOSIG")
    A(f"""
    s_mov_b32 s42, {G.XF}
    s_mov_b32 s43, {G.ST}
    s_mov_b32 s41, 0
    """)
    k1_decode(A, "KS_END")
    A("""
    s_cmp_ge_u32 s87, 15
    s_cbranch_scc1 KS_END
    v_and_b32 v1, 63, v0
    v_lshlrev_b32 v1, 4, v1
    s_mov_b32 s24, 4
    s_cmp_eq_u32 s87, 8
    s_cselect_b32 s24, 16, s24
    s_cmp_ge_u32 s87, 9
    s_cselect_b32 s24, 3, s24
    s_add_u32 s25, s87, 16
    v_and_b32 v28, 1, v0
    v_cmp_eq_u32 vcc, 1, v28
    v_mov_b32 v30, s86
    v_mov_b32 v29, s25
    v_cndmask_b32 v30, v30, v29, vcc
    v_lshlrev_b32 v30, 2, v30
    v_mov_b32 v29, s24
    v_cndmask_b32 v29, 4, v29, vcc
    s_mov_b32 s39, 0x40000
    s_cmp_lg_u32 s3, 0
    s_cbranch_scc1 KS_GO
    """)
    A.label("KS_POLL")
    A(f"""
    buffer_load_dword v31, v30, s[12:15], 0 offen sc1
    s_waitcnt vmcnt(0)
    v_cmp_eq_u32 vcc, v29, v31
    s_nop 1
    s_cmp_eq_u64 vcc, -1
    s_cbranch_scc1 KS_GO
    s_sleep {P.get('ks_sleep', 12)}
    s_sub_u32 s39, s39, 1
    s_cmp_lg_u32 s39, 0
    s_cbranch_scc1 KS_POLL
    """)
    A.label("KS_GO")
    A("s_barrier")
    A.stamp(1)
    C = Asm()
    k1_phase(C, "K1S", 0, False)
    for i in C.ins:
        if i.text.startswith("buffer_load"):
            i.text = i.text[:-4] + " sc1 lds" if i.text.endswith(" lds") else i.text + " sc1"
    A.extend(C)
    A.label("KS_END")
    A("s_endpgm")
    G.end(A, name, 400, 256)
    return (name, 256, 256, LDS_BYTES)

def gen_k0():
    name = "k0_kernel"
    A = G.begin(name)
    A("""
    s_load_dwordx16 s[64:79], s[0:1], 0
    s_load_dwordx4 s[80:83], s[0:1], 64
    """)
    G.wave_id(A, 3)
    A.waitall()
    G.srd(A, 4, 82, G.WS_USED)
    if P.get("pf", 1):
        A("""
        s_lshr_b32 s29, s2, 3
        s_lshl_b32 s29, s29, 2
        s_add_u32 s29, s29, s3
        v_and_b32 v1, 63, v0
        v_lshlrev_b32 v1, 4, v1
        """)
        G.code_prefetch(A, "k1_kernel", "kca_kernel", 16, 29, 1, 124)
    B = Asm()
    nj = G.k0_body(B)
    for i in B.ins:
        if i.text.startswith("buffer_store_dwordx4") and "v[8:11]" not in i.text and P.get("k0_sc1", 0): i.text += " sc1"
    A.extend(B)
    A("s_endpgm")
    G.end(A, name, 128)
    return (name, nj, 256, 41984)

def gen_k1s():
    name = "k1_kernel"
    A = G.begin(name)
    A(f"""
    s_load_dwordx2 s[12:13], s[0:1], 72
    s_cmp_ge_u32 s2, 256
    s_cbranch_scc1 K1S_END
    s_mov_b32 s42, {G.XF}
    s_mov_b32 s43, {G.ST}
    s_mov_b32 s41, 0
    """)
    G.wave_id(A, 3)
    k1_decode(A, "K1S_END")
    A("""
    s_cmp_ge_u32 s87, 15
    s_cbranch_scc1 K1S_END
    v_and_b32 v1, 63, v0
    v_lshlrev_b32 v1, 4, v1
    """)
    A.waitall()
    G.srd(A, 4, 12, G.WS_USED)
    k1_phase(A, "K1S", 0, False)
    A.label("K1S_END")
    A("s_endpgm")
    G.end(A, name, 400, 256)
    return (name, 256, 256, LDS_BYTES)

def gen_chain():
    A = Asm()
    names = [("kca_kernel", 0), ("kcb_kernel", 1)]
    for i, (n, fl) in enumerate(names):
        A.raw(f".globl {n}\n.p2align 8\n.type {n},@function")
        A.label(n)
        A(f"s_mov_b32 s40, {fl}")
        A(f"s_mov_b32 s41, {fl*8192}")
        A(f"s_mov_b32 s42, {G.XF + 2*fl*G.XSZ}")
        A(f"s_mov_b32 s43, {G.ST + 2*fl*G.SSZ}")
        if i < len(names) - 1: A("s_branch CH_BODY")
    A.label("CH_BODY")
    A("""
    s_load_dwordx2 s[12:13], s[0:1], 72
    s_load_dwordx2 s[14:15], s[0:1], 56
    s_cmp_ge_u32 s2, 256
    s_cbranch_scc1 CH_END
    """)
    G.wave_id(A, 3)
    t2_decode(A)
    t2_setup(A, 18, G.OF, G.WO, 0, 1)
    k4_decode(A)
    A.waitall()
    G.srd(A, 4, 12, G.WS_USED)
    G.srd(A, 8, 14, G.S * G.D * 2)
    sl4 = lambda t: t
    NTAIL = P.get("t2_ntail", 16)
    A("s_cmp_lg_u32 s83, 0")
    A("s_cbranch_scc1 K3_N5")
    A.save("k3n5")
    wt = lambda: tile_dmas([0, 1, 2, 3], sl4, 77, 76, 78, lambda t: f"w{t}" if t < 3 else "t3")
    for NT, pfx in ((4, "K3A"), (5, "K3B")):
        if NT == 5:
            A.label("K3_N5"); A.restore("k3n5")
        X, RES, left = t2_main(A, NT, 18, pfx, 0, "", wt()[:NTAIL], None, 0)
        assert not left
        t2_store(A, NT, X, RES)
        if NT == 4: A("s_branch K3_DONE")
    A.label("K3_DONE")
    if P.get("st3"): A.stamp(14)
    A("s_lshl_b32 s24, s80, 3")
    A("s_add_u32 s24, s24, s81")
    A("s_lshl_b32 s24, s24, 2")
    A("s_add_u32 s24, s24, s41")
    NMID = P.get("t2_nmid", 4)
    assert NTAIL + NMID <= 20
    for g in wt()[NTAIL:NTAIL+NMID]: A.ins += g
    signal(A, 24, "out")
    A.stamp(1)
    for g in wt()[NTAIL+NMID:]: A.ins += g
    k4_phase(A, None)
    qt = lambda: tile_dmas([0, 1, 2, 3], sl4, 77, 76, 78, lambda t: f"q{t}")
    if SK:
        k5_phase(A, lambda t: tile_dmas([t], sl4, 77, 76, 78, lambda t: f"q{t}"), P.get("k5_nmid", 6))
    else:
        A("s_lshl_b32 s24, s85, 5")
        A("s_add_u32 s24, s24, s84")
        A("s_lshl_b32 s24, s24, 2")
        A("s_add_u32 s24, s24, s41")
        A("s_add_u32 s24, s24, 1024")
        t2_setup(A, 144, G.HF, G.W2, 1, 2)
        signal(A, 24, "hout")
        A.stamp(8)
        k1_decode(A, None)
        A("s_lshr_b32 s25, s80, 2")
        A("s_lshl_b32 s25, s25, 7")
        A("s_add_u32 s25, s25, s41")
        A("s_add_u32 s25, s25, 1024")
        WPRE = 5
        poll(A, 25, 32, True)
        A.stamp(9)
        A("s_cmp_lg_u32 s83, 0")
        A("s_cbranch_scc1 K5_N5")
        A.save("k5n5")
        qt = lambda: tile_dmas([0, 1, 2, 3], sl4, 77, 76, 78, lambda t: f"q{t}")
        for NT, pfx in ((4, "K5A"), (5, "K5B")):
            if NT == 5:
                A.label("K5_N5"); A.restore("k5n5")
            X, RES, left = t2_main(A, NT, 144, pfx, WPRE, " sc1", qt()[:NTAIL], None, None)
            assert not left
            A.stamp(10)
            A("s_cmp_lg_u32 s40, 0")
            A(f"s_cbranch_scc1 {pfx}_FINAL")
            A.save(pfx + "fin")
            t2_store(A, NT, X, RES)
            A("s_branch K5_DONE")
            A.save(pfx + "done")
            A.label(f"{pfx}_FINAL")
            A.restore(pfx + "fin")
            for t in range(NT):
                A(f"buffer_store_dwordx2 v[{RES+2*t}:{RES+2*t+1}], v29, s[8:11], s31 offen offset:{t*32}")
            A("s_endpgm")
        A.label("K5_DONE")
        A.restore("K5Bdone")
        A("s_lshl_b32 s24, s80, 3")
        A("s_add_u32 s24, s24, s81")
        A("s_lshl_b32 s24, s24, 2")
        A("s_add_u32 s24, s24, s41")
        A("s_add_u32 s24, s24, 2048")
        for g in qt()[NTAIL:NTAIL+NMID]: A.ins += g
        signal(A, 24, "out")
        A.stamp(11)
        A("s_cmp_ge_u32 s87, 15")
        A("s_cbranch_scc1 CH_END")
        for g in qt()[NTAIL+NMID:]: A.ins += g
    if P.get("pf", 1):
        A("s_lshr_b32 s29, s2, 3")
        A("s_lshl_b32 s29, s29, 2")
        A("s_add_u32 s29, s29, s3")
        G.code_prefetch(A, "k2_kernel", "CODE_END", 12, 29, 1, 248)
    k1_phase(A, "K1C", 2, True)
    A.label("CH_END")
    A("s_endpgm")
    text = finalize(A)
    first = True
    for n, fl in names:
        G.kernels.append((n, text if first else "", 512, 256, 96))
        first = False
    return [(n, 256, 256, LDS_BYTES) for n, fl in names]
```

```python
from asmlib import *
import gen as G
P = G.P

def gen_k2(name, side):
    A = G.begin(name)
    L = name[:3].upper()
    VK, VV = 2, 6
    QMr, QEr = 12, 16
    NEG, Sr, Pr, Or = 48, 64, 96, 112
    KMr, VRr, KEr = 128, 140, 164
    T = 172
    SD, SO = 192, 228
    SV = 184
    W2 = 2 * G.KVG
    FL = 236 if side else 184
    SCR = 151552
    A(f"""
    s_load_dwordx2 s[82:83], s[0:1], 72
    """)
    if side: A("s_load_dwordx8 s[72:79], s[0:1], 32")
    A(f"""
    s_cmp_ge_u32 s2, 256
    s_cbranch_scc1 {L}_END
    s_and_b32 s24, s2, 7
    s_lshl_b32 s24, s24, 2
    s_bfe_u32 s25, s2, 0x20003
    s_add_u32 s24, s24, s25            ; head
    s_lshr_b32 s25, s2, 5              ; qblk
    """)
    G.wave_id(A, 3)
    A(f"""
    v_and_b32 v1, 63, v0
    v_lshlrev_b32 v1, 4, v1
    s_lshl_b32 s25, s25, 3
    s_add_u32 s25, s25, s3             ; qtile
    s_lshl_b32 s26, s24, 6
    s_add_u32 s26, s26, s25            ; head*64+qtile
    s_lshl_b32 s27, s26, 10
    s_add_u32 s27, s27, {G.QM}
    s_lshl_b32 s28, s26, 7
    s_add_u32 s28, s28, {G.QE}
    s_lshl_b32 s21, s3, 10
    s_mul_i32 s22, s24, {G.KVH}
    s_add_u32 s22, s22, {G.KV}
    s_add_u32 s20, s22, s21
    s_and_b32 s23, s21, 0xc00          ; (w&3)*1024
    s_add_u32 s22, s22, s23
    v_and_b32 v{T}, 31, v0
    v_lshlrev_b32 v{T+1}, 2, v{T}
    s_mov_b32 s40, 0
    """)
    A.waitall()
    G.srd(A, 4, 82, G.WS_USED)
    jmax = [2, 4, 6, 9, 11, 13, 16, 18]
    def dma_round(B, j):
        g = min(gg for gg in range(8) if j <= jmax[gg])
        a, b = (20, 21) if j < 18 else (22, 23)
        B(f"s_add_u32 s30, s{a}, {j*8192}")
        B(f"s_add_u32 m0, s{b}, {j*8192}")
        B("buffer_load_dwordx4 v1, s[4:7], s30 offen lds", tag=f"c{g}")
    dma_round(A, 0); dma_round(A, 1)
    A(f"buffer_load_dwordx4 v[{QMr}:{QMr+3}], v1, s[4:7], s27 offen", tag="q")
    A(f"buffer_load_dword v{T+2}, v{T+1}, s[4:7], s28 offen", tag="q")
    PRE = P.get("k2_pre", 5)
    for j in range(2, PRE): dma_round(A, j)
    A(f"""
    v_bfe_u32 v{T+3}, v0, 2, 1
    v_lshlrev_b32 v{T+3}, 3, v{T+3}
    v_bfe_u32 v{T+4}, v0, 3, 1
    v_lshlrev_b32 v{T+4}, 2, v{T+4}
    v_and_b32 v{T+5}, 3, v0
    v_add3_u32 v{T+3}, v{T+3}, v{T+4}, v{T+5}     ; d(i) for i<16
    v_min_u32 v{T+4}, 18, v{T}
    v_cmp_gt_u32 vcc, 16, v{T}
    v_cndmask_b32 v{T+3}, v{T+4}, v{T+3}, vcc
    v_lshlrev_b32 v{T+3}, 4, v{T+3}
    v_bfe_u32 v{T+4}, v0, 5, 1
    v_mul_u32_u24 v{T+4}, 304, v{T+4}
    v_add_u32 v{T+3}, v{T+3}, v{T+4}
    """)
    for p in range(4):
        A(f"v_add_u32 v{VK+p}, {p*W2}, v1")
        A(f"v_add_u32 v{VV+p}, {p*W2 + 9216}, v{T+3}")
    for i in range(32): A(f"v_mov_b32 v{QEr+i}, 0")
    if side:
        side_setup(A, L, SV, T, SCR)
    A.wait("q")
    A(f"v_cmp_gt_u32 vcc, 512, v1")
    for j in range(4):
        A(f"v_cndmask_b32 v{QEr+4*j+j}, 0, v{T+2}, vcc")
        A(f"v_cndmask_b32 v{QEr+16+4*j+j}, v{T+2}, 0, vcc")
    def rdK(t):
        p = t >> 4; g = (t >> 3) & 1
        A(f"ds_read_b128 v[{KMr+4*(t%3)}:{KMr+4*(t%3)+3}], v{VK+p} offset:{g*G.KVG + (t&7)*1024}", tag=f"k{t}")
        if t % 8 == 0:
            A(f"ds_read_b128 v[{KEr+4*g}:{KEr+4*g+3}], v{VK+p} offset:{g*G.KVG + 8192}", tag=f"k{t}")
    def rdV(t):
        p = t >> 4; g = (t >> 3) & 1
        b = VRr + 8 * (t % 3)
        A(f"ds_read_b128 v[{b}:{b+3}], v{VV+p} offset:{g*G.KVG + (t&7)*1216}", tag=f"v{t}")
        A(f"ds_read_b128 v[{b+4}:{b+7}], v{VV+p} offset:{g*G.KVG + (t&7)*1216+608}", tag=f"v{t}")
    def qk1(t, c):
        s_ = Sr + 16 * (t & 1)
        A(f"v_mfma_f32_32x32x16_bf16 v[{s_}:{s_+15}], v[{KMr+4*(t%3)}:{KMr+4*(t%3)+3}], v[{QMr}:{QMr+3}], {c}")
    def qk2(t):
        s_ = Sr + 16 * (t & 1); g = (t >> 3) & 1; q = QEr + 4 * (t & 7)
        A(f"v_mfma_f32_32x32x16_bf16 v[{s_}:{s_+15}], v[{KEr+4*g}:{KEr+4*g+3}], v[{q}:{q+3}], v[{s_}:{s_+15}]")
    def pv(t, half):
        b = VRr + 8 * (t % 3) + 4 * half; p_ = Pr + 8 * (t & 1) + 4 * half
        c = "0" if (t == 0 and half == 0) else f"v[{Or}:{Or+15}]"
        A(f"v_mfma_f32_32x32x16_bf16 v[{Or}:{Or+15}], v[{b}:{b+3}], v[{p_}:{p_+3}], {c}")
    def maxreduce(dst, s_, first):
        i0 = 0
        if first:
            A(f"v_max3_f32 v{dst}, v{s_}, v{s_+1}, v{s_+2}")
            A(f"v_max_f32 v{dst}, v{dst}, v{s_+3}")
            i0 = 4
        for i in range(i0, 16, 2):
            A(f"v_max3_f32 v{dst}, v{dst}, v{s_+i}, v{s_+i+1}")
    def setneg(dst):
        A(f"v_mov_b32 v{T+7}, v{dst}")
        A(f"v_permlane32_swap_b32 v{dst}, v{T+7}")
        A(f"v_max_f32 v{dst}, v{dst}, v{T+7}")
        for i in range(16): A(f"v_sub_f32 v{NEG+i}, 0, v{dst}")
    NEGC = f"v[{NEG}:{NEG+15}]"
    A.stamp(0)
    A.wait("c0")
    A.stamp(1)
    A("s_barrier")
    A.stamp(2)
    rdK(0)
    A.wait("k0")
    qk1(0, "0"); qk2(0)
    maxreduce(T + 6, Sr, True)
    setneg(T + 6)
    A.label(f"{L}_MAIN")
    if side: A(f"v_mov_b32 v{SV+4}, 0")
    rdK(0); rdK(1)
    A.wait("k0")
    qk1(0, NEGC); qk2(0)
    nextj = PRE
    LASTB = P.get("k2_lastb", 2)
    PRIO = {int(k): v for k, v in P.get("k2_prio", {"0":3,"32":2,"52":1,"61":0}).items()}
    U0, U1, US = P.get('k2_u0', 6), P.get('k2_u1', 15), 5
    for t in range(64):
        s_ = Sr + 16 * (t & 1); p_ = Pr + 8 * (t & 1)
        if t % 8 == 0: A.stamp(3 + t // 8)
        if t + 2 < 64:
            if (t + 2) % 8 == 0 and (t + 2) // 8 <= LASTB:
                g = (t + 2) // 8
                A.wait(*([f"c{g}"] if g < LASTB else [f"c{x}" for x in range(g, 8)]))
                A("s_barrier")
            rdK(t + 2)
        rdV(t)
        for _ in range(P.get("k2_dpt", 2)):
            if nextj < 19:
                dma_round(A, nextj); nextj += 1
        if t in PRIO: A(f"s_setprio {PRIO[t]}")
        if t in (20, 24, 28, 32, 36):
            k = (t - 20) // 4
            if k == 0:
                for i in range(4): A(f"v_mov_b32 v{FL+i}, -1")
                A("s_mul_i32 s86, s2, 36864")
                A(f"s_add_u32 s86, s86, {G.PART}")
                A("s_add_u32 s86, s86, s21")
            A(f"buffer_store_dwordx4 v[{FL}:{FL+3}], v1, s[4:7], s86 offen{P.get('fill_st', ' sc1')}")
            A("s_add_u32 s86, s86, 8192")
        if side and t == P.get("pf_t", 57) and P.get("pf", 1):
            A("s_lshr_b32 s29, s2, 3")
            A("s_lshl_b32 s29, s29, 3")
            A("s_add_u32 s29, s29, s3")
            G.code_prefetch(A, "kca_kernel", "k2_kernel", 16, 29, 1, SD)
        if side:
            if t == 60:
                A(f"ds_write_b32 v{SV+5}, v{SV+4}", tag="cs")
                A.wait("cs")
                A("s_barrier")
            u, ph = divmod(t - U0, US)
            if 0 <= u < 9 and ph == 0:
                A(f"buffer_load_dwordx2 v[{SD+4*u}:{SD+4*u+1}], v{SV}, s[8:11], s34 offen", tag=f"sl{u}")
                A(f"buffer_load_dwordx2 v[{SD+4*u+2}:{SD+4*u+3}], v{SV+1}, s[8:11], s34 offen", tag=f"sl{u}")
                A("s_add_u32 s34, s34, s35" if u < 8 else "s_mov_b32 s34, s38")
            u, ph = divmod(t - U1, US)
            if 0 <= u < 9 and ph < 3:
                so = SO + 4 * (u & 1)
                if ph == 0:
                    A.wait(f"sl{u}")
                    A(f"ds_write_b64 v{SV+3}, v[{SD+4*u}:{SD+4*u+1}]", tag=f"sw{u}")
                    A(f"ds_write_b64 v{SV+3}, v[{SD+4*u+2}:{SD+4*u+3}] offset:512", tag=f"sw{u}")
                elif ph == 1:
                    A.wait(f"sw{u}")
                    A(f"ds_read_b64_tr_b16 v[{so}:{so+1}], v{SV+3}", tag=f"sr{u}")
                    A(f"ds_read_b64_tr_b16 v[{so+2}:{so+3}], v{SV+3} offset:512", tag=f"sr{u}")
                else:
                    A.wait(f"sr{u}")
                    A(f"buffer_store_dwordx4 v[{so}:{so+3}], v{SV+2}, s[12:15], s36 offen sc1")
                    A("s_add_u32 s36, s36, s37" if u < 8 else "s_mov_b32 s36, s39")
                    for j in range(4): A(f"v_dot2_f32_bf16 v{SV+4}, v{so+j}, s41, v{SV+4}")
        def exps(a, b):
            for i in range(a, b): A(f"v_exp_f32 v{s_+i}, v{s_+i}")
        def cvts(a, b):
            for i in range(a, b): A(f"v_cvt_pk_bf16_f32 v{p_+i}, v{s_+2*i}, v{s_+2*i+1}")
        if t + 1 < 64:
            A.wait(f"k{t+1}")
            qk1(t + 1, NEGC)
        exps(0, 4)
        if t + 1 < 64: qk2(t + 1)
        exps(4, 8); cvts(0, 2)
        if t > 0:
            A.wait(f"v{t-1}")
            pv(t - 1, 0)
        exps(8, 12); cvts(2, 4)
        if t > 0: pv(t - 1, 1)
        exps(12, 16); cvts(4, 8)
    A.wait("v63")
    pv(63, 0); pv(63, 1)
    A.stamp(11)
    A(f"""
    s_mov_b32 s42, {hex(G.f32(2.0**60))}
    v_cmp_gt_f32 vcc, s42, v{Or+10}
    s_cmp_eq_u64 vcc, -1
    s_cbranch_scc1 {L}_OUT
    s_cmp_lg_u32 s40, 0
    s_cbranch_scc1 {L}_OUT
    """)
    A.save("out")
    A(f"""
    s_mov_b32 s40, 1
    s_mov_b32 s42, 0
    v_mov_b32 v{T+6}, 0xff800000
    v_mov_b32 v{T+8}, v{VK}
    """)
    A.label(f"{L}_FB")
    for t in range(8):
        A(f"ds_read_b128 v[{KMr}:{KMr+3}], v{T+8} offset:{t*1024}")
        A(f"ds_read_b128 v[{KEr}:{KEr+3}], v{T+8} offset:8192")
        A.waitall(vm=False)
        q = QEr + 4 * t
        A(f"v_mfma_f32_32x32x16_bf16 v[{Sr}:{Sr+15}], v[{KMr}:{KMr+3}], v[{QMr}:{QMr+3}], 0")
        A(f"v_mfma_f32_32x32x16_bf16 v[{Sr}:{Sr+15}], v[{KEr}:{KEr+3}], v[{q}:{q+3}], v[{Sr}:{Sr+15}]")
        maxreduce(T + 6, Sr, False)
    A(f"""
    v_add_u32 v{T+8}, {G.KVG}, v{T+8}
    s_add_u32 s42, s42, 1
    s_cmp_lt_u32 s42, 8
    s_cbranch_scc1 {L}_FB
    """)
    setneg(T + 6)
    A("s_waitcnt vmcnt(0)")
    A("s_nop 7")
    A(f"s_branch {L}_MAIN")
    A.label(f"{L}_OUT")
    A.restore("out")
    A(f"""
    v_rcp_f32 v{T+6}, v{Or+10}
    v_bfe_u32 v{T}, v0, 4, 1
    v_mul_u32_u24 v{T}, 18432, v{T}
    v_and_b32 v{T+1}, 15, v0
    v_lshlrev_b32 v{T+1}, 4, v{T+1}
    v_add_u32 v{T}, v{T}, v{T+1}
    v_bfe_u32 v{T+1}, v0, 5, 1
    v_lshlrev_b32 v{T+1}, 8, v{T+1}
    v_add_u32 v{T+1}, v{T}, v{T+1}
    s_mul_i32 s30, s25, 36864
    s_add_u32 s30, s30, {G.OF}
    s_lshl_b32 s31, s24, 9
    s_add_u32 s31, s31, s30
    s_lshr_b32 s32, s24, 2
    s_lshl_b32 s32, s32, 8
    s_and_b32 s33, s24, 3
    s_lshl_b32 s33, s33, 2
    s_add_u32 s32, s32, s33
    s_add_u32 s32, s32, s30
    s_add_u32 s32, s32, 16384
    """)
    for i in range(10): A(f"v_mul_f32 v{Or+i}, v{Or+i}, v{T+6}")
    for i in range(5): A(f"v_cvt_pk_bf16_f32 v{Pr+i}, v{Or+2*i}, v{Or+2*i+1}")
    A(f"buffer_store_dwordx4 v[{Pr}:{Pr+3}], v{T+1}, s[4:7], s31 offen")
    A("s_mov_b32 exec_hi, 0")
    A(f"buffer_store_dword v{Pr+4}, v{T}, s[4:7], s32 offen")
    if side:
        A("s_mov_b32 exec_hi, -1")
        side_final(A, L, SV, Sr, SCR)
    A.label(f"{L}_END")
    A("s_endpgm")
    G.end(A, name, 240 if side else 192)
    return (name, 256, 512, SCR + (10240 if side else 0))

def side_setup(A, L, SV, T, SCR):
    t0, t1, t2 = T + 9, T + 10, T + 11
    A(f"""
    s_lshl_b32 s29, s2, 1
    s_lshr_b32 s30, s3, 2
    s_add_u32 s29, s29, s30
    s_and_b32 s31, s3, 3
    s_mov_b32 s41, 0x3f803f80
    s_mov_b32 s12, s4
    s_mov_b32 s13, s5
    s_mov_b32 s14, {G.WS_USED}
    s_mov_b32 s15, 0x00020000
    s_mov_b32 s10, {G.D*G.F*2}
    s_mov_b32 s11, 0x00020000
    v_and_b32 v{t0}, 63, v0
    v_lshrrev_b32 v{SV}, 5, v{t0}
    v_lshlrev_b32 v{SV}, 3, v{SV}
    v_bfe_u32 v{t1}, v{t0}, 2, 2
    v_add_u32 v{SV}, v{SV}, v{t1}              ; kk
    v_and_b32 v{SV+2}, 15, v{t0}
    v_lshlrev_b32 v{SV+2}, 4, v{SV+2}
    s_lshl_b32 s30, s3, 10
    s_add_u32 s30, s30, {SCR}
    v_lshlrev_b32 v{SV+3}, 3, v{t0}
    v_add_u32 v{SV+3}, s30, v{SV+3}
    s_lshl_b32 s30, s3, 8
    s_add_u32 s30, s30, {SCR + 8192}
    v_lshlrev_b32 v{SV+5}, 2, v{t0}
    v_add_u32 v{SV+5}, s30, v{SV+5}
    s_cmp_ge_u32 s29, 288
    s_cbranch_scc1 {L}_SW2
    ; ---- w1 / w3 ----
    s_cmp_ge_u32 s29, 144
    s_cselect_b32 s8, s74, s72
    s_cselect_b32 s9, s75, s73
    s_cselect_b32 s30, 144, 0
    s_cselect_b32 s36, 256, 0
    s_and_b32 s9, s9, 0xffff
    s_sub_u32 s29, s29, s30
    s_lshl_b32 s34, s29, 6
    s_mul_i32 s30, s31, {9*16*9216}
    s_add_u32 s34, s34, s30
    s_mov_b32 s35, {16*9216}
    s_mul_i32 s30, s29, {2*G.T1S}
    s_add_u32 s36, s36, s30
    s_mul_i32 s30, s31, 9216
    s_add_u32 s36, s36, s30
    s_add_u32 s36, s36, {G.W13}
    s_mov_b32 s37, 1024
    s_mov_b32 s43, 1
    s_mov_b32 s30, 9216
    s_mov_b32 s32, 16
    s_mov_b32 s33, 8
    s_mov_b32 s44, {G.T1S}             ; D1
    s_mov_b32 s45, 512                 ; D2
    s_branch {L}_SCOM
    """)
    A.label(f"{L}_SW2")
    A(f"""
    s_mov_b32 s8, s76
    s_and_b32 s9, s77, 0xffff
    s_cmp_ge_u32 s29, 432
    s_cselect_b32 s10, 0, s10
    s_cselect_b32 s14, 0, s14
    s_sub_u32 s29, s29, 288
    s_mul_i32 s30, s29, 3641
    s_lshr_b32 s30, s30, 16             ; seg
    s_mul_i32 s32, s30, 18
    s_sub_u32 s32, s29, s32             ; strip
    s_mul_i32 s30, s30, 36
    s_mul_i32 s33, s31, 9
    s_add_u32 s30, s30, s33             ; U0
    s_mul_i32 s34, s30, {16*1152}
    s_lshl_b32 s33, s32, 6
    s_add_u32 s34, s34, s33
    s_mov_b32 s35, {16*1152}
    s_lshl_b32 s36, s30, 9
    s_mul_i32 s33, s32, {2*144*1024}
    s_add_u32 s36, s36, s33
    s_add_u32 s36, s36, {G.W2}
    s_mov_b32 s37, 512
    s_mov_b32 s43, 0
    s_mov_b32 s30, 1152
    s_mov_b32 s32, 8
    s_mov_b32 s33, 16
    s_mov_b32 s44, {144*1024}
    s_mov_b32 s45, 256
    """)
    A.label(f"{L}_SCOM")
    A(f"""
    s_mov_b32 s38, s34
    s_mov_b32 s39, s36
    v_mul_lo_u32 v{SV}, v{SV}, s30
    v_bfe_u32 v{t1}, v{t0}, 4, 1
    v_lshlrev_b32 v{t2}, 5, v{t1}
    v_add_u32 v{SV}, v{SV}, v{t2}
    v_mul_lo_u32 v{t1}, v{t1}, s44
    v_add_u32 v{SV+2}, v{SV+2}, v{t1}
    v_and_b32 v{t1}, 1, v{t0}
    v_mul_lo_u32 v{t1}, v{t1}, s32
    v_add_u32 v{SV}, v{SV}, v{t1}
    v_bfe_u32 v{t1}, v{t0}, 1, 1
    v_mul_lo_u32 v{t1}, v{t1}, s33
    v_add_u32 v{SV}, v{SV}, v{t1}
    s_lshl_b32 s30, s30, 2
    v_add_u32 v{SV+1}, s30, v{SV}
    v_lshrrev_b32 v{t1}, 5, v{t0}
    v_mul_lo_u32 v{t1}, v{t1}, s45
    v_add_u32 v{SV+2}, v{SV+2}, v{t1}
    """)

def side_final(A, L, SV, R, SCR):
    A(f"""
    s_and_b32 s31, s3, 3
    s_cmp_lg_u32 s31, 0
    s_cbranch_scc1 {L}_END
    s_cmp_eq_u32 s43, 0
    s_cbranch_scc1 {L}_END
    v_and_b32 v{R}, 31, v0
    v_lshlrev_b32 v{R}, 2, v{R}
    s_lshl_b32 s30, s3, 8
    s_add_u32 s30, s30, {SCR + 8192}
    v_add_u32 v{R}, s30, v{R}
    """)
    for j in range(8):
        A(f"ds_read_b32 v{R+8+j}, v{R} offset:{j*128}")
    A.waitall(vm=False)
    b = R
    A(f"""
    v_add_f32 v{b+8}, v{b+8}, v{b+9}
    v_add_f32 v{b+10}, v{b+10}, v{b+11}
    v_add_f32 v{b+12}, v{b+12}, v{b+13}
    v_add_f32 v{b+14}, v{b+14}, v{b+15}
    v_add_f32 v{b+8}, v{b+8}, v{b+10}
    v_add_f32 v{b+12}, v{b+12}, v{b+14}
    v_add_f32 v{b+8}, v{b+8}, v{b+12}
    v_sub_f32 v{b+8}, 0, v{b+8}
    v_cvt_pk_bf16_f32 v{b+9}, v{b+8}, v{b+8}
    v_lshlrev_b32 v{b+9}, 16, v{b+9}
    v_sub_f32 v{b+8}, v{b+8}, v{b+9}
    v_cvt_pk_bf16_f32 v{b+10}, v{b+8}, v{b+8}
    v_lshlrev_b32 v{b+10}, 16, v{b+10}
    v_sub_f32 v{b+11}, v{b+8}, v{b+10}
    v_cvt_pk_bf16_f32 v{b+12}, v{b+9}, v{b+10}
    v_cvt_pk_bf16_f32 v{b+13}, v{b+9}, v{b+11}
    v_cvt_pk_bf16_f32 v{b+14}, v{b+10}, v{b+9}
    v_mov_b32 v{b+15}, 0
    v_cmp_gt_u32 vcc, 512, v1
    v_cndmask_b32 v{b+12}, 0, v{b+12}, vcc
    v_cndmask_b32 v{b+13}, 0, v{b+13}, vcc
    v_cndmask_b32 v{b+14}, 0, v{b+14}, vcc
    s_add_u32 s30, s39, {36*1024}
    buffer_store_dwordx4 v[{b+12}:{b+15}], v{SV+2}, s[12:15], s30 offen sc1
    """)
```

```python
import sys, math, struct
from asmlib import *

NAME = "interleave_layers__softmax_full_mha__glu_gated_swiglu__prompt"
S, D, H, DH, F = 2048, 576, 32, 18, 4608

def al(x): return (x + 4095) // 4096 * 4096
off = 0
def region(n):
    global off
    o = off; off = al(off + n); return o
XSZ = 64 * 36 * 1024
SSZ = 2048 * 64
XF  = region(4 * XSZ)
ST  = region(4 * SSZ)
FLG = region(1 << 20)
QM  = region(32 * 64 * 1024)
QE  = region(32 * 64 * 128)
KVH = 151552
KVG = 18944
KV  = region(32 * KVH + 8192)
OF  = region(128 * 18 * 1024)
HF  = region(128 * 144 * 1024)
T1S = 37 * 1024
WQ  = region(54 * T1S)
W13 = region(288 * T1S)
WO  = region(36 * 18 * 1024)
W2  = region(36 * 144 * 1024)
PARTSZ = 64 * 4 * 3 * 4 * 3072
PART = region(PARTSZ + 65536)
WS_USED = off

def f32(x): return struct.unpack("<I", struct.pack("<f", x))[0]

import os, json
P = json.loads(os.environ.get("GP", "{}"))
kernels = []
launches = []

def begin(name):
    A = Asm()
    A.raw(f".globl {name}\n.p2align 8\n.type {name},@function")
    A.label(name)
    return A

def end(A, name, nv, acc=None, ns=96):
    acc = acc if acc is not None else (nv + 3) // 4 * 4
    kernels.append((name, finalize(A), nv, acc, ns))

def srd(A, d, lo, nbytes):
    A(f"""
    s_mov_b32 s{d}, s{lo}
    s_and_b32 s{d+1}, s{lo+1}, 0xffff
    s_mov_b32 s{d+2}, {nbytes}
    s_mov_b32 s{d+3}, 0x00020000
    """)

def wave_id(A, sreg, vtmp=1):
    A(f"v_lshrrev_b32 v{vtmp}, 6, v0")
    A(f"v_readfirstlane_b32 s{sreg}, v{vtmp}")

_pf = [0]
def code_prefetch(A, start, endl, sd, s_idx, vlane16, vdst, nper=1, stride=262144):
    lab = f"PF{_pf[0]}"; _pf[0] += 1
    A(f"s_getpc_b64 s[{sd}:{sd+1}]")
    A.label(lab)
    A(f"s_add_u32 s{sd}, s{sd}, {start}-{lab}")
    A(f"s_addc_u32 s{sd+1}, s{sd+1}, 0")
    A(f"s_and_b32 s{sd+1}, s{sd+1}, 0xffff")
    A(f"s_mov_b32 s{sd+2}, {endl}-{start}")
    A(f"s_mov_b32 s{sd+3}, 0x00020000")
    A(f"s_lshl_b32 s{s_idx}, s{s_idx}, 10")
    for i in range(nper):
        A(f"buffer_load_dwordx4 v[{vdst}:{vdst+3}], v{vlane16}, s[{sd}:{sd+3}], s{s_idx} offen", tag="pf")
        if i + 1 < nper: A(f"s_add_u32 s{s_idx}, s{s_idx}, {stride}")

def k0_units(A, nunits, rowstride, fA, fB, fC, D1, D2, unit_src, unit_dst, colsum, ext_dst=None, row_mode=None, maskq=False):
    A("""
    v_and_b32 v1, 63, v0
    v_lshrrev_b32 v2, 5, v1          ; g>>1
    v_lshlrev_b32 v2, 3, v2          ; 8*(g>>1)
    v_bfe_u32 v3, v1, 2, 2           ; t>>2
    v_add_u32 v2, v2, v3             ; kk (r=0)
    """)
    if row_mode == "woext":
        A("""
        v_lshrrev_b32 v3, 1, v2
        v_mul_u32_u24 v3, 18, v3
        v_and_b32 v2, 1, v2
        v_add_u32 v2, v2, v3
        """)
        r1add = 36 * rowstride
    else:
        r1add = 4 * rowstride
    A(f"s_mov_b32 s22, {rowstride}")
    A("v_mul_lo_u32 v2, v2, s22")
    A(f"""
    v_bfe_u32 v3, v1, 4, 1
    v_mul_u32_u24 v3, {2*fA}, v3
    v_add_u32 v2, v2, v3
    v_and_b32 v3, 1, v1
    v_mul_u32_u24 v3, {2*fB}, v3
    v_add_u32 v2, v2, v3
    v_bfe_u32 v3, v1, 1, 1
    v_mul_u32_u24 v3, {2*fC}, v3
    v_add_u32 v2, v2, v3
    v_add_u32 v3, {r1add}, v2
    """)
    A(f"""
    v_bfe_u32 v4, v1, 4, 1
    s_mov_b32 s22, {D1}
    v_mul_lo_u32 v4, v4, s22
    v_and_b32 v5, 15, v1
    v_lshlrev_b32 v5, 4, v5
    v_add_u32 v4, v4, v5
    v_lshrrev_b32 v5, 5, v1
    v_mul_u32_u24 v5, {D2}, v5
    v_add_u32 v4, v4, v5
    """)
    if maskq:
        A("""
        v_bfe_u32 v5, v1, 3, 2
        v_cmp_eq_u32 vcc, s25, v5
        v_mov_b32 v5, 0x7ffffff0
        v_cndmask_b32 v4, v5, v4, vcc
        """)
    A("""
    s_mul_i32 s22, s3, 9216
    v_lshlrev_b32 v5, 3, v1
    v_add_u32 v5, s22, v5
    v_mov_b32 v6, 0
    s_mov_b32 s23, 0x3f803f80
    """)
    for u in range(nunits):
        A(f"s_add_u32 s22, s20, {unit_src(u)}")
        A(f"buffer_load_dwordx2 v[{16+4*u}:{17+4*u}], v2, s[8:11], s22 offen", tag=f"ld{u}")
        A(f"buffer_load_dwordx2 v[{18+4*u}:{19+4*u}], v3, s[8:11], s22 offen", tag=f"ld{u}")
    for u in range(nunits):
        A.wait(f"ld{u}")
        A(f"ds_write_b64 v5, v[{16+4*u}:{17+4*u}] offset:{u*1024}", tag=f"w{u}")
        A(f"ds_write_b64 v5, v[{18+4*u}:{19+4*u}] offset:{u*1024+512}", tag=f"w{u}")
    for u in range(nunits):
        A.wait(f"w{u}")
        A(f"ds_read_b64_tr_b16 v[{56+4*u}:{57+4*u}], v5 offset:{u*1024}", tag=f"r{u}")
        A(f"ds_read_b64_tr_b16 v[{58+4*u}:{59+4*u}], v5 offset:{u*1024+512}", tag=f"r{u}")
    for u in range(nunits):
        A.wait(f"r{u}")
        A(f"s_add_u32 s22, s21, {unit_dst(u)}")
        A(f"buffer_store_dwordx4 v[{56+4*u}:{59+4*u}], v4, s[4:7], s22 offen")
        if colsum:
            for j in range(4):
                A(f"v_dot2_f32_bf16 v6, v{56+4*u+j}, s23, v6")
    if colsum:
        A("""
        s_lshl_b32 s22, s3, 8
        v_lshlrev_b32 v7, 2, v1
        v_add_u32 v7, s22, v7
        s_nop 2
        ds_write_b32 v7, v6 offset:40960
        """)
        A.waitall(vm=False)
        A("s_barrier")
        A("s_cmp_lg_u32 s3, 0")
        A("s_cbranch_scc1 K0_END")
        A("""
        v_and_b32 v7, 31, v1
        v_lshlrev_b32 v7, 2, v7
        """)
        for j in range(8):
            A(f"ds_read_b32 v{8+j}, v7 offset:{40960 + j*128}")
        A.waitall(vm=False)
        A("""
        v_add_f32 v8, v8, v9
        v_add_f32 v10, v10, v11
        v_add_f32 v12, v12, v13
        v_add_f32 v14, v14, v15
        v_add_f32 v8, v8, v10
        v_add_f32 v12, v12, v14
        v_add_f32 v8, v8, v12
        v_sub_f32 v8, 0, v8               ; c = -colsum
        v_cvt_pk_bf16_f32 v9, v8, v8
        v_lshlrev_b32 v9, 16, v9          ; c1
        v_sub_f32 v8, v8, v9
        v_cvt_pk_bf16_f32 v10, v8, v8
        v_lshlrev_b32 v10, 16, v10        ; c2
        v_sub_f32 v11, v8, v10
        v_cvt_pk_bf16_f32 v12, v9, v10
        v_cvt_pk_bf16_f32 v13, v9, v11
        v_cvt_pk_bf16_f32 v14, v10, v9
        v_mov_b32 v15, 0
        v_cmp_gt_u32 vcc, 32, v1
        v_cndmask_b32 v12, 0, v12, vcc
        v_cndmask_b32 v13, 0, v13, vcc
        v_cndmask_b32 v14, 0, v14, vcc
        """)
        A(f"s_add_u32 s22, s21, {ext_dst}")
        A("buffer_store_dwordx4 v[12:15], v4, s[4:7], s22 offen")
    A("s_branch K0_END")

def k0_body(A):
    A("s_mov_b32 s19, 252")
    jobs = [("x", 64), ("qkm", 32), ("qke", 16), ("v", 18), ("wom", 18), ("woe", 2)]
    SIDE = P.get("side", 1)
    if not SIDE: jobs += [("w1", 144), ("w3", 144), ("w2", 144)]
    base = 0
    A("s_mov_b32 s24, s2")
    for jn, cnt in jobs:
        A(f"s_cmp_lt_u32 s24, {cnt}")
        A(f"s_cbranch_scc1 K0_{jn}")
        A(f"s_sub_u32 s24, s24, {cnt}")
        base += cnt
    A("s_branch K0_END")
    njobs = base
    A.label("K0_x")
    A("s_lshr_b32 s19, s24, 2")
    A("s_lshl_b32 s19, s19, 2")
    srd(A, 8, 64, S * D * 2)
    A("""
    v_and_b32 v1, 63, v0
    v_and_b32 v2, 31, v1
    v_mul_u32_u24 v2, 1152, v2
    v_lshrrev_b32 v3, 5, v1
    v_lshlrev_b32 v3, 4, v3
    v_add_u32 v2, v2, v3
    v_lshlrev_b32 v4, 4, v1
    s_mul_i32 s20, s24, 36864          ; rb*32*1152
    s_mul_i32 s22, s3, 288
    s_add_u32 s20, s20, s22
    s_mul_i32 s21, s24, 36864          ; rb*36*1024
    s_mul_i32 s22, s3, 9216
    s_add_u32 s21, s21, s22
    """)
    A(f"s_add_u32 s21, s21, {XF}")
    for u in range(9):
        A(f"buffer_load_dwordx4 v[{16+4*u}:{19+4*u}], v2, s[8:11], s20 offen offset:{u*32}", tag=f"x{u}")
    for u in range(9):
        A.wait(f"x{u}")
        A(f"s_add_u32 s22, s21, {u*1024}")
        A(f"buffer_store_dwordx4 v[{16+4*u}:{19+4*u}], v4, s[4:7], s22 offen")
        for j in range(4):
            A(f"v_lshlrev_b32 v{56+8*u+2*j}, 16, v{16+4*u+j}")
            A(f"v_and_b32 v{57+8*u+2*j}, 0xffff0000, v{16+4*u+j}")
    for p, (lo, hi, n) in enumerate([(56, 88, 64), (88, 128, 80)]):
        sm = 6 + 2 * p
        A(f"v_add_f32 v{sm}, v{lo}, v{lo+1}")
        for i in range(lo + 2, hi): A(f"v_add_f32 v{sm}, v{sm}, v{i}")
        A(f"v_mov_b32 v10, v{sm}")
        A(f"v_permlane32_swap_b32 v{sm}, v10")
        A(f"v_add_f32 v{sm}, v{sm}, v10")
        A(f"v_mul_f32 v{sm}, {hex(f32(1.0/n))}, v{sm}")
        A(f"v_mov_b32 v{sm+1}, 0")
        for i in range(lo, hi):
            A(f"v_sub_f32 v{i}, v{i}, v{sm}")
            A(f"v_fmac_f32 v{sm+1}, v{i}, v{i}")
        A(f"v_mov_b32 v10, v{sm+1}")
        A(f"v_permlane32_swap_b32 v{sm+1}, v10")
        A(f"v_add_f32 v{sm+1}, v{sm+1}, v10")
    A(f"""
    v_and_b32 v2, 31, v1
    v_lshlrev_b32 v2, 6, v2
    s_lshl_b32 s22, s24, 11
    s_lshl_b32 s23, s3, 4
    s_add_u32 s22, s22, s23
    s_add_u32 s22, s22, {ST}
    buffer_store_dwordx4 v[6:9], v2, s[4:7], s22 offen
    s_branch K0_END
    """)
    T1src = lambda rs: (lambda u: u * 16 * rs)
    T1dst = lambda u: u * 1024
    A.label("K0_qkm")
    A("s_lshr_b32 s19, s24, 2")
    A("s_lshl_b32 s19, s19, 2")
    A("s_add_u32 s19, s19, 64")
    srd(A, 8, 66, D * 3 * D * 2)
    A(f"""
    v_lshrrev_b32 v1, 5, v0
    v_mul_u32_u24 v1, {KVG}, v1
    v_and_b32 v2, 31, v0
    v_mul_u32_u24 v2, 304, v2
    v_add_u32 v1, v1, v2
    s_mul_i32 s22, s24, {KVH}
    s_add_u32 s22, s22, {KV + 9216 + 288}
    v_mov_b32 v8, 0x3f803f80
    v_mov_b32 v9, 0x3f803f80
    v_mov_b32 v10, 0x3f803f80
    v_mov_b32 v11, 0x3f803f80
    buffer_store_dwordx4 v[8:11], v1, s[4:7], s22 offen
    v_lshlrev_b32 v2, {2 + P.get("fsh", 5)}, v0
    v_mov_b32 v12, 0
    s_lshl_b32 s22, s24, {10 + P.get("fsh", 5)}
    s_add_u32 s22, s22, {FLG}
    buffer_store_dword v12, v2, s[4:7], s22 offen
    s_lshr_b32 s22, s24, 4
    s_mul_i32 s20, s22, 1152
    s_and_b32 s23, s24, 15
    s_mul_i32 s23, s23, 72
    s_add_u32 s20, s20, s23
    s_mul_i32 s23, s3, {9*16*3456}
    s_add_u32 s20, s20, s23
    s_mul_i32 s21, s24, {T1S}
    s_mul_i32 s23, s3, 9216
    s_add_u32 s21, s21, s23
    s_add_u32 s21, s21, {WQ}
    """)
    k0_units(A, 9, 3456, 20, 8, 4, 256, 512, T1src(3456), T1dst, True, 36 * 1024)
    A.label("K0_qke")
    srd(A, 8, 66, D * 3 * D * 2)
    A(f"""
    s_mul_i32 s20, s24, {2*72}
    s_add_u32 s20, s20, 32
    s_mul_i32 s23, s3, {9*16*3456}
    s_add_u32 s20, s20, s23
    s_and_b32 s25, s24, 3
    s_lshr_b32 s21, s24, 2
    s_mul_i32 s21, s21, {T1S}
    s_mov_b32 s19, {4*(16+8)}
    s_mul_i32 s23, s3, 9216
    s_add_u32 s21, s21, s23
    s_add_u32 s21, s21, {WQ + 32*T1S}
    """)
    k0_units(A, 9, 3456, 0, 36, 0, 256, 512, T1src(3456), T1dst, True, 36 * 1024, maskq=True)
    A.label("K0_v")
    A("s_mul_i32 s19, s24, 21846")
    A("s_lshr_b32 s19, s19, 16")
    A("s_lshl_b32 s19, s19, 2")
    A(f"s_add_u32 s19, s19, {4*(16+9)}")
    srd(A, 8, 66, D * 3 * D * 2)
    A(f"""
    s_lshl_b32 s20, s24, 6
    s_add_u32 s20, s20, 2304
    s_mul_i32 s23, s3, {9*16*3456}
    s_add_u32 s20, s20, s23
    s_mul_i32 s21, s24, {T1S}
    s_mul_i32 s23, s3, 9216
    s_add_u32 s21, s21, s23
    s_add_u32 s21, s21, {WQ + 36*T1S}
    """)
    k0_units(A, 9, 3456, 16, 4, 8, 256, 512, T1src(3456), T1dst, True, 36 * 1024)
    for nm, ptr, add in (() if SIDE else (("w1", 72, 0), ("w3", 74, 256))):
        A.label(f"K0_{nm}")
        srd(A, 8, ptr, D * F * 2)
        A(f"""
        s_lshl_b32 s20, s24, 6
        s_mul_i32 s23, s3, {9*16*9216}
        s_add_u32 s20, s20, s23
        s_mul_i32 s21, s24, {2*T1S}
        s_mul_i32 s23, s3, 9216
        s_add_u32 s21, s21, s23
        s_add_u32 s21, s21, {W13 + add}
        """)
        k0_units(A, 9, 9216, 16, 8, 4, T1S, 512, T1src(9216), T1dst, True, 36 * 1024)
    if not SIDE:
        A.label("K0_w2")
        srd(A, 8, 76, D * F * 2)
        A(f"""
        s_mul_i32 s22, s24, 3641
        s_lshr_b32 s22, s22, 16             ; seg = j/18
        s_mul_i32 s23, s22, 18
        s_sub_u32 s23, s24, s23             ; strip
        s_mul_i32 s22, s22, 36
        s_mul_i32 s25, s3, 9
        s_add_u32 s22, s22, s25             ; U0
        s_mul_i32 s20, s22, {16*1152}
        s_lshl_b32 s25, s23, 6
        s_add_u32 s20, s20, s25
        s_lshl_b32 s21, s22, 9              ; U0*512
        s_mul_i32 s25, s23, {2*144*1024}
        s_add_u32 s21, s21, s25
        s_add_u32 s21, s21, {W2}
        """)
        k0_units(A, 9, 1152, 16, 4, 8, 144 * 1024, 256, lambda u: u * 16 * 1152, lambda u: u * 512, False)
    A.label("K0_wom")
    srd(A, 8, 68, D * D * 2)
    A(f"""
    s_mul_i32 s20, s3, {8*18*1152}
    s_lshl_b32 s25, s24, 6
    s_add_u32 s20, s20, s25
    s_lshl_b32 s21, s3, 12
    s_mul_i32 s25, s24, {2*18*1024}
    s_add_u32 s21, s21, s25
    s_add_u32 s21, s21, {WO}
    """)
    k0_units(A, 8, 1152, 16, 4, 8, 18 * 1024, 256, lambda u: u * 18 * 1152, lambda u: u * 512, False)
    A.label("K0_woe")
    srd(A, 8, 68, D * D * 2)
    A(f"""
    s_mul_i32 s20, s3, {144*1152}
    s_add_u32 s20, s20, {16*1152}
    s_mul_i32 s25, s24, {9*64}
    s_add_u32 s20, s20, s25
    s_lshl_b32 s21, s3, 9
    s_add_u32 s21, s21, {WO + 32*512}
    s_mul_i32 s25, s24, {9*2*18*1024}
    s_add_u32 s21, s21, s25
    """)
    k0_units(A, 9, 1152, 16, 4, 8, 18 * 1024, 256, lambda u: u * 64, lambda u: u * 2 * 18 * 1024, False, row_mode="woext")
    A.label("K0_END")
    return njobs

def emit(path):
    hdr = open(f"cdna_kernels/{NAME}.s.ref").read().split("; Override launch")[0]
    out = hdr
    for n, g, b, lds in launches:
        out += f"; @launch kernel={n} grid=({g},1,1) block=({b},1,1) lds={lds}\n"
    out += '.amdgcn_target "amdgcn-amd-amdhsa--gfx950"\n.text\n'
    for n, text, nv, acc, ns in kernels:
        out += text
    out += '.section .rodata,"a"\n'
    for n, text, nv, acc, ns in kernels:
        if n is None: continue
        out += f""".p2align 6
.amdhsa_kernel {n}
  .amdhsa_next_free_vgpr {nv}
  .amdhsa_next_free_sgpr {ns}
  .amdhsa_accum_offset {acc}
  .amdhsa_group_segment_fixed_size 0
  .amdhsa_kernarg_size 80
  .amdhsa_user_sgpr_count 2
  .amdhsa_user_sgpr_kernarg_segment_ptr 1
  .amdhsa_system_sgpr_workgroup_id_x 1
.end_amdhsa_kernel
"""
    open(path, "w").write(out)

if __name__ == "__main__":
    import gen as G2
    G2.main()
def main():
    import k2, chain
    L0 = chain.gen_k0(); L1 = chain.gen_k1s()
    L2a = k2.gen_k2("k2a_kernel", True)
    CA, CB = chain.gen_chain()
    L2 = k2.gen_k2("k2_kernel", False)
    kernels.append((None, "CODE_END:\n    s_endpgm\n", 0, 0, 0))
    launches.extend([L0, L1, L2a, CA, L2, CB])
    emit(sys.argv[1] if len(sys.argv) > 1 else f"cdna_kernels/{NAME}.s")
```

```python
import re

class I:
    __slots__ = ("text", "kind", "tag", "wait", "meta")
    def __init__(self, text, kind="", tag=None, wait=None):
        self.text = text; self.kind = kind; self.tag = tag; self.wait = wait

def v(n, c=1):
    return f"v{n}" if c == 1 else f"v[{n}:{n+c-1}]"
def a(n, c=1):
    return f"a{n}" if c == 1 else f"a[{n}:{n+c-1}]"
def s(n, c=1):
    return f"s{n}" if c == 1 else f"s[{n}:{n+c-1}]"
def r(n, c=1):
    if n >= 256:
        return a(n - 256, c)
    assert n + c <= 256
    return v(n, c)

_reg_re = re.compile(r"^-?\|?([vas])(?:(\d+)|\[(\d+):(\d+)\])\|?$")
def parse_reg(tok):
    tok = tok.strip()
    m = re.match(r"^(?:neg|abs)\((.*)\)$", tok)
    if m: tok = m.group(1)
    if tok == "vcc": return [("s", 106), ("s", 107)]
    if tok == "exec": return [("s", 126), ("s", 127)]
    if tok == "m0": return [("s", 124)]
    m = _reg_re.match(tok)
    if not m: return []
    f = m.group(1)
    if m.group(2) is not None:
        lo = hi = int(m.group(2))
    else:
        lo, hi = int(m.group(3)), int(m.group(4))
    return [(f, i) for i in range(lo, hi + 1)]

TRANS = ("v_exp_f32", "v_log_f32", "v_rcp_f32", "v_rsq_f32", "v_sqrt_f32", "v_sin_f32", "v_cos_f32")
def analyze(text):
    t = text.split(";")[0].strip()
    parts = t.split(None, 1)
    op = parts[0]
    ops = []
    mods = []
    if len(parts) > 1:
        depth = 0; cur = ""
        for ch in parts[1] + ",":
            if ch in "[(": depth += 1
            elif ch in "])": depth -= 1
            if ch == "," and depth == 0:
                p = cur.split()
                if p:
                    ops.append(p[0]); mods += p[1:]
                cur = ""
            else:
                cur += ch
    R = [parse_reg(o) for o in ops]
    d = dict(op=op, wr=set(), rd=set(), cls="other", mods=mods, passes=0, srcC=set(), srcAB=set(), D=None)
    def rd(*idx):
        for i in idx:
            if i < len(R): d["rd"].update(R[i])
    def wr(*idx):
        for i in idx:
            if i < len(R): d["wr"].update(R[i])
    n = len(R)
    if op.startswith("v_mfma"):
        d["cls"] = "mfma"
        wr(0); rd(1, 2, 3)
        d["srcC"] = set(R[3]); d["srcAB"] = set(R[1]) | set(R[2]); d["D"] = tuple(R[0]); d["C"] = tuple(R[3])
        d["passes"] = 8 if "32x32x16" in op or "32x32x8" in op else (4 if "16x16x32" in op or "16x16x16" in op else 16)
    elif op.startswith("v_cmp"):
        d["cls"] = "valu"; wr(0); rd(*range(1, n))
    elif op.startswith("v_readfirstlane") or op.startswith("v_readlane"):
        d["cls"] = "valu"; d["rdlane"] = True; wr(0); rd(*range(1, n))
    elif op.startswith("v_permlane"):
        d["cls"] = "valu"; d["perml"] = True; wr(0, 1); rd(0, 1)
    elif op.startswith("v_"):
        d["cls"] = "valu"
        wr(0); rd(*range(1, n))
        if op.startswith(("v_fmac", "v_dot2c", "v_pk_fmac")) or "UNUSED_PRESERVE" in t: rd(0)
        if op.startswith(("v_add_co", "v_sub_co", "v_addc_co")): wr(1)
        if op.startswith("v_cndmask") and n == 3: d["rd"].update(parse_reg("vcc"))
        if op.startswith(TRANS): d["trans"] = True
        if any(m.startswith(("row_", "quad_perm", "wave_")) for m in mods): d["dpp"] = True
    elif op.startswith("ds_read") or op.startswith("ds_bpermute") or op.startswith("ds_swizzle"):
        d["cls"] = "ds"; wr(0); rd(*range(1, n))
    elif op.startswith("ds_"):
        d["cls"] = "ds"; rd(*range(n))
    elif op.startswith("buffer_load") or op.startswith("global_load"):
        d["cls"] = "vmem"
        if "lds" in mods or "_lds_" in op:
            rd(*range(n)); d["rd"].update(parse_reg("m0")); d["ldsdma"] = True
        else:
            wr(0); rd(*range(1, n))
    elif op.startswith("buffer_") or op.startswith("global_"):
        d["cls"] = "vmem"; rd(*range(n))
        if ("x4" in op or "x3" in op) and "store" in op:
            d["widestore"] = set(R[0]) if op.startswith("buffer") else set(R[1])
    elif op.startswith("s_"):
        d["cls"] = "salu"
        if op.startswith(("s_cmp", "s_cbranch", "s_branch", "s_waitcnt", "s_barrier", "s_nop", "s_endpgm", "s_setprio", "s_sleep", "s_bitcmp")):
            rd(*range(n))
        else:
            wr(0); rd(*range(1, n))
            if "saveexec" in op: d["wr"].update(parse_reg("exec"))
    return d

def states_of(text):
    t = text.strip()
    m = re.match(r"s_nop\s+(\d+)", t)
    if m: return int(m.group(1)) + 1
    return 1

def need_states(p, c):
    need = 0
    pw = p["wr"]
    vw = {x for x in pw if x[0] in "va"}
    sw = {x for x in pw if x[0] == "s"}
    if p["cls"] == "valu":
        if c["cls"] == "mfma" and vw & c["rd"]: need = max(need, 2)
        if c.get("perml") and vw & c["rd"]: need = max(need, 2)
        if c.get("dpp") and vw & c["rd"]: need = max(need, 2)
        if c.get("rdlane") and vw & c["rd"]: need = max(need, 1)
        if p.get("trans") and c["cls"] in ("valu", "mfma") and not c.get("trans") and vw & (c["rd"]): need = max(need, 1)
        if p.get("trans") and c["cls"] in ("vmem", "ds") and vw & c["rd"]: need = max(need, 1)
        if sw:
            if c["cls"] == "vmem" and sw & c["rd"]: need = max(need, 5)
            if c["cls"] == "valu" and sw & c["rd"]: need = max(need, 4 if c.get("rdlane") else 2)
            if c["cls"] == "salu" and sw & c["rd"]: need = max(need, 1)
    if p["cls"] == "salu":
        if ("s", 124) in sw and c.get("ldsdma"): need = max(need, 1)
    if p["cls"] == "mfma":
        ps = p["passes"]
        big = {2: 5, 4: 8, 8: 12, 16: 20}[ps]
        ovl = {2: 4, 4: 6, 8: 10, 16: 18}[ps]
        war = {2: 1, 4: 3, 8: 7, 16: 15}[ps]
        if c["cls"] == "mfma":
            if vw & c["srcAB"]: need = max(need, big)
            if vw & c["srcC"]:
                if not (p["D"] == c["C"] and p["passes"] == c["passes"]): need = max(need, ovl)
            elif vw & c["wr"]: need = max(need, ovl)
        elif c["cls"] in ("valu", "vmem", "ds"):
            if vw & (c["rd"] | c["wr"]): need = max(need, big)
            if c["cls"] == "valu" and p["srcC"] & c["wr"]: need = max(need, war)
            if c["cls"] in ("vmem", "ds") and p["srcC"] & c["wr"]: need = max(need, war)
    if p.get("widestore") and c["cls"] in ("valu", "mfma") and p["widestore"] & c["wr"]: need = max(need, 2)
    if p.get("widestore") and c["cls"] in ("ds", "vmem") and p["widestore"] & c["wr"]: need = max(need, 1)
    return need

class Asm:
    def __init__(self):
        self.ins = []
    def __call__(self, text, tag=None):
        for line in text.strip().split("\n"):
            line = line.strip()
            if not line or line.startswith(";"): continue
            self.ins.append(I(line, tag=tag))
        return self
    def label(self, name):
        self.ins.append(I(name + ":", kind="label"))
    def raw(self, text):
        self.ins.append(I(text, kind="raw"))
    def wait(self, *tags):
        self.ins.append(I("", kind="wait", wait=tags))
    def waitall(self, vm=True, lgkm=True):
        self.ins.append(I("", kind="waitall", wait=(vm, lgkm)))
    def fence(self):
        self.ins.append(I("", kind="fence"))
    def save(self, name):
        self.ins.append(I("", kind="save", tag=name))
    def restore(self, name):
        self.ins.append(I("", kind="restore", tag=name))
    def stamp(self, key):
        import os
        if not os.environ.get("STAMPS"): return
        op = "s_memrealtime" if os.environ.get("STAMPS") == "rt" else "s_memtime"
        sl = os.environ.get("SL")
        if not sl:
            if isinstance(key, int): self.ins.append(I(f"{op} s[{44+2*key}:{45+2*key}]"))
            return
        for i, ent in enumerate(sl.split(",")):
            nm, _, layer = ent.partition(":")
            if nm != str(key): continue
            if layer:
                Asm.nst += 1
                self.ins.append(I(f"s_cmp_lg_u32 s40, {layer}"))
                self.ins.append(I(f"s_cbranch_scc1 STP{Asm.nst}"))
                self.ins.append(I(f"{op} s[{44+2*i}:{45+2*i}]"))
                self.ins.append(I(f"STP{Asm.nst}:", kind="label"))
            else:
                self.ins.append(I(f"{op} s[{44+2*i}:{45+2*i}]"))
    nst = 0
    def extend(self, other):
        self.ins += other.ins

def interleave(main, fill, slots, start=0):
    out = []
    fi = 0
    seen = 0
    for ins in main:
        out.append(ins)
        b = slots(ins)
        if b > 0:
            seen += 1
            if seen <= start: continue
            while fi < len(fill) and b > 0:
                f, c = fill[fi]
                if c > b and b < slots(ins): break
                out.append(f); b -= c; fi += 1
    rest = [f for f, c in fill[fi:]]
    return out, rest

def cost(ins):
    if ins.kind in ("wait", "waitall", "fence", "label", "raw", "save", "restore"): return 0
    op = ins.text.split()[0]
    if op.startswith(TRANS): return 8
    if op.startswith("v_mfma"): return 8
    if op.startswith("v_"): return 4
    if op.startswith("s_"): return 1
    return 4

def finalize(asm):
    out = []
    vmq = []; lgq = []
    smem_out = False
    snaps = {}
    hist = []
    def push(text):
        an = analyze(text)
        need = 0
        dist = 0
        for p, st in reversed(hist):
            n = need_states(p, an)
            if n > dist: need = max(need, n - dist)
            dist += st
            if dist > 24: break
        while need > 0:
            k = min(need, 16)
            out.append(f"    s_nop {k-1}")
            hist.append((analyze(f"s_nop {k-1}"), k))
            need -= k
        out.append("    " + text)
        hist.append((an, states_of(text)))
        if len(hist) > 40: del hist[:10]
        return an
    for ins in asm.ins:
        if ins.kind == "label":
            out.append(ins.text); continue
        if ins.kind == "raw":
            out.append(ins.text); continue
        if ins.kind == "save":
            snaps[ins.tag] = (None if vmq is None else list(vmq), None if lgq is None else list(lgq), smem_out, list(hist))
            continue
        if ins.kind == "restore":
            a_, b_, smem_out, h_ = snaps[ins.tag]
            vmq = None if a_ is None else list(a_); lgq = None if b_ is None else list(b_)
            hist[:] = h_
            continue
        if ins.kind == "fence":
            vmq = None; lgq = None
            continue
        if ins.kind == "waitall":
            vm, lg = ins.wait
            p = []
            if vm and (vmq is None or vmq): p.append("vmcnt(0)")
            if lg and (lgq is None or lgq or smem_out): p.append("lgkmcnt(0)")
            if vm: vmq = []
            if lg: lgq = []; smem_out = False
            if p: push("s_waitcnt " + " ".join(p))
            continue
        if ins.kind == "wait":
            p = []
            assert vmq is not None and lgq is not None, "wait by tag after fence without waitall"
            idx = max([i for i, t in enumerate(vmq) if t in ins.wait], default=-1)
            if idx >= 0:
                n = len(vmq) - 1 - idx
                if n <= 63:
                    p.append(f"vmcnt({n})")
                    vmq = vmq[idx + 1:]
                else:
                    raise Exception("vmcnt overflow")
            idx = max([i for i, t in enumerate(lgq) if t in ins.wait], default=-1)
            if idx >= 0:
                n = len(lgq) - 1 - idx
                if smem_out: n = 0
                if n > 15: n = 15
                p.append(f"lgkmcnt({n})")
                lgq = lgq[len(lgq) - n:] if n else []
                if n == 0: smem_out = False
            if p: push("s_waitcnt " + " ".join(p))
            continue
        an = push(ins.text)
        op = an["op"]
        if an["cls"] == "vmem" and not op.startswith(("buffer_wbl2", "buffer_inv")):
            if vmq is not None:
                vmq.append(ins.tag)
                if len(vmq) > 63: vmq = vmq[-63:]
        elif an["cls"] == "ds":
            if lgq is not None: lgq.append(ins.tag)
        elif op.startswith(("s_load", "s_memtime", "s_buffer_load", "s_memrealtime")):
            smem_out = True
            if lgq is not None: lgq.append(ins.tag)
        elif op == "s_waitcnt":
            m = re.search(r"vmcnt\((\d+)\)", ins.text)
            if m:
                n = int(m.group(1))
                if vmq is None:
                    if n == 0: vmq = []
                else: vmq = vmq[len(vmq) - n:] if n and len(vmq) > n else ([] if n == 0 else vmq)
            m = re.search(r"lgkmcnt\((\d+)\)", ins.text)
            if m:
                n = int(m.group(1))
                if n == 0: lgq = []; smem_out = False
                elif lgq is not None and not smem_out and len(lgq) > n: lgq = lgq[len(lgq) - n:]
    return "\n".join(out) + "\n"

class Sched:
    def __init__(self, main):
        self.main = main
        self.rel = {}
    def release(self, pos, q, groups, **kw):
        self.rel.setdefault(pos, []).append((q, groups, kw))
    def run(self, gap=24, cap=24, vm_every=1, vm_cost=16, ds_cost=12, wait_cost=4):
        out = []
        vm = []; va = []
        every = vm_every; credit = 1.0; skip = 0
        main = self.main
        follow = {}
        last = None
        for idx, ins in enumerate(main):
            if ins.text.startswith("v_mfma"):
                last = idx; follow[idx] = 0
            elif last is not None:
                if ins.kind == "wait": follow[last] += wait_cost
                elif ins.text.startswith("ds_"): follow[last] += ds_cost
                elif ins.text.startswith(("buffer_", "global_")): follow[last] += vm_cost
                else: follow[last] += cost(ins)
        for idx, ins in enumerate(main):
            for q, groups, kw in self.rel.get(idx, []):
                if q == "vm":
                    if kw.get("front"): vm = list(groups) + vm
                    else: vm += groups
                    if "every" in kw: every = kw["every"]
                else:
                    va += groups
                    skip = max(skip, kw.get("skip", 0))
                    if "cap" in kw: cap = kw["cap"]
            out.append(ins)
            if ins.text.startswith("v_mfma"):
                b = gap - follow[idx]
                credit = min(credit + 1.0 / every, 2.0) if vm else 1.0
                if vm and credit >= 1.0 and (b >= vm_cost or every <= 1):
                    out += vm.pop(0); credit -= 1.0; b -= vm_cost
                if skip > 0:
                    skip -= 1; continue
                b = min(b, cap)
                while va:
                    c = sum(vm_cost if i.text.startswith("buffer_") else cost(i) for i in va[0])
                    if c > b: break
                    out += va.pop(0); b -= c
        rest = [i for g in vm for i in g] + [i for g in va for i in g]
        return out, rest

def groups_vm(ins):
    gs = []; cur = []
    for i in ins:
        cur.append(i)
        if i.text.startswith(("buffer_", "global_")):
            gs.append(cur); cur = []
    if cur: gs.append(cur)
    return gs
def groups_1(ins):
    gs = []; cur = []
    for i in ins:
        cur.append(i)
        if not i.text.startswith("s_"):
            gs.append(cur); cur = []
    if cur: gs.append(cur)
    return gs

def check_tags(ins):
    waited = set()
    for i in ins:
        if i.kind == "wait": waited.update(i.wait)
        elif i.kind == "" and i.tag is not None:
            assert i.tag not in waited, f"tag {i.tag} issued after its wait"

def est(ins):
    if ins.kind == "wait" or ins.kind == "waitall": return 4
    if ins.kind: return 0
    t = ins.text
    if t.startswith("v_mfma_f32_32x32"): return 32
    if t.startswith("v_mfma"): return 16
    if t.startswith("ds_write_b128"): return 40
    if t.startswith("ds_"): return 14
    if t.startswith(("buffer_", "global_")): return 16
    if t.startswith("s_barrier"): return 40
    return cost(ins)

def pace(main, groups, interval, first=0):
    out = []; groups = list(groups); acc = interval - first; blocked = False
    for ins in main:
        out.append(ins)
        if ins.text.startswith("s_cbranch") : blocked = True
        if ins.kind == "label": blocked = False
        if ins.text.startswith("s_cmp"): continue
        acc += est(ins)
        if groups and acc >= interval and not blocked:
            out += groups.pop(0); acc = 0
    return out, groups
```

```python
from asmlib import *
import gen as G
import chain as C
P = G.P
FSH = C.FSH
SCR = 151552
QA = P.get('q_atomic', 0)

def att_phase(A, L, side, tail_vm, post_loop=None):
    VK, VV = 2, 6
    NEG, Sr, Pr = 16, 48, 80
    T = 96
    SV, SD, SO = 112, 120, 192
    FL = 208
    aQM, aQE, aO, aKM, aV, aKE = 0, 8, 72, 104, 116, 140
    W2 = 2 * G.KVG
    A(f"""
    s_and_b32 s24, s2, 7
    s_lshl_b32 s24, s24, 2
    s_bfe_u32 s25, s2, 0x20003
    s_add_u32 s24, s24, s25            ; head
    s_lshr_b32 s26, s2, 5              ; qblk
    s_lshl_b32 s25, s26, 3
    s_lshl_b32 s27, s3, 1
    s_add_u32 s25, s25, s27
    s_lshl_b32 s29, s24, 6
    s_add_u32 s29, s29, s25
    s_lshl_b32 s27, s29, 10
    s_add_u32 s27, s27, {G.QM}
    s_add_u32 s27, s27, s100
    s_lshl_b32 s28, s29, 7
    s_add_u32 s28, s28, {G.QE}
    s_add_u32 s28, s28, s100
    s_lshl_b32 s21, s3, 10
    s_mul_i32 s20, s24, {G.KVH}
    s_add_u32 s20, s20, {G.KV}
    s_add_u32 s20, s20, s100
    s_add_u32 s20, s20, s21
    v_and_b32 v{T}, 31, v0
    v_lshlrev_b32 v{T+1}, 2, v{T}
    s_lshr_b32 s30, s24, 3
    s_add_u32 s31, s30, 4
    s_mul_i32 s32, s24, 18
    s_add_u32 s33, s32, 17
    s_mul_i32 s32, s32, 683
    s_lshr_b32 s32, s32, 16
    s_add_u32 s32, s32, 9
    s_mul_i32 s33, s33, 683
    s_lshr_b32 s33, s33, 16
    s_add_u32 s33, s33, 9
    v_bfe_u32 v{T+2}, v0, 4, 2
    v_mov_b32 v{T+3}, s31
    v_cmp_eq_u32 vcc, 1, v{T+2}
    v_cndmask_b32 v{T+3}, v{T+3}, 15, vcc
    v_mov_b32 v{T+4}, s32
    v_cmp_eq_u32 vcc, 2, v{T+2}
    v_cndmask_b32 v{T+3}, v{T+3}, v{T+4}, vcc
    v_mov_b32 v{T+4}, s33
    v_cmp_eq_u32 vcc, 3, v{T+2}
    v_cndmask_b32 v{T+3}, v{T+3}, v{T+4}, vcc
    v_lshlrev_b32 v{T+3}, 4, v{T+3}
    v_and_b32 v{T+4}, {0 if QA else 15}, v0
    v_add_u32 v{T+3}, v{T+3}, v{T+4}
    v_lshlrev_b32 v{T+3}, {2+FSH}, v{T+3}
    s_lshl_b32 s30, s30, 4
    s_lshl_b32 s31, s26, 1
    s_add_u32 s30, s30, {0 if QA else "s31"}
    v_and_b32 v{T+4}, 1, v0
    s_add_u32 s31, s31, 128
    v_mov_b32 v{T+5}, s30
    v_mov_b32 v{T+6}, s31
    v_and_b32 v{T+7}, 2, v0
    v_cmp_eq_u32 vcc, 2, v{T+7}
    v_cndmask_b32 v{T+5}, v{T+5}, v{T+6}, vcc
    v_add_u32 v{T+4}, v{T+5}, v{T+4}
    v_lshlrev_b32 v{T+4}, {2+FSH}, v{T+4}
    s_add_u32 s38, s41, 4096
    s_lshl_b32 s38, s38, {FSH}
    s_add_u32 s38, s38, {G.FLG}
    """)
    SOLO = P.get("solo", 1)
    if SOLO:
        A(f"""
        s_lshr_b32 s30, s82, 1
        s_add_u32 s30, s30, 130
        v_and_b32 v{T+8}, 3, v0
        v_min_u32 v{T+8}, 2, v{T+8}
        v_add_u32 v{T+8}, s30, v{T+8}
        v_and_b32 v{T+9}, 1, v0
        v_add_u32 v{T+9}, 148, v{T+9}
        v_and_b32 v{T+10}, 4, v0
        v_cmp_eq_u32 vcc, 4, v{T+10}
        v_cndmask_b32 v{T+8}, v{T+8}, v{T+9}, vcc
        s_add_u32 s30, s24, 150
        v_mov_b32 v{T+9}, s30
        v_and_b32 v{T+10}, 8, v0
        v_cmp_eq_u32 vcc, 8, v{T+10}
        v_cndmask_b32 v{T+8}, v{T+8}, v{T+9}, vcc
        v_lshlrev_b32 v{T+12}, {2+FSH}, v{T+8}
        v_add_u32 v{T+12}, {G.FLG + (7168 << FSH)}, v{T+12}
        """)
    A(f"""
    v_bfe_u32 v{T+5}, v0, 2, 1
    v_lshlrev_b32 v{T+5}, 3, v{T+5}
    v_bfe_u32 v{T+6}, v0, 3, 1
    v_lshlrev_b32 v{T+6}, 2, v{T+6}
    v_and_b32 v{T+7}, 3, v0
    v_add3_u32 v{T+5}, v{T+5}, v{T+6}, v{T+7}
    v_min_u32 v{T+6}, 18, v{T}
    v_cmp_gt_u32 vcc, 16, v{T}
    v_cndmask_b32 v{T+5}, v{T+6}, v{T+5}, vcc
    v_lshlrev_b32 v{T+5}, 4, v{T+5}
    v_bfe_u32 v{T+6}, v0, 5, 1
    v_mul_u32_u24 v{T+6}, 304, v{T+6}
    v_add_u32 v{T+5}, v{T+5}, v{T+6}
    """)
    for p in range(4):
        A(f"v_add_u32 v{VK+p}, {p*W2}, v1")
        A(f"v_add_u32 v{VV+p}, {p*W2 + 9216}, v{T+5}")
    for i in range(64): A(f"v_accvgpr_write_b32 a{aQE+i}, 0")
    for i in range(4): A(f"v_mov_b32 v{FL+i}, -1")
    A(f"""
    s_mul_i32 s86, s26, {32*36864}
    s_mul_i32 s30, s24, 36864
    s_add_u32 s86, s86, s30
    s_add_u32 s86, s86, s21
    s_add_u32 s86, s86, {G.PART}
    {C.LO2(86)}
    """)
    if side: side_setup(A, L, SV, T + 8)
    if P.get("att_fillpre", 0):
        for k in range(9):
            A(f"buffer_store_dwordx4 v[{FL}:{FL+3}], v1, s[4:7], s86 offen sc1")
            A("s_add_u32 s86, s86, 4096")
    A("s_cmp_lg_u32 s3, 0")
    A(f"s_cbranch_scc1 {L}_PD")
    R = A.raw
    R("    s_mov_b32 s39, 0x20000")
    R(f"{L}_PL:")
    R(f"    buffer_load_dword v{T+6}, v{T+3}, s[4:7], s38 offen sc1")
    R(f"    buffer_load_dword v{T+7}, v{T+4}, s[4:7], s38 offen sc1")
    if SOLO: R(f"    buffer_load_dword v{T+13}, v{T+12}, s[4:7], 0 offen sc1")
    R("    s_waitcnt vmcnt(0)")
    if SOLO: R(f"    v_and_b32 v{T+6}, v{T+6}, v{T+13}")
    R(f"    v_and_b32 v{T+6}, v{T+6}, v{T+7}")
    R(f"    v_cmp_ne_u32 vcc, 1, v{T+6}")
    R("    s_nop 1")
    R("    s_and_b64 exec, exec, vcc")
    R(f"    s_cbranch_scc0 {L}_PX")
    R(f"    s_sleep {P.get('att_sleep', 2)}")
    R("    s_sub_u32 s39, s39, 1")
    R("    s_cmp_lg_u32 s39, 0")
    R(f"    s_cbranch_scc1 {L}_PL")
    R(f"{L}_PX:")
    R("    s_mov_b64 exec, -1")
    A.label(f"{L}_PD")
    A("s_barrier")
    A.stamp("a0" if side else "b0")
    def dma_round(B, j):
        g = 0 if j <= 4 else (1 if j <= 9 else 2)
        B(f"s_add_u32 s30, s20, {j*4096}")
        B(f"s_add_u32 m0, s21, {j*4096}")
        B("buffer_load_dwordx4 v1, s[4:7], s30 offen sc1 lds", tag=f"c{g}")
    for j in range(3): dma_round(A, j)
    for j in range(2):
        A(f"buffer_load_dwordx4 a[{aQM+4*j}:{aQM+4*j+3}], v1, s[4:7], s27 offen offset:{j*1024} sc1", tag="q")
        A(f"buffer_load_dword v{T+2+j}, v{T+1}, s[4:7], s28 offen offset:{j*128} sc1", tag="q")
    PRE = P.get("att_pre", 16)
    for j in range(3, PRE): dma_round(A, j)
    A.wait("q")
    A("v_cmp_gt_u32 vcc, 512, v1")
    for j in range(2):
        A(f"v_cndmask_b32 v{T+4}, 0, v{T+2+j}, vcc")
        A(f"v_cndmask_b32 v{T+5}, v{T+2+j}, 0, vcc")
        for k in range(4):
            A(f"v_accvgpr_write_b32 a{aQE+32*j+5*k}, v{T+4}")
            A(f"v_accvgpr_write_b32 a{aQE+32*j+16+5*k}, v{T+5}")
    def rdK(t):
        p = t >> 4; g = (t >> 3) & 1
        A(f"ds_read_b128 a[{aKM+4*(t%3)}:{aKM+4*(t%3)+3}], v{VK+p} offset:{g*G.KVG + (t&7)*1024}", tag=f"k{t}")
        if t % 8 == 0:
            A(f"ds_read_b128 a[{aKE+4*g}:{aKE+4*g+3}], v{VK+p} offset:{g*G.KVG + 8192}", tag=f"k{t}")
    def rdV(t, half):
        p = t >> 4; g = (t >> 3) & 1
        b = aV + 8 * (t % 3) + 4 * half
        A(f"ds_read_b128 a[{b}:{b+3}], v{VV+p} offset:{g*G.KVG + (t&7)*1216 + half*608}", tag=f"v{t}")
    def qk1(j, t, c):
        s_ = Sr + 16 * j
        A(f"v_mfma_f32_32x32x16_bf16 v[{s_}:{s_+15}], a[{aKM+4*(t%3)}:{aKM+4*(t%3)+3}], a[{aQM+4*j}:{aQM+4*j+3}], {c}")
    def qk2(j, t):
        s_ = Sr + 16 * j; g = (t >> 3) & 1; q = aQE + 32 * j + 4 * (t & 7)
        A(f"v_mfma_f32_32x32x16_bf16 v[{s_}:{s_+15}], a[{aKE+4*g}:{aKE+4*g+3}], a[{q}:{q+3}], v[{s_}:{s_+15}]")
    def pv(j, t, half, first=None):
        b = aV + 8 * (t % 3) + 4 * half; p_ = Pr + 8 * j + 4 * half; o = aO + 16 * j
        z = (t == 0 and half == 0) if first is None else first
        c = "0" if z else f"a[{o}:{o+15}]"
        A(f"v_mfma_f32_32x32x16_bf16 a[{o}:{o+15}], a[{b}:{b+3}], v[{p_}:{p_+3}], {c}")
    def maxreduce(dst, s_, first):
        i0 = 0
        if first:
            A(f"v_max3_f32 v{dst}, v{s_}, v{s_+1}, v{s_+2}")
            A(f"v_max_f32 v{dst}, v{dst}, v{s_+3}")
            i0 = 4
        for i in range(i0, 16, 2):
            A(f"v_max3_f32 v{dst}, v{dst}, v{s_+i}, v{s_+i+1}")
    def setneg(dst, j):
        A(f"v_mov_b32 v{T+7}, v{dst}")
        A(f"v_permlane32_swap_b32 v{dst}, v{T+7}")
        A(f"v_max_f32 v{dst}, v{dst}, v{T+7}")
        for i in range(16): A(f"v_sub_f32 v{NEG+16*j+i}, 0, v{dst}")
    NEGC = lambda j: f"v[{NEG+16*j}:{NEG+16*j+15}]"
    A.wait("c0")
    A("s_barrier")
    rdK(0); rdK(1)
    if P.get("att_ord", 1): rdV(0, 0); rdV(0, 1)
    A.wait("k0")
    qk1(0, 0, "0"); qk1(1, 0, "0"); qk2(0, 0); qk2(1, 0)
    maxreduce(T + 4, Sr, True); setneg(T + 4, 0)
    qk1(0, 0, NEGC(0)); qk2(0, 0)
    maxreduce(T + 5, Sr + 16, True); setneg(T + 5, 1)
    if side:
        A(f"v_mov_b32 v{SV+4}, 0"); A(f"v_mov_b32 v{SV+6}, 0")
    A.stamp("a1" if side else "b1")
    nextj = PRE
    U0, U1, US = P.get('att_u0', 3), P.get('att_u1', 13), 5
    tail = [] if P.get('att_wopost', 0) else tail_vm()
    for v in range(128):
        t, j = v >> 1, v & 1
        s_ = Sr + 16 * j; p_ = Pr + 8 * j
        jn, tn = 1 - j, t + j
        jp, tp = 1 - j, t - 1 + j
        extra = Asm()
        if j == 0:
            for _ in range(P.get("att_dpt", 3)):
                if nextj < 37:
                    dma_round(extra, nextj); nextj += 1
            if 20 <= t < 38 and t % 2 == 0 and not P.get('att_fillpre', 0):
                extra(f"buffer_store_dwordx4 v[{FL}:{FL+3}], v1, s[4:7], s86 offen sc1")
                extra("s_add_u32 s86, s86, 4096")
            if t >= P.get("att_tail0", 38) and tail: extra.ins += tail.pop(0)
        elif side:
            side_step(extra, t, U0, U1, US, SV, SD, SO, L)
        def exps(a, b):
            for i in range(a, b): A(f"v_exp_f32 v{s_+i}, v{s_+i}")
        def cvts(a, b):
            for i in range(a, b): A(f"v_cvt_pk_bf16_f32 v{p_+i}, v{s_+2*i}, v{s_+2*i+1}")
        if P.get("att_ord", 1):
            po = Pr + 8 * (1 - j); so = Sr + 16 * (1 - j)
            if tp >= 0:
                if j == 1: A.wait(f"v{tp}")
                pv(jp, tp, 0)
            exps(0, 2)
            if v > 0:
                for i in (6, 7): A(f"v_cvt_pk_bf16_f32 v{po+i}, v{so+2*i}, v{so+2*i+1}")
            exps(2, 4)
            if tn < 64:
                if j == 1: A.wait(f"k{tn}")
                qk1(jn, tn, NEGC(jn))
            exps(4, 6)
            if j == 1 and t + 1 < 64: rdV(t + 1, 0)
            elif j == 0 and t + 2 < 64:
                if t + 2 in (8, 16):
                    A.wait("c1" if t + 2 == 8 else "c2")
                    A("s_barrier")
                rdK(t + 2)
            exps(6, 8); cvts(0, 2)
            if tn < 64: qk2(jn, tn)
            exps(8, 10)
            if j == 1 and t + 1 < 64: rdV(t + 1, 1)
            A.ins += extra.ins
            exps(10, 12); cvts(2, 4)
            if tp >= 0: pv(jp, tp, 1)
            exps(12, 16); cvts(4, 6)
            if v == 127: cvts(6, 8)
            continue
        if tn < 64:
            if j == 1: A.wait(f"k{tn}")
            qk1(jn, tn, NEGC(jn))
        exps(0, 2)
        if j == 0: rdV(t, 0)
        elif t + 2 < 64:
            if t + 2 in (8, 16):
                A.wait("c1" if t + 2 == 8 else "c2")
                A("s_barrier")
            rdK(t + 2)
        exps(2, 4)
        if tn < 64: qk2(jn, tn)
        exps(4, 6)
        if j == 0: rdV(t, 1)
        exps(6, 8); cvts(0, 2)
        if tp >= 0:
            if j == 1: A.wait(f"v{tp}")
            pv(jp, tp, 0)
        exps(8, 10)
        A.ins += extra.ins
        exps(10, 12); cvts(2, 4)
        if tp >= 0: pv(jp, tp, 1)
        exps(12, 16); cvts(4, 8)
    for g in tail: A.ins += g
    pv(1, 63, 0); pv(1, 63, 1)
    if post_loop: post_loop(A)
    A.stamp("a2" if side else "b2")
    def readO():
        for j in range(2):
            for i in range(11): A(f"v_accvgpr_read_b32 v{Sr+16*j+i}, a{aO+16*j+i}")
    readO()
    A(f"""
    s_mov_b32 s30, {hex(G.f32(2.0**60))}
    v_max_f32 v{T}, v{Sr+10}, v{Sr+26}
    v_cmp_gt_f32 vcc, s30, v{Sr+10}
    v_cmp_gt_f32 s[32:33], s30, v{Sr+26}
    s_and_b64 vcc, vcc, s[32:33]
    s_cmp_eq_u64 vcc, -1
    s_cbranch_scc1 {L}_OUT
    """)
    A.save(L + "out")
    A(f"""
    s_mov_b32 s31, 0
    v_mov_b32 v{T+4}, 0xff800000
    v_mov_b32 v{T+5}, 0xff800000
    v_mov_b32 v{T+8}, v{VK}
    """)
    A.label(f"{L}_F1")
    A(f"ds_read_b128 a[{aKE}:{aKE+3}], v{T+8} offset:8192")
    for t in range(8):
        A(f"ds_read_b128 a[{aKM}:{aKM+3}], v{T+8} offset:{t*1024}")
        A.waitall(vm=False)
        for j in range(2):
            qk1(j, 0, "0")
            q = aQE + 32 * j + 4 * t; s_ = Sr + 16 * j
            A(f"v_mfma_f32_32x32x16_bf16 v[{s_}:{s_+15}], a[{aKE}:{aKE+3}], a[{q}:{q+3}], v[{s_}:{s_+15}]")
        for j in range(2): maxreduce(T + 4 + j, Sr + 16 * j, False)
    A(f"""
    v_add_u32 v{T+8}, {G.KVG}, v{T+8}
    s_add_u32 s31, s31, 1
    s_cmp_lt_u32 s31, 8
    s_cbranch_scc1 {L}_F1
    """)
    setneg(T + 4, 0); setneg(T + 5, 1)
    for i in range(32): A(f"v_accvgpr_write_b32 a{aO+i}, 0")
    A(f"""
    s_mov_b32 s31, 0
    v_mov_b32 v{T+8}, v{VK}
    v_mov_b32 v{T+9}, v{VV}
    """)
    A.label(f"{L}_F2")
    A(f"ds_read_b128 a[{aKE}:{aKE+3}], v{T+8} offset:8192")
    for t in range(8):
        A("s_nop 15")
        A(f"ds_read_b128 a[{aKM}:{aKM+3}], v{T+8} offset:{t*1024}")
        A(f"ds_read_b128 a[{aV}:{aV+3}], v{T+9} offset:{t*1216}")
        A(f"ds_read_b128 a[{aV+4}:{aV+7}], v{T+9} offset:{t*1216+608}")
        A.waitall(vm=False)
        for j in range(2):
            qk1(j, 0, NEGC(j))
            q = aQE + 32 * j + 4 * t; s_ = Sr + 16 * j
            A(f"v_mfma_f32_32x32x16_bf16 v[{s_}:{s_+15}], a[{aKE}:{aKE+3}], a[{q}:{q+3}], v[{s_}:{s_+15}]")
        for j in range(2):
            s_ = Sr + 16 * j; p_ = Pr + 8 * j
            for i in range(16): A(f"v_exp_f32 v{s_+i}, v{s_+i}")
            for i in range(8): A(f"v_cvt_pk_bf16_f32 v{p_+i}, v{s_+2*i}, v{s_+2*i+1}")
            pv(j, 0, 0, False); pv(j, 0, 1, False)
    A(f"""
    v_add_u32 v{T+8}, {G.KVG}, v{T+8}
    v_add_u32 v{T+9}, {G.KVG}, v{T+9}
    s_add_u32 s31, s31, 1
    s_cmp_lt_u32 s31, 8
    s_nop 15
    s_cbranch_scc1 {L}_F2
    """)
    readO()
    A.label(f"{L}_OUT")
    A.restore(L + "out")
    A(f"""
    v_rcp_f32 v{T+4}, v{Sr+10}
    v_rcp_f32 v{T+5}, v{Sr+26}
    v_bfe_u32 v{T}, v0, 4, 1
    v_mul_u32_u24 v{T}, 18432, v{T}
    v_and_b32 v{T+1}, 15, v0
    v_lshlrev_b32 v{T+1}, 4, v{T+1}
    v_add_u32 v{T}, v{T}, v{T+1}
    v_bfe_u32 v{T+1}, v0, 5, 1
    v_lshlrev_b32 v{T+1}, 8, v{T+1}
    v_add_u32 v{T+1}, v{T}, v{T+1}
    s_mul_i32 s30, s25, 36864
    s_add_u32 s30, s30, {G.OF}
    {C.LO2(30)}
    s_lshl_b32 s31, s24, 9
    s_add_u32 s31, s31, s30
    s_lshr_b32 s32, s24, 2
    s_lshl_b32 s32, s32, 8
    s_and_b32 s33, s24, 3
    s_lshl_b32 s33, s33, 2
    s_add_u32 s32, s32, s33
    s_add_u32 s32, s32, s30
    s_add_u32 s32, s32, 16384
    s_add_u32 s33, s31, 36864
    """)
    for j in range(2):
        o = Sr + 16 * j; p_ = Pr + 8 * j
        for i in range(10): A(f"v_mul_f32 v{o+i}, v{o+i}, v{T+4+j}")
        for i in range(5): A(f"v_cvt_pk_bf16_f32 v{p_+i}, v{o+2*i}, v{o+2*i+1}")
        A(f"buffer_store_dwordx4 v[{p_}:{p_+3}], v{T+1}, s[4:7], s{31 if j == 0 else 33} offen sc1", tag="o")
    A(f"v_permlane32_swap_b32 v{Pr+4}, v{Pr+12}")
    A(f"v_lshrrev_b32 v{T}, 2, v1")
    A("s_lshl_b32 s32, s24, 13")
    A("s_lshl_b32 s33, s25, 7")
    A("s_add_u32 s32, s32, s33")
    A(f"s_add_u32 s32, s32, {G.OE}")
    A(f"buffer_store_dword v{Pr+4}, v{T}, s[4:7], s32 offen sc1", tag="o")
    A(f"""
    s_lshl_b32 s30, s26, 2
    s_add_u32 s30, s30, s3
    s_lshl_b32 s30, s30, 5
    s_add_u32 s30, s30, s24
    s_lshl_b32 s30, s30, 2
    s_add_u32 s30, s30, s41
    s_add_u32 s30, s30, 16384
    s_lshl_b32 s30, s30, {FSH}
    s_add_u32 s31, s30, {G.FLG}
    v_mov_b32 v{T+2}, 0
    v_mov_b32 v{T+3}, 1
    """)
    A("s_mov_b32 s86, s31")

def side_setup(A, L, SV, t0):
    t1, t2 = t0 + 1, t0 + 2
    A("s_load_dwordx4 s[72:75], s[0:1], 32")
    A("s_load_dwordx2 s[70:71], s[0:1], 48")
    A(f"""
    s_mov_b32 s19, 0x3f803f80
    s_mov_b32 s14, {G.D*G.F*2}
    s_mov_b32 s15, 0x00020000
    v_and_b32 v{t0}, 63, v0
    v_lshrrev_b32 v{SV}, 3, v{t0}
    v_and_b32 v{SV+2}, 15, v{t0}
    v_lshlrev_b32 v{SV+2}, 4, v{SV+2}
    s_lshl_b32 s30, s3, 11
    s_add_u32 s30, s30, {SCR}
    v_add_u32 v{SV+3}, s30, v1
    v_lshrrev_b32 v{SV+5}, 5, v{t0}
    v_lshlrev_b32 v{SV+5}, 3, v{SV+5}
    v_bfe_u32 v{t1}, v{t0}, 2, 2
    v_add_u32 v{SV+5}, v{SV+5}, v{t1}
    v_lshlrev_b32 v{SV+5}, 7, v{SV+5}
    v_add_u32 v{SV+5}, s30, v{SV+5}
    v_bfe_u32 v{t1}, v{t0}, 4, 1
    v_lshlrev_b32 v{t1}, 5, v{t1}
    v_add_u32 v{SV+5}, v{SV+5}, v{t1}
    s_lshl_b32 s30, s3, 8
    s_add_u32 s30, s30, {SCR + 8192}
    v_lshlrev_b32 v{SV+7}, 2, v{t0}
    v_add_u32 v{SV+7}, s30, v{SV+7}
    s_lshl_b32 s18, s2, 1
    s_add_u32 s18, s18, s3
    s_lshl_b32 s18, s18, {2+FSH}
    s_add_u32 s18, s18, {G.FLG + (5120 << FSH)}
    """)
    A.waitall(vm=False)
    A(f"""
    s_cmp_ge_u32 s2, 144
    s_cbranch_scc1 {L}_SW2
    s_cmp_ge_u32 s2, 72
    s_cselect_b32 s12, s74, s72
    s_cselect_b32 s13, s75, s73
    s_cselect_b32 s30, 72, 0
    s_cselect_b32 s36, 256, 0
    s_and_b32 s13, s13, 0xffff
    s_sub_u32 s29, s2, s30
    s_lshl_b32 s34, s29, 7
    s_mul_i32 s30, s3, {9*16*9216}
    s_add_u32 s34, s34, s30
    s_mov_b32 s35, {16*9216}
    s_mul_i32 s30, s29, {4*G.T1S}
    s_add_u32 s36, s36, s30
    s_add_u32 s16, s36, {G.W13 + 36*1024}
    s_mul_i32 s30, s3, 9216
    s_add_u32 s36, s36, s30
    s_add_u32 s36, s36, {G.W13}
    s_mov_b32 s37, 1024
    s_mov_b32 s17, {2*G.T1S}
    s_mov_b32 s30, 9216
    s_mov_b32 s32, 16
    s_mov_b32 s33, 8
    s_mov_b32 s22, {G.T1S}
    s_mov_b32 s23, 512
    s_branch {L}_SCOM
    """)
    A.label(f"{L}_SW2")
    A(f"""
    s_mov_b32 s12, s70
    s_and_b32 s13, s71, 0xffff
    s_sub_u32 s29, s2, 144
    s_mul_i32 s30, s29, 7282
    s_lshr_b32 s30, s30, 16             ; seg = j/9
    s_mul_i32 s32, s30, 9
    s_sub_u32 s32, s29, s32
    s_mul_i32 s30, s30, 36
    s_mul_i32 s33, s3, 9
    s_add_u32 s30, s30, s33             ; U0
    s_mul_i32 s34, s30, {16*1152}
    s_lshl_b32 s33, s32, 7
    s_add_u32 s34, s34, s33
    s_mov_b32 s35, {16*1152}
    s_lshl_b32 s36, s30, 9
    s_mul_i32 s33, s32, {4*144*1024}
    s_add_u32 s36, s36, s33
    s_add_u32 s36, s36, {G.W2}
    s_mov_b32 s16, 0x7fff0000
    s_cmp_ge_u32 s2, 216
    s_cselect_b32 s14, 0, s14
    s_cselect_b32 s36, s16, s36
    s_mov_b32 s37, 512
    s_mov_b32 s17, {2*144*1024}
    s_mov_b32 s30, 1152
    s_mov_b32 s32, 8
    s_mov_b32 s33, 16
    s_mov_b32 s22, {144*1024}
    s_mov_b32 s23, 256
    """)
    A.label(f"{L}_SCOM")
    A(f"""
    v_mul_lo_u32 v{SV}, v{SV}, s30
    v_and_b32 v{t1}, 7, v{t0}
    v_lshlrev_b32 v{t1}, 4, v{t1}
    v_add_u32 v{SV}, v{SV}, v{t1}
    s_lshl_b32 s30, s30, 3
    v_add_u32 v{SV+1}, s30, v{SV}
    v_bfe_u32 v{t1}, v{t0}, 4, 1
    v_mul_lo_u32 v{t1}, v{t1}, s22
    v_add_u32 v{SV+2}, v{SV+2}, v{t1}
    v_lshrrev_b32 v{t1}, 5, v{t0}
    v_mul_lo_u32 v{t1}, v{t1}, s23
    v_add_u32 v{SV+2}, v{SV+2}, v{t1}
    v_and_b32 v{t1}, 1, v{t0}
    v_mul_lo_u32 v{t1}, v{t1}, s32
    v_add_u32 v{SV+5}, v{SV+5}, v{t1}
    v_bfe_u32 v{t1}, v{t0}, 1, 1
    v_mul_lo_u32 v{t1}, v{t1}, s33
    v_add_u32 v{SV+5}, v{SV+5}, v{t1}
    """)

def side_step(A, t, U0, U1, US, SV, SD, SO, L):
    u, ph = divmod(t - U0, US)
    if 0 <= u < 9 and ph == 0:
        A(f"buffer_load_dwordx4 v[{SD+8*u}:{SD+8*u+3}], v{SV}, s[12:15], s34 offen", tag=f"sl{u}")
        A(f"buffer_load_dwordx4 v[{SD+8*u+4}:{SD+8*u+7}], v{SV+1}, s[12:15], s34 offen", tag=f"sl{u}")
        A("s_add_u32 s34, s34, s35")
    u, ph = divmod(t - U1, US)
    if 0 <= u < 9:
        if ph == 0:
            A.wait(f"sl{u}")
            A(f"ds_write_b128 v{SV+3}, v[{SD+8*u}:{SD+8*u+3}]", tag=f"sw{u}")
            A(f"ds_write_b128 v{SV+3}, v[{SD+8*u+4}:{SD+8*u+7}] offset:1024", tag=f"sw{u}")
        elif ph == 1:
            A.wait(f"sw{u}")
            for k in range(2):
                A(f"ds_read_b64_tr_b16 v[{SO+4*k}:{SO+4*k+1}], v{SV+5} offset:{k*64}", tag=f"sr{u}")
                A(f"ds_read_b64_tr_b16 v[{SO+4*k+2}:{SO+4*k+3}], v{SV+5} offset:{k*64+512}", tag=f"sr{u}")
        elif ph == 2:
            A.wait(f"sr{u}")
            A(f"buffer_store_dwordx4 v[{SO}:{SO+3}], v{SV+2}, s[4:7], s36 offen sc1", tag="ss")
            A("s_add_u32 s30, s36, s17")
            A(f"buffer_store_dwordx4 v[{SO+4}:{SO+7}], v{SV+2}, s[4:7], s30 offen sc1", tag="ss")
            A("s_add_u32 s36, s36, s37")
        elif ph == 3:
            for k in range(2):
                for j in range(4): A(f"v_dot2_f32_bf16 v{SV+4+2*k}, v{SO+4*k+j}, s19, v{SV+4+2*k}")
    TE = U1 + 9 * US
    if t == TE:
        A(f"ds_write_b32 v{SV+7}, v{SV+4}", tag="cs")
        A(f"ds_write_b32 v{SV+7}, v{SV+6} offset:1024", tag="cs")
        A.wait("cs", "ss")
        A("s_barrier")
        b = SD
        A(f"v_and_b32 v{b}, 31, v0")
        A(f"v_lshlrev_b32 v{b}, 2, v{b}")
        A("s_and_b32 s30, s3, 1")
        A("s_lshl_b32 s30, s30, 10")
        A(f"s_add_u32 s30, s30, {SCR + 8192}")
        A(f"v_add_u32 v{b}, s30, v{b}")
        for j in range(8): A(f"ds_read_b32 v{b+8+j}, v{b} offset:{j*128}", tag="cr")
    if t == TE + 1:
        b = SD
        A.wait("cr")
        A(f"""
        v_add_f32 v{b+8}, v{b+8}, v{b+9}
        v_add_f32 v{b+10}, v{b+10}, v{b+11}
        v_add_f32 v{b+12}, v{b+12}, v{b+13}
        v_add_f32 v{b+14}, v{b+14}, v{b+15}
        v_add_f32 v{b+8}, v{b+8}, v{b+10}
        v_add_f32 v{b+12}, v{b+12}, v{b+14}
        v_add_f32 v{b+8}, v{b+8}, v{b+12}
        v_sub_f32 v{b+8}, 0, v{b+8}
        v_cvt_pk_bf16_f32 v{b+9}, v{b+8}, v{b+8}
        v_lshlrev_b32 v{b+9}, 16, v{b+9}
        v_sub_f32 v{b+8}, v{b+8}, v{b+9}
        v_cvt_pk_bf16_f32 v{b+10}, v{b+8}, v{b+8}
        v_lshlrev_b32 v{b+10}, 16, v{b+10}
        v_sub_f32 v{b+11}, v{b+8}, v{b+10}
        v_cvt_pk_bf16_f32 v{b+12}, v{b+9}, v{b+10}
        v_cvt_pk_bf16_f32 v{b+13}, v{b+9}, v{b+11}
        v_cvt_pk_bf16_f32 v{b+14}, v{b+10}, v{b+9}
        v_mov_b32 v{b+15}, 0
        v_cmp_gt_u32 vcc, 512, v1
        v_cndmask_b32 v{b+12}, 0, v{b+12}, vcc
        v_cndmask_b32 v{b+13}, 0, v{b+13}, vcc
        v_cndmask_b32 v{b+14}, 0, v{b+14}, vcc
        s_and_b32 s30, s3, 1
        s_mul_i32 s30, s30, s17
        s_add_u32 s30, s30, s16
        """)
        A(f"buffer_store_dwordx4 v[{b+12}:{b+15}], v{SV+2}, s[4:7], s30 offen sc1", tag="se")
    if t == TE + P.get("att_fd", 5):
        b = SD
        A.wait("se")
        A(f"v_mov_b32 v{b}, 0")
        A(f"v_mov_b32 v{b+1}, 1")
        A("s_cmp_ge_u32 s3, 2")
        A("s_cselect_b32 s30, 0x7fff0000, s18")
        A("s_mov_b64 exec, 1")
        A(f"buffer_store_dword v{b+1}, v{b}, s[4:7], s30 offen sc1")
        A("s_mov_b64 exec, -1")
```

```python
from asmlib import *
import gen as G
from t1 import *
import k4 as K4M
P = G.P
QSCALE = (18 ** -0.5) * LOG2E
SK = P.get("sk", 1)
MEGA = P.get("mega", 1)
K45 = P.get("k45", 1)
LO = (lambda r_: f"s_add_u32 s{r_}, s{r_}, s100") if MEGA else (lambda r_: "")
LO2 = (lambda r_: "") if G.REUSE else LO
FSH = P.get("fsh", 5)
RED = 2 * G.T1S
LDS_BYTES = 163840


def signal(A, nflag_sgpr, store_tag):
    A.wait(store_tag)
    A.stamp("sg" + store_tag + str(nflag_sgpr))
    A("s_barrier")
    lab = f"SIG{signal.n}"; signal.n += 1
    A("s_cmp_lg_u32 s3, 0")
    A(f"s_cbranch_scc1 {lab}")
    A.raw("    s_mov_b64 exec, 1")
    A.raw("    v_mov_b32 v30, 0")
    A.raw("    v_mov_b32 v31, 1")
    A.raw(f"    s_lshl_b32 s38, s{nflag_sgpr}, {FSH}")
    A.raw(f"    s_add_u32 s38, s38, {G.FLG}")
    A.raw(f"    buffer_store_dword v31, v30, s[4:7], s38 offen sc1")
    A.raw("    s_mov_b64 exec, -1")
    A.label(lab)
signal.n = 0

def poll(A, base_sgpr, n, allwaves=False):
    lab = f"POLL{poll.n}"; poll.n += 1
    if not allwaves:
        A("s_cmp_lg_u32 s3, 0")
        A(f"s_cbranch_scc1 {lab}_D")
    R = A.raw
    R(f"    v_and_b32 v30, {n-1}, v0")
    R(f"    v_lshlrev_b32 v30, {2+FSH}, v30")
    R(f"    s_lshl_b32 s38, s{base_sgpr}, {FSH}")
    R(f"    s_add_u32 s38, s38, {G.FLG}")
    R("    s_mov_b32 s39, 0x20000")
    if n < 64: R(f"    s_mov_b64 exec, {hex((1 << n) - 1)}" if n < 32 else "    s_mov_b32 exec_hi, 0")
    R(f"{lab}:")
    R(f"    buffer_load_dword v31, v30, s[4:7], s38 offen sc1")
    R("    s_waitcnt vmcnt(0)")
    R("    v_cmp_ne_u32 vcc, 1, v31")
    R("    s_nop 1")
    R("    s_and_b64 exec, exec, vcc")
    R(f"    s_cbranch_scc0 {lab}_X")
    R(f"    s_sleep {P.get('sleep', 1)}")
    R("    s_sub_u32 s39, s39, 1")
    R("    s_cmp_lg_u32 s39, 0")
    R(f"    s_cbranch_scc1 {lab}")
    R(f"{lab}_X:")
    R("    s_mov_b64 exec, -1")
    A.label(f"{lab}_D")
    if not allwaves: A("s_barrier")
poll.n = 0

def t2_decode(A):
    A("""
    s_and_b32 s24, s2, 7
    s_lshr_b32 s25, s2, 3
    s_lshr_b32 s80, s24, 1
    s_lshl_b32 s80, s80, 3
    s_and_b32 s27, s25, 7
    s_add_u32 s80, s80, s27            ; rg
    s_and_b32 s81, s24, 1
    s_lshl_b32 s81, s81, 2
    s_lshr_b32 s28, s25, 3
    s_add_u32 s81, s81, s28            ; cg
    s_lshr_b32 s82, s81, 1
    s_mul_i32 s82, s82, 9
    s_and_b32 s83, s81, 1
    s_lshl_b32 s34, s83, 2
    s_add_u32 s82, s82, s34            ; nt0
    """)

def t2_setup(A, KS, ACT, WP, xin, xout):
    A(f"""
    v_and_b32 v1, 63, v0
    v_lshlrev_b32 v1, 4, v1
    s_mov_b32 s34, s3
    """)
    for i in range(4):
        A(f"s_mul_i32 s35, s34, {KS*1024}")
        A(f"v_add_u32 v{2+i}, s35, v1")
        if i > 0:
            A(f"s_mul_i32 s35, s34, 15360")
            A(f"s_add_u32 s35, s35, {RED + (i-1)*5120}")
            A(f"v_add_u32 v{11+i}, s35, v1")
        A("s_add_u32 s34, s34, 1")
        A("s_and_b32 s34, s34, 3")
    A(f"""
    v_mov_b32 v6, v1
    v_add_u32 v7, {KS*1024}, v1
    v_add_u32 v8, {2*KS*1024}, v1
    v_add_u32 v9, {3*KS*1024}, v1
    v_add_u32 v10, {4*KS*1024}, v1
    s_lshl_b32 s34, s3, 10
    s_mul_i32 s20, s80, {4*KS*1024}
    s_add_u32 s20, s20, {ACT}
    {LO2(20)}
    s_add_u32 s20, s20, s34
    s_mul_i32 s21, s82, {KS*1024}
    s_add_u32 s21, s21, {WP}
    s_add_u32 s21, s21, s34
    v_and_b32 v11, 15, v0
    v_lshlrev_b32 v11, 4, v11
    v_bfe_u32 v28, v0, 5, 1
    v_lshlrev_b32 v28, 9, v28
    v_add_u32 v11, v11, v28
    v_bfe_u32 v28, v0, 4, 1
    v_lshlrev_b32 v28, 3, v28
    v_add_u32 v11, v11, v28
    s_lshl_b32 s28, s80, 1
    s_lshr_b32 s29, s3, 1
    s_add_u32 s28, s28, s29            ; rb32
    s_mul_i32 s28, s28, 36
    s_add_u32 s28, s28, s82
    s_lshl_b32 s28, s28, 10
    s_and_b32 s29, s3, 1
    s_lshl_b32 s29, s29, 8
    s_add_u32 s28, s28, s29
    s_add_u32 s28, s28, s42
    s_add_u32 s22, s28, {xout*G.XSZ}
    s_add_u32 s23, s22, 4096
    s_add_u32 s28, s28, {xin*G.XSZ}
    s_add_u32 s29, s28, 4096
    s_mul_i32 s34, s3, 15360
    s_add_u32 s34, s34, {RED}
    v_add_u32 v27, s34, v1             ; lds read addr
    v_and_b32 v15, 15, v0
    v_mul_u32_u24 v29, 1152, v15
    v_lshlrev_b32 v15, 3, v15
    s_lshl_b32 s34, s80, 2
    s_add_u32 s34, s34, s3             ; rb16
    s_lshl_b32 s30, s34, 10
    s_lshl_b32 s35, s81, 7
    s_add_u32 s30, s30, s35
    s_add_u32 s30, s30, s43
    s_add_u32 s36, s30, {xout*G.SSZ}
    v_bfe_u32 v28, v0, 4, 2
    v_lshlrev_b32 v28, 3, v28
    v_add_u32 v29, v29, v28
    s_mul_i32 s31, s34, 18432
    s_lshl_b32 s35, s82, 5
    s_add_u32 s31, s31, s35
    """)

DEPTH = 6
def t2_buf(st, i):
    if MEGA: return 256 + 16 * st + 4 * i if i < 4 else 256 + 156 + 20 * st + 4 * (i - 4)
    return 256 + (st % DEPTH) * 36 + 4 * i
def t2_wload(A, NT, st):
    off = st * 4096
    A(f"s_add_u32 s37, s21, {off}")
    for t in range(NT):
        A(f"buffer_load_dwordx4 {r(t2_buf(st, 4+t), 4)}, v{6+t}, s[4:7], s37 offen", tag=f"l{st}")
def t2_aload(A, st, sc):
    if MEGA and st == 4:
        A(f"""
        v_bfe_u32 v30, v0, 4, 2
        v_lshlrev_b32 v30, 15, v30
        v_and_b32 v31, 15, v0
        v_lshlrev_b32 v31, 2, v31
        v_add_u32 v30, v30, v31
        s_and_b32 s37, s3, 1
        s_lshl_b32 s37, s37, 17
        s_lshl_b32 s34, s80, 8
        s_add_u32 s37, s37, s34
        s_add_u32 s37, s37, {G.OE}
        """)
        for i in range(4):
            A(f"s_add_u32 s34, s3, {i}")
            A("s_and_b32 s34, s34, 3")
            A("s_lshl_b32 s34, s34, 6")
            A("s_add_u32 s34, s34, s37")
            for j in range(4):
                A(f"buffer_load_dword {r(t2_buf(st, i) + j)}, v30, s[4:7], s34 offen{sc}", tag=f"l{st}")
                if j < 3: A("s_add_u32 s34, s34, 8192")
        return
    A(f"s_add_u32 s37, s20, {st*4096}")
    for i in range(4):
        A(f"buffer_load_dwordx4 {r(t2_buf(st, i), 4)}, v{2+i}, s[4:7], s37 offen{sc}", tag=f"l{st}")

def t2_main(A, NT, KS, pfx, wpre, sc, extra_vm, mid_hook, st0):
    nsteps = (KS + 3) // 4
    partial_last = (KS % 4) != 0
    ACC, RES = 32, 16
    def stage_loads(st):
        B = Asm()
        if st >= wpre: t2_wload(B, NT, st)
        t2_aload(B, st, sc)
        return B.ins
    PRE = min(P.get("t2_pre", 5 if MEGA else 2), nsteps)
    for st in range(PRE): A.ins += stage_loads(st)
    for t in range(NT):
        so, im = (28, t * 1024) if t < 4 else (29, 0)
        A(f"buffer_load_dwordx2 v[{RES+2*t}:{RES+2*t+1}], v11, s[4:7], s{so} offen offset:{im}{sc}", tag="res")
    if mid_hook == "bar": A("s_barrier")
    M = Asm(); marks = {}
    for st in range(nsteps):
        marks[st] = len(M.ins)
        M.wait(f"l{st}")
        if st == 0: M.stamp("t0")
        if st == 0 and st0 is not None: M.stamp(st0)
        if partial_last and st == nsteps - 1:
            M(f"s_cmp_ge_u32 s3, {KS % 4}")
            M(f"s_cbranch_scc1 {pfx}_SKIP")
        for mt in range(4):
            for t in range(NT):
                acc = ACC + 4 * (mt * NT + t)
                c = "0" if st == 0 else f"v[{acc}:{acc+3}]"
                M(f"v_mfma_f32_16x16x32_bf16 v[{acc}:{acc+3}], {r(t2_buf(st, 4+t), 4)}, {r(t2_buf(st, mt), 4)}, {c}")
    S_ = Sched(M.ins)
    first = []
    for st in range(PRE, min(DEPTH - 1, nsteps)): first += groups_vm(stage_loads(st))
    S_.release(0, "vm", first, every=1)
    for st in range(nsteps):
        n = st + DEPTH - 1
        if n < nsteps and n >= min(DEPTH - 1, nsteps):
            S_.release(marks[st], "vm", groups_vm(stage_loads(n)))
    out, rest = S_.run(gap=8, vm_every=1)
    check_tags(out + rest)
    assert not rest
    T = Asm()
    lastld = max([i for i, x in enumerate(out) if x.text.startswith("buffer_load")], default=-1)
    A.ins += out[:lastld + 1]
    T.ins += out[lastld + 1:]
    if partial_last: T.label(f"{pfx}_SKIP")
    T("s_nop 7")
    T.stamp("t1")
    for mt in range(1, 4):
        for t in range(NT):
            acc = ACC + 4 * (mt * NT + t)
            T(f"ds_write_b128 v{11+mt}, v[{acc}:{acc+3}] offset:{t*1024}")
    T.wait("res")
    X = ACC + 16 * NT
    for t in range(NT):
        for j in range(2):
            T(f"v_lshlrev_b32 v{X+4*t+2*j}, 16, v{RES+2*t+j}")
            T(f"v_and_b32 v{X+4*t+2*j+1}, 0xffff0000, v{RES+2*t+j}")
    for i in range(4 * NT): T(f"v_add_f32 v{X+i}, v{X+i}, v{ACC+i}")
    T.waitall(vm=False)
    T("s_barrier")
    tl, left = pace(T.ins, extra_vm or [], P.get("t2_pace", 70), first=P.get("t2_first", 100))
    A.ins += tl
    if left: print(pfx, "tail leftover", len(left))
    for g in left: A.ins += g
    left = []
    A.stamp("t2")
    for k in range(3):
        for t in range(NT):
            d = ACC + 4 * ((k + 1) * NT + t)
            A(f"ds_read_b128 v[{d}:{d+3}], v27 offset:{k*5120+t*1024}", tag=f"rd{k}")
    for k in range(3):
        A.wait(f"rd{k}")
        for i in range(4 * NT):
            A(f"v_add_f32 v{X+i}, v{X+i}, v{ACC+4*(k+1)*NT+i}")
    for i in range(2 * NT):
        A(f"v_cvt_pk_bf16_f32 v{RES+i}, v{X+2*i}, v{X+2*i+1}")
    return X, RES, left

def widen(A, RES):
    for p in range(2):
        for k in range(2):
            A(f"v_permlane16_swap_b32 v{RES+4*p+k}, v{RES+4*p+2+k}")

def final_store(A, NT, RES):
    A("""
    v_bfe_u32 v28, v0, 4, 1
    v_lshlrev_b32 v28, 5, v28
    v_bfe_u32 v30, v0, 5, 1
    v_lshlrev_b32 v30, 4, v30
    v_and_b32 v31, 15, v0
    v_mul_u32_u24 v31, 1152, v31
    v_add3_u32 v28, v28, v30, v31
    """)
    widen(A, RES)
    for p in range(2):
        A(f"buffer_store_dwordx4 v[{RES+4*p}:{RES+4*p+3}], v28, s[8:11], s31 offen offset:{p*64}")
    if NT == 5: A(f"buffer_store_dwordx2 v[{RES+8}:{RES+9}], v29, s[8:11], s31 offen offset:128")

def t2_store(A, NT, X, RES):
    A("""
    v_bfe_u32 v28, v0, 4, 1
    v_lshlrev_b32 v28, 10, v28
    v_bfe_u32 v30, v0, 5, 1
    v_lshlrev_b32 v30, 9, v30
    v_and_b32 v31, 15, v0
    v_lshlrev_b32 v31, 4, v31
    v_add3_u32 v30, v28, v30, v31
    """)
    widen(A, RES)
    for p in range(2):
        A(f"buffer_store_dwordx4 v[{RES+4*p}:{RES+4*p+3}], v30, s[4:7], s22 offen offset:{p*2048} sc1", tag="out")
    if NT == 5: A(f"buffer_store_dwordx2 v[{RES+8}:{RES+9}], v11, s[4:7], s23 offen sc1", tag="out")
    for i in range(2 * NT):
        A(f"v_lshlrev_b32 v{X+2*i}, 16, v{RES+i}")
        A(f"v_and_b32 v{X+2*i+1}, 0xffff0000, v{RES+i}")
    def xreduce(dst):
        A(f"v_mov_b32 v28, v{dst}")
        A(f"v_permlane16_swap_b32 v{dst}, v28")
        A(f"v_add_f32 v{dst}, v{dst}, v28")
        A(f"v_mov_b32 v28, v{dst}")
        A(f"v_permlane32_swap_b32 v{dst}, v28")
        A(f"v_add_f32 v{dst}, v{dst}, v28")
    A(f"v_add_f32 v26, v{X}, v{X+1}")
    A(f"v_add_f32 v27, v{X+2}, v{X+3}")
    for i in range(4, 4 * NT): A(f"v_add_f32 v{26+(i&1)}, v{26+(i&1)}, v{X+i}")
    A("v_add_f32 v26, v26, v27")
    xreduce(26)
    A(f"v_mul_f32 v26, {hex(G.f32(1.0/(16*NT)))}, v26")
    A("v_mov_b32 v27, 0")
    for i in range(4 * NT):
        A(f"v_sub_f32 v{X+i}, v{X+i}, v26")
        A(f"v_fmac_f32 v27, v{X+i}, v{X+i}")
    xreduce(27)
    A("buffer_store_dwordx2 v[26:27], v15, s[4:7], s36 offen sc1", tag="out")

def tile_dmas(tiles, slot_of, s_srcw, s_src, s_ldsw, tag):
    B = Asm()
    for t in tiles:
        for c in range(10):
            if c < 9: dma(B, s_srcw, t * G.T1S + c * 4096, s_ldsw, slot_of(t) * G.T1S + c * 4096, 1, tag(t), stmp=38)
            else: dma(B, s_src, t * G.T1S + 36 * 1024, None, slot_of(t) * G.T1S + 36 * 1024, 1, tag(t), stmp=38)
    return groups_vm(B.ins)

def k4_decode(A):
    A(f"""
    s_and_b32 s84, s2, 7
    s_lshl_b32 s84, s84, 2
    s_bfe_u32 s25, s2, 0x20003
    s_add_u32 s84, s84, s25            ; cb
    s_lshr_b32 s85, s2, 5              ; rb8
    s_lshl_b32 s78, s3, 10
    s_mul_i32 s76, s84, {9*G.T1S}
    s_add_u32 s76, s76, {G.W13}
    s_add_u32 s77, s76, s78
    """)

def k4_phase(A, tail_vm):
    def xreg(j, ks):
        if ks == 36: return 16 + 4 * j
        idx = j * 36 + ks
        if idx < 64: return 256 + 4 * idx
        return 24 + 4 * (idx - 64)
    sl = {0: 0, 1: 1, 2: 2, 3: 3, 4: 0, 5: 1, 6: 2, 7: 3, 8: 0}
    accreg = lambda t, j: 88 + 32 * sl[t] + 16 * j
    t1 = T1(2, xreg, accreg, 56, 8, lambda t: sl[t], 2)
    A(f"""
    v_mov_b32 v2, v1
    v_add_u32 v3, 0x10000, v1
    v_add_u32 v4, 0x20000, v1
    s_lshl_b32 s26, s85, 3
    s_lshl_b32 s27, s3, 1
    s_add_u32 s26, s26, s27
    s_mul_i32 s23, s26, 36864
    s_add_u32 s23, s23, s42
    s_add_u32 s23, s23, {G.XSZ}
    s_lshl_b32 s29, s26, 11
    s_add_u32 s29, s29, s43
    s_add_u32 s29, s29, {G.SSZ}
    v_bfe_u32 v5, v0, 4, 1
    v_mul_u32_u24 v5, {144*1024}, v5
    v_and_b32 v10, 15, v0
    v_lshlrev_b32 v10, 4, v10
    v_add_u32 v5, v5, v10
    v_bfe_u32 v10, v0, 5, 1
    v_lshlrev_b32 v10, 8, v10
    v_add_u32 v5, v5, v10
    s_mul_i32 s31, s26, {2*144*1024}
    s_mul_i32 s32, s84, {9*512}
    s_add_u32 s31, s31, s32
    s_add_u32 s31, s31, {G.HF}
    {LO2(31)}
    s_lshl_b32 s24, s26, 4
    s_add_u32 s24, s24, s41
    s_mul_i32 s79, s82, {144*1024}
    s_add_u32 s79, s79, {G.W2}
    s_add_u32 s79, s79, s78
    """)
    if SK: k5_decode(A)
    if not SK: A.stamp(2)
    poll(A, 24, 8, True)
    A.wait("w0", "w1", "w2", "t3")
    if not SK: A.stamp(3)
    def xl(B, ks):
        for j in range(2):
            B(f"s_add_u32 s30, s23, {j*36864 + (ks//4)*4096}")
            B(f"buffer_load_dwordx4 {r(xreg(j, ks), 4)}, v1, s[4:7], s30 offen offset:{(ks%4)*1024} sc1", tag=f"x{ks}")
    AHEAD = P.get("k4_ahead", 6)
    for ks in range(2): xl(A, ks)
    stats_load(A, 2, 29, 216, 10, " sc1")
    for ks in range(2, AHEAD): xl(A, ks)
    A("s_barrier")
    SC = Asm()
    SC.wait("st")
    SC("v_cmp_gt_u32 vcc, 512, v1")
    for j in range(2):
        stats_compute(SC, 216 + 16 * j, 12, 8 + j, 10)
        build_xext(SC, 12, 16 + 4 * j, 13)
        SC(f"v_rsq_f32 v{6+j}, v{8+j}")
        SC(f"v_mul_f32 v{6+j}, {hex(G.f32(-LOG2E))}, v{6+j}")
    def epilogue(t):
        E = Asm()
        for j in range(2):
            acc = accreg(t, j)
            tm = 216 + 20 * j
            for i in range(8): E(f"v_mul_f32 v{tm+i}, v{acc+i}, v{6+j}")
            for i in range(8): E(f"v_exp_f32 v{tm+i}, v{tm+i}")
            for i in range(8): E(f"v_mul_f32 v{tm+8+i}, v{acc+i}, v{acc+8+i}")
            for i in range(8): E(f"v_fma_f32 v{tm+i}, v{tm+i}, v{8+j}, v{8+j}")
            for i in range(8): E(f"v_rcp_f32 v{tm+i}, v{tm+i}")
            for i in range(8): E(f"v_mul_f32 v{tm+8+i}, v{tm+8+i}, v{tm+i}")
            for i in range(4): E(f"v_cvt_pk_bf16_f32 v{tm+16+i}, v{tm+8+2*i}, v{tm+9+2*i}")
            E(f"s_add_u32 s33, s31, {j*2*144*1024 + t*512}")
            E(f"buffer_store_dwordx4 v[{tm+16}:{tm+19}], v5, s[4:7], s33 offen sc1", tag="hout" if t > (5 if K45 else 6) else "hE")
        return E.ins
    items = [(t, ks) for ks in range(37) for t in range(3)] + [(t, ks) for t in range(3, 9) for ks in range(37)]
    DIST = 6
    M = Asm(); marks = {}
    def pre_read(i):
        t, ks = items[i]
        if t >= 4 and ks == 0:
            M.wait(f"t{t}")
            if K45 and t == 8: M.wait("hE")
            M("s_barrier")
            if K45 and t == 8:
                flag_store(M, 13, 14)
                M("v_and_b32 v14, 7, v0")
                M(f"v_lshlrev_b32 v14, {2+FSH}, v14")
            if t in (5, 6): marks[("dma", t + 2)] = len(M.ins)
        t1.read(M, i, t, ks)
    for i in range(DIST): pre_read(i)
    for i, (t, ks) in enumerate(items):
        if t == 0: marks[("ks", ks)] = len(M.ins)
        if t == 8: marks[("ks8", ks)] = len(M.ins)
        if i + DIST < len(items): pre_read(i + DIST)
        if ks == 0 and t >= 3:
            if t in (3, 6): M.stamp(5 if t == 3 else 6)
            marks[("tile", t)] = len(M.ins)
        M.wait(f"wf{i}", f"x{ks}")
        if i == 0: M.stamp(4)
        t1.mfmas(M, i, t, ks)
        if t == 3 and ks == 2:
            M("s_barrier")
            marks[("dma", 4)] = len(M.ins)
        if K45 and t == 8:
            if ks == 4:
                M("s_barrier")
                marks[("q2",)] = len(M.ins)
            if ks == P.get("k45_fl", 20):
                M("buffer_load_dword v15, v14, s[4:7], s15 offen sc1", tag="fe")
            if ks == P.get("k45_ck", 26):
                flagchk(M, "K5E", "fe", 15, 14, 15)
                marks[("hgo",)] = len(M.ins)
        elif SK and t == 8 and ks == 8:
            M.wait("hE")
            M("s_barrier")
            flag_store(M, 13, 14)
            M("v_and_b32 v14, 7, v0")
            M(f"v_lshlrev_b32 v14, {2+FSH}, v14")
            marks[("q2",)] = len(M.ins)
        elif SK and t == 8 and ks == 36:
            M("buffer_load_dword v15, v14, s[4:7], s15 offen sc1", tag="fe")
    dm = lambda ts: tile_dmas(ts, lambda t: sl[t], 77, 76, 78, lambda t: f"t{t}")
    S_ = Sched(M.ins)
    B = Asm()
    for ks in range(AHEAD, 36): xl(B, ks)
    S_.release(0, "vm", groups_vm(B.ins), every=P.get("k4_e0", 2.5))
    S_.release(marks[("ks", 4)], "va", groups_1(SC.ins))
    S_.release(marks[("tile", 3)], "va", groups_1(epilogue(0) + epilogue(1) + epilogue(2)), skip=3)
    S_.release(marks[("dma", 4)], "vm", dm([4, 5, 6]), every=3)
    S_.release(marks[("dma", 7)], "vm", dm([7]))
    S_.release(marks[("dma", 8)], "vm", dm([8]))
    for t in range(4, 9):
        S_.release(marks[("tile", t)], "va", groups_1(epilogue(t - 1)), skip=3)
    def w2pre(st):
        B = Asm()
        for t in range(5):
            B(f"s_add_u32 s37, s79, {t*144*1024 + st*4096}")
            B(f"buffer_load_dwordx4 {r(t2_buf(st, 4+t), 4)}, v1, s[4:7], s37 offen", tag=f"l{st}")
        return groups_vm(B.ins)
    if SK:
        S_.release(marks[("ks8", 0)], "vm", k5_unit(0) + k5_unit(1), every=2)
        S_.release(marks[("q2",)], "vm", k5_unit(2) + k5_unit(3))
        if K45:
            B = Asm()
            for st in range(P.get("k5_ahead", 6)): k5_hl(B, st)
            S_.release(marks[("hgo",)], "vm", groups_vm(B.ins), front=True)
        out, rest = S_.run(cap=24, vm_cost=16)
        e8 = epilogue(8)
        if K45:
            B = Asm(); B.wait("d0", "d1"); B("s_barrier")
            e8 = B.ins + pace(e8, k5_unit(4), 60)[0]
    else:
        S_.release(marks[("ks8", 9)], "vm", w2pre(0) + w2pre(4), every=2)
        S_.release(marks[("ks8", 18)], "vm", w2pre(1))
        S_.release(marks[("ks8", 27)], "vm", w2pre(2))
        out, rest = S_.run(cap=24, vm_cost=16)
        e8, left = pace(epilogue(8), w2pre(3), 40)
        assert not left
    lst = out + rest + e8
    K4M.check_order(lst, accreg)
    check_tags(lst)
    A.ins += lst
    A.stamp(7)

TS = 144 * 1024
ORD = [0, 1, 2, 5, 6, 7, 3, 4, 8] if not P.get('k45', 1) else [0, 1, 2, 5, 6, 3, 7, 4, 8]
K5P = [37888, 66560, 95232, 123904, 0]
def k5_decode(A):
    A(f"""
    s_and_b32 s82, s2, 3
    s_bfe_u32 s80, s2, 0x10002
    s_lshl_b32 s80, s80, 3
    s_bfe_u32 s81, s2, 0x30003
    s_add_u32 s80, s80, s81            ; rg128
    s_lshr_b32 s81, s2, 6              ; cgp
    s_mul_i32 s79, s81, {9*TS}
    s_mul_i32 s83, s82, {36*1024}
    s_add_u32 s79, s79, s83
    s_mul_i32 s83, s3, 9216
    s_add_u32 s79, s79, s83
    s_add_u32 s79, s79, {G.W2}
    s_add_u32 s83, s79, {4*TS}
    s_sub_u32 s19, s79, {5*TS}
    s_bitcmp1_b32 s82, 0               ; nh
    s_cselect_b32 s19, s79, s19
    s_cselect_b32 s79, s79, s83
    s_mul_i32 s83, s3, 7168
    s_lshl_b32 s14, s3, 11
    s_lshr_b32 s15, s80, 1
    s_lshl_b32 s15, s15, 2
    s_add_u32 s15, s15, s82
    s_lshl_b32 s15, s15, 5
    s_add_u32 s15, s15, s41
    s_add_u32 s15, s15, 3072
    s_lshl_b32 s15, s15, {FSH}
    s_add_u32 s15, s15, {G.FLG}
    s_lshl_b32 s13, s85, 5
    s_add_u32 s13, s13, s84
    s_lshl_b32 s13, s13, 2
    s_add_u32 s13, s13, s41
    s_add_u32 s13, s13, 3072
    s_lshl_b32 s34, s80, 2
    s_add_u32 s34, s34, s3
    s_mul_i32 s20, s34, {2*144*1024}
    s_mul_i32 s21, s82, {36*1024}
    s_add_u32 s20, s20, s21
    s_add_u32 s20, s20, {G.HF}
    {LO2(20)}
    s_add_u32 s12, s20, {144*1024}
    s_bitcmp1_b32 s82, 1               ; mt_own
    s_cselect_b32 s21, s12, s20
    s_cselect_b32 s12, s20, s12
    s_mov_b32 s20, s21
    """)
def k5_unit(u):
    B = Asm()
    if u < 9:
        for j in range(7):
            dma(B, 79 if j < 5 else 19, j * TS + ORD[u] * 1024, 83, K5P[u % 5] + j * 1024, 1, f"d{u}", stmp=38)
    else:
        for qq in range(3):
            for j in range(7, 9):
                dma(B, 19, j * TS + ORD[3 * (u - 9) + qq] * 1024, 14, K5P[u % 5] + qq * 8192 + (j - 7) * 1024, 1, f"d{u}", stmp=38)
    return groups_vm(B.ins)

def flagchk(A, lab, tag, vreg, vaddr, sbase):
    A.wait(tag)
    A(f"v_cmp_eq_u32 vcc, 1, v{vreg}")
    A("s_cmp_eq_u64 vcc, -1")
    A(f"s_cbranch_scc1 {lab}_OK")
    R = A.raw
    R("    s_mov_b32 s39, 0x20000")
    R(f"{lab}:")
    R("    s_sleep 1")
    R(f"    buffer_load_dword v{vreg}, v{vaddr}, s[4:7], s{sbase} offen sc1")
    R("    s_waitcnt vmcnt(0)")
    R(f"    v_cmp_eq_u32 vcc, 1, v{vreg}")
    R("    s_nop 1")
    R("    s_cmp_eq_u64 vcc, -1")
    R(f"    s_cbranch_scc1 {lab}_OK")
    R("    s_sub_u32 s39, s39, 1")
    R("    s_cmp_lg_u32 s39, 0")
    R(f"    s_cbranch_scc1 {lab}")
    A.label(f"{lab}_OK")

def flag_store(A, sgpr, vt=30):
    lab = f"SIG{signal.n}"; signal.n += 1
    A("s_cmp_lg_u32 s3, 0")
    A(f"s_cbranch_scc1 {lab}")
    A.raw("    s_mov_b64 exec, 1")
    A.raw(f"    v_mov_b32 v{vt}, 0")
    A.raw(f"    v_mov_b32 v{vt+1}, 1")
    A.raw(f"    s_lshl_b32 s38, s{sgpr}, {FSH}")
    A.raw(f"    s_add_u32 s38, s38, {G.FLG}")
    A.raw(f"    buffer_store_dword v{vt+1}, v{vt}, s[4:7], s38 offen sc1")
    A.raw("    s_mov_b64 exec, -1")
    A.label(lab)

def k5_hreg(st, j):
    return 256 + 8 * st + 4 * j if st < 32 else 168 + 8 * (st - 32) + 4 * j
def k5_hl(B, st):
    ph = 9 * (st % 4) + ORD[st // 4]
    for j in range(2):
        B(f"s_add_u32 s30, s{20 if j == 0 else 12}, {(ph//4)*4096}")
        B(f"buffer_load_dwordx4 {r(k5_hreg(st, j), 4)}, v1, s[4:7], s30 offen offset:{(ph%4)*1024} sc1", tag=f"h{st}")

def k5_path(A, nh, qtile, AHEAD, setup):
    NO, NB = (5, 4) if nh == 0 else (4, 5)
    ACC, WR, R, PB = 32, 120, 12, 200
    acc = lambda j, sl: ACC + 36 * j + 4 * sl
    hreg = k5_hreg
    items = [(0, st, sl) for st in range(36) for sl in range(7)] + [(1, st, sl) for st in range(36) for sl in (7, 8)]
    DIST = P.get("k5_dist", 9)
    M = Asm(); marks = {}
    def rd(i):
        ps, st, sl = items[i]
        if ps == 0:
            u = st // 4; first = (st % 4 == 0 and sl == 0)
            off = K5P[u % 5] + (st % 4) * 7168 + sl * 1024
        else:
            u = 9 + st // 12; first = (st % 12 == 0 and sl == 7)
            off = K5P[u % 5] + ((st // 4) % 3) * 8192 + (st % 4) * 2048 + (sl - 7) * 1024
        if first and u >= 2:
            M.wait(f"d{u}")
            if K45 and u == 2: M.wait("hout")
            M("s_barrier")
            if K45 and u == 2: flag_store(M, 26)
            marks[("B", u)] = len(M.ins)
        w = WR + 4 * (i % R)
        M(f"ds_read_b128 v[{w}:{w+3}], v{2 + (off >> 16)} offset:{off & 0xffff}", tag=f"wf{i}")
    for i in range(DIST): rd(i)
    WG_ = 3
    NE = 20 if K45 else 24
    LA = P.get('k5_la', 4) if K45 else AHEAD
    CHK = NE - LA
    for i, (ps, st, sl) in enumerate(items):
        if sl in (0, 7):
            if (ps, st) == (0, CHK - P.get("k5_fl", 3)):
                M("buffer_load_dword v13, v14, s[4:7], s25 offen sc1", tag="fl")
            if (ps, st) == (0, CHK):
                flagchk(M, f"K5L{nh}", "fl", 13, 14, 25)
            marks[("st", ps, st)] = len(M.ins)
        if (ps, st, sl) == (1, 0, 7): M.stamp(13)
        if i + DIST < len(items): rd(i + DIST)
        tags = []
        if i % WG_ == 0: tags.append(f"wf{min(i + WG_ - 1, len(items) - 1)}")
        if ps == 0 and sl == 0: tags.append(f"h{st}")
        if tags: M.wait(*tags)
        w = WR + 4 * (i % R)
        for j in range(2):
            a_ = acc(j, sl)
            c = "0" if st == 0 else f"v[{a_}:{a_+3}]"
            M(f"v_mfma_f32_16x16x32_bf16 v[{a_}:{a_+3}], v[{w}:{w+3}], {r(hreg(st, j), 4)}, {c}")
    S_ = Sched(M.ins)
    late = []
    if setup:
        gs = []; cur = []
        for k, x in enumerate(setup):
            cur.append(I(x.text))
            nxt = setup[k + 1].text if k + 1 < len(setup) else ""
            if (len(cur) >= 4 or x.text.startswith("v_")) and not nxt.startswith("s_cselect"):
                gs.append(cur); cur = []
        if cur: gs.append(cur)
        S_.release(marks[("st", 0, 1)], "va", gs)
    for st in range(AHEAD, 36):
        B = Asm(); k5_hl(B, st)
        rel = st - AHEAD if st < NE else max(st - AHEAD, CHK)
        if st >= NE and st - AHEAD < CHK: late.extend([B.ins[:2], B.ins[2:]])
        else: S_.release(marks[("st", 0, rel)], "vm", [B.ins[:2], B.ins[2:]], every=P.get("k5_e", 3), front=(st - AHEAD != CHK))
        if st - AHEAD == CHK - 1: S_.release(marks[("st", 0, CHK)], "vm", late, front=True)
    for u in range(5, 12):
        S_.release(marks[("B", u - 3)], "vm", k5_unit(u))
    S_.release(marks[("B", 10)], "vm", qtile(3))
    S_.release(marks[("B", 11)], "vm", qtile(0))
    def pieces(n): return [(0, 2), (2, 2)] if n == 4 else [(0, 2), (2, 1), (3, 2)]
    def pstore(a0, n, sbase, sel, tag):
        B = Asm()
        for pi, (t0, k) in enumerate(pieces(n)):
            if pi not in sel: continue
            b = a0 + 4 * t0
            for i in range(2 * k): B(f"v_cvt_pk_bf16_f32 v{b+i}, v{b+2*i}, v{b+2*i+1}")
            if k == 2: B(f"buffer_store_dwordx4 v[{b}:{b+3}], v1, s[4:7], s{sbase} offen offset:{pi*1024} sc1", tag=tag)
            else: B(f"buffer_store_dwordx2 v[{b}:{b+1}], v1, s[4:7], s{sbase} offen offset:{pi*1024} sc1", tag=tag)
        return B.ins
    def pload(dst, k, tag):
        B = Asm()
        B(f"s_add_u32 s37, s21, {k*12288}")
        for pi, (t0, kk) in enumerate(pieces(NB)):
            d = dst + 4 * pi
            if kk == 2: B(f"buffer_load_dwordx4 v[{d}:{d+3}], v1, s[4:7], s37 offen offset:{pi*1024} sc1", tag=tag)
            else: B(f"buffer_load_dwordx2 v[{d}:{d+1}], v1, s[4:7], s37 offen offset:{pi*1024} sc1", tag=tag)
        return B.ins
    def pregs(dst):
        return [dst + 4 * pi + i for pi, (t0, kk) in enumerate(pieces(NB)) for i in range(2 * kk)]
    def check(regs):
        B = Asm()
        B(f"v_max3_u32 v30, v{regs[0]}, v{regs[1]}, v{regs[2]}")
        rest_ = regs[3:]
        while len(rest_) >= 2:
            B(f"v_max3_u32 v30, v30, v{rest_[0]}, v{rest_[1]}"); rest_ = rest_[2:]
        if rest_: B(f"v_max_u32 v30, v30, v{rest_[0]}")
        B("v_cmp_eq_u32 vcc, -1, v30")
        B("s_cmp_eq_u64 vcc, 0")
        return B.ins
    RES = 16
    B = Asm()
    for t in range(NB):
        so, im = (28, t * 1024) if t < 4 else (29, 0)
        B(f"buffer_load_dwordx2 v[{RES+2*t}:{RES+2*t+1}], v11, s[4:7], s{so} offen offset:{im} sc1", tag="res")
    S_.release(marks[("st", 0, 30)], "vm", groups_vm(B.ins))
    np_ = len(pieces(NB))
    allp = range(3)
    S_.release(marks[("st", 1, 2)], "va", groups_1(pstore(acc(0, 0), NO, 16, allp, "pa") + pstore(acc(1, 0), NO, 17, allp, "pa")
                                                  + pstore(acc(1, NO), NB, 18, range(np_ - 1), "pa")))
    out, rest = S_.run(gap=8, vm_cost=8)
    assert not rest, len(rest)
    check_tags(out)
    A.ins += out
    A.stamp(10)
    A.ins += pstore(acc(1, NO), NB, 18, [np_ - 1], "pb")
    A.ins += pload(PB, 0, "p0") + pload(PB + 12, 1, "p0") + pload(PB + 24, 2, "p2")
    A("s_barrier")
    X = WR
    A.wait("res")
    for t in range(NB):
        for j in range(2):
            A(f"v_lshlrev_b32 v{X+4*t+2*j}, 16, v{RES+2*t+j}")
            A(f"v_and_b32 v{X+4*t+2*j+1}, 0xffff0000, v{RES+2*t+j}")
    for i in range(4 * NB): A(f"v_add_f32 v{X+i}, v{X+i}, v{acc(0, NO)+i}")
    def addp(b):
        for i, rg in enumerate(pregs(b)):
            A(f"v_lshlrev_b32 v30, 16, v{rg}")
            A(f"v_and_b32 v31, 0xffff0000, v{rg}")
            A(f"v_add_f32 v{X+2*i}, v{X+2*i}, v30")
            A(f"v_add_f32 v{X+2*i+1}, v{X+2*i+1}, v31")
    def spin(lab, regs, loads, tag):
        A("s_mov_b32 s39, 0x20000")
        A.wait(tag)
        A.label(lab)
        A.ins += check(regs)
        A(f"s_cbranch_scc1 {lab}_OK")
        A.save(lab)
        A(f"s_sleep {P.get('k5_sleep', 1)}")
        A.ins += loads
        A("s_waitcnt vmcnt(0)")
        A("s_sub_u32 s39, s39, 1")
        A("s_cmp_lg_u32 s39, 0")
        A(f"s_cbranch_scc1 {lab}")
        A.label(f"{lab}_OK")
        A.restore(lab)
    spin(f"K5SA{nh}", pregs(PB) + pregs(PB + 12), pload(PB, 0, None) + pload(PB + 12, 1, None), "p0")
    addp(PB); addp(PB + 12)
    spin(f"K5SB{nh}", pregs(PB + 24), pload(PB + 24, 2, None), "p2")
    A.stamp(2)
    addp(PB + 24)
    for i in range(2 * NB):
        A(f"v_cvt_pk_bf16_f32 v{RES+i}, v{X+2*i}, v{X+2*i+1}")
    A.stamp(3)
    pfx = f"K5{nh}"
    A("s_cmp_lg_u32 s40, 0")
    A(f"s_cbranch_scc1 {pfx}_FINAL")
    A.save(pfx + "fin")
    t2_store(A, NB, X, RES)
    A("s_branch K5_DONE")
    A.save(pfx + "done")
    A.label(f"{pfx}_FINAL")
    A.restore(pfx + "fin")
    final_store(A, NB, RES)
    A("s_endpgm")

def k5_phase(A0, qtile, NMID):
    AHEAD = P.get("k5_ahead", 6)
    A = A0
    if not K45:
        flagchk(A, "K5E", "fe", 15, 14, 15)
        for st in range(AHEAD): k5_hl(A, st)
        A("s_sub_u32 s24, s13, 2048")
        A.wait("d0", "d1", "d2", "d3")
        signal(A, 24, "hout")
        A.stamp(8)
        for g in k5_unit(4): A.ins += g
    else:
        A("s_sub_u32 s26, s13, 2048")
        A = Asm()
    k1_decode(A, None)
    A(f"""
    s_lshr_b32 s32, s82, 1             ; mt_own
    s_and_b32 s33, s82, 1              ; nh
    s_lshl_b32 s34, s80, 2
    s_add_u32 s34, s34, s3
    s_lshl_b32 s27, s80, 2
    s_add_u32 s27, s27, s81            ; tile
    s_mul_i32 s21, s27, {4*36864}
    s_mul_i32 s35, s3, 3072
    s_add_u32 s21, s21, s35
    s_add_u32 s21, s21, {G.PART}
    {LO2(21)}
    s_mul_i32 s35, s32, 12288
    s_add_u32 s35, s35, s21
    s_xor_b32 s36, s82, 1
    s_mul_i32 s36, s36, 36864
    s_add_u32 s16, s35, s36
    s_xor_b32 s36, s82, 3
    s_mul_i32 s36, s36, 36864
    s_add_u32 s17, s35, s36
    s_xor_b32 s36, s82, 2
    s_mul_i32 s36, s36, 36864
    s_add_u32 s18, s21, s36
    s_add_u32 s18, s18, 24576
    s_mul_i32 s36, s82, 36864
    s_add_u32 s21, s21, s36
    s_mul_i32 s13, s81, 9
    s_lshl_b32 s35, s33, 2
    s_add_u32 s13, s13, s35            ; nt0
    v_and_b32 v11, 15, v0
    v_lshlrev_b32 v11, 4, v11
    v_bfe_u32 v28, v0, 5, 1
    v_lshlrev_b32 v28, 9, v28
    v_add_u32 v11, v11, v28
    v_bfe_u32 v28, v0, 4, 1
    v_lshlrev_b32 v28, 3, v28
    v_add_u32 v11, v11, v28
    s_mul_i32 s28, s34, 36
    s_add_u32 s28, s28, s13
    s_lshl_b32 s28, s28, 10
    s_lshl_b32 s29, s32, 8
    s_add_u32 s28, s28, s29
    s_add_u32 s28, s28, s42
    s_add_u32 s22, s28, {2*G.XSZ}
    s_add_u32 s23, s22, 4096
    s_add_u32 s28, s28, {G.XSZ}
    s_add_u32 s29, s28, 4096
    v_and_b32 v15, 15, v0
    v_mul_u32_u24 v29, 1152, v15
    v_lshlrev_b32 v15, 3, v15
    s_lshl_b32 s35, s34, 1
    s_add_u32 s35, s35, s32            ; rb16
    s_lshl_b32 s36, s35, 10
    s_lshl_b32 s37, s81, 1
    s_add_u32 s37, s37, s33
    s_lshl_b32 s37, s37, 7
    s_add_u32 s36, s36, s37
    s_add_u32 s36, s36, s43
    s_add_u32 s36, s36, {2*G.SSZ}
    v_bfe_u32 v28, v0, 4, 2
    v_lshlrev_b32 v28, 3, v28
    v_add_u32 v29, v29, v28
    s_mul_i32 s31, s35, 18432
    s_lshl_b32 s37, s13, 5
    s_add_u32 s31, s31, s37
    s_sub_u32 s25, s15, {2048 << FSH}
    """)
    setup = A.ins if K45 else []
    A = A0
    A.stamp(9)
    A("s_bitcmp1_b32 s82, 0")
    A("s_cbranch_scc1 K5_N1")
    A.save("k5n1")
    k5_path(A, 0, qtile, AHEAD, setup)
    A.label("K5_N1"); A.restore("k5n1")
    k5_path(A, 1, qtile, AHEAD, setup)
    A.label("K5_DONE")
    A.restore("K51done")
    A("s_lshl_b32 s24, s80, 2")
    A("s_add_u32 s24, s24, s81")
    A("s_lshl_b32 s24, s24, 2")
    A("s_add_u32 s24, s24, s82")
    A("s_lshl_b32 s24, s24, 2")
    A("s_add_u32 s24, s24, s41")
    A("s_add_u32 s24, s24, 2048")
    rest = qtile(1) + qtile(2)
    for g in rest[:NMID]: A.ins += g
    signal(A, 24, "out")
    A.stamp(11)
    if MEGA:
        A("s_mov_b32 s101, s41")
        A(f"s_mov_b32 s40, 1")
        A(f"s_mov_b32 s41, 8192")
        A(f"s_mov_b32 s42, {G.XF + 2*G.XSZ}")
        A(f"s_mov_b32 s43, {G.ST + 2*G.SSZ}")
        A(f"s_mov_b32 s100, {G.LBS}")
    else:
        A("s_cmp_ge_u32 s87, 15")
        A("s_cbranch_scc1 CH_END")
    for g in rest[NMID:]: A.ins += g

def k1_decode(A, endlab):
    A(f"""
    s_and_b32 s24, s2, 7
    s_lshr_b32 s25, s2, 3
    s_lshr_b32 s86, s24, 1
    s_lshl_b32 s86, s86, 2
    s_and_b32 s27, s25, 3
    s_add_u32 s86, s86, s27            ; rg
    s_and_b32 s87, s24, 1
    s_lshl_b32 s87, s87, 3
    s_lshr_b32 s34, s25, 2
    s_add_u32 s87, s87, s34            ; cg
    s_lshl_b32 s78, s3, 10
    s_lshl_b32 s34, s87, 2
    s_mul_i32 s35, s87, 3
    s_add_u32 s35, s35, 9
    s_cmp_ge_u32 s87, 9
    s_cselect_b32 s34, s35, s34
    s_cmp_eq_u32 s87, 15
    s_cselect_b32 s34, 34, s34
    s_mul_i32 s76, s34, {G.T1S}
    s_add_u32 s76, s76, {G.WQ}
    s_add_u32 s77, s76, s78
    """)

def k1_main(A, NT, swapped, sc):
    xreg = lambda j, ks: (256 + 4 * ks) if ks < 36 else 8
    t1 = T1(1, xreg, lambda t, j: 64 + 16 * t, 32, 8, lambda t: t, 2, swapped)
    def xl(B, ks):
        B(f"s_add_u32 s30, s23, {(ks//4)*4096}")
        B(f"buffer_load_dwordx4 {r(xreg(0, ks), 4)}, v1, s[4:7], s30 offen offset:{(ks%4)*1024}{sc}", tag=f"x{ks}")
    AHEAD = P.get("k1_ahead", 10)
    for ks in range(2): xl(A, ks)
    stats_load(A, 1, 29, 16, 12, sc)
    for ks in range(2, AHEAD): xl(A, ks)
    A("s_barrier")
    SC = Asm()
    SC.wait("st")
    stats_compute(SC, 16, 5, 6, 12)
    SC("v_cmp_gt_u32 vcc, 512, v1")
    build_xext(SC, 5, 8, 12)
    SC("v_rsq_f32 v6, v6")
    items = [(t, ks) for ks in range(37) for t in range(NT)]
    DIST = 6
    M = Asm(); marks = {}
    for i in range(DIST): t1.read(M, i, *items[i])
    for i, (t, ks) in enumerate(items):
        if t == 0: marks[ks] = len(M.ins)
        if i + DIST < len(items): t1.read(M, i + DIST, *items[i + DIST])
        M.wait(f"wf{i}", f"x{ks}")
        if i == 0: M.stamp(14)
        t1.mfmas(M, i, t, ks)
    S_ = Sched(M.ins)
    B = Asm()
    for ks in range(AHEAD, 36): xl(B, ks)
    S_.release(0, "vm", groups_vm(B.ins), every=P.get("k1_e0", 2.5))
    S_.release(marks[3], "va", groups_1(SC.ins))
    out, rest = S_.run(cap=24, vm_cost=8)
    assert not rest
    check_tags(out)
    A.ins += out
    A.stamp(15)

def k1_phase(A, L, xidx, do_poll):
    sc = " sc1" if do_poll else ""
    A(f"""
    v_mov_b32 v2, v1
    v_add_u32 v3, 0x10000, v1
    v_add_u32 v4, 0x20000, v1
    s_lshl_b32 s26, s86, 2
    s_add_u32 s26, s26, s3             ; rb
    s_mov_b32 s27, s87
    s_mul_i32 s23, s26, 36864
    s_add_u32 s23, s23, s42
    s_add_u32 s23, s23, {xidx*G.XSZ}
    s_lshl_b32 s29, s26, 11
    s_add_u32 s29, s29, s43
    s_add_u32 s29, s29, {xidx*G.SSZ}
    s_lshr_b32 s31, s26, 3
    s_mul_i32 s31, s31, {G.KVG}
    s_add_u32 s31, s31, {G.KV}
    {LO(31)}
    s_lshr_b32 s24, s26, 1
    s_lshl_b32 s24, s24, 5
    s_add_u32 s24, s24, s41
    s_add_u32 s24, s24, 2048
    """)
    if do_poll:
        if SK:
            A("s_lshl_b32 s24, s86, 6")
            A(f"s_add_u32 s24, s24, s{101 if MEGA else 41}")
            A("s_add_u32 s24, s24, 2048")
        A.stamp(12)
        poll(A, 24, 16 if SK else 8, True)
        A.wait("q0", "q1", "q2", "q3")
    if MEGA:
        A("s_and_b32 s32, s27, 7")
        A("s_cmp_eq_u32 s27, 8")
        A(f"s_cbranch_scc1 {L}_EXT")
        A("s_cmp_eq_u32 s27, 15")
        A(f"s_cbranch_scc1 {L}_EXT")
        A.save(L + "ext")
    A(f"s_cmp_ge_u32 s27, 9")
    A(f"s_cbranch_scc1 {L}_V")
    A.save(L + "v")
    def pre():
        if not do_poll:
            pass
    k1_main_w(A, 4, False, sc, do_poll)
    if not MEGA:
        A("s_cmp_eq_u32 s27, 8")
        A(f"s_cbranch_scc1 {L}_EXT")
        A.save(L + "ext")
    ST_ = " sc1" if MEGA else P.get("k1_st", "")
    def fin():
        if MEGA:
            A.stamp("kf" + L)
            A(f"s_branch {L}_JOIN")
        else: A("s_endpgm")
    A(f"""
    s_and_b32 s32, s27, 3
    s_lshl_b32 s32, s32, 3
    s_lshl_b32 s33, s26, 10
    s_add_u32 s33, s33, {G.QM}
    {LO(33)}
    s_and_b32 s34, s26, 7
    s_lshl_b32 s34, s34, 10
    s_add_u32 s34, s34, s31
    s_cmp_lt_u32 s27, 4
    s_cselect_b32 s33, s33, s34
    s_mov_b32 s35, {G.KVH}
    s_cselect_b32 s35, 65536, s35
    s_mov_b32 s36, {hex(G.f32(QSCALE))}
    s_cselect_b32 s36, s36, 1.0
    s_mul_i32 s32, s32, s35
    s_add_u32 s33, s33, s32
    v_mul_f32 v6, s36, v6
    """)
    for t in range(4):
        acc = 64 + 16 * t
        for e in range(2):
            for i in range(8): A(f"v_mul_f32 v{acc+8*e+i}, v{acc+8*e+i}, v6")
            for i in range(4): A(f"v_cvt_pk_bf16_f32 v{128+8*t+4*e+i}, v{acc+8*e+2*i}, v{acc+8*e+2*i+1}")
            A(f"buffer_store_dwordx4 v[{128+8*t+4*e}:{128+8*t+4*e+3}], v1, s[4:7], s33 offen{ST_}")
            A("s_add_u32 s33, s33, s35")
    fin()
    A.label(f"{L}_EXT")
    A.restore(L + "ext")
    if MEGA:
        k1_main_w(A, 2, False, sc, do_poll)
        A(f"""
        v_and_b32 v12, 31, v0
        v_bfe_u32 v13, v0, 5, 1
        v_lshlrev_b32 v13, 10, v13
        s_cmp_eq_u32 s27, 8
        s_cselect_b32 s32, 2, 4            ; m shift
        s_cselect_b32 s33, 7, 2            ; w shift
        s_mov_b32 s36, {hex(G.f32(QSCALE))}
        s_cselect_b32 s36, s36, 1.0
        s_mov_b32 s35, {G.KVH}
        s_cselect_b32 s35, 8192, s35
        s_lshl_b32 s34, s86, 9
        s_add_u32 s34, s34, {G.QE}
        s_add_u32 s34, s34, s100
        s_and_b32 s37, s86, 1
        s_lshl_b32 s37, s37, 9
        s_add_u32 s37, s37, s31
        s_add_u32 s37, s37, 8192
        s_cmp_eq_u32 s27, 8
        s_cselect_b32 s34, s34, s37
        s_lshl_b32 s33, s3, s33
        v_lshlrev_b32 v16, s32, v12
        v_add3_u32 v16, v16, v13, s33
        v_lshlrev_b32 v18, 4, v0
        v_lshrrev_b32 v13, 5, v0
        v_mul_lo_u32 v19, v13, s35
        v_lshlrev_b32 v21, 4, v12
        v_add_u32 v19, v19, v21
        s_lshl_b32 s35, s35, 3
        v_add_u32 v17, {2*G.T1S}, v16
        v_add_u32 v22, {2*G.T1S}, v18
        v_mul_f32 v6, s36, v6
        """)
        for t in range(2):
            acc = 64 + 16 * t
            for i in range(16): A(f"v_mul_f32 v{acc+i}, v{acc+i}, v6")
            for i in range(8): A(f"v_cvt_pk_bf16_f32 v{128+8*t+i}, v{acc+2*i}, v{acc+2*i+1}")
            for i in range(8):
                hd = 16 * t + 4 * (i >> 1) + (i & 1)
                A(f"ds_write_b32 v16, v{128+8*t+i} offset:{3*G.T1S - 65536 + hd*512}" if False else f"ds_write_b32 v17, v{128+8*t+i} offset:{hd*512}")
        A.waitall(vm=False)
        A("s_barrier")
        for k in range(4):
            A(f"ds_read_b128 v[{64+4*k}:{67+4*k}], v22 offset:{k*4096}", tag=f"er{k}")
        for k in range(4):
            A.wait(f"er{k}")
            A(f"buffer_store_dwordx4 v[{64+4*k}:{67+4*k}], v19, s[4:7], s34 offen sc1")
            A("s_add_u32 s34, s34, s35")
    else:
        A(f"""
        v_and_b32 v12, 31, v0
        v_bfe_u32 v13, v0, 5, 1
        v_lshlrev_b32 v14, 2, v12
        v_mul_u32_u24 v15, 16384, v13
        v_add_u32 v14, v14, v15
        v_lshlrev_b32 v15, 4, v12
        s_mov_b32 s32, {2*G.KVH}
        v_mul_lo_u32 v13, v13, s32
        v_add_u32 v15, v15, v13
        s_lshl_b32 s33, s26, 7
        s_add_u32 s33, s33, {G.QE}
        {LO(33)}
        s_bfe_u32 s34, s26, 0x10002
        s_lshl_b32 s34, s34, 9
        s_and_b32 s35, s26, 3
        s_lshl_b32 s35, s35, 2
        s_add_u32 s34, s34, s35
        s_add_u32 s34, s34, s31
        s_add_u32 s34, s34, 8192
        v_mul_f32 v7, {hex(G.f32(QSCALE))}, v6
        """)
        if MEGA:
            A(f"""
            v_bfe_u32 v13, v0, 5, 1
            v_lshlrev_b32 v13, 10, v13         ; h*2 heads*512
            s_lshl_b32 s35, s3, 7
            v_lshlrev_b32 v16, 2, v12
            v_add3_u32 v16, v16, v13, s35      ; Q lds addr
            s_lshl_b32 s35, s3, 2
            v_lshlrev_b32 v17, 4, v12
            v_add3_u32 v17, v17, v13, s35      ; K lds addr
            v_lshlrev_b32 v18, 4, v0
            v_lshrrev_b32 v13, 5, v0
            v_lshlrev_b32 v19, 13, v13
            v_lshlrev_b32 v21, 4, v12
            v_add_u32 v19, v19, v21
            s_mov_b32 s35, {G.KVH}
            v_mul_lo_u32 v20, v13, s35
            v_add_u32 v20, v20, v21
            s_lshl_b32 s35, s3, 7
            s_sub_u32 s33, s33, s35
            s_lshl_b32 s35, s3, 2
            s_sub_u32 s34, s34, s35
            """)
        for t in range(4):
            acc = 64 + 16 * t
            sc_ = 7 if t < 2 else 6
            e = t & 1
            for i in range(16): A(f"v_mul_f32 v{acc+i}, v{acc+i}, v{sc_}")
            for i in range(8): A(f"v_cvt_pk_bf16_f32 v{128+8*t+i}, v{acc+2*i}, v{acc+2*i+1}")
            for i in range(8):
                g, par = i >> 1, i & 1
                hd = 16 * e + 4 * g + par
                if MEGA:
                    if t == 0 and i == 0:
                        A("s_barrier")
                    if t < 2: A(f"ds_write_b32 v16, v{128+8*t+i} offset:{hd*512}")
                    else: A(f"ds_write_b32 v17, v{128+8*t+i} offset:{16384 + hd*512}")
                elif t < 2:
                    A(f"s_add_u32 s30, s33, {hd*8192}")
                    A(f"buffer_store_dword v{128+8*t+i}, v14, s[4:7], s30 offen")
                else:
                    A(f"s_add_u32 s30, s34, {hd*G.KVH}")
                    A(f"buffer_store_dword v{128+8*t+i}, v15, s[4:7], s30 offen")
        if MEGA:
            A.waitall(vm=False)
            A("s_barrier")
            for k in range(8):
                A(f"ds_read_b128 v[{64+4*k}:{67+4*k}], v18 offset:{k*4096}", tag=f"er{k}")
            for k in range(8):
                A.wait(f"er{k}")
                if k < 4:
                    A(f"s_add_u32 s30, s33, {k*8*8192}")
                    A(f"buffer_store_dwordx4 v[{64+4*k}:{67+4*k}], v19, s[4:7], s30 offen sc1")
                else:
                    A(f"s_add_u32 s30, s34, {(k-4)*8*G.KVH}")
                    A(f"buffer_store_dwordx4 v[{64+4*k}:{67+4*k}], v20, s[4:7], s30 offen sc1")
    fin()
    A.label(f"{L}_V")
    A.restore(L + "v")
    k1_main_w(A, 3, True, sc, do_poll)
    A(f"""
    v_and_b32 v12, 31, v0
    v_lshlrev_b32 v13, 2, v12
    s_lshl_b32 s32, s3, 7
    s_add_u32 s32, s32, {4*G.T1S}
    v_add_u32 v13, s32, v13
    ds_write_b32 v13, v6
    v_bfe_u32 v14, v0, 5, 1
    v_lshlrev_b32 v13, 4, v14
    v_add_u32 v13, s32, v13
    """)
    A.waitall(vm=False)
    for g in range(4):
        A(f"ds_read_b128 v[{16+4*g}:{19+4*g}], v13 offset:{g*32}")
    A(f"""
    s_sub_u32 s32, s27, 9
    s_mul_i32 s32, s32, 96
    v_add_u32 v12, s32, v12
    v_mul_u32_u24 v14, 304, v14
    s_and_b32 s33, s26, 7
    s_mul_i32 s33, s33, 1216
    s_add_u32 s33, s33, s31
    s_add_u32 s33, s33, 9216
    s_mov_b32 s34, {G.KVH}
    """)
    A.waitall(vm=False)
    for t in range(3):
        acc = 64 + 16 * t
        A(f"""
        v_mul_u32_u24 v13, 3641, v12
        v_lshrrev_b32 v13, 16, v13
        v_mul_u32_u24 v15, 18, v13
        v_sub_u32 v15, v12, v15
        v_mul_lo_u32 v13, v13, s34
        v_lshlrev_b32 v15, 4, v15
        v_add3_u32 v{7+t}, v13, v15, v14
        v_add_u32 v12, 32, v12
        """)
        for i in range(16): A(f"v_mul_f32 v{acc+i}, v{acc+i}, v{16+i}")
        for i in range(8): A(f"v_cvt_pk_bf16_f32 v{128+8*t+i}, v{acc+2*i}, v{acc+2*i+1}")
        for e in range(2):
            A(f"buffer_store_dwordx4 v[{128+8*t+4*e}:{128+8*t+4*e+3}], v{7+t}, s[4:7], s33 offen offset:{e*608}{ST_}")
    fin()

def k1_main_w(A, NT, swapped, sc, prefetched):
    if prefetched:
        k1_main(A, NT, swapped, sc)
    else:
        k1_main_stream(A, NT, swapped)

def k1_main_stream(A, NT, swapped):
    xreg = lambda j, ks: (256 + 4 * ks) if ks < 36 else 8
    t1 = T1(1, xreg, lambda t, j: 64 + 16 * t, 32, 8, lambda t: t, 2, swapped)
    def issue(B, c):
        for t in range(NT):
            if c < 9: dma(B, 77, t * G.T1S + c * 4096, 78, t * G.T1S + c * 4096, 1, f"c{c}", stmp=38)
            else: dma(B, 76, t * G.T1S + 36 * 1024, None, t * G.T1S + 36 * 1024, 1, f"c{c}", stmp=38)
        if c < 9:
            for q in range(4):
                B(f"s_add_u32 s30, s23, {c*4096}")
                B(f"buffer_load_dwordx4 {r(xreg(0, 4*c+q), 4)}, v1, s[4:7], s30 offen offset:{q*1024}", tag=f"x{4*c+q}")
    AHEAD = P.get("k1s_ahead", 3)
    issue(A, 0)
    stats_load(A, 1, 29, 16, 12, "")
    for c in range(1, AHEAD): issue(A, c)
    SC = Asm()
    SC.wait("st")
    stats_compute(SC, 16, 5, 6, 12)
    SC("v_cmp_gt_u32 vcc, 512, v1")
    build_xext(SC, 5, 8, 12)
    SC("v_rsq_f32 v6, v6")
    items = [(t, ks) for ks in range(37) for t in range(NT)]
    DIST = 6
    M = Asm(); marks = {}
    def pre_read(i):
        t, ks = items[i]
        if t == 0 and ks % 4 == 0:
            M.wait(f"c{ks//4}"); M("s_barrier")
        t1.read(M, i, t, ks)
    for i in range(DIST): pre_read(i)
    for i, (t, ks) in enumerate(items):
        if t == 0: marks[ks] = len(M.ins)
        if i + DIST < len(items): pre_read(i + DIST)
        M.wait(f"wf{i}", f"x{ks}")
        if i == 0: M.stamp(14)
        t1.mfmas(M, i, t, ks)
    S_ = Sched(M.ins)
    for c in range(AHEAD, 10):
        B = Asm(); issue(B, c)
        S_.release(marks[4 * (c - AHEAD)], "vm", groups_vm(B.ins), every=1)
    S_.release(marks[3], "va", groups_1(SC.ins))
    out, rest = S_.run(cap=24, vm_cost=16)
    assert not rest
    check_tags(out)
    A.ins += out
    A.stamp(15)

def gen_ks():
    name = "ks_kernel"
    A = G.begin(name)
    A("""
    s_load_dwordx16 s[64:79], s[0:1], 0
    s_load_dwordx4 s[80:83], s[0:1], 64
    s_cmp_ge_u32 s2, 256
    s_cbranch_scc1 KS_END
    """)
    G.wave_id(A, 3)
    A.waitall()
    G.srd(A, 4, 82, G.WS_USED)
    G.srd(A, 12, 80, 256)
    B = Asm()
    nj = G.k0_body(B)
    sec = ""
    for i in B.ins:
        if i.kind == "label": sec = i.text
        if i.text.startswith("buffer_store") and not sec.startswith("K0_wo") and "v[8:11]" not in i.text: i.text += " sc1"
    A.extend(B)
    A.fence()
    A.waitall()
    A.stamp(0)
    A(f"""
    s_cmp_ge_u32 s2, {nj}
    s_cbranch_scc1 KS_NOSIG
    s_barrier
    s_cmp_lg_u32 s3, 0
    s_cbranch_scc1 KS_NOSIG
    s_mov_b64 exec, 1
    v_mov_b32 v30, 0
    v_mov_b32 v31, 1
    buffer_atomic_add v31, v30, s[12:15], s19 offen
    s_mov_b64 exec, -1
    """)
    A.label("KS_NOSIG")
    A(f"""
    s_mov_b32 s42, {G.XF}
    s_mov_b32 s43, {G.ST}
    s_mov_b32 s41, 0
    """)
    k1_decode(A, "KS_END")
    A("""
    s_cmp_ge_u32 s87, 15
    s_cbranch_scc1 KS_END
    v_and_b32 v1, 63, v0
    v_lshlrev_b32 v1, 4, v1
    s_mov_b32 s24, 4
    s_cmp_eq_u32 s87, 8
    s_cselect_b32 s24, 16, s24
    s_cmp_ge_u32 s87, 9
    s_cselect_b32 s24, 3, s24
    s_add_u32 s25, s87, 16
    v_and_b32 v28, 1, v0
    v_cmp_eq_u32 vcc, 1, v28
    v_mov_b32 v30, s86
    v_mov_b32 v29, s25
    v_cndmask_b32 v30, v30, v29, vcc
    v_lshlrev_b32 v30, 2, v30
    v_mov_b32 v29, s24
    v_cndmask_b32 v29, 4, v29, vcc
    s_mov_b32 s39, 0x40000
    s_cmp_lg_u32 s3, 0
    s_cbranch_scc1 KS_GO
    """)
    A.label("KS_POLL")
    A(f"""
    buffer_load_dword v31, v30, s[12:15], 0 offen sc1
    s_waitcnt vmcnt(0)
    v_cmp_eq_u32 vcc, v29, v31
    s_nop 1
    s_cmp_eq_u64 vcc, -1
    s_cbranch_scc1 KS_GO
    s_sleep {P.get('ks_sleep', 12)}
    s_sub_u32 s39, s39, 1
    s_cmp_lg_u32 s39, 0
    s_cbranch_scc1 KS_POLL
    """)
    A.label("KS_GO")
    A("s_barrier")
    A.stamp(1)
    C = Asm()
    k1_phase(C, "K1S", 0, False)
    for i in C.ins:
        if i.text.startswith("buffer_load"):
            i.text = i.text[:-4] + " sc1 lds" if i.text.endswith(" lds") else i.text + " sc1"
    A.extend(C)
    A.label("KS_END")
    A("s_endpgm")
    G.end(A, name, 400, 256)
    return (name, 256, 256, LDS_BYTES)

def gen_k0():
    name = "k0_kernel"
    A = G.begin(name)
    A("""
    s_load_dwordx16 s[64:79], s[0:1], 0
    s_load_dwordx4 s[80:83], s[0:1], 64
    """)
    G.wave_id(A, 3)
    A.waitall()
    G.srd(A, 4, 82, G.WS_USED)
    if P.get("pf", 1):
        A("""
        s_lshr_b32 s29, s2, 3
        s_lshl_b32 s29, s29, 2
        s_add_u32 s29, s29, s3
        v_and_b32 v1, 63, v0
        v_lshlrev_b32 v1, 4, v1
        """)
        if MEGA: G.code_prefetch(A, "km_kernel", "CODE_END", 16, 29, 1, 124, nper=2, stride=72*1024)
        else: G.code_prefetch(A, "k1_kernel", "kca_kernel", 16, 29, 1, 124)
    B = Asm()
    nj = G.k0_body(B)
    for i in B.ins:
        if i.text.startswith("buffer_store_dwordx4") and "v[8:11]" not in i.text and P.get("k0_sc1", 0): i.text += " sc1"
    A.extend(B)
    A("s_endpgm")
    G.end(A, name, 128)
    return (name, nj, 256, 41984)

def gen_k1s():
    name = "k1_kernel"
    A = G.begin(name)
    A(f"""
    s_load_dwordx2 s[12:13], s[0:1], 72
    s_cmp_ge_u32 s2, 256
    s_cbranch_scc1 K1S_END
    s_mov_b32 s42, {G.XF}
    s_mov_b32 s43, {G.ST}
    s_mov_b32 s41, 0
    """)
    G.wave_id(A, 3)
    k1_decode(A, "K1S_END")
    A("""
    s_cmp_ge_u32 s87, 15
    s_cbranch_scc1 K1S_END
    v_and_b32 v1, 63, v0
    v_lshlrev_b32 v1, 4, v1
    """)
    A.waitall()
    G.srd(A, 4, 12, G.WS_USED)
    k1_phase(A, "K1S", 0, False)
    A.label("K1S_END")
    A("s_endpgm")
    G.end(A, name, 400, 256)
    return (name, 256, 256, LDS_BYTES)

def gen_chain():
    A = Asm()
    names = [("kca_kernel", 0), ("kcb_kernel", 1)]
    for i, (n, fl) in enumerate(names):
        A.raw(f".globl {n}\n.p2align 8\n.type {n},@function")
        A.label(n)
        A(f"s_mov_b32 s40, {fl}")
        A(f"s_mov_b32 s41, {fl*8192}")
        A(f"s_mov_b32 s42, {G.XF + 2*fl*G.XSZ}")
        A(f"s_mov_b32 s43, {G.ST + 2*fl*G.SSZ}")
        if i < len(names) - 1: A("s_branch CH_BODY")
    A.label("CH_BODY")
    A("""
    s_load_dwordx2 s[12:13], s[0:1], 72
    s_load_dwordx2 s[14:15], s[0:1], 56
    s_cmp_ge_u32 s2, 256
    s_cbranch_scc1 CH_END
    """)
    G.wave_id(A, 3)
    t2_decode(A)
    t2_setup(A, 18, G.OF, G.WO, 0, 1)
    k4_decode(A)
    A.waitall()
    G.srd(A, 4, 12, G.WS_USED)
    G.srd(A, 8, 14, G.S * G.D * 2)
    sl4 = lambda t: t
    NTAIL = P.get("t2_ntail", 16)
    A("s_cmp_lg_u32 s83, 0")
    A("s_cbranch_scc1 K3_N5")
    A.save("k3n5")
    wt = lambda: tile_dmas([0, 1, 2, 3], sl4, 77, 76, 78, lambda t: f"w{t}" if t < 3 else "t3")
    for NT, pfx in ((4, "K3A"), (5, "K3B")):
        if NT == 5:
            A.label("K3_N5"); A.restore("k3n5")
        X, RES, left = t2_main(A, NT, 18, pfx, 0, "", wt()[:NTAIL], None, 0)
        assert not left
        t2_store(A, NT, X, RES)
        if NT == 4: A("s_branch K3_DONE")
    A.label("K3_DONE")
    if P.get("st3"): A.stamp(14)
    A("s_lshl_b32 s24, s80, 3")
    A("s_add_u32 s24, s24, s81")
    A("s_lshl_b32 s24, s24, 2")
    A("s_add_u32 s24, s24, s41")
    NMID = P.get("t2_nmid", 4)
    assert NTAIL + NMID <= 20
    for g in wt()[NTAIL:NTAIL+NMID]: A.ins += g
    signal(A, 24, "out")
    A.stamp(1)
    for g in wt()[NTAIL+NMID:]: A.ins += g
    k4_phase(A, None)
    qt = lambda: tile_dmas([0, 1, 2, 3], sl4, 77, 76, 78, lambda t: f"q{t}")
    if SK:
        k5_phase(A, lambda t: tile_dmas([t], sl4, 77, 76, 78, lambda t: f"q{t}"), P.get("k5_nmid", 6))
    else:
        A("s_lshl_b32 s24, s85, 5")
        A("s_add_u32 s24, s24, s84")
        A("s_lshl_b32 s24, s24, 2")
        A("s_add_u32 s24, s24, s41")
        A("s_add_u32 s24, s24, 1024")
        t2_setup(A, 144, G.HF, G.W2, 1, 2)
        signal(A, 24, "hout")
        A.stamp(8)
        k1_decode(A, None)
        A("s_lshr_b32 s25, s80, 2")
        A("s_lshl_b32 s25, s25, 7")
        A("s_add_u32 s25, s25, s41")
        A("s_add_u32 s25, s25, 1024")
        WPRE = 5
        poll(A, 25, 32, True)
        A.stamp(9)
        A("s_cmp_lg_u32 s83, 0")
        A("s_cbranch_scc1 K5_N5")
        A.save("k5n5")
        qt = lambda: tile_dmas([0, 1, 2, 3], sl4, 77, 76, 78, lambda t: f"q{t}")
        for NT, pfx in ((4, "K5A"), (5, "K5B")):
            if NT == 5:
                A.label("K5_N5"); A.restore("k5n5")
            X, RES, left = t2_main(A, NT, 144, pfx, WPRE, " sc1", qt()[:NTAIL], None, None)
            assert not left
            A.stamp(10)
            A("s_cmp_lg_u32 s40, 0")
            A(f"s_cbranch_scc1 {pfx}_FINAL")
            A.save(pfx + "fin")
            t2_store(A, NT, X, RES)
            A("s_branch K5_DONE")
            A.save(pfx + "done")
            A.label(f"{pfx}_FINAL")
            A.restore(pfx + "fin")
            for t in range(NT):
                A(f"buffer_store_dwordx2 v[{RES+2*t}:{RES+2*t+1}], v29, s[8:11], s31 offen offset:{t*32}")
            A("s_endpgm")
        A.label("K5_DONE")
        A.restore("K5Bdone")
        A("s_lshl_b32 s24, s80, 3")
        A("s_add_u32 s24, s24, s81")
        A("s_lshl_b32 s24, s24, 2")
        A("s_add_u32 s24, s24, s41")
        A("s_add_u32 s24, s24, 2048")
        for g in qt()[NTAIL:NTAIL+NMID]: A.ins += g
        signal(A, 24, "out")
        A.stamp(11)
        A("s_cmp_ge_u32 s87, 15")
        A("s_cbranch_scc1 CH_END")
        for g in qt()[NTAIL+NMID:]: A.ins += g
    if P.get("pf", 1):
        A("s_lshr_b32 s29, s2, 3")
        A("s_lshl_b32 s29, s29, 2")
        A("s_add_u32 s29, s29, s3")
        G.code_prefetch(A, "k2_kernel", "CODE_END", 12, 29, 1, 248)
    k1_phase(A, "K1C", 2, True)
    A.label("CH_END")
    A("s_endpgm")
    text = finalize(A)
    first = True
    for n, fl in names:
        G.kernels.append((n, text if first else "", 512, 256, 96))
        first = False
    return [(n, 256, 256, LDS_BYTES) for n, fl in names]
```

```python
from asmlib import *
import gen as G
from chain import *
import att
SOLO = P.get("solo", 1)

def k1_join(A, L):
    A.label(f"{L}_JOIN")
    A.fence()
    if SOLO and L == "K1S":
        A("v_and_b32 v30, 7, v0")
        A(f"v_lshlrev_b32 v30, {2+FSH}, v30")
        A(f"s_mov_b32 s38, {G.FLG + ((7168 + 182*4) << FSH)}")
        spin_flags(A, "ZBRDY", 30, 31, 4, "s38", 8)
    A.waitall()
    A.stamp("kj" + L)
    A("""
    s_lshl_b32 s24, s87, 4
    s_add_u32 s24, s24, s86
    s_lshl_b32 s24, s24, 2
    s_add_u32 s24, s24, s41
    s_add_u32 s24, s24, 4096
    """)
    if P.get("q_atomic", 0):
        A("s_andn2_b32 s24, s24, 63")
    A("s_barrier")
    B = Asm(); flag_store(B, 24)
    for i in B.ins:
        if P.get("q_atomic", 0) and "buffer_store_dword" in i.text:
            i.text = i.text.replace("buffer_store_dword", "buffer_atomic_add").replace(" sc1", "")
    A.extend(B)

def wo_prefetch():
    B = Asm()
    for st in range(5):
        for t in range(5):
            B(f"s_add_u32 s30, s87, {t*18*1024 + st*4096}")
            B(f"buffer_load_dwordx4 {r(t2_buf(st, 4+t), 4)}, v1, s[4:7], s30 offen sc1", tag=f"l{st}")
    return groups_vm(B.ins)

def pre_att(A):
    t2_decode(A)
    k4_decode(A)
    A(f"""
    s_mul_i32 s87, s82, {18*1024}
    s_add_u32 s87, s87, {G.WO}
    s_add_u32 s87, s87, s78
    """)

def spin_flags(A, lab, vaddr, vdat, srd, soff, nl):
    R = A.raw
    R("    s_mov_b32 s39, 0x20000")
    R(f"    s_mov_b64 exec, {hex((1 << nl) - 1)}")
    R(f"{lab}:")
    R(f"    buffer_load_dword v{vdat}, v{vaddr}, s[{srd}:{srd+3}], {soff} offen sc1")
    R("    s_waitcnt vmcnt(0)")
    R(f"    v_cmp_ne_u32 vcc, 1, v{vdat}")
    R("    s_nop 1")
    R("    s_and_b64 exec, exec, vcc")
    R(f"    s_cbranch_scc0 {lab}_X")
    R("    s_sleep 4")
    R("    s_sub_u32 s39, s39, 1")
    R("    s_cmp_lg_u32 s39, 0")
    R(f"    s_cbranch_scc1 {lab}")
    R(f"{lab}_X:")
    R("    s_mov_b64 exec, -1")

def gen_mega():
    name = "km_kernel"
    A = G.begin(name)
    if SOLO:
        A("s_load_dwordx16 s[64:79], s[0:1], 0")
        A("s_load_dwordx4 s[80:83], s[0:1], 64")
    else:
        A("s_load_dwordx2 s[82:83], s[0:1], 72")
        A("s_load_dwordx2 s[78:79], s[0:1], 56")
    A(f"""
    s_cmp_lt_u32 s2, 256
    s_cbranch_scc1 KM_GO
    s_endpgm
    """)
    A.label("KM_GO")
    if P.get("perm"):
        A("s_and_b32 s3, s2, 7")
        A("s_lshl_b32 s3, s3, 5")
        A("s_lshr_b32 s2, s2, 3")
        A("s_or_b32 s2, s2, s3")
    A(f"""
    s_mov_b32 s40, 0
    s_mov_b32 s41, 0
    s_mov_b32 s42, {G.XF}
    s_mov_b32 s43, {G.ST}
    s_mov_b32 s100, 0
    s_mov_b32 s101, 0
    """)
    G.wave_id(A, 3)
    A.waitall()
    G.srd(A, 4, 82, G.WS_USED)
    if SOLO:
        G.srd(A, 16, 80, 256)
        A("s_mov_b32 s84, s78")
        A("s_mov_b32 s85, s79")
        B = Asm()
        nj = G.k0_body(B)
        for i in B.ins:
            if i.text.startswith("buffer_store"): i.text += " sc1"
            if i.text.startswith("s_") and " s19," in i.text: i.text = "s_nop 0"
        A.extend(B)
        A.fence()
        A.stamp("p0")
        A("""
        s_cmp_lt_u32 s2, 152
        s_cbranch_scc1 KM_NOPF
        s_lshr_b32 s29, s2, 3
        s_sub_u32 s29, s29, 19
        s_lshl_b32 s29, s29, 2
        s_add_u32 s29, s29, s3
        v_and_b32 v1, 63, v0
        v_lshlrev_b32 v1, 4, v1
        """)
        G.code_prefetch(A, "KM_NOPF", "CODE_END", 12, 29, 1, 248, nper=3, stride=52*1024)
        A.label("KM_NOPF")
        if P.get("tlb", 0):
            A("v_and_b32 v30, 63, v0")
            A("v_lshlrev_b32 v30, 21, v30")
            A("v_add_u32 v30, 0x1ff000, v30")
            A("buffer_load_dword v247, v30, s[4:7], 0 offen sc1")
        A("v_and_b32 v30, 3, v0")
        A("v_lshlrev_b32 v30, 2, v30")
        spin_flags(A, "ZRDY", 30, 31, 16, "0", 4)
        A.waitall()
        A(f"""
        s_cmp_ge_u32 s2, {nj - 1}
        s_cbranch_scc1 KM_NOSIG
        s_barrier
        s_lshl_b32 s24, s2, 2
        s_add_u32 s24, s24, 7168
        """)
        flag_store(A, 24)
        A.label("KM_NOSIG")
        G.srd(A, 8, 84, G.S * G.D * 2)
    else:
        G.srd(A, 8, 78, G.S * G.D * 2)
    k1_decode(A, None)
    A("""
    v_and_b32 v1, 63, v0
    v_lshlrev_b32 v1, 4, v1
    """)
    if SOLO:
        A(f"""
        s_lshl_b32 s24, s87, 2
        s_add_u32 s24, s24, 64
        s_mov_b32 s25, 3
        s_mul_i32 s26, s87, 3
        s_add_u32 s26, s26, {112 - 27}
        s_cmp_ge_u32 s87, 9
        s_cselect_b32 s24, s26, s24
        s_cselect_b32 s25, 2, s25
        s_cmp_eq_u32 s87, 8
        s_cselect_b32 s25, 7, s25
        s_cmp_eq_u32 s87, 15
        s_cselect_b32 s24, 104, s24
        s_cselect_b32 s25, 7, s25
        v_and_b32 v30, 7, v0
        v_min_u32 v30, s25, v30
        v_add_u32 v30, s24, v30
        s_lshl_b32 s26, s86, 2
        s_add_u32 s26, s26, s3
        v_mov_b32 v31, s26
        v_and_b32 v29, 8, v0
        v_cmp_eq_u32 vcc, 8, v29
        v_cndmask_b32 v30, v30, v31, vcc
        v_lshlrev_b32 v30, {2+FSH}, v30
        s_mov_b32 s38, {G.FLG + (7168 << FSH)}
        """)
        spin_flags(A, "PRDY", 30, 31, 4, "s38", 9)
        A.stamp("p1")
    C = Asm()
    k1_phase(C, "K1S", 0, False)
    for i in C.ins:
        if SOLO and i.text.startswith("buffer_load") and "sc1" not in i.text and not i.text.endswith(" lds"): i.text += " sc1"
    A.extend(C)
    k1_join(A, "K1S")
    A.stamp("k1e")
    pre_att(A)
    def pfc(B):
        B("s_lshr_b32 s29, s2, 3")
        B("s_lshl_b32 s29, s29, 2")
        B("s_add_u32 s29, s29, s3")
        G.code_prefetch(B, "K3_DONE", "K1C_JOIN", 12, 29, 1, 248)
    att.att_phase(A, "ATA", True, wo_prefetch, pfc if P.get("pf2", 1) else None)
    A.label("CH_K3")
    A.fence()
    sl4 = lambda t: t
    t2_setup(A, 18, G.OF, G.WO, 0, 1)
    A(f"""
    s_mul_i32 s24, s84, 9
    s_lshr_b32 s24, s24, 2
    s_lshr_b32 s25, s2, 6              ; cgp
    s_mul_i32 s25, s25, 9
    s_lshr_b32 s25, s25, 2
    s_and_b32 s26, s2, 3
    s_mul_i32 s26, s26, 18
    s_add_u32 s25, s25, s26
    s_add_u32 s25, s25, 144
    v_bfe_u32 v30, v0, 1, 2
    v_min_u32 v30, 2, v30              ; 0..2
    v_bfe_u32 v31, v0, 3, 1
    v_bfe_u32 v26, v0, 4, 1
    v_cmp_eq_u32 vcc, 1, v26
    v_mov_b32 v26, 72
    v_cndmask_b32 v26, v26, 9, vcc
    v_mul_u32_u24 v31, v31, v26
    v_add_u32 v30, v30, v31
    v_mov_b32 v31, s24
    v_mov_b32 v26, s25
    v_cndmask_b32 v31, v31, v26, vcc
    v_add_u32 v30, v30, v31
    v_lshlrev_b32 v30, 1, v30
    v_and_b32 v31, 1, v0
    v_add_u32 v30, v30, v31
    v_lshlrev_b32 v30, {2+FSH}, v30
    s_mov_b32 s25, {G.FLG + (5120 << FSH)}
    """)
    A("v_mov_b32 v26, v30")
    A.raw(" buffer_load_dword v25, v26, s[4:7], s25 offen sc1")
    A("s_waitcnt vmcnt(1)")
    A("s_mov_b64 exec, 1")
    A("buffer_store_dword v99, v98, s[4:7], s86 offen sc1")
    A("s_mov_b64 exec, -1")
    A.stamp("ate")
    wt = lambda: tile_dmas([0, 1, 2, 3], sl4, 77, 76, 78, lambda t: f"w{t}" if t < 3 else "t3")
    NPRE = 0
    NTAIL = P.get("m_ntail", 16); NMID = P.get("m_nmid", 4)
    assert NPRE + NTAIL + NMID <= 20
    A("s_lshl_b32 s24, s80, 7")
    A("s_add_u32 s24, s24, s41")
    A("s_add_u32 s24, s24, 16384")
    poll(A, 24, 32, P.get('k3_allw', 0))
    A.waitall()
    flagchk(A, "WRDY", "fw", 25, 26, 25)
    A.stamp("k3p")
    A("s_cmp_lg_u32 s83, 0")
    A("s_cbranch_scc1 K3_N5")
    A.save("k3n5")
    for NT, pfx in ((4, "K3A"), (5, "K3B")):
        if NT == 5:
            A.label("K3_N5"); A.restore("k3n5")
        X, RES, left = t2_main(A, NT, 18, pfx, 5, " sc1", wt()[NPRE:NPRE+NTAIL], "bar", None)
        t2_store(A, NT, X, RES)
        if NT == 4: A("s_branch K3_DONE")
    A.label("K3_DONE")
    A.stamp("t3")
    A("s_lshl_b32 s24, s80, 3")
    A("s_add_u32 s24, s24, s81")
    A("s_lshl_b32 s24, s24, 2")
    A("s_add_u32 s24, s24, s41")
    for g in wt()[NPRE+NTAIL:NPRE+NTAIL+NMID]: A.ins += g
    signal(A, 24, "out")
    A.stamp("k3e")
    for g in wt()[NPRE+NTAIL+NMID:]: A.ins += g
    k4_phase(A, None)
    k5_phase(A, lambda t: tile_dmas([t], sl4, 77, 76, 78, lambda t: f"q{t}"), P.get("k5_nmid", 6))
    if P.get("pf2", 1):
        A("s_lshr_b32 s29, s2, 3")
        A("s_lshl_b32 s29, s29, 2")
        A("s_add_u32 s29, s29, s3")
        G.code_prefetch(A, "K1C_JOIN", "CODE_END", 12, 29, 1, 248)
    k1_phase(A, "K1C", 0, True)
    k1_join(A, "K1C")
    A.stamp("k1e2")
    pre_att(A)
    att.att_phase(A, "ATB", False, wo_prefetch)
    A("s_branch CH_K3")
    A.label("CH_END")
    A("s_endpgm")
    for i in A.ins:
        if i.text.endswith(" lds") and "sc1" not in i.text: i.text = i.text[:-4] + " sc1 lds"
    G.end(A, name, 512, 256, ns=102)
    return (name, 256, 256, LDS_BYTES)
```

```python
from asmlib import *
import gen as G
LOG2E = 1.4426950408889634

def stats_load(A, nrb, s_row_base, vdst, vtmp, sc=''):
    A(f"v_and_b32 v{vtmp}, 15, v0")
    A(f"v_lshlrev_b32 v{vtmp}, 3, v{vtmp}")
    A(f"v_bfe_u32 v{vtmp+1}, v0, 4, 1")
    A(f"v_lshlrev_b32 v{vtmp+1}, 10, v{vtmp+1}")
    A(f"v_add_u32 v{vtmp}, v{vtmp}, v{vtmp+1}")
    for j in range(nrb):
        for q in range(8):
            A(f"buffer_load_dwordx2 v[{vdst+16*j+2*q}:{vdst+16*j+2*q+1}], v{vtmp}, s[4:7], s{s_row_base} offen offset:{j*2048+q*128}{sc}", tag="st")

def stats_compute(A, b, vmean, vve, t):
    A(f"""
    v_add_f32 v{t}, v{b}, v{b+4}
    v_add_f32 v{t+1}, v{b+2}, v{b+6}
    v_add_f32 v{t}, v{t}, v{b+8}
    v_add_f32 v{t+1}, v{t+1}, v{b+10}
    v_add_f32 v{t}, v{t}, v{b+12}
    v_add_f32 v{t+1}, v{t+1}, v{b+14}
    v_mul_f32 v{t}, {hex(G.f32(64/576))}, v{t}
    v_mul_f32 v{t+1}, {hex(G.f32(80/576))}, v{t+1}
    v_add_f32 v{vmean}, v{t}, v{t+1}
    v_mov_b32 v{t}, 0
    v_mov_b32 v{t+1}, 0
    """)
    for p in range(8):
        A(f"v_sub_f32 v{b+2*p}, v{b+2*p}, v{vmean}")
        A(f"v_fmac_f32 v{t+(p&1)}, v{b+2*p}, v{b+2*p}")
    A(f"v_mul_f32 v{t}, {hex(G.f32(64.0))}, v{t}")
    A(f"v_mul_f32 v{t+1}, {hex(G.f32(80.0))}, v{t+1}")
    A(f"v_add_f32 v{t}, v{t}, v{t+1}")
    for p in range(8):
        A(f"v_add_f32 v{t}, v{t}, v{b+2*p+1}")
    A(f"v_mov_b32 v{t+1}, {hex(G.f32(1e-5))}")
    A(f"v_mov_b32 v{vve}, {hex(G.f32(1/576))}")
    A(f"v_fma_f32 v{vve}, v{t}, v{vve}, v{t+1}")

def build_xext(A, vmean, dst, t):
    A(f"""
    v_cvt_pk_bf16_f32 v{t}, v{vmean}, v{vmean}
    v_lshlrev_b32 v{t}, 16, v{t}
    v_sub_f32 v{t+2}, v{vmean}, v{t}
    v_cvt_pk_bf16_f32 v{t+1}, v{t+2}, v{t+2}
    v_lshlrev_b32 v{t+1}, 16, v{t+1}
    v_sub_f32 v{t+2}, v{t+2}, v{t+1}
    v_cvt_pk_bf16_f32 v{dst}, v{t}, v{t}
    v_cvt_pk_bf16_f32 v{dst+1}, v{t+1}, v{t}
    v_cvt_pk_bf16_f32 v{dst+2}, v{t+1}, v{t+2}
    v_mov_b32 v{dst+3}, 0
    v_cndmask_b32 v{dst}, 0, v{dst}, vcc
    v_cndmask_b32 v{dst+1}, 0, v{dst+1}, vcc
    v_cndmask_b32 v{dst+2}, 0, v{dst+2}, vcc
    """)

def dma(A, s_src, src_off, s_ldsw, lds_off, vlane, tag, stmp=30):
    A(f"s_add_u32 s{stmp}, s{s_src}, {src_off}")
    if s_ldsw is None:
        A(f"s_mov_b32 m0, {lds_off}")
    else:
        A(f"s_add_u32 m0, s{s_ldsw}, {lds_off}")
    A(f"buffer_load_dwordx4 v{vlane}, s[4:7], s{stmp} offen lds", tag=tag)

class T1:
    def __init__(self, nrb, xreg, accreg, wring, R, slot_of, vldsaddr, swapped=False):
        self.nrb = nrb; self.xreg = xreg; self.accreg = accreg; self.wring = wring; self.R = R
        self.slot_of = slot_of; self.vl = vldsaddr; self.swapped = swapped
    def read(self, A, i, tile, ks):
        off = self.slot_of(tile) * G.T1S + ks * 1024
        w = self.wring + 4 * (i % self.R)
        win = off >> 16
        A(f"ds_read_b128 v[{w}:{w+3}], v{self.vl + win} offset:{off & 0xffff}", tag=f"wf{i}")
    def mfmas(self, A, i, tile, ks):
        w = self.wring + 4 * (i % self.R)
        for j in range(self.nrb):
            acc = self.accreg(tile, j)
            x = self.xreg(j, ks)
            c = "0" if ks == 0 else r(acc, 16)
            if self.swapped:
                A(f"v_mfma_f32_32x32x16_bf16 {r(acc,16)}, {r(x,4)}, v[{w}:{w+3}], {c}")
            else:
                A(f"v_mfma_f32_32x32x16_bf16 {r(acc,16)}, v[{w}:{w+3}], {r(x,4)}, {c}")
```

```python
import sys, math, struct, os, json
from asmlib import *

NAME = "interleave_layers__softmax_full_mha__glu_gated_swiglu__prompt"
S, D, H, DH, F = 2048, 576, 32, 18, 4608

def al(x): return (x + 4095) // 4096 * 4096
off = 0
def region(n):
    global off
    o = off; off = al(off + n); return o
XSZ = 64 * 36 * 1024
SSZ = 2048 * 64
XF  = region(4 * XSZ)
ST  = region(4 * SSZ)
FLG = region(1 << 20)
LB0 = off
QM  = region(32 * 64 * 1024)
QE  = region(32 * 64 * 128)
KVH = 151552
KVG = 18944
KV  = region(32 * KVH + 8192)
REUSE = json.loads(os.environ.get("GP", "{}")).get("reuse", 1)
if REUSE:
    LBS = off - LB0; region(LBS)
OF  = region(128 * 18 * 1024)
OE  = region(32 * 2048 * 4)
HF  = region(128 * 144 * 1024)
PARTSZ = 64 * 4 * 3 * 4 * 3072
PART = region(PARTSZ + 65536)
if not REUSE:
    LBS = off - LB0
    region(LBS)
T1S = 37 * 1024
WQ  = region(54 * T1S)
W13 = region(288 * T1S)
WO  = region(36 * 18 * 1024)
W2  = region(36 * 144 * 1024)
WS_USED = off

def f32(x): return struct.unpack("<I", struct.pack("<f", x))[0]

import os, json
P = json.loads(os.environ.get("GP", "{}"))
kernels = []
launches = []

def begin(name):
    A = Asm()
    A.raw(f".globl {name}\n.p2align 8\n.type {name},@function")
    A.label(name)
    return A

def end(A, name, nv, acc=None, ns=96):
    acc = acc if acc is not None else (nv + 3) // 4 * 4
    kernels.append((name, finalize(A), nv, acc, ns))

def srd(A, d, lo, nbytes):
    A(f"""
    s_mov_b32 s{d}, s{lo}
    s_and_b32 s{d+1}, s{lo+1}, 0xffff
    s_mov_b32 s{d+2}, {nbytes}
    s_mov_b32 s{d+3}, 0x00020000
    """)

def wave_id(A, sreg, vtmp=1):
    A(f"v_lshrrev_b32 v{vtmp}, 6, v0")
    A(f"v_readfirstlane_b32 s{sreg}, v{vtmp}")

_pf = [0]
def code_prefetch(A, start, endl, sd, s_idx, vlane16, vdst, nper=1, stride=262144):
    lab = f"PF{_pf[0]}"; _pf[0] += 1
    A(f"s_getpc_b64 s[{sd}:{sd+1}]")
    A.label(lab)
    A(f"s_add_u32 s{sd}, s{sd}, {start}-{lab}")
    A(f"s_addc_u32 s{sd+1}, s{sd+1}, 0")
    A(f"s_and_b32 s{sd+1}, s{sd+1}, 0xffff")
    A(f"s_mov_b32 s{sd+2}, {endl}-{start}")
    A(f"s_mov_b32 s{sd+3}, 0x00020000")
    A(f"s_lshl_b32 s{s_idx}, s{s_idx}, 10")
    for i in range(nper):
        A(f"buffer_load_dwordx4 v[{vdst}:{vdst+3}], v{vlane16}, s[{sd}:{sd+3}], s{s_idx} offen", tag="pf")
        if i + 1 < nper: A(f"s_add_u32 s{s_idx}, s{s_idx}, {stride}")

def k0_units(A, nunits, rowstride, fA, fB, fC, D1, D2, unit_src, unit_dst, colsum, ext_dst=None, row_mode=None, maskq=False):
    A("""
    v_and_b32 v1, 63, v0
    v_lshrrev_b32 v2, 5, v1          ; g>>1
    v_lshlrev_b32 v2, 3, v2          ; 8*(g>>1)
    v_bfe_u32 v3, v1, 2, 2           ; t>>2
    v_add_u32 v2, v2, v3             ; kk (r=0)
    """)
    if row_mode == "woext":
        A("""
        v_lshrrev_b32 v3, 1, v2
        v_mul_u32_u24 v3, 18, v3
        v_and_b32 v2, 1, v2
        v_add_u32 v2, v2, v3
        """)
        r1add = 36 * rowstride
    else:
        r1add = 4 * rowstride
    A(f"s_mov_b32 s22, {rowstride}")
    A("v_mul_lo_u32 v2, v2, s22")
    A(f"""
    v_bfe_u32 v3, v1, 4, 1
    v_mul_u32_u24 v3, {2*fA}, v3
    v_add_u32 v2, v2, v3
    v_and_b32 v3, 1, v1
    v_mul_u32_u24 v3, {2*fB}, v3
    v_add_u32 v2, v2, v3
    v_bfe_u32 v3, v1, 1, 1
    v_mul_u32_u24 v3, {2*fC}, v3
    v_add_u32 v2, v2, v3
    v_add_u32 v3, {r1add}, v2
    """)
    A(f"""
    v_bfe_u32 v4, v1, 4, 1
    s_mov_b32 s22, {D1}
    v_mul_lo_u32 v4, v4, s22
    v_and_b32 v5, 15, v1
    v_lshlrev_b32 v5, 4, v5
    v_add_u32 v4, v4, v5
    v_lshrrev_b32 v5, 5, v1
    v_mul_u32_u24 v5, {D2}, v5
    v_add_u32 v4, v4, v5
    """)
    if maskq:
        A("""
        v_bfe_u32 v5, v1, 3, 2
        v_cmp_eq_u32 vcc, s25, v5
        v_mov_b32 v5, 0x7ffffff0
        v_cndmask_b32 v4, v5, v4, vcc
        """)
    A("""
    s_mul_i32 s22, s3, 9216
    v_lshlrev_b32 v5, 3, v1
    v_add_u32 v5, s22, v5
    v_mov_b32 v6, 0
    s_mov_b32 s23, 0x3f803f80
    """)
    for u in range(nunits):
        A(f"s_add_u32 s22, s20, {unit_src(u)}")
        A(f"buffer_load_dwordx2 v[{16+4*u}:{17+4*u}], v2, s[8:11], s22 offen", tag=f"ld{u}")
        A(f"buffer_load_dwordx2 v[{18+4*u}:{19+4*u}], v3, s[8:11], s22 offen", tag=f"ld{u}")
    for u in range(nunits):
        A.wait(f"ld{u}")
        A(f"ds_write_b64 v5, v[{16+4*u}:{17+4*u}] offset:{u*1024}", tag=f"w{u}")
        A(f"ds_write_b64 v5, v[{18+4*u}:{19+4*u}] offset:{u*1024+512}", tag=f"w{u}")
    for u in range(nunits):
        A.wait(f"w{u}")
        A(f"ds_read_b64_tr_b16 v[{56+4*u}:{57+4*u}], v5 offset:{u*1024}", tag=f"r{u}")
        A(f"ds_read_b64_tr_b16 v[{58+4*u}:{59+4*u}], v5 offset:{u*1024+512}", tag=f"r{u}")
    for u in range(nunits):
        A.wait(f"r{u}")
        A(f"s_add_u32 s22, s21, {unit_dst(u)}")
        A(f"buffer_store_dwordx4 v[{56+4*u}:{59+4*u}], v4, s[4:7], s22 offen")
        if colsum:
            for j in range(4):
                A(f"v_dot2_f32_bf16 v6, v{56+4*u+j}, s23, v6")
    if colsum:
        A("""
        s_lshl_b32 s22, s3, 8
        v_lshlrev_b32 v7, 2, v1
        v_add_u32 v7, s22, v7
        s_nop 2
        ds_write_b32 v7, v6 offset:40960
        """)
        A.waitall(vm=False)
        A("s_barrier")
        A("s_cmp_lg_u32 s3, 0")
        A("s_cbranch_scc1 K0_END")
        A("""
        v_and_b32 v7, 31, v1
        v_lshlrev_b32 v7, 2, v7
        """)
        for j in range(8):
            A(f"ds_read_b32 v{8+j}, v7 offset:{40960 + j*128}")
        A.waitall(vm=False)
        A("""
        v_add_f32 v8, v8, v9
        v_add_f32 v10, v10, v11
        v_add_f32 v12, v12, v13
        v_add_f32 v14, v14, v15
        v_add_f32 v8, v8, v10
        v_add_f32 v12, v12, v14
        v_add_f32 v8, v8, v12
        v_sub_f32 v8, 0, v8               ; c = -colsum
        v_cvt_pk_bf16_f32 v9, v8, v8
        v_lshlrev_b32 v9, 16, v9          ; c1
        v_sub_f32 v8, v8, v9
        v_cvt_pk_bf16_f32 v10, v8, v8
        v_lshlrev_b32 v10, 16, v10        ; c2
        v_sub_f32 v11, v8, v10
        v_cvt_pk_bf16_f32 v12, v9, v10
        v_cvt_pk_bf16_f32 v13, v9, v11
        v_cvt_pk_bf16_f32 v14, v10, v9
        v_mov_b32 v15, 0
        v_cmp_gt_u32 vcc, 32, v1
        v_cndmask_b32 v12, 0, v12, vcc
        v_cndmask_b32 v13, 0, v13, vcc
        v_cndmask_b32 v14, 0, v14, vcc
        """)
        A(f"s_add_u32 s22, s21, {ext_dst}")
        A("buffer_store_dwordx4 v[12:15], v4, s[4:7], s22 offen")
    A("s_branch K0_END")

def k0_body(A):
    A("s_mov_b32 s19, 252")
    jobs = [("x", 64), ("qkm", 32), ("qke", 16), ("v", 18), ("wom", 18), ("woe", 2)]
    SIDE = P.get("side", 1)
    SOLO = P.get("solo", 1) and P.get("mega", 1)
    if SOLO: jobs += [("ones", 32), ("zero", 8), ("zeroa", 1)]
    if not SIDE: jobs += [("w1", 144), ("w3", 144), ("w2", 144)]
    base = 0
    A("s_mov_b32 s24, s2")
    for jn, cnt in jobs:
        A(f"s_cmp_lt_u32 s24, {cnt}")
        A(f"s_cbranch_scc1 K0_{jn}")
        A(f"s_sub_u32 s24, s24, {cnt}")
        base += cnt
    A("s_branch K0_END")
    njobs = base
    A.label("K0_x")
    A("s_lshr_b32 s19, s24, 2")
    A("s_lshl_b32 s19, s19, 2")
    srd(A, 8, 64, S * D * 2)
    A("""
    v_and_b32 v1, 63, v0
    v_and_b32 v2, 31, v1
    v_mul_u32_u24 v2, 1152, v2
    v_lshrrev_b32 v3, 5, v1
    v_lshlrev_b32 v3, 4, v3
    v_add_u32 v2, v2, v3
    v_lshlrev_b32 v4, 4, v1
    s_mul_i32 s20, s24, 36864          ; rb*32*1152
    s_mul_i32 s22, s3, 288
    s_add_u32 s20, s20, s22
    s_mul_i32 s21, s24, 36864          ; rb*36*1024
    s_mul_i32 s22, s3, 9216
    s_add_u32 s21, s21, s22
    """)
    A(f"s_add_u32 s21, s21, {XF}")
    for u in range(9):
        A(f"buffer_load_dwordx4 v[{16+4*u}:{19+4*u}], v2, s[8:11], s20 offen offset:{u*32}", tag=f"x{u}")
    for u in range(9):
        A.wait(f"x{u}")
        A(f"s_add_u32 s22, s21, {u*1024}")
        A(f"buffer_store_dwordx4 v[{16+4*u}:{19+4*u}], v4, s[4:7], s22 offen")
        for j in range(4):
            A(f"v_lshlrev_b32 v{56+8*u+2*j}, 16, v{16+4*u+j}")
            A(f"v_and_b32 v{57+8*u+2*j}, 0xffff0000, v{16+4*u+j}")
    for p, (lo, hi, n) in enumerate([(56, 88, 64), (88, 128, 80)]):
        sm = 6 + 2 * p
        A(f"v_add_f32 v{sm}, v{lo}, v{lo+1}")
        for i in range(lo + 2, hi): A(f"v_add_f32 v{sm}, v{sm}, v{i}")
        A(f"v_mov_b32 v10, v{sm}")
        A(f"v_permlane32_swap_b32 v{sm}, v10")
        A(f"v_add_f32 v{sm}, v{sm}, v10")
        A(f"v_mul_f32 v{sm}, {hex(f32(1.0/n))}, v{sm}")
        A(f"v_mov_b32 v{sm+1}, 0")
        for i in range(lo, hi):
            A(f"v_sub_f32 v{i}, v{i}, v{sm}")
            A(f"v_fmac_f32 v{sm+1}, v{i}, v{i}")
        A(f"v_mov_b32 v10, v{sm+1}")
        A(f"v_permlane32_swap_b32 v{sm+1}, v10")
        A(f"v_add_f32 v{sm+1}, v{sm+1}, v10")
    A(f"""
    v_and_b32 v2, 15, v1
    v_lshlrev_b32 v2, 3, v2
    v_bfe_u32 v3, v1, 4, 1
    v_lshlrev_b32 v3, 10, v3
    v_add_u32 v2, v2, v3
    s_lshl_b32 s22, s24, 11
    s_lshl_b32 s23, s3, 8
    s_add_u32 s22, s22, s23
    s_add_u32 s22, s22, {ST}
    buffer_store_dwordx2 v[6:7], v2, s[4:7], s22 offen
    buffer_store_dwordx2 v[8:9], v2, s[4:7], s22 offen offset:128
    s_branch K0_END
    """)
    T1src = lambda rs: (lambda u: u * 16 * rs)
    T1dst = lambda u: u * 1024
    A.label("K0_qkm")
    A("s_lshr_b32 s19, s24, 2")
    A("s_lshl_b32 s19, s19, 2")
    A("s_add_u32 s19, s19, 64")
    srd(A, 8, 66, D * 3 * D * 2)
    def ones_code(zero):
        A(f"""
        v_lshrrev_b32 v1, 5, v0
        v_mul_u32_u24 v1, {KVG}, v1
        v_and_b32 v2, 31, v0
        v_mul_u32_u24 v2, 304, v2
        v_add_u32 v1, v1, v2
        s_mul_i32 s22, s24, {KVH}
        s_add_u32 s22, s22, {KV + 9216 + 288}
        v_mov_b32 v8, 0x3f803f80
        v_mov_b32 v9, 0x3f803f80
        v_mov_b32 v10, 0x3f803f80
        v_mov_b32 v11, 0x3f803f80
        buffer_store_dwordx4 v[8:11], v1, s[4:7], s22 offen
        s_add_u32 s22, s22, {LBS}
        buffer_store_dwordx4 v[8:11], v1, s[4:7], s22 offen
        """)
        if zero: A(f"""
        v_lshlrev_b32 v2, {2 + P.get("fsh", 5)}, v0
        v_mov_b32 v12, 0
        s_lshl_b32 s22, s24, {10 + P.get("fsh", 5)}
        s_add_u32 s22, s22, {FLG}
        buffer_store_dword v12, v2, s[4:7], s22 offen
        """)
    if not SOLO: ones_code(True)
    A(f"""
    s_lshr_b32 s22, s24, 4
    s_mul_i32 s20, s22, 1152
    s_and_b32 s23, s24, 15
    s_mul_i32 s23, s23, 72
    s_add_u32 s20, s20, s23
    s_mul_i32 s23, s3, {9*16*3456}
    s_add_u32 s20, s20, s23
    s_mul_i32 s21, s24, {T1S}
    s_mul_i32 s23, s3, 9216
    s_add_u32 s21, s21, s23
    s_add_u32 s21, s21, {WQ}
    """)
    k0_units(A, 9, 3456, 20, 8, 4, 256, 512, T1src(3456), T1dst, True, 36 * 1024)
    A.label("K0_qke")
    srd(A, 8, 66, D * 3 * D * 2)
    A(f"""
    s_mul_i32 s20, s24, {2*72}
    s_add_u32 s20, s20, 32
    s_mul_i32 s23, s3, {9*16*3456}
    s_add_u32 s20, s20, s23
    s_and_b32 s25, s24, 3
    s_lshr_b32 s21, s24, 2
    s_mul_i32 s21, s21, {T1S}
    s_mov_b32 s19, {4*(16+8)}
    s_mul_i32 s23, s3, 9216
    s_add_u32 s21, s21, s23
    s_add_u32 s21, s21, {WQ + 32*T1S}
    """)
    k0_units(A, 9, 3456, 0, 36, 0, 256, 512, T1src(3456), T1dst, True, 36 * 1024, maskq=True)
    A.label("K0_v")
    A("s_mul_i32 s19, s24, 21846")
    A("s_lshr_b32 s19, s19, 16")
    A("s_lshl_b32 s19, s19, 2")
    A(f"s_add_u32 s19, s19, {4*(16+9)}")
    srd(A, 8, 66, D * 3 * D * 2)
    A(f"""
    s_lshl_b32 s20, s24, 6
    s_add_u32 s20, s20, 2304
    s_mul_i32 s23, s3, {9*16*3456}
    s_add_u32 s20, s20, s23
    s_mul_i32 s21, s24, {T1S}
    s_mul_i32 s23, s3, 9216
    s_add_u32 s21, s21, s23
    s_add_u32 s21, s21, {WQ + 36*T1S}
    """)
    k0_units(A, 9, 3456, 16, 4, 8, 256, 512, T1src(3456), T1dst, True, 36 * 1024)
    for nm, ptr, add in (() if SIDE else (("w1", 72, 0), ("w3", 74, 256))):
        A.label(f"K0_{nm}")
        srd(A, 8, ptr, D * F * 2)
        A(f"""
        s_lshl_b32 s20, s24, 6
        s_mul_i32 s23, s3, {9*16*9216}
        s_add_u32 s20, s20, s23
        s_mul_i32 s21, s24, {2*T1S}
        s_mul_i32 s23, s3, 9216
        s_add_u32 s21, s21, s23
        s_add_u32 s21, s21, {W13 + add}
        """)
        k0_units(A, 9, 9216, 16, 8, 4, T1S, 512, T1src(9216), T1dst, True, 36 * 1024)
    if not SIDE:
        A.label("K0_w2")
        srd(A, 8, 76, D * F * 2)
        A(f"""
        s_mul_i32 s22, s24, 3641
        s_lshr_b32 s22, s22, 16             ; seg = j/18
        s_mul_i32 s23, s22, 18
        s_sub_u32 s23, s24, s23             ; strip
        s_mul_i32 s22, s22, 36
        s_mul_i32 s25, s3, 9
        s_add_u32 s22, s22, s25             ; U0
        s_mul_i32 s20, s22, {16*1152}
        s_lshl_b32 s25, s23, 6
        s_add_u32 s20, s20, s25
        s_lshl_b32 s21, s22, 9              ; U0*512
        s_mul_i32 s25, s23, {2*144*1024}
        s_add_u32 s21, s21, s25
        s_add_u32 s21, s21, {W2}
        """)
        k0_units(A, 9, 1152, 16, 4, 8, 144 * 1024, 256, lambda u: u * 16 * 1152, lambda u: u * 512, False)
    A.label("K0_wom")
    srd(A, 8, 68, D * D * 2)
    A(f"""
    s_mul_i32 s20, s3, {8*18*1152}
    s_lshl_b32 s25, s24, 6
    s_add_u32 s20, s20, s25
    s_lshl_b32 s21, s3, 12
    s_mul_i32 s25, s24, {2*18*1024}
    s_add_u32 s21, s21, s25
    s_add_u32 s21, s21, {WO}
    """)
    k0_units(A, 8, 1152, 16, 4, 8, 18 * 1024, 256, lambda u: u * 18 * 1152, lambda u: u * 512, False)
    A.label("K0_woe")
    srd(A, 8, 68, D * D * 2)
    A(f"""
    s_mul_i32 s20, s3, {144*1152}
    s_add_u32 s20, s20, {16*1152}
    s_mul_i32 s25, s24, {9*64}
    s_add_u32 s20, s20, s25
    s_lshl_b32 s21, s3, 9
    s_add_u32 s21, s21, {WO + 32*512}
    s_mul_i32 s25, s24, {9*2*18*1024}
    s_add_u32 s21, s21, s25
    """)
    k0_units(A, 9, 1152, 16, 4, 8, 18 * 1024, 256, lambda u: u * 64, lambda u: u * 2 * 18 * 1024, False, row_mode="woext")
    if SOLO:
        A.label("K0_ones")
        ones_code(False)
        A("s_branch K0_END")
        A.label("K0_zero")
        A(f"""
        v_lshlrev_b32 v2, {2 + P.get("fsh", 5)}, v0
        v_mov_b32 v12, 0
        s_lshl_b32 s22, s24, {12 + P.get("fsh", 5)}
        s_add_u32 s22, s22, {FLG}
        """)
        for k in range(4):
            if k == 3:
                A("s_cmp_eq_u32 s24, 1")
                A("s_cselect_b32 s22, 0x7fff0000, s22")
            A("buffer_store_dword v12, v2, s[4:7], s22 offen")
            A(f"s_add_u32 s22, s22, {1 << (10 + P.get('fsh', 5))}")
        A("s_branch K0_END")
        A.label("K0_zeroa")
        A(f"""
        v_lshlrev_b32 v2, {2 + P.get("fsh", 5)}, v0
        v_mov_b32 v12, 0
        s_mov_b32 s22, {FLG + (7168 << P.get("fsh", 5))}
        buffer_store_dword v12, v2, s[4:7], s22 offen
        s_waitcnt vmcnt(0)
        s_lshl_b32 s22, s3, 2
        v_mov_b32 v12, 1
        v_mov_b32 v2, 0
        s_mov_b64 exec, 1
        buffer_store_dword v12, v2, s[16:19], s22 offen
        s_mov_b64 exec, -1
        """)
    A.label("K0_END")
    return njobs

def emit(path):
    hdr = open(f"cdna_kernels/{NAME}.s.ref").read().split("; Override launch")[0]
    out = hdr
    for n, g, b, lds in launches:
        out += f"; @launch kernel={n} grid=({g},1,1) block=({b},1,1) lds={lds}\n"
    out += '.amdgcn_target "amdgcn-amd-amdhsa--gfx950"\n.text\n'
    for n, text, nv, acc, ns in kernels:
        out += "\n".join((" " + l.split(";")[0].strip()) if l.startswith(" ") else l for l in text.split("\n"))
    out += '.section .rodata,"a"\n'
    for n, text, nv, acc, ns in kernels:
        if n is None: continue
        out += f""".p2align 6
.amdhsa_kernel {n}
  .amdhsa_next_free_vgpr {nv}
  .amdhsa_next_free_sgpr {ns}
  .amdhsa_accum_offset {acc}
  .amdhsa_group_segment_fixed_size 0
  .amdhsa_kernarg_size 80
  .amdhsa_user_sgpr_count 2
  .amdhsa_user_sgpr_kernarg_segment_ptr 1
  .amdhsa_system_sgpr_workgroup_id_x 1
.end_amdhsa_kernel
"""
    open(path, "w").write(out)

if __name__ == "__main__":
    import gen as G2
    G2.main()
def main():
    import k2, chain
    if P.get("mega", 1):
        import mega
        if P.get("solo", 1):
            launches.append(mega.gen_mega())
        else:
            L0 = chain.gen_k0(); LM = mega.gen_mega()
            launches.extend([L0, LM])
        kernels.append((None, "CODE_END:\n    s_endpgm\n", 0, 0, 0))
    else:
        L0 = chain.gen_k0(); L1 = chain.gen_k1s()
        L2a = k2.gen_k2("k2a_kernel", True)
        CA, CB = chain.gen_chain()
        L2 = k2.gen_k2("k2_kernel", False)
        kernels.append((None, "CODE_END:\n    s_endpgm\n", 0, 0, 0))
        launches.extend([L0, L1, L2a, CA, L2, CB])
    emit(sys.argv[1] if len(sys.argv) > 1 else f"cdna_kernels/{NAME}.s")
```

```python
import re

class I:
    __slots__ = ("text", "kind", "tag", "wait", "meta")
    def __init__(self, text, kind="", tag=None, wait=None):
        self.text = text; self.kind = kind; self.tag = tag; self.wait = wait

def v(n, c=1):
    return f"v{n}" if c == 1 else f"v[{n}:{n+c-1}]"
def a(n, c=1):
    return f"a{n}" if c == 1 else f"a[{n}:{n+c-1}]"
def s(n, c=1):
    return f"s{n}" if c == 1 else f"s[{n}:{n+c-1}]"
def r(n, c=1):
    if n >= 256:
        return a(n - 256, c)
    assert n + c <= 256
    return v(n, c)

_reg_re = re.compile(r"^-?\|?([vas])(?:(\d+)|\[(\d+):(\d+)\])\|?$")
def parse_reg(tok):
    tok = tok.strip()
    m = re.match(r"^(?:neg|abs)\((.*)\)$", tok)
    if m: tok = m.group(1)
    if tok == "vcc": return [("s", 106), ("s", 107)]
    if tok == "exec": return [("s", 126), ("s", 127)]
    if tok == "m0": return [("s", 124)]
    m = _reg_re.match(tok)
    if not m: return []
    f = m.group(1)
    if m.group(2) is not None:
        lo = hi = int(m.group(2))
    else:
        lo, hi = int(m.group(3)), int(m.group(4))
    return [(f, i) for i in range(lo, hi + 1)]

TRANS = ("v_exp_f32", "v_log_f32", "v_rcp_f32", "v_rsq_f32", "v_sqrt_f32", "v_sin_f32", "v_cos_f32")
def analyze(text):
    t = text.split(";")[0].strip()
    parts = t.split(None, 1)
    op = parts[0]
    ops = []
    mods = []
    if len(parts) > 1:
        depth = 0; cur = ""
        for ch in parts[1] + ",":
            if ch in "[(": depth += 1
            elif ch in "])": depth -= 1
            if ch == "," and depth == 0:
                p = cur.split()
                if p:
                    ops.append(p[0]); mods += p[1:]
                cur = ""
            else:
                cur += ch
    R = [parse_reg(o) for o in ops]
    d = dict(op=op, wr=set(), rd=set(), cls="other", mods=mods, passes=0, srcC=set(), srcAB=set(), D=None)
    def rd(*idx):
        for i in idx:
            if i < len(R): d["rd"].update(R[i])
    def wr(*idx):
        for i in idx:
            if i < len(R): d["wr"].update(R[i])
    n = len(R)
    if op.startswith("v_mfma"):
        d["cls"] = "mfma"
        wr(0); rd(1, 2, 3)
        d["srcC"] = set(R[3]); d["srcAB"] = set(R[1]) | set(R[2]); d["D"] = tuple(R[0]); d["C"] = tuple(R[3])
        d["passes"] = 8 if "32x32x16" in op or "32x32x8" in op else (4 if "16x16x32" in op or "16x16x16" in op else 16)
    elif op.startswith("v_cmp"):
        d["cls"] = "valu"; wr(0); rd(*range(1, n))
    elif op.startswith("v_readfirstlane") or op.startswith("v_readlane"):
        d["cls"] = "valu"; d["rdlane"] = True; wr(0); rd(*range(1, n))
    elif op.startswith("v_permlane"):
        d["cls"] = "valu"; d["perml"] = True; wr(0, 1); rd(0, 1)
    elif op.startswith("v_"):
        d["cls"] = "valu"
        wr(0); rd(*range(1, n))
        if op.startswith(("v_fmac", "v_dot2c", "v_pk_fmac")) or "UNUSED_PRESERVE" in t: rd(0)
        if op.startswith(("v_add_co", "v_sub_co", "v_addc_co")): wr(1)
        if op.startswith("v_cndmask") and n == 3: d["rd"].update(parse_reg("vcc"))
        if op.startswith(TRANS): d["trans"] = True
        if any(m.startswith(("row_", "quad_perm", "wave_")) for m in mods): d["dpp"] = True
    elif op.startswith("ds_read") or op.startswith("ds_bpermute") or op.startswith("ds_swizzle"):
        d["cls"] = "ds"; wr(0); rd(*range(1, n))
    elif op.startswith("ds_"):
        d["cls"] = "ds"; rd(*range(n))
    elif op.startswith("buffer_load") or op.startswith("global_load"):
        d["cls"] = "vmem"
        if "lds" in mods or "_lds_" in op:
            rd(*range(n)); d["rd"].update(parse_reg("m0")); d["ldsdma"] = True
        else:
            wr(0); rd(*range(1, n))
    elif op.startswith("buffer_") or op.startswith("global_"):
        d["cls"] = "vmem"; rd(*range(n))
        if ("x4" in op or "x3" in op) and "store" in op:
            d["widestore"] = set(R[0]) if op.startswith("buffer") else set(R[1])
    elif op.startswith("s_"):
        d["cls"] = "salu"
        if op.startswith(("s_cmp", "s_cbranch", "s_branch", "s_waitcnt", "s_barrier", "s_nop", "s_endpgm", "s_setprio", "s_sleep", "s_bitcmp", "s_setpc")):
            rd(*range(n))
        else:
            wr(0); rd(*range(1, n))
            if "saveexec" in op: d["wr"].update(parse_reg("exec"))
    return d

def states_of(text):
    t = text.strip()
    m = re.match(r"s_nop\s+(\d+)", t)
    if m: return int(m.group(1)) + 1
    return 1

def need_states(p, c):
    need = 0
    pw = p["wr"]
    vw = {x for x in pw if x[0] in "va"}
    sw = {x for x in pw if x[0] == "s"}
    if p["cls"] == "valu":
        if c["cls"] == "mfma" and vw & c["rd"]: need = max(need, 2)
        if c.get("perml") and vw & c["rd"]: need = max(need, 2)
        if c.get("dpp") and vw & c["rd"]: need = max(need, 2)
        if c.get("rdlane") and vw & c["rd"]: need = max(need, 1)
        if p.get("trans") and c["cls"] in ("valu", "mfma") and not c.get("trans") and vw & (c["rd"]): need = max(need, 1)
        if p.get("trans") and c["cls"] in ("vmem", "ds") and vw & c["rd"]: need = max(need, 1)
        if sw:
            if c["cls"] == "vmem" and sw & c["rd"]: need = max(need, 5)
            if c["cls"] == "valu" and sw & c["rd"]: need = max(need, 4 if c.get("rdlane") else 2)
            if c["cls"] == "salu" and sw & c["rd"]: need = max(need, 1)
    if p["cls"] == "salu":
        if ("s", 124) in sw and c.get("ldsdma"): need = max(need, 1)
    if p["cls"] == "mfma":
        ps = p["passes"]
        big = {2: 5, 4: 8, 8: 12, 16: 20}[ps]
        ovl = {2: 4, 4: 6, 8: 10, 16: 18}[ps]
        war = {2: 1, 4: 3, 8: 7, 16: 15}[ps]
        if c["cls"] == "mfma":
            if vw & c["srcAB"]: need = max(need, big)
            if vw & c["srcC"]:
                if not (p["D"] == c["C"] and p["passes"] == c["passes"]): need = max(need, ovl)
            elif vw & c["wr"]: need = max(need, ovl)
        elif c["cls"] in ("valu", "vmem", "ds"):
            if vw & (c["rd"] | c["wr"]): need = max(need, big)
            if c["cls"] == "valu" and p["srcC"] & c["wr"]: need = max(need, war)
            if c["cls"] in ("vmem", "ds") and p["srcC"] & c["wr"]: need = max(need, war)
    if p.get("widestore") and c["cls"] in ("valu", "mfma") and p["widestore"] & c["wr"]: need = max(need, 2)
    if p.get("widestore") and c["cls"] in ("ds", "vmem") and p["widestore"] & c["wr"]: need = max(need, 1)
    return need

class Asm:
    def __init__(self):
        self.ins = []
    def __call__(self, text, tag=None):
        for line in text.strip().split("\n"):
            line = line.strip()
            if not line or line.startswith(";"): continue
            self.ins.append(I(line, tag=tag))
        return self
    def label(self, name):
        self.ins.append(I(name + ":", kind="label"))
    def raw(self, text):
        self.ins.append(I(text, kind="raw"))
    def wait(self, *tags):
        self.ins.append(I("", kind="wait", wait=tags))
    def waitall(self, vm=True, lgkm=True):
        self.ins.append(I("", kind="waitall", wait=(vm, lgkm)))
    def fence(self):
        self.ins.append(I("", kind="fence"))
    def reset(self):
        self.ins.append(I("", kind="reset"))
    def save(self, name):
        self.ins.append(I("", kind="save", tag=name))
    def restore(self, name):
        self.ins.append(I("", kind="restore", tag=name))
    def stamp(self, key):
        import os
        if not os.environ.get("STAMPS"): return
        op = "s_memrealtime" if os.environ.get("STAMPS") == "rt" else "s_memtime"
        sl = os.environ.get("SL")
        if not sl:
            if isinstance(key, int): self.ins.append(I(f"{op} s[{44+2*key}:{45+2*key}]"))
            return
        for i, ent in enumerate(sl.split(",")):
            nm, _, layer = ent.partition(":")
            if nm != str(key): continue
            if layer:
                Asm.nst += 1
                self.ins.append(I(f"s_cmp_lg_u32 s40, {layer}"))
                self.ins.append(I(f"s_cbranch_scc1 STP{Asm.nst}"))
                self.ins.append(I(f"{op} s[{44+2*i}:{45+2*i}]"))
                self.ins.append(I(f"STP{Asm.nst}:", kind="label"))
            else:
                self.ins.append(I(f"{op} s[{44+2*i}:{45+2*i}]"))
    nst = 0
    def extend(self, other):
        self.ins += other.ins

def interleave(main, fill, slots, start=0):
    out = []
    fi = 0
    seen = 0
    for ins in main:
        out.append(ins)
        b = slots(ins)
        if b > 0:
            seen += 1
            if seen <= start: continue
            while fi < len(fill) and b > 0:
                f, c = fill[fi]
                if c > b and b < slots(ins): break
                out.append(f); b -= c; fi += 1
    rest = [f for f, c in fill[fi:]]
    return out, rest

def cost(ins):
    if ins.kind in ("wait", "waitall", "fence", "label", "raw", "save", "restore", "reset"): return 0
    op = ins.text.split()[0]
    if op.startswith(TRANS): return 8
    if op.startswith("v_mfma"): return 8
    if op.startswith("v_"): return 4
    if op.startswith("s_"): return 1
    return 4

def finalize(asm):
    out = []
    vmq = []; lgq = []
    smem_out = False
    snaps = {}
    hist = []
    def push(text):
        an = analyze(text)
        need = 0
        dist = 0
        for p, st in reversed(hist):
            n = need_states(p, an)
            if n > dist: need = max(need, n - dist)
            dist += st
            if dist > 24: break
        while need > 0:
            k = min(need, 16)
            out.append(f"    s_nop {k-1}")
            hist.append((analyze(f"s_nop {k-1}"), k))
            need -= k
        out.append("    " + text)
        hist.append((an, states_of(text)))
        if len(hist) > 40: del hist[:10]
        return an
    for ins in asm.ins:
        if ins.kind == "label":
            out.append(ins.text); continue
        if ins.kind == "raw":
            out.append(ins.text); continue
        if ins.kind == "reset":
            vmq = ["?"]; lgq = ["?"]
            continue
        if ins.kind == "save":
            snaps[ins.tag] = (None if vmq is None else list(vmq), None if lgq is None else list(lgq), smem_out, list(hist))
            continue
        if ins.kind == "restore":
            a_, b_, smem_out, h_ = snaps[ins.tag]
            vmq = None if a_ is None else list(a_); lgq = None if b_ is None else list(b_)
            hist[:] = h_
            continue
        if ins.kind == "fence":
            vmq = None; lgq = None
            continue
        if ins.kind == "waitall":
            vm, lg = ins.wait
            p = []
            if vm and (vmq is None or vmq): p.append("vmcnt(0)")
            if lg and (lgq is None or lgq or smem_out): p.append("lgkmcnt(0)")
            if vm: vmq = []
            if lg: lgq = []; smem_out = False
            if p: push("s_waitcnt " + " ".join(p))
            continue
        if ins.kind == "wait":
            p = []
            assert vmq is not None and lgq is not None, "wait by tag after fence without waitall"
            idx = max([i for i, t in enumerate(vmq) if t in ins.wait], default=-1)
            if idx >= 0:
                n = len(vmq) - 1 - idx
                if n <= 63:
                    p.append(f"vmcnt({n})")
                    vmq = vmq[idx + 1:]
                else:
                    raise Exception("vmcnt overflow")
            idx = max([i for i, t in enumerate(lgq) if t in ins.wait], default=-1)
            if idx >= 0:
                n = len(lgq) - 1 - idx
                if smem_out: n = 0
                if n > 15: n = 15
                p.append(f"lgkmcnt({n})")
                lgq = lgq[len(lgq) - n:] if n else []
                if n == 0: smem_out = False
            if p: push("s_waitcnt " + " ".join(p))
            continue
        an = push(ins.text)
        op = an["op"]
        if an["cls"] == "vmem" and not op.startswith(("buffer_wbl2", "buffer_inv")):
            if vmq is not None:
                vmq.append(ins.tag)
                if len(vmq) > 63: vmq = vmq[-63:]
        elif an["cls"] == "ds":
            if lgq is not None: lgq.append(ins.tag)
        elif op.startswith(("s_load", "s_memtime", "s_buffer_load", "s_memrealtime")):
            smem_out = True
            if lgq is not None: lgq.append(ins.tag)
        elif op == "s_waitcnt":
            m = re.search(r"vmcnt\((\d+)\)", ins.text)
            if m:
                n = int(m.group(1))
                if vmq is None:
                    if n == 0: vmq = []
                else: vmq = vmq[len(vmq) - n:] if n and len(vmq) > n else ([] if n == 0 else vmq)
            m = re.search(r"lgkmcnt\((\d+)\)", ins.text)
            if m:
                n = int(m.group(1))
                if n == 0: lgq = []; smem_out = False
                elif lgq is not None and not smem_out and len(lgq) > n: lgq = lgq[len(lgq) - n:]
    return "\n".join(out) + "\n"

class Sched:
    def __init__(self, main):
        self.main = main
        self.rel = {}
    def release(self, pos, q, groups, **kw):
        self.rel.setdefault(pos, []).append((q, groups, kw))
    def run(self, gap=24, cap=24, vm_every=1, vm_cost=16, ds_cost=12, wait_cost=4):
        out = []
        vm = []; va = []
        every = vm_every; credit = 1.0; skip = 0
        main = self.main
        follow = {}
        last = None
        for idx, ins in enumerate(main):
            if ins.text.startswith("v_mfma"):
                last = idx; follow[idx] = 0
            elif last is not None:
                if ins.kind == "wait": follow[last] += wait_cost
                elif ins.text.startswith("ds_"): follow[last] += ds_cost
                elif ins.text.startswith(("buffer_", "global_")): follow[last] += vm_cost
                else: follow[last] += cost(ins)
        for idx, ins in enumerate(main):
            for q, groups, kw in self.rel.get(idx, []):
                if q == "vm":
                    if kw.get("front"): vm = list(groups) + vm
                    else: vm += groups
                    if "every" in kw: every = kw["every"]
                else:
                    va += groups
                    skip = max(skip, kw.get("skip", 0))
                    if "cap" in kw: cap = kw["cap"]
            out.append(ins)
            if ins.text.startswith("v_mfma"):
                b = gap - follow[idx]
                credit = min(credit + 1.0 / every, 2.0) if vm else 1.0
                if vm and credit >= 1.0 and (b >= vm_cost or every <= 1):
                    out += vm.pop(0); credit -= 1.0; b -= vm_cost
                if skip > 0:
                    skip -= 1; continue
                b = min(b, cap)
                while va:
                    c = sum(vm_cost if i.text.startswith("buffer_") else cost(i) for i in va[0])
                    if c > b: break
                    out += va.pop(0); b -= c
        rest = [i for g in vm for i in g] + [i for g in va for i in g]
        return out, rest

def groups_vm(ins):
    gs = []; cur = []
    for i in ins:
        cur.append(i)
        if i.text.startswith(("buffer_", "global_")):
            gs.append(cur); cur = []
    if cur: gs.append(cur)
    return gs
def groups_1(ins):
    gs = []; cur = []
    for i in ins:
        cur.append(i)
        if not i.text.startswith("s_"):
            gs.append(cur); cur = []
    if cur: gs.append(cur)
    return gs

def check_tags(ins):
    waited = set()
    for i in ins:
        if i.kind == "wait": waited.update(i.wait)
        elif i.kind == "" and i.tag is not None:
            assert i.tag not in waited, f"tag {i.tag} issued after its wait"

def est(ins):
    if ins.kind == "wait" or ins.kind == "waitall": return 4
    if ins.kind: return 0
    t = ins.text
    if t.startswith("v_mfma_f32_32x32"): return 32
    if t.startswith("v_mfma"): return 16
    if t.startswith("ds_write_b128"): return 40
    if t.startswith("ds_"): return 14
    if t.startswith(("buffer_", "global_")): return 16
    if t.startswith("s_barrier"): return 40
    return cost(ins)

def pace(main, groups, interval, first=0):
    out = []; groups = list(groups); acc = interval - first; blocked = False
    for ins in main:
        out.append(ins)
        if ins.text.startswith("s_cbranch") : blocked = True
        if ins.kind == "label": blocked = False
        if ins.text.startswith("s_cmp"): continue
        acc += est(ins)
        if groups and acc >= interval and not blocked:
            out += groups.pop(0); acc = 0
    return out, groups
```

```python
from asmlib import *
import gen as G
import chain as C
P = G.P
FSH = C.FSH
SCR = 151552
QA = P.get('q_atomic', 0)

def att_phase(A, L, side, tail_vm, post_loop=None):
    VK, VV = 2, 6
    NEG, Sr, Pr = 16, 48, 80
    T = 96
    SV, SD, SO = 112, 120, 192
    FL = 208
    aQM, aQE, aO, aKM, aV, aKE = 0, 8, 72, 104, 116, 140
    W2 = 2 * G.KVG
    A(f"""
    s_and_b32 s24, s2, 7
    s_lshl_b32 s24, s24, 2
    s_bfe_u32 s25, s2, 0x20003
    s_add_u32 s24, s24, s25            ; head
    s_lshr_b32 s26, s2, 5              ; qblk
    s_lshl_b32 s25, s26, 3
    s_lshl_b32 s27, s3, 1
    s_add_u32 s25, s25, s27
    s_lshl_b32 s29, s24, 6
    s_add_u32 s29, s29, s25
    s_lshl_b32 s27, s29, 10
    s_add_u32 s27, s27, {G.QM}
    s_add_u32 s27, s27, s100
    s_lshl_b32 s28, s29, 7
    s_add_u32 s28, s28, {G.QE}
    s_add_u32 s28, s28, s100
    s_lshl_b32 s21, s3, 10
    s_mul_i32 s20, s24, {G.KVH}
    s_add_u32 s20, s20, {G.KV}
    s_add_u32 s20, s20, s100
    s_add_u32 s20, s20, s21
    v_and_b32 v{T}, 31, v0
    v_lshlrev_b32 v{T+1}, 2, v{T}
    s_lshr_b32 s30, s24, 3
    s_add_u32 s31, s30, 4
    s_mul_i32 s32, s24, 18
    s_add_u32 s33, s32, 17
    s_mul_i32 s32, s32, 683
    s_lshr_b32 s32, s32, 16
    s_add_u32 s32, s32, 9
    s_mul_i32 s33, s33, 683
    s_lshr_b32 s33, s33, 16
    s_add_u32 s33, s33, 9
    v_bfe_u32 v{T+2}, v0, 4, 2
    v_mov_b32 v{T+3}, s31
    v_cmp_eq_u32 vcc, 1, v{T+2}
    v_cndmask_b32 v{T+3}, v{T+3}, 15, vcc
    v_mov_b32 v{T+4}, s32
    v_cmp_eq_u32 vcc, 2, v{T+2}
    v_cndmask_b32 v{T+3}, v{T+3}, v{T+4}, vcc
    v_mov_b32 v{T+4}, s33
    v_cmp_eq_u32 vcc, 3, v{T+2}
    v_cndmask_b32 v{T+3}, v{T+3}, v{T+4}, vcc
    v_lshlrev_b32 v{T+3}, 4, v{T+3}
    v_and_b32 v{T+4}, {0 if QA else 15}, v0
    v_add_u32 v{T+3}, v{T+3}, v{T+4}
    v_lshlrev_b32 v{T+3}, {2+FSH}, v{T+3}
    s_lshl_b32 s30, s30, 4
    s_lshl_b32 s31, s26, 1
    s_add_u32 s30, s30, {0 if QA else "s31"}
    v_and_b32 v{T+4}, 1, v0
    s_add_u32 s31, s31, 128
    v_mov_b32 v{T+5}, s30
    v_mov_b32 v{T+6}, s31
    v_and_b32 v{T+7}, 2, v0
    v_cmp_eq_u32 vcc, 2, v{T+7}
    v_cndmask_b32 v{T+5}, v{T+5}, v{T+6}, vcc
    v_add_u32 v{T+4}, v{T+5}, v{T+4}
    v_lshlrev_b32 v{T+4}, {2+FSH}, v{T+4}
    s_add_u32 s38, s41, 4096
    s_lshl_b32 s38, s38, {FSH}
    s_add_u32 s38, s38, {G.FLG}
    """)
    SOLO = P.get("solo", 1)
    if SOLO:
        A(f"""
        s_lshr_b32 s30, s82, 1
        s_add_u32 s30, s30, 130
        v_and_b32 v{T+8}, 3, v0
        v_min_u32 v{T+8}, 2, v{T+8}
        v_add_u32 v{T+8}, s30, v{T+8}
        v_and_b32 v{T+9}, 1, v0
        v_add_u32 v{T+9}, 148, v{T+9}
        v_and_b32 v{T+10}, 4, v0
        v_cmp_eq_u32 vcc, 4, v{T+10}
        v_cndmask_b32 v{T+8}, v{T+8}, v{T+9}, vcc
        s_lshr_b32 s30, s24, {2 if P.get("early", 0) else 0}
        s_add_u32 s30, s30, 150
        v_mov_b32 v{T+9}, s30
        v_and_b32 v{T+10}, 8, v0
        v_cmp_eq_u32 vcc, 8, v{T+10}
        v_cndmask_b32 v{T+8}, v{T+8}, v{T+9}, vcc
        v_lshlrev_b32 v{T+12}, {2+FSH}, v{T+8}
        v_add_u32 v{T+12}, {G.FLG + (7168 << FSH)}, v{T+12}
        """)
    A(f"""
    v_bfe_u32 v{T+5}, v0, 2, 1
    v_lshlrev_b32 v{T+5}, 3, v{T+5}
    v_bfe_u32 v{T+6}, v0, 3, 1
    v_lshlrev_b32 v{T+6}, 2, v{T+6}
    v_and_b32 v{T+7}, 3, v0
    v_add3_u32 v{T+5}, v{T+5}, v{T+6}, v{T+7}
    v_min_u32 v{T+6}, 18, v{T}
    v_cmp_gt_u32 vcc, 16, v{T}
    v_cndmask_b32 v{T+5}, v{T+6}, v{T+5}, vcc
    v_lshlrev_b32 v{T+5}, 4, v{T+5}
    v_bfe_u32 v{T+6}, v0, 5, 1
    v_mul_u32_u24 v{T+6}, 304, v{T+6}
    v_add_u32 v{T+5}, v{T+5}, v{T+6}
    """)
    for p in range(4):
        A(f"v_add_u32 v{VK+p}, {p*W2}, v1")
        A(f"v_add_u32 v{VV+p}, {p*W2 + 9216}, v{T+5}")
    for i in range(64): A(f"v_accvgpr_write_b32 a{aQE+i}, 0")
    for i in range(4): A(f"v_mov_b32 v{FL+i}, -1")
    A(f"""
    s_mul_i32 s86, s26, {32*36864}
    s_mul_i32 s30, s24, 36864
    s_add_u32 s86, s86, s30
    s_add_u32 s86, s86, s21
    s_add_u32 s86, s86, {G.PART}
    {C.LO2(86)}
    """)
    if side: side_setup(A, L, SV, T + 8)
    if P.get("att_fillpre", 0):
        for k in range(9):
            A(f"buffer_store_dwordx4 v[{FL}:{FL+3}], v1, s[4:7], s86 offen sc1")
            A("s_add_u32 s86, s86, 4096")
    A("s_cmp_lg_u32 s3, 0")
    A(f"s_cbranch_scc1 {L}_PD")
    R = A.raw
    R("    s_mov_b32 s39, 0x20000")
    R(f"{L}_PL:")
    R(f"    buffer_load_dword v{T+6}, v{T+3}, s[4:7], s38 offen sc1")
    R(f"    buffer_load_dword v{T+7}, v{T+4}, s[4:7], s38 offen sc1")
    if SOLO: R(f"    buffer_load_dword v{T+13}, v{T+12}, s[4:7], 0 offen sc1")
    R("    s_waitcnt vmcnt(0)")
    if SOLO: R(f"    v_and_b32 v{T+6}, v{T+6}, v{T+13}")
    R(f"    v_and_b32 v{T+6}, v{T+6}, v{T+7}")
    R(f"    v_cmp_ne_u32 vcc, 1, v{T+6}")
    R("    s_nop 1")
    R("    s_and_b64 exec, exec, vcc")
    R(f"    s_cbranch_scc0 {L}_PX")
    R(f"    s_sleep {P.get('att_sleep', 2)}")
    R("    s_sub_u32 s39, s39, 1")
    R("    s_cmp_lg_u32 s39, 0")
    R(f"    s_cbranch_scc1 {L}_PL")
    R(f"{L}_PX:")
    R("    s_mov_b64 exec, -1")
    A.label(f"{L}_PD")
    A("s_barrier")
    A.stamp("a0" if side else "b0")
    def dma_round(B, j):
        g = 0 if j <= 4 else (1 if j <= 9 else 2)
        B(f"s_add_u32 s30, s20, {j*4096}")
        B(f"s_add_u32 m0, s21, {j*4096}")
        B("buffer_load_dwordx4 v1, s[4:7], s30 offen sc1 lds", tag=f"c{g}")
    for j in range(3): dma_round(A, j)
    for j in range(2):
        A(f"buffer_load_dwordx4 a[{aQM+4*j}:{aQM+4*j+3}], v1, s[4:7], s27 offen offset:{j*1024} sc1", tag="q")
        A(f"buffer_load_dword v{T+2+j}, v{T+1}, s[4:7], s28 offen offset:{j*128} sc1", tag="q")
    PRE = P.get("att_pre", 16)
    for j in range(3, PRE): dma_round(A, j)
    A.wait("q")
    A("v_cmp_gt_u32 vcc, 512, v1")
    for j in range(2):
        A(f"v_cndmask_b32 v{T+4}, 0, v{T+2+j}, vcc")
        A(f"v_cndmask_b32 v{T+5}, v{T+2+j}, 0, vcc")
        for k in range(4):
            A(f"v_accvgpr_write_b32 a{aQE+32*j+5*k}, v{T+4}")
            A(f"v_accvgpr_write_b32 a{aQE+32*j+16+5*k}, v{T+5}")
    def rdK(t):
        p = t >> 4; g = (t >> 3) & 1
        A(f"ds_read_b128 a[{aKM+4*(t%3)}:{aKM+4*(t%3)+3}], v{VK+p} offset:{g*G.KVG + (t&7)*1024}", tag=f"k{t}")
        if t % 8 == 0:
            A(f"ds_read_b128 a[{aKE+4*g}:{aKE+4*g+3}], v{VK+p} offset:{g*G.KVG + 8192}", tag=f"k{t}")
    def rdV(t, half):
        p = t >> 4; g = (t >> 3) & 1
        b = aV + 8 * (t % 3) + 4 * half
        A(f"ds_read_b128 a[{b}:{b+3}], v{VV+p} offset:{g*G.KVG + (t&7)*1216 + half*608}", tag=f"v{t}")
    def qk1(j, t, c):
        s_ = Sr + 16 * j
        A(f"v_mfma_f32_32x32x16_bf16 v[{s_}:{s_+15}], a[{aKM+4*(t%3)}:{aKM+4*(t%3)+3}], a[{aQM+4*j}:{aQM+4*j+3}], {c}")
    def qk2(j, t):
        s_ = Sr + 16 * j; g = (t >> 3) & 1; q = aQE + 32 * j + 4 * (t & 7)
        A(f"v_mfma_f32_32x32x16_bf16 v[{s_}:{s_+15}], a[{aKE+4*g}:{aKE+4*g+3}], a[{q}:{q+3}], v[{s_}:{s_+15}]")
    def pv(j, t, half, first=None):
        b = aV + 8 * (t % 3) + 4 * half; p_ = Pr + 8 * j + 4 * half; o = aO + 16 * j
        z = (t == 0 and half == 0) if first is None else first
        c = "0" if z else f"a[{o}:{o+15}]"
        A(f"v_mfma_f32_32x32x16_bf16 a[{o}:{o+15}], a[{b}:{b+3}], v[{p_}:{p_+3}], {c}")
    def maxreduce(dst, s_, first):
        i0 = 0
        if first:
            A(f"v_max3_f32 v{dst}, v{s_}, v{s_+1}, v{s_+2}")
            A(f"v_max_f32 v{dst}, v{dst}, v{s_+3}")
            i0 = 4
        for i in range(i0, 16, 2):
            A(f"v_max3_f32 v{dst}, v{dst}, v{s_+i}, v{s_+i+1}")
    def setneg(dst, j):
        A(f"v_mov_b32 v{T+7}, v{dst}")
        A(f"v_permlane32_swap_b32 v{dst}, v{T+7}")
        A(f"v_max_f32 v{dst}, v{dst}, v{T+7}")
        for i in range(16): A(f"v_sub_f32 v{NEG+16*j+i}, 0, v{dst}")
    NEGC = lambda j: f"v[{NEG+16*j}:{NEG+16*j+15}]"
    A.wait("c0")
    A("s_barrier")
    rdK(0); rdK(1)
    if P.get("att_ord", 1): rdV(0, 0); rdV(0, 1)
    A.wait("k0")
    qk1(0, 0, "0"); qk1(1, 0, "0"); qk2(0, 0); qk2(1, 0)
    maxreduce(T + 4, Sr, True); setneg(T + 4, 0)
    qk1(0, 0, NEGC(0)); qk2(0, 0)
    maxreduce(T + 5, Sr + 16, True); setneg(T + 5, 1)
    if side:
        A(f"v_mov_b32 v{SV+4}, 0"); A(f"v_mov_b32 v{SV+6}, 0")
    A.stamp("a1" if side else "b1")
    nextj = PRE
    U0, U1, US = P.get('att_u0', 3), P.get('att_u1', 13), 5
    tail = [] if P.get('att_wopost', 0) else tail_vm()
    for v in range(128):
        t, j = v >> 1, v & 1
        s_ = Sr + 16 * j; p_ = Pr + 8 * j
        jn, tn = 1 - j, t + j
        jp, tp = 1 - j, t - 1 + j
        extra = Asm()
        if j == 0:
            for _ in range(P.get("att_dpt", 3)):
                if nextj < 37:
                    dma_round(extra, nextj); nextj += 1
            if 20 <= t < 38 and t % 2 == 0 and not P.get('att_fillpre', 0):
                extra(f"buffer_store_dwordx4 v[{FL}:{FL+3}], v1, s[4:7], s86 offen sc1")
                extra("s_add_u32 s86, s86, 4096")
            if t >= P.get("att_tail0", 38) and tail: extra.ins += tail.pop(0)
        elif side:
            side_step(extra, t, U0, U1, US, SV, SD, SO, L)
        def exps(a, b):
            for i in range(a, b): A(f"v_exp_f32 v{s_+i}, v{s_+i}")
        def cvts(a, b):
            for i in range(a, b): A(f"v_cvt_pk_bf16_f32 v{p_+i}, v{s_+2*i}, v{s_+2*i+1}")
        if P.get("att_ord", 1):
            po = Pr + 8 * (1 - j); so = Sr + 16 * (1 - j)
            if tp >= 0:
                if j == 1: A.wait(f"v{tp}")
                pv(jp, tp, 0)
            exps(0, 2)
            if v > 0:
                for i in (6, 7): A(f"v_cvt_pk_bf16_f32 v{po+i}, v{so+2*i}, v{so+2*i+1}")
            exps(2, 4)
            if tn < 64:
                if j == 1: A.wait(f"k{tn}")
                qk1(jn, tn, NEGC(jn))
            exps(4, 6)
            if j == 1 and t + 1 < 64: rdV(t + 1, 0)
            elif j == 0 and t + 2 < 64:
                if t + 2 in (8, 16):
                    A.wait("c1" if t + 2 == 8 else "c2")
                    A("s_barrier")
                rdK(t + 2)
            exps(6, 8); cvts(0, 2)
            if tn < 64: qk2(jn, tn)
            exps(8, 10)
            if j == 1 and t + 1 < 64: rdV(t + 1, 1)
            A.ins += extra.ins
            exps(10, 12); cvts(2, 4)
            if tp >= 0: pv(jp, tp, 1)
            exps(12, 16); cvts(4, 6)
            if v == 127: cvts(6, 8)
            continue
        if tn < 64:
            if j == 1: A.wait(f"k{tn}")
            qk1(jn, tn, NEGC(jn))
        exps(0, 2)
        if j == 0: rdV(t, 0)
        elif t + 2 < 64:
            if t + 2 in (8, 16):
                A.wait("c1" if t + 2 == 8 else "c2")
                A("s_barrier")
            rdK(t + 2)
        exps(2, 4)
        if tn < 64: qk2(jn, tn)
        exps(4, 6)
        if j == 0: rdV(t, 1)
        exps(6, 8); cvts(0, 2)
        if tp >= 0:
            if j == 1: A.wait(f"v{tp}")
            pv(jp, tp, 0)
        exps(8, 10)
        A.ins += extra.ins
        exps(10, 12); cvts(2, 4)
        if tp >= 0: pv(jp, tp, 1)
        exps(12, 16); cvts(4, 8)
    for g in tail: A.ins += g
    pv(1, 63, 0); pv(1, 63, 1)
    if post_loop: post_loop(A)
    A.stamp("a2" if side else "b2")
    def readO():
        for j in range(2):
            for i in range(11): A(f"v_accvgpr_read_b32 v{Sr+16*j+i}, a{aO+16*j+i}")
    readO()
    A(f"""
    s_mov_b32 s30, {hex(G.f32(2.0**60))}
    v_max_f32 v{T}, v{Sr+10}, v{Sr+26}
    v_cmp_gt_f32 vcc, s30, v{Sr+10}
    v_cmp_gt_f32 s[32:33], s30, v{Sr+26}
    s_and_b64 vcc, vcc, s[32:33]
    s_cmp_eq_u64 vcc, -1
    s_cbranch_scc1 {L}_OUT
    """)
    A.save(L + "out")
    A(f"""
    s_mov_b32 s31, 0
    v_mov_b32 v{T+4}, 0xff800000
    v_mov_b32 v{T+5}, 0xff800000
    v_mov_b32 v{T+8}, v{VK}
    """)
    A.label(f"{L}_F1")
    A(f"ds_read_b128 a[{aKE}:{aKE+3}], v{T+8} offset:8192")
    for t in range(8):
        A(f"ds_read_b128 a[{aKM}:{aKM+3}], v{T+8} offset:{t*1024}")
        A.waitall(vm=False)
        for j in range(2):
            qk1(j, 0, "0")
            q = aQE + 32 * j + 4 * t; s_ = Sr + 16 * j
            A(f"v_mfma_f32_32x32x16_bf16 v[{s_}:{s_+15}], a[{aKE}:{aKE+3}], a[{q}:{q+3}], v[{s_}:{s_+15}]")
        for j in range(2): maxreduce(T + 4 + j, Sr + 16 * j, False)
    A(f"""
    v_add_u32 v{T+8}, {G.KVG}, v{T+8}
    s_add_u32 s31, s31, 1
    s_cmp_lt_u32 s31, 8
    s_cbranch_scc1 {L}_F1
    """)
    setneg(T + 4, 0); setneg(T + 5, 1)
    for i in range(32): A(f"v_accvgpr_write_b32 a{aO+i}, 0")
    A(f"""
    s_mov_b32 s31, 0
    v_mov_b32 v{T+8}, v{VK}
    v_mov_b32 v{T+9}, v{VV}
    """)
    A.label(f"{L}_F2")
    A(f"ds_read_b128 a[{aKE}:{aKE+3}], v{T+8} offset:8192")
    for t in range(8):
        A("s_nop 15")
        A(f"ds_read_b128 a[{aKM}:{aKM+3}], v{T+8} offset:{t*1024}")
        A(f"ds_read_b128 a[{aV}:{aV+3}], v{T+9} offset:{t*1216}")
        A(f"ds_read_b128 a[{aV+4}:{aV+7}], v{T+9} offset:{t*1216+608}")
        A.waitall(vm=False)
        for j in range(2):
            qk1(j, 0, NEGC(j))
            q = aQE + 32 * j + 4 * t; s_ = Sr + 16 * j
            A(f"v_mfma_f32_32x32x16_bf16 v[{s_}:{s_+15}], a[{aKE}:{aKE+3}], a[{q}:{q+3}], v[{s_}:{s_+15}]")
        for j in range(2):
            s_ = Sr + 16 * j; p_ = Pr + 8 * j
            for i in range(16): A(f"v_exp_f32 v{s_+i}, v{s_+i}")
            for i in range(8): A(f"v_cvt_pk_bf16_f32 v{p_+i}, v{s_+2*i}, v{s_+2*i+1}")
            pv(j, 0, 0, False); pv(j, 0, 1, False)
    A(f"""
    v_add_u32 v{T+8}, {G.KVG}, v{T+8}
    v_add_u32 v{T+9}, {G.KVG}, v{T+9}
    s_add_u32 s31, s31, 1
    s_cmp_lt_u32 s31, 8
    s_nop 15
    s_cbranch_scc1 {L}_F2
    """)
    readO()
    A.label(f"{L}_OUT")
    A.restore(L + "out")
    A(f"""
    v_rcp_f32 v{T+4}, v{Sr+10}
    v_rcp_f32 v{T+5}, v{Sr+26}
    v_bfe_u32 v{T}, v0, 4, 1
    v_mul_u32_u24 v{T}, 18432, v{T}
    v_and_b32 v{T+1}, 15, v0
    v_lshlrev_b32 v{T+1}, 4, v{T+1}
    v_add_u32 v{T}, v{T}, v{T+1}
    v_bfe_u32 v{T+1}, v0, 5, 1
    v_lshlrev_b32 v{T+1}, 8, v{T+1}
    v_add_u32 v{T+1}, v{T}, v{T+1}
    s_mul_i32 s30, s25, 36864
    s_add_u32 s30, s30, {G.OF}
    {C.LO2(30)}
    s_lshl_b32 s31, s24, 9
    s_add_u32 s31, s31, s30
    s_lshr_b32 s32, s24, 2
    s_lshl_b32 s32, s32, 8
    s_and_b32 s33, s24, 3
    s_lshl_b32 s33, s33, 2
    s_add_u32 s32, s32, s33
    s_add_u32 s32, s32, s30
    s_add_u32 s32, s32, 16384
    s_add_u32 s33, s31, 36864
    """)
    for j in range(2):
        o = Sr + 16 * j; p_ = Pr + 8 * j
        for i in range(10): A(f"v_mul_f32 v{o+i}, v{o+i}, v{T+4+j}")
        for i in range(5): A(f"v_cvt_pk_bf16_f32 v{p_+i}, v{o+2*i}, v{o+2*i+1}")
        A(f"buffer_store_dwordx4 v[{p_}:{p_+3}], v{T+1}, s[4:7], s{31 if j == 0 else 33} offen sc1", tag="o")
    A(f"v_permlane32_swap_b32 v{Pr+4}, v{Pr+12}")
    A(f"v_lshrrev_b32 v{T}, 2, v1")
    A("s_lshl_b32 s32, s24, 13")
    A("s_lshl_b32 s33, s25, 7")
    A("s_add_u32 s32, s32, s33")
    A(f"s_add_u32 s32, s32, {G.OE}")
    A(f"buffer_store_dword v{Pr+4}, v{T}, s[4:7], s32 offen sc1", tag="o")
    A(f"""
    s_lshl_b32 s30, s26, 2
    s_add_u32 s30, s30, s3
    s_lshl_b32 s30, s30, 5
    s_add_u32 s30, s30, s24
    s_lshl_b32 s30, s30, 2
    s_add_u32 s30, s30, s41
    s_add_u32 s30, s30, 16384
    s_lshl_b32 s30, s30, {FSH}
    s_add_u32 s31, s30, {G.FLG}
    v_mov_b32 v{T+2}, 0
    v_mov_b32 v{T+3}, 1
    """)
    A("s_mov_b32 s86, s31")

def side_setup(A, L, SV, t0, sj=2, scr=SCR):
    t1, t2 = t0 + 1, t0 + 2
    A("s_load_dwordx4 s[72:75], s[0:1], 32")
    A("s_load_dwordx2 s[70:71], s[0:1], 48")
    A(f"""
    s_mov_b32 s19, 0x3f803f80
    s_mov_b32 s14, {G.D*G.F*2}
    s_mov_b32 s15, 0x00020000
    v_and_b32 v{t0}, 63, v0
    v_lshrrev_b32 v{SV}, 3, v{t0}
    v_and_b32 v{SV+2}, 15, v{t0}
    v_lshlrev_b32 v{SV+2}, 4, v{SV+2}
    s_lshl_b32 s30, s3, 11
    s_add_u32 s30, s30, {scr}
    v_add_u32 v{SV+3}, s30, v1
    v_lshrrev_b32 v{SV+5}, 5, v{t0}
    v_lshlrev_b32 v{SV+5}, 3, v{SV+5}
    v_bfe_u32 v{t1}, v{t0}, 2, 2
    v_add_u32 v{SV+5}, v{SV+5}, v{t1}
    v_lshlrev_b32 v{SV+5}, 7, v{SV+5}
    v_add_u32 v{SV+5}, s30, v{SV+5}
    v_bfe_u32 v{t1}, v{t0}, 4, 1
    v_lshlrev_b32 v{t1}, 5, v{t1}
    v_add_u32 v{SV+5}, v{SV+5}, v{t1}
    s_lshl_b32 s30, s3, 8
    s_add_u32 s30, s30, {SCR + 8192}
    v_lshlrev_b32 v{SV+7}, 2, v{t0}
    v_add_u32 v{SV+7}, s30, v{SV+7}
    s_lshl_b32 s18, s{sj}, 1
    s_add_u32 s18, s18, s3
    s_lshl_b32 s18, s18, {2+FSH}
    s_add_u32 s18, s18, {G.FLG + (5120 << FSH)}
    """)
    A.waitall(vm=False)
    A(f"""
    s_cmp_ge_u32 s{sj}, 144
    s_cbranch_scc1 {L}_SW2
    s_cmp_ge_u32 s{sj}, 72
    s_cselect_b32 s12, s74, s72
    s_cselect_b32 s13, s75, s73
    s_cselect_b32 s30, 72, 0
    s_cselect_b32 s36, 256, 0
    s_and_b32 s13, s13, 0xffff
    s_sub_u32 s29, s{sj}, s30
    s_lshl_b32 s34, s29, 7
    s_mul_i32 s30, s3, {9*16*9216}
    s_add_u32 s34, s34, s30
    s_mov_b32 s35, {16*9216}
    s_mul_i32 s30, s29, {4*G.T1S}
    s_add_u32 s36, s36, s30
    s_add_u32 s16, s36, {G.W13 + 36*1024}
    s_mul_i32 s30, s3, 9216
    s_add_u32 s36, s36, s30
    s_add_u32 s36, s36, {G.W13}
    s_mov_b32 s37, 1024
    s_mov_b32 s17, {2*G.T1S}
    s_mov_b32 s30, 9216
    s_mov_b32 s32, 16
    s_mov_b32 s33, 8
    s_mov_b32 s22, {G.T1S}
    s_mov_b32 s23, 512
    s_branch {L}_SCOM
    """)
    A.label(f"{L}_SW2")
    A(f"""
    s_mov_b32 s12, s70
    s_and_b32 s13, s71, 0xffff
    s_sub_u32 s29, s{sj}, 144
    s_mul_i32 s30, s29, 7282
    s_lshr_b32 s30, s30, 16             ; seg = j/9
    s_mul_i32 s32, s30, 9
    s_sub_u32 s32, s29, s32
    s_mul_i32 s30, s30, 36
    s_mul_i32 s33, s3, 9
    s_add_u32 s30, s30, s33             ; U0
    s_mul_i32 s34, s30, {16*1152}
    s_lshl_b32 s33, s32, 7
    s_add_u32 s34, s34, s33
    s_mov_b32 s35, {16*1152}
    s_lshl_b32 s36, s30, 9
    s_mul_i32 s33, s32, {4*144*1024}
    s_add_u32 s36, s36, s33
    s_add_u32 s36, s36, {G.W2}
    s_mov_b32 s16, 0x7fff0000
    s_cmp_ge_u32 s{sj}, 216
    s_cselect_b32 s14, 0, s14
    s_cselect_b32 s36, s16, s36
    s_mov_b32 s37, 512
    s_mov_b32 s17, {2*144*1024}
    s_mov_b32 s30, 1152
    s_mov_b32 s32, 8
    s_mov_b32 s33, 16
    s_mov_b32 s22, {144*1024}
    s_mov_b32 s23, 256
    """)
    A.label(f"{L}_SCOM")
    A(f"""
    v_mul_lo_u32 v{SV}, v{SV}, s30
    v_and_b32 v{t1}, 7, v{t0}
    v_lshlrev_b32 v{t1}, 4, v{t1}
    v_add_u32 v{SV}, v{SV}, v{t1}
    s_lshl_b32 s30, s30, 3
    v_add_u32 v{SV+1}, s30, v{SV}
    v_bfe_u32 v{t1}, v{t0}, 4, 1
    v_mul_lo_u32 v{t1}, v{t1}, s22
    v_add_u32 v{SV+2}, v{SV+2}, v{t1}
    v_lshrrev_b32 v{t1}, 5, v{t0}
    v_mul_lo_u32 v{t1}, v{t1}, s23
    v_add_u32 v{SV+2}, v{SV+2}, v{t1}
    v_and_b32 v{t1}, 1, v{t0}
    v_mul_lo_u32 v{t1}, v{t1}, s32
    v_add_u32 v{SV+5}, v{SV+5}, v{t1}
    v_bfe_u32 v{t1}, v{t0}, 1, 1
    v_mul_lo_u32 v{t1}, v{t1}, s33
    v_add_u32 v{SV+5}, v{SV+5}, v{t1}
    """)

def side_step(A, t, U0, U1, US, SV, SD, SO, L):
    u, ph = divmod(t - U0, US)
    if 0 <= u < 9 and ph == 0:
        A(f"buffer_load_dwordx4 v[{SD+8*u}:{SD+8*u+3}], v{SV}, s[12:15], s34 offen", tag=f"sl{u}")
        A(f"buffer_load_dwordx4 v[{SD+8*u+4}:{SD+8*u+7}], v{SV+1}, s[12:15], s34 offen", tag=f"sl{u}")
        A("s_add_u32 s34, s34, s35")
    u, ph = divmod(t - U1, US)
    if 0 <= u < 9:
        if ph == 0:
            A.wait(f"sl{u}")
            A(f"ds_write_b128 v{SV+3}, v[{SD+8*u}:{SD+8*u+3}]", tag=f"sw{u}")
            A(f"ds_write_b128 v{SV+3}, v[{SD+8*u+4}:{SD+8*u+7}] offset:1024", tag=f"sw{u}")
        elif ph == 1:
            A.wait(f"sw{u}")
            for k in range(2):
                A(f"ds_read_b64_tr_b16 v[{SO+4*k}:{SO+4*k+1}], v{SV+5} offset:{k*64}", tag=f"sr{u}")
                A(f"ds_read_b64_tr_b16 v[{SO+4*k+2}:{SO+4*k+3}], v{SV+5} offset:{k*64+512}", tag=f"sr{u}")
        elif ph == 2:
            A.wait(f"sr{u}")
            A(f"buffer_store_dwordx4 v[{SO}:{SO+3}], v{SV+2}, s[4:7], s36 offen sc1", tag="ss")
            A("s_add_u32 s30, s36, s17")
            A(f"buffer_store_dwordx4 v[{SO+4}:{SO+7}], v{SV+2}, s[4:7], s30 offen sc1", tag="ss")
            A("s_add_u32 s36, s36, s37")
        elif ph == 3:
            for k in range(2):
                for j in range(4): A(f"v_dot2_f32_bf16 v{SV+4+2*k}, v{SO+4*k+j}, s19, v{SV+4+2*k}")
    TE = U1 + 9 * US
    if t == TE:
        A(f"ds_write_b32 v{SV+7}, v{SV+4}", tag="cs")
        A(f"ds_write_b32 v{SV+7}, v{SV+6} offset:1024", tag="cs")
        A.wait("cs", "ss")
        A("s_barrier")
        b = SD
        A(f"v_and_b32 v{b}, 31, v0")
        A(f"v_lshlrev_b32 v{b}, 2, v{b}")
        A("s_and_b32 s30, s3, 1")
        A("s_lshl_b32 s30, s30, 10")
        A(f"s_add_u32 s30, s30, {SCR + 8192}")
        A(f"v_add_u32 v{b}, s30, v{b}")
        for j in range(8): A(f"ds_read_b32 v{b+8+j}, v{b} offset:{j*128}", tag="cr")
    if t == TE + 1:
        b = SD
        A.wait("cr")
        A(f"""
        v_add_f32 v{b+8}, v{b+8}, v{b+9}
        v_add_f32 v{b+10}, v{b+10}, v{b+11}
        v_add_f32 v{b+12}, v{b+12}, v{b+13}
        v_add_f32 v{b+14}, v{b+14}, v{b+15}
        v_add_f32 v{b+8}, v{b+8}, v{b+10}
        v_add_f32 v{b+12}, v{b+12}, v{b+14}
        v_add_f32 v{b+8}, v{b+8}, v{b+12}
        v_sub_f32 v{b+8}, 0, v{b+8}
        v_cvt_pk_bf16_f32 v{b+9}, v{b+8}, v{b+8}
        v_lshlrev_b32 v{b+9}, 16, v{b+9}
        v_sub_f32 v{b+8}, v{b+8}, v{b+9}
        v_cvt_pk_bf16_f32 v{b+10}, v{b+8}, v{b+8}
        v_lshlrev_b32 v{b+10}, 16, v{b+10}
        v_sub_f32 v{b+11}, v{b+8}, v{b+10}
        v_cvt_pk_bf16_f32 v{b+12}, v{b+9}, v{b+10}
        v_cvt_pk_bf16_f32 v{b+13}, v{b+9}, v{b+11}
        v_cvt_pk_bf16_f32 v{b+14}, v{b+10}, v{b+9}
        v_mov_b32 v{b+15}, 0
        v_cmp_gt_u32 vcc, 512, v1
        v_cndmask_b32 v{b+12}, 0, v{b+12}, vcc
        v_cndmask_b32 v{b+13}, 0, v{b+13}, vcc
        v_cndmask_b32 v{b+14}, 0, v{b+14}, vcc
        s_and_b32 s30, s3, 1
        s_mul_i32 s30, s30, s17
        s_add_u32 s30, s30, s16
        """)
        A(f"buffer_store_dwordx4 v[{b+12}:{b+15}], v{SV+2}, s[4:7], s30 offen sc1", tag="se")
    if t == TE + P.get("att_fd", 5):
        b = SD
        A.wait("se")
        A(f"v_mov_b32 v{b}, 0")
        A(f"v_mov_b32 v{b+1}, 1")
        A("s_cmp_ge_u32 s3, 2")
        A("s_cselect_b32 s30, 0x7fff0000, s18")
        A("s_mov_b64 exec, 1")
        A(f"buffer_store_dword v{b+1}, v{b}, s[4:7], s30 offen sc1")
        A("s_mov_b64 exec, -1")


def side_early(A, pf):
    def loads(SV, SD, tg):
        for u in range(9):
            A(f"buffer_load_dwordx4 v[{SD+8*u}:{SD+8*u+3}], v{SV}, s[12:15], s34 offen", tag=f"{tg}{u}")
            A(f"buffer_load_dwordx4 v[{SD+8*u+4}:{SD+8*u+7}], v{SV+1}, s[12:15], s34 offen", tag=f"{tg}{u}")
            A("s_add_u32 s34, s34, s35")
    def process(SV, SD, tg, d, ds, ext, s2d, fl):
        SO = 224
        A(f"v_mov_b32 v{SV+4}, 0"); A(f"v_mov_b32 v{SV+6}, 0")
        def wr(u):
            A.wait(f"{tg}{u}")
            o = (u % 3) * 8192
            A(f"ds_write_b128 v{SV+3}, v[{SD+8*u}:{SD+8*u+3}] offset:{o}", tag=f"w{tg}{u}")
            A(f"ds_write_b128 v{SV+3}, v[{SD+8*u+4}:{SD+8*u+7}] offset:{o+1024}", tag=f"w{tg}{u}")
        def rd(u):
            A.wait(f"w{tg}{u}")
            o = (u % 3) * 8192; so = SO + 8 * (u % 3)
            for k in range(2):
                A(f"ds_read_b64_tr_b16 v[{so+4*k}:{so+4*k+1}], v{SV+5} offset:{o+k*64}", tag=f"r{tg}{u}")
                A(f"ds_read_b64_tr_b16 v[{so+4*k+2}:{so+4*k+3}], v{SV+5} offset:{o+k*64+512}", tag=f"r{tg}{u}")
        def st(u):
            A.wait(f"r{tg}{u}")
            so = SO + 8 * (u % 3)
            A(f"buffer_store_dwordx4 v[{so}:{so+3}], v{SV+2}, s[4:7], s{d} offen sc1")
            A(f"s_add_u32 s30, s{d}, s{s2d}")
            A(f"buffer_store_dwordx4 v[{so+4}:{so+7}], v{SV+2}, s[4:7], s30 offen sc1")
            A(f"s_add_u32 s{d}, s{d}, s{ds}")
            for k in range(2):
                for j in range(4): A(f"v_dot2_f32_bf16 v{SV+4+2*k}, v{so+4*k+j}, s19, v{SV+4+2*k}")
        for u in range(11):
            if u < 9: wr(u)
            if 1 <= u < 10: rd(u - 1)
            if u >= 2: st(u - 2)
        A("s_nop 2")
        A(f"ds_write_b32 v{SV+7}, v{SV+4}")
        A(f"ds_write_b32 v{SV+7}, v{SV+6} offset:1024")
        A.waitall(vm=False)
        A("s_barrier")
        b = SD
        A(f"v_and_b32 v{b}, 31, v0")
        A(f"v_lshlrev_b32 v{b}, 2, v{b}")
        A("s_and_b32 s30, s3, 1")
        A("s_lshl_b32 s30, s30, 10")
        A(f"s_add_u32 s30, s30, {SCR + 8192}")
        A(f"v_add_u32 v{b}, s30, v{b}")
        for j in range(8): A(f"ds_read_b32 v{b+8+j}, v{b} offset:{j*128}")
        A.waitall(vm=False)
        A("s_barrier")
        A(f"""
        v_add_f32 v{b+8}, v{b+8}, v{b+9}
        v_add_f32 v{b+10}, v{b+10}, v{b+11}
        v_add_f32 v{b+12}, v{b+12}, v{b+13}
        v_add_f32 v{b+14}, v{b+14}, v{b+15}
        v_add_f32 v{b+8}, v{b+8}, v{b+10}
        v_add_f32 v{b+12}, v{b+12}, v{b+14}
        v_add_f32 v{b+8}, v{b+8}, v{b+12}
        v_sub_f32 v{b+8}, 0, v{b+8}
        v_cvt_pk_bf16_f32 v{b+9}, v{b+8}, v{b+8}
        v_lshlrev_b32 v{b+9}, 16, v{b+9}
        v_sub_f32 v{b+8}, v{b+8}, v{b+9}
        v_cvt_pk_bf16_f32 v{b+10}, v{b+8}, v{b+8}
        v_lshlrev_b32 v{b+10}, 16, v{b+10}
        v_sub_f32 v{b+11}, v{b+8}, v{b+10}
        v_cvt_pk_bf16_f32 v{b+12}, v{b+9}, v{b+10}
        v_cvt_pk_bf16_f32 v{b+13}, v{b+9}, v{b+11}
        v_cvt_pk_bf16_f32 v{b+14}, v{b+10}, v{b+9}
        v_mov_b32 v{b+15}, 0
        v_cmp_gt_u32 vcc, 512, v1
        v_cndmask_b32 v{b+12}, 0, v{b+12}, vcc
        v_cndmask_b32 v{b+13}, 0, v{b+13}, vcc
        v_cndmask_b32 v{b+14}, 0, v{b+14}, vcc
        s_and_b32 s30, s3, 1
        s_mul_i32 s30, s30, s{s2d}
        s_add_u32 s30, s30, s{ext}
        """)
        A(f"buffer_store_dwordx4 v[{b+12}:{b+15}], v{SV+2}, s[4:7], s30 offen sc1")
    A("s_sub_u32 s31, s2, 128")
    side_setup(A, "SE1", 8, 24, sj=31, scr=0)
    loads(8, 32, "a")
    A("""
    s_mov_b32 s24, s36
    s_mov_b32 s25, s37
    s_mov_b32 s26, s16
    s_mov_b32 s27, s17
    s_cmp_lt_u32 s2, 168
    s_cbranch_scc1 SE_ONE
    s_sub_u32 s31, s2, 40
    """)
    A.save("se1")
    side_setup(A, "SE2", 16, 24, sj=31, scr=0)
    loads(16, 112, "b")
    pf(A)
    process(8, 32, "a", 24, 25, 26, 27, 28)
    process(16, 112, "b", 36, 37, 16, 17, 18)
    A("s_branch SE_DONE")
    A.label("SE_ONE")
    A.restore("se1")
    process(8, 32, "a", 24, 25, 26, 27, 28)
    A.label("SE_DONE")
    A.fence()
```

```python
from asmlib import *
import gen as G
from t1 import *
import k4 as K4M
P = G.P
QSCALE = (18 ** -0.5) * LOG2E
SK = P.get("sk", 1)
MEGA = P.get("mega", 1)
K45 = P.get("k45", 1)
XFIRST = MEGA and P.get("solo", 1) and P.get("xfirst", 0)
X2I = 0 if (MEGA and P.get("xreuse", 0)) else 2
LO = (lambda r_: f"s_add_u32 s{r_}, s{r_}, s100") if MEGA else (lambda r_: "")
LO2 = (lambda r_: "") if G.REUSE else LO
FSH = P.get("fsh", 5)
RED = 2 * G.T1S
LDS_BYTES = 163840


def signal(A, nflag_sgpr, store_tag):
    A.wait(store_tag)
    A.stamp("sg" + store_tag + str(nflag_sgpr))
    A("s_barrier")
    lab = f"SIG{signal.n}"; signal.n += 1
    A("s_cmp_lg_u32 s3, 0")
    A(f"s_cbranch_scc1 {lab}")
    A.raw("    s_mov_b64 exec, 1")
    A.raw("    v_mov_b32 v30, 0")
    A.raw("    v_mov_b32 v31, 1")
    A.raw(f"    s_lshl_b32 s38, s{nflag_sgpr}, {FSH}")
    A.raw(f"    s_add_u32 s38, s38, {G.FLG}")
    A.raw(f"    buffer_store_dword v31, v30, s[4:7], s38 offen sc1")
    A.raw("    s_mov_b64 exec, -1")
    A.label(lab)
signal.n = 0

def poll(A, base_sgpr, n, allwaves=False):
    lab = f"POLL{poll.n}"; poll.n += 1
    if not allwaves:
        A("s_cmp_lg_u32 s3, 0")
        A(f"s_cbranch_scc1 {lab}_D")
    R = A.raw
    R(f"    v_and_b32 v30, {n-1}, v0")
    R(f"    v_lshlrev_b32 v30, {2+FSH}, v30")
    R(f"    s_lshl_b32 s38, s{base_sgpr}, {FSH}")
    R(f"    s_add_u32 s38, s38, {G.FLG}")
    R("    s_mov_b32 s39, 0x20000")
    if n < 64: R(f"    s_mov_b64 exec, {hex((1 << n) - 1)}" if n < 32 else "    s_mov_b32 exec_hi, 0")
    R(f"{lab}:")
    R(f"    buffer_load_dword v31, v30, s[4:7], s38 offen sc1")
    R("    s_waitcnt vmcnt(0)")
    R("    v_cmp_ne_u32 vcc, 1, v31")
    R("    s_nop 1")
    R("    s_and_b64 exec, exec, vcc")
    R(f"    s_cbranch_scc0 {lab}_X")
    R(f"    s_sleep {P.get('sleep', 1)}")
    R("    s_sub_u32 s39, s39, 1")
    R("    s_cmp_lg_u32 s39, 0")
    R(f"    s_cbranch_scc1 {lab}")
    R(f"{lab}_X:")
    R("    s_mov_b64 exec, -1")
    A.label(f"{lab}_D")
    if not allwaves: A("s_barrier")
poll.n = 0

def t2_decode(A):
    A("""
    s_and_b32 s24, s2, 7
    s_lshr_b32 s25, s2, 3
    s_lshr_b32 s80, s24, 1
    s_lshl_b32 s80, s80, 3
    s_and_b32 s27, s25, 7
    s_add_u32 s80, s80, s27            ; rg
    s_and_b32 s81, s24, 1
    s_lshl_b32 s81, s81, 2
    s_lshr_b32 s28, s25, 3
    s_add_u32 s81, s81, s28            ; cg
    s_lshr_b32 s82, s81, 1
    s_mul_i32 s82, s82, 9
    s_and_b32 s83, s81, 1
    s_lshl_b32 s34, s83, 2
    s_add_u32 s82, s82, s34            ; nt0
    """)

def t2_setup(A, KS, ACT, WP, xin, xout):
    A(f"""
    v_and_b32 v1, 63, v0
    v_lshlrev_b32 v1, 4, v1
    s_mov_b32 s34, s3
    """)
    for i in range(4):
        A(f"s_mul_i32 s35, s34, {KS*1024}")
        A(f"v_add_u32 v{2+i}, s35, v1")
        if i > 0:
            A(f"s_mul_i32 s35, s34, 15360")
            A(f"s_add_u32 s35, s35, {RED + (i-1)*5120}")
            A(f"v_add_u32 v{11+i}, s35, v1")
        A("s_add_u32 s34, s34, 1")
        A("s_and_b32 s34, s34, 3")
    A(f"""
    v_mov_b32 v6, v1
    v_add_u32 v7, {KS*1024}, v1
    v_add_u32 v8, {2*KS*1024}, v1
    v_add_u32 v9, {3*KS*1024}, v1
    v_add_u32 v10, {4*KS*1024}, v1
    s_lshl_b32 s34, s3, 10
    s_mul_i32 s20, s80, {4*KS*1024}
    s_add_u32 s20, s20, {ACT}
    {LO2(20)}
    s_add_u32 s20, s20, s34
    s_mul_i32 s21, s82, {KS*1024}
    s_add_u32 s21, s21, {WP}
    s_add_u32 s21, s21, s34
    v_and_b32 v11, 15, v0
    v_lshlrev_b32 v11, 4, v11
    v_bfe_u32 v28, v0, 5, 1
    v_lshlrev_b32 v28, 9, v28
    v_add_u32 v11, v11, v28
    v_bfe_u32 v28, v0, 4, 1
    v_lshlrev_b32 v28, 3, v28
    v_add_u32 v11, v11, v28
    s_lshl_b32 s28, s80, 1
    s_lshr_b32 s29, s3, 1
    s_add_u32 s28, s28, s29            ; rb32
    s_mul_i32 s28, s28, 36
    s_add_u32 s28, s28, s82
    s_lshl_b32 s28, s28, 10
    s_and_b32 s29, s3, 1
    s_lshl_b32 s29, s29, 8
    s_add_u32 s28, s28, s29
    s_add_u32 s28, s28, s42
    s_add_u32 s22, s28, {xout*G.XSZ}
    s_add_u32 s23, s22, 4096
    s_add_u32 s28, s28, {xin*G.XSZ}
    s_add_u32 s29, s28, 4096
    s_mul_i32 s34, s3, 15360
    s_add_u32 s34, s34, {RED}
    v_add_u32 v27, s34, v1             ; lds read addr
    v_and_b32 v15, 15, v0
    v_mul_u32_u24 v29, 1152, v15
    v_lshlrev_b32 v15, 3, v15
    s_lshl_b32 s34, s80, 2
    s_add_u32 s34, s34, s3             ; rb16
    s_lshl_b32 s30, s34, 10
    s_lshl_b32 s35, s81, 7
    s_add_u32 s30, s30, s35
    s_add_u32 s30, s30, s43
    s_add_u32 s36, s30, {xout*G.SSZ}
    v_bfe_u32 v28, v0, 4, 2
    v_lshlrev_b32 v28, 3, v28
    v_add_u32 v29, v29, v28
    s_mul_i32 s31, s34, 18432
    s_lshl_b32 s35, s82, 5
    s_add_u32 s31, s31, s35
    """)

DEPTH = 6
def t2_buf(st, i):
    if MEGA: return 256 + 16 * st + 4 * i if i < 4 else 256 + 156 + 20 * st + 4 * (i - 4)
    return 256 + (st % DEPTH) * 36 + 4 * i
def t2_wload(A, NT, st):
    off = st * 4096
    A(f"s_add_u32 s37, s21, {off}")
    for t in range(NT):
        A(f"buffer_load_dwordx4 {r(t2_buf(st, 4+t), 4)}, v{6+t}, s[4:7], s37 offen", tag=f"l{st}")
def t2_aload(A, st, sc):
    if MEGA and st == 4:
        A(f"""
        v_bfe_u32 v30, v0, 4, 2
        v_lshlrev_b32 v30, 15, v30
        v_and_b32 v31, 15, v0
        v_lshlrev_b32 v31, 2, v31
        v_add_u32 v30, v30, v31
        s_and_b32 s37, s3, 1
        s_lshl_b32 s37, s37, 17
        s_lshl_b32 s34, s80, 8
        s_add_u32 s37, s37, s34
        s_add_u32 s37, s37, {G.OE}
        """)
        for i in range(4):
            A(f"s_add_u32 s34, s3, {i}")
            A("s_and_b32 s34, s34, 3")
            A("s_lshl_b32 s34, s34, 6")
            A("s_add_u32 s34, s34, s37")
            for j in range(4):
                A(f"buffer_load_dword {r(t2_buf(st, i) + j)}, v30, s[4:7], s34 offen{sc}", tag=f"l{st}")
                if j < 3: A("s_add_u32 s34, s34, 8192")
        return
    A(f"s_add_u32 s37, s20, {st*4096}")
    for i in range(4):
        A(f"buffer_load_dwordx4 {r(t2_buf(st, i), 4)}, v{2+i}, s[4:7], s37 offen{sc}", tag=f"l{st}")

def t2_main(A, NT, KS, pfx, wpre, sc, extra_vm, mid_hook, st0):
    nsteps = (KS + 3) // 4
    partial_last = (KS % 4) != 0
    ACC, RES = 32, 16
    def stage_loads(st):
        B = Asm()
        if st >= wpre: t2_wload(B, NT, st)
        t2_aload(B, st, sc)
        return B.ins
    PRE = min(P.get("t2_pre", 5 if MEGA else 2), nsteps)
    for st in range(PRE): A.ins += stage_loads(st)
    for t in range(NT):
        so, im = (28, t * 1024) if t < 4 else (29, 0)
        A(f"buffer_load_dwordx2 v[{RES+2*t}:{RES+2*t+1}], v11, s[4:7], s{so} offen offset:{im}{sc}", tag="res")
    if mid_hook == "bar": A("s_barrier")
    M = Asm(); marks = {}
    for st in range(nsteps):
        marks[st] = len(M.ins)
        M.wait(f"l{st}")
        if st == 0: M.stamp("t0")
        if st == 0 and st0 is not None: M.stamp(st0)
        if partial_last and st == nsteps - 1:
            M(f"s_cmp_ge_u32 s3, {KS % 4}")
            M(f"s_cbranch_scc1 {pfx}_SKIP")
        for mt in range(4):
            for t in range(NT):
                acc = ACC + 4 * (mt * NT + t)
                c = "0" if st == 0 else f"v[{acc}:{acc+3}]"
                M(f"v_mfma_f32_16x16x32_bf16 v[{acc}:{acc+3}], {r(t2_buf(st, 4+t), 4)}, {r(t2_buf(st, mt), 4)}, {c}")
    S_ = Sched(M.ins)
    first = []
    for st in range(PRE, min(DEPTH - 1, nsteps)): first += groups_vm(stage_loads(st))
    S_.release(0, "vm", first, every=1)
    for st in range(nsteps):
        n = st + DEPTH - 1
        if n < nsteps and n >= min(DEPTH - 1, nsteps):
            S_.release(marks[st], "vm", groups_vm(stage_loads(n)))
    out, rest = S_.run(gap=8, vm_every=1)
    check_tags(out + rest)
    assert not rest
    T = Asm()
    lastld = max([i for i, x in enumerate(out) if x.text.startswith("buffer_load")], default=-1)
    A.ins += out[:lastld + 1]
    T.ins += out[lastld + 1:]
    if partial_last: T.label(f"{pfx}_SKIP")
    T("s_nop 7")
    T.stamp("t1")
    for mt in range(1, 4):
        for t in range(NT):
            acc = ACC + 4 * (mt * NT + t)
            T(f"ds_write_b128 v{11+mt}, v[{acc}:{acc+3}] offset:{t*1024}")
    T.wait("res")
    X = ACC + 16 * NT
    for t in range(NT):
        for j in range(2):
            T(f"v_lshlrev_b32 v{X+4*t+2*j}, 16, v{RES+2*t+j}")
            T(f"v_and_b32 v{X+4*t+2*j+1}, 0xffff0000, v{RES+2*t+j}")
    for i in range(4 * NT): T(f"v_add_f32 v{X+i}, v{X+i}, v{ACC+i}")
    T.waitall(vm=False)
    T("s_barrier")
    tl, left = pace(T.ins, extra_vm or [], P.get("t2_pace", 70), first=P.get("t2_first", 100))
    A.ins += tl
    if left: print(pfx, "tail leftover", len(left))
    for g in left: A.ins += g
    left = []
    A.stamp("t2")
    for k in range(3):
        for t in range(NT):
            d = ACC + 4 * ((k + 1) * NT + t)
            A(f"ds_read_b128 v[{d}:{d+3}], v27 offset:{k*5120+t*1024}", tag=f"rd{k}")
    for k in range(3):
        A.wait(f"rd{k}")
        for i in range(4 * NT):
            A(f"v_add_f32 v{X+i}, v{X+i}, v{ACC+4*(k+1)*NT+i}")
    for i in range(2 * NT):
        A(f"v_cvt_pk_bf16_f32 v{RES+i}, v{X+2*i}, v{X+2*i+1}")
    return X, RES, left

def widen(A, RES):
    for p in range(2):
        for k in range(2):
            A(f"v_permlane16_swap_b32 v{RES+4*p+k}, v{RES+4*p+2+k}")

def final_store(A, NT, RES):
    A("""
    v_bfe_u32 v28, v0, 4, 1
    v_lshlrev_b32 v28, 5, v28
    v_bfe_u32 v30, v0, 5, 1
    v_lshlrev_b32 v30, 4, v30
    v_and_b32 v31, 15, v0
    v_mul_u32_u24 v31, 1152, v31
    v_add3_u32 v28, v28, v30, v31
    """)
    widen(A, RES)
    for p in range(2):
        A(f"buffer_store_dwordx4 v[{RES+4*p}:{RES+4*p+3}], v28, s[8:11], s31 offen offset:{p*64}")
    if NT == 5: A(f"buffer_store_dwordx2 v[{RES+8}:{RES+9}], v29, s[8:11], s31 offen offset:128")

def t2_store(A, NT, X, RES):
    A("""
    v_bfe_u32 v28, v0, 4, 1
    v_lshlrev_b32 v28, 10, v28
    v_bfe_u32 v30, v0, 5, 1
    v_lshlrev_b32 v30, 9, v30
    v_and_b32 v31, 15, v0
    v_lshlrev_b32 v31, 4, v31
    v_add3_u32 v30, v28, v30, v31
    """)
    widen(A, RES)
    for p in range(2):
        A(f"buffer_store_dwordx4 v[{RES+4*p}:{RES+4*p+3}], v30, s[4:7], s22 offen offset:{p*2048} sc1", tag="out")
    if NT == 5: A(f"buffer_store_dwordx2 v[{RES+8}:{RES+9}], v11, s[4:7], s23 offen sc1", tag="out")
    for i in range(2 * NT):
        A(f"v_lshlrev_b32 v{X+2*i}, 16, v{RES+i}")
        A(f"v_and_b32 v{X+2*i+1}, 0xffff0000, v{RES+i}")
    def xreduce(dst):
        A(f"v_mov_b32 v28, v{dst}")
        A(f"v_permlane16_swap_b32 v{dst}, v28")
        A(f"v_add_f32 v{dst}, v{dst}, v28")
        A(f"v_mov_b32 v28, v{dst}")
        A(f"v_permlane32_swap_b32 v{dst}, v28")
        A(f"v_add_f32 v{dst}, v{dst}, v28")
    A(f"v_add_f32 v26, v{X}, v{X+1}")
    A(f"v_add_f32 v27, v{X+2}, v{X+3}")
    for i in range(4, 4 * NT): A(f"v_add_f32 v{26+(i&1)}, v{26+(i&1)}, v{X+i}")
    A("v_add_f32 v26, v26, v27")
    xreduce(26)
    A(f"v_mul_f32 v26, {hex(G.f32(1.0/(16*NT)))}, v26")
    A("v_mov_b32 v27, 0")
    for i in range(4 * NT):
        A(f"v_sub_f32 v{X+i}, v{X+i}, v26")
        A(f"v_fmac_f32 v27, v{X+i}, v{X+i}")
    xreduce(27)
    A("buffer_store_dwordx2 v[26:27], v15, s[4:7], s36 offen sc1", tag="out")

def tile_dmas(tiles, slot_of, s_srcw, s_src, s_ldsw, tag):
    B = Asm()
    for t in tiles:
        for c in range(10):
            if c < 9: dma(B, s_srcw, t * G.T1S + c * 4096, s_ldsw, slot_of(t) * G.T1S + c * 4096, 1, tag(t), stmp=38)
            else: dma(B, s_src, t * G.T1S + 36 * 1024, None, slot_of(t) * G.T1S + 36 * 1024, 1, tag(t), stmp=38)
    return groups_vm(B.ins)

def k4_decode(A):
    A(f"""
    s_and_b32 s84, s2, 7
    s_lshl_b32 s84, s84, 2
    s_bfe_u32 s25, s2, 0x20003
    s_add_u32 s84, s84, s25            ; cb
    s_lshr_b32 s85, s2, 5              ; rb8
    s_lshl_b32 s78, s3, 10
    s_mul_i32 s76, s84, {9*G.T1S}
    s_add_u32 s76, s76, {G.W13}
    s_add_u32 s77, s76, s78
    """)

def k4_phase(A, tail_vm):
    def xreg(j, ks):
        if ks == 36: return 16 + 4 * j
        idx = j * 36 + ks
        if idx < 64: return 256 + 4 * idx
        return 24 + 4 * (idx - 64)
    sl = {0: 0, 1: 1, 2: 2, 3: 3, 4: 0, 5: 1, 6: 2, 7: 3, 8: 0}
    accreg = lambda t, j: 88 + 32 * sl[t] + 16 * j
    t1 = T1(2, xreg, accreg, 56, 8, lambda t: sl[t], 2)
    A(f"""
    v_mov_b32 v2, v1
    v_add_u32 v3, 0x10000, v1
    v_add_u32 v4, 0x20000, v1
    s_lshl_b32 s26, s85, 3
    s_lshl_b32 s27, s3, 1
    s_add_u32 s26, s26, s27
    s_mul_i32 s23, s26, 36864
    s_add_u32 s23, s23, s42
    s_add_u32 s23, s23, {G.XSZ}
    s_lshl_b32 s29, s26, 11
    s_add_u32 s29, s29, s43
    s_add_u32 s29, s29, {G.SSZ}
    v_bfe_u32 v5, v0, 4, 1
    v_mul_u32_u24 v5, {144*1024}, v5
    v_and_b32 v10, 15, v0
    v_lshlrev_b32 v10, 4, v10
    v_add_u32 v5, v5, v10
    v_bfe_u32 v10, v0, 5, 1
    v_lshlrev_b32 v10, 8, v10
    v_add_u32 v5, v5, v10
    s_mul_i32 s31, s26, {2*144*1024}
    s_mul_i32 s32, s84, {9*512}
    s_add_u32 s31, s31, s32
    s_add_u32 s31, s31, {G.HF}
    {LO2(31)}
    s_lshl_b32 s24, s26, 4
    s_add_u32 s24, s24, s41
    s_mul_i32 s79, s82, {144*1024}
    s_add_u32 s79, s79, {G.W2}
    s_add_u32 s79, s79, s78
    """)
    if SK: k5_decode(A)
    if not SK: A.stamp(2)
    poll(A, 24, 8, True)
    A.wait("w0", "w1", "w2", "t3")
    if not SK: A.stamp(3)
    def xl(B, ks):
        for j in range(2):
            B(f"s_add_u32 s30, s23, {j*36864 + (ks//4)*4096}")
            B(f"buffer_load_dwordx4 {r(xreg(j, ks), 4)}, v1, s[4:7], s30 offen offset:{(ks%4)*1024} sc1", tag=f"x{ks}")
    AHEAD = P.get("k4_ahead", 6)
    for ks in range(2): xl(A, ks)
    stats_load(A, 2, 29, 216, 10, " sc1")
    for ks in range(2, AHEAD): xl(A, ks)
    A("s_barrier")
    SC = Asm()
    SC.wait("st")
    SC("v_cmp_gt_u32 vcc, 512, v1")
    for j in range(2):
        stats_compute(SC, 216 + 16 * j, 12, 8 + j, 10)
        build_xext(SC, 12, 16 + 4 * j, 13)
        SC(f"v_rsq_f32 v{6+j}, v{8+j}")
        SC(f"v_mul_f32 v{6+j}, {hex(G.f32(-LOG2E))}, v{6+j}")
    def epilogue(t):
        E = Asm()
        for j in range(2):
            acc = accreg(t, j)
            tm = 216 + 20 * j
            for i in range(8): E(f"v_mul_f32 v{tm+i}, v{acc+i}, v{6+j}")
            for i in range(8): E(f"v_exp_f32 v{tm+i}, v{tm+i}")
            for i in range(8): E(f"v_mul_f32 v{tm+8+i}, v{acc+i}, v{acc+8+i}")
            for i in range(8): E(f"v_fma_f32 v{tm+i}, v{tm+i}, v{8+j}, v{8+j}")
            for i in range(8): E(f"v_rcp_f32 v{tm+i}, v{tm+i}")
            for i in range(8): E(f"v_mul_f32 v{tm+8+i}, v{tm+8+i}, v{tm+i}")
            for i in range(4): E(f"v_cvt_pk_bf16_f32 v{tm+16+i}, v{tm+8+2*i}, v{tm+9+2*i}")
            E(f"s_add_u32 s33, s31, {j*2*144*1024 + t*512}")
            E(f"buffer_store_dwordx4 v[{tm+16}:{tm+19}], v5, s[4:7], s33 offen sc1", tag="hout" if t > (5 if K45 else 6) else "hE")
        return E.ins
    items = [(t, ks) for ks in range(37) for t in range(3)] + [(t, ks) for t in range(3, 9) for ks in range(37)]
    DIST = 6
    M = Asm(); marks = {}
    def pre_read(i):
        t, ks = items[i]
        if t >= 4 and ks == 0:
            M.wait(f"t{t}")
            if K45 and t == 8: M.wait("hE")
            M("s_barrier")
            if K45 and t == 8:
                flag_store(M, 13, 14)
                M("v_and_b32 v14, 7, v0")
                M(f"v_lshlrev_b32 v14, {2+FSH}, v14")
            if t in (5, 6): marks[("dma", t + 2)] = len(M.ins)
        t1.read(M, i, t, ks)
    for i in range(DIST): pre_read(i)
    for i, (t, ks) in enumerate(items):
        if t == 0: marks[("ks", ks)] = len(M.ins)
        if t == 8: marks[("ks8", ks)] = len(M.ins)
        if i + DIST < len(items): pre_read(i + DIST)
        if ks == 0 and t >= 3:
            if t in (3, 6): M.stamp(5 if t == 3 else 6)
            marks[("tile", t)] = len(M.ins)
        M.wait(f"wf{i}", f"x{ks}")
        if i == 0: M.stamp(4)
        t1.mfmas(M, i, t, ks)
        if t == 3 and ks == 2:
            M("s_barrier")
            marks[("dma", 4)] = len(M.ins)
        if t in (7, 8) and ks in (0, 18): M.stamp(f"t{t}k{ks}")
        if t == 8 and ks == 36: M.stamp("t8e")
        if K45 and t == 8:
            if ks == 4:
                M("s_barrier")
                marks[("q2",)] = len(M.ins)
            if ks == P.get("k45_fl", 20):
                M("buffer_load_dword v15, v14, s[4:7], s15 offen sc1", tag="fe")
            if ks == P.get("k45_ck", 26):
                flagchk(M, "K5E", "fe", 15, 14, 15)
                marks[("hgo",)] = len(M.ins)
        elif SK and t == 8 and ks == 8:
            M.wait("hE")
            M("s_barrier")
            flag_store(M, 13, 14)
            M("v_and_b32 v14, 7, v0")
            M(f"v_lshlrev_b32 v14, {2+FSH}, v14")
            marks[("q2",)] = len(M.ins)
        elif SK and t == 8 and ks == 36:
            M("buffer_load_dword v15, v14, s[4:7], s15 offen sc1", tag="fe")
    dm = lambda ts: tile_dmas(ts, lambda t: sl[t], 77, 76, 78, lambda t: f"t{t}")
    S_ = Sched(M.ins)
    B = Asm()
    for ks in range(AHEAD, 36): xl(B, ks)
    S_.release(0, "vm", groups_vm(B.ins), every=P.get("k4_e0", 2.5))
    S_.release(marks[("ks", 4)], "va", groups_1(SC.ins))
    S_.release(marks[("tile", 3)], "va", groups_1(epilogue(0) + epilogue(1) + epilogue(2)), skip=3)
    S_.release(marks[("dma", 4)], "vm", dm([4, 5, 6]), every=3)
    S_.release(marks[("dma", 7)], "vm", dm([7]))
    S_.release(marks[("dma", 8)], "vm", dm([8]))
    for t in range(4, 9):
        S_.release(marks[("tile", t)], "va", groups_1(epilogue(t - 1)), skip=3)
    def w2pre(st):
        B = Asm()
        for t in range(5):
            B(f"s_add_u32 s37, s79, {t*144*1024 + st*4096}")
            B(f"buffer_load_dwordx4 {r(t2_buf(st, 4+t), 4)}, v1, s[4:7], s37 offen", tag=f"l{st}")
        return groups_vm(B.ins)
    if SK:
        S_.release(marks[("ks8", 0)], "vm", k5_unit(0) + k5_unit(1), every=2)
        S_.release(marks[("q2",)], "vm", k5_unit(2) + k5_unit(3))
        if K45:
            B = Asm()
            for st in range(P.get("k5_ahead", 6)): k5_hl(B, st)
            S_.release(marks[("hgo",)], "vm", groups_vm(B.ins), front=True)
        out, rest = S_.run(cap=24, vm_cost=16)
        e8 = epilogue(8)
        if K45:
            B = Asm(); B.wait("d0", "d1"); B("s_barrier")
            e8 = B.ins + pace(e8, k5_unit(4), 60)[0]
    else:
        S_.release(marks[("ks8", 9)], "vm", w2pre(0) + w2pre(4), every=2)
        S_.release(marks[("ks8", 18)], "vm", w2pre(1))
        S_.release(marks[("ks8", 27)], "vm", w2pre(2))
        out, rest = S_.run(cap=24, vm_cost=16)
        e8, left = pace(epilogue(8), w2pre(3), 40)
        assert not left
    lst = out + rest + e8
    K4M.check_order(lst, accreg)
    check_tags(lst)
    A.ins += lst
    A.stamp(7)

TS = 144 * 1024
ORD = [0, 1, 2, 5, 6, 7, 3, 4, 8] if not P.get('k45', 1) else [0, 1, 2, 5, 6, 3, 7, 4, 8]
K5P = [37888, 66560, 95232, 123904, 0]
def k5_decode(A):
    A(f"""
    s_and_b32 s82, s2, 3
    s_bfe_u32 s80, s2, 0x10002
    s_lshl_b32 s80, s80, 3
    s_bfe_u32 s81, s2, 0x30003
    s_add_u32 s80, s80, s81            ; rg128
    s_lshr_b32 s81, s2, 6              ; cgp
    s_mul_i32 s79, s81, {9*TS}
    s_mul_i32 s83, s82, {36*1024}
    s_add_u32 s79, s79, s83
    s_mul_i32 s83, s3, 9216
    s_add_u32 s79, s79, s83
    s_add_u32 s79, s79, {G.W2}
    s_add_u32 s83, s79, {4*TS}
    s_sub_u32 s19, s79, {5*TS}
    s_bitcmp1_b32 s82, 0               ; nh
    s_cselect_b32 s19, s79, s19
    s_cselect_b32 s79, s79, s83
    s_mul_i32 s83, s3, 7168
    s_lshl_b32 s14, s3, 11
    s_lshr_b32 s15, s80, 1
    s_lshl_b32 s15, s15, 2
    s_add_u32 s15, s15, s82
    s_lshl_b32 s15, s15, 5
    s_add_u32 s15, s15, s41
    s_add_u32 s15, s15, 3072
    s_lshl_b32 s15, s15, {FSH}
    s_add_u32 s15, s15, {G.FLG}
    s_lshl_b32 s13, s85, 5
    s_add_u32 s13, s13, s84
    s_lshl_b32 s13, s13, 2
    s_add_u32 s13, s13, s41
    s_add_u32 s13, s13, 3072
    s_lshl_b32 s34, s80, 2
    s_add_u32 s34, s34, s3
    s_mul_i32 s20, s34, {2*144*1024}
    s_mul_i32 s21, s82, {36*1024}
    s_add_u32 s20, s20, s21
    s_add_u32 s20, s20, {G.HF}
    {LO2(20)}
    s_add_u32 s12, s20, {144*1024}
    s_bitcmp1_b32 s82, 1               ; mt_own
    s_cselect_b32 s21, s12, s20
    s_cselect_b32 s12, s20, s12
    s_mov_b32 s20, s21
    """)
def k5_unit(u):
    B = Asm()
    if u < 9:
        for j in range(7):
            dma(B, 79 if j < 5 else 19, j * TS + ORD[u] * 1024, 83, K5P[u % 5] + j * 1024, 1, f"d{u}", stmp=38)
    else:
        for qq in range(3):
            for j in range(7, 9):
                dma(B, 19, j * TS + ORD[3 * (u - 9) + qq] * 1024, 14, K5P[u % 5] + qq * 8192 + (j - 7) * 1024, 1, f"d{u}", stmp=38)
    return groups_vm(B.ins)

def flagchk(A, lab, tag, vreg, vaddr, sbase):
    A.wait(tag)
    A(f"v_cmp_eq_u32 vcc, 1, v{vreg}")
    A("s_cmp_eq_u64 vcc, -1")
    A(f"s_cbranch_scc1 {lab}_OK")
    R = A.raw
    R("    s_mov_b32 s39, 0x20000")
    R(f"{lab}:")
    R("    s_sleep 1")
    R(f"    buffer_load_dword v{vreg}, v{vaddr}, s[4:7], s{sbase} offen sc1")
    R("    s_waitcnt vmcnt(0)")
    R(f"    v_cmp_eq_u32 vcc, 1, v{vreg}")
    R("    s_nop 1")
    R("    s_cmp_eq_u64 vcc, -1")
    R(f"    s_cbranch_scc1 {lab}_OK")
    R("    s_sub_u32 s39, s39, 1")
    R("    s_cmp_lg_u32 s39, 0")
    R(f"    s_cbranch_scc1 {lab}")
    A.label(f"{lab}_OK")

def flag_store(A, sgpr, vt=30):
    lab = f"SIG{signal.n}"; signal.n += 1
    A("s_cmp_lg_u32 s3, 0")
    A(f"s_cbranch_scc1 {lab}")
    A.raw("    s_mov_b64 exec, 1")
    A.raw(f"    v_mov_b32 v{vt}, 0")
    A.raw(f"    v_mov_b32 v{vt+1}, 1")
    A.raw(f"    s_lshl_b32 s38, s{sgpr}, {FSH}")
    A.raw(f"    s_add_u32 s38, s38, {G.FLG}")
    A.raw(f"    buffer_store_dword v{vt+1}, v{vt}, s[4:7], s38 offen sc1")
    A.raw("    s_mov_b64 exec, -1")
    A.label(lab)

def k5_hreg(st, j):
    return 256 + 8 * st + 4 * j if st < 32 else 168 + 8 * (st - 32) + 4 * j
def k5_hl(B, st):
    ph = 9 * (st % 4) + ORD[st // 4]
    for j in range(2):
        B(f"s_add_u32 s30, s{20 if j == 0 else 12}, {(ph//4)*4096}")
        B(f"buffer_load_dwordx4 {r(k5_hreg(st, j), 4)}, v1, s[4:7], s30 offen offset:{(ph%4)*1024} sc1", tag=f"h{st}")

class guarded: n = 0
_gn = guarded
def k5_path(A, nh, qtile, AHEAD, setup):
    NO, NB = (5, 4) if nh == 0 else (4, 5)
    ACC, WR, R, PB = 32, 104, P.get('k5_r', 12), 200
    acc = lambda j, sl: ACC + 36 * j + 4 * sl
    hreg = k5_hreg
    items = [(0, st, sl) for st in range(36) for sl in range(7)] + [(1, st, sl) for st in range(36) for sl in (7, 8)]
    DIST = P.get("k5_dist", 9)
    M = Asm(); marks = {}
    def rd(i):
        ps, st, sl = items[i]
        if ps == 0:
            u = st // 4; first = (st % 4 == 0 and sl == 0)
            off = K5P[u % 5] + (st % 4) * 7168 + sl * 1024
        else:
            u = 9 + st // 12; first = (st % 12 == 0 and sl == 7)
            off = K5P[u % 5] + ((st // 4) % 3) * 8192 + (st % 4) * 2048 + (sl - 7) * 1024
        if first and u >= 2:
            M.wait(f"d{u}")
            if K45 and u == 2: M.wait("hout")
            M("s_barrier")
            if K45 and u == 2: flag_store(M, 26)
            marks[("B", u)] = len(M.ins)
        w = WR + 4 * (i % R)
        M(f"ds_read_b128 v[{w}:{w+3}], v{2 + (off >> 16)} offset:{off & 0xffff}", tag=f"wf{i}")
    for i in range(DIST): rd(i)
    WG_ = P.get('k5_wg', 3)
    assert DIST + 1 <= R and WG_ <= DIST
    NE = 20 if K45 else 24
    LA = P.get('k5_la', 4) if K45 else AHEAD
    CHK = NE - LA
    for i, (ps, st, sl) in enumerate(items):
        if sl in (0, 7):
            if (ps, st) == (0, CHK - P.get("k5_fl", 3)):
                M("buffer_load_dword v13, v14, s[4:7], s25 offen sc1", tag="fl")
            if ps == 0 and st % 4 == 0: M.stamp(f"s{st}")
            if (ps, st) == (0, CHK):
                flagchk(M, f"K5L{nh}", "fl", 13, 14, 25)
                M.stamp("sc")
            marks[("st", ps, st)] = len(M.ins)
        if (ps, st, sl) == (1, 0, 7): M.stamp(13)
        if i + DIST < len(items): rd(i + DIST)
        tags = []
        if i % WG_ == 0: tags.append(f"wf{min(i + WG_ - 1, len(items) - 1)}")
        if ps == 0 and sl == 0: tags.append(f"h{st}")
        if tags: M.wait(*tags)
        w = WR + 4 * (i % R)
        for j in range(2):
            a_ = acc(j, sl)
            c = "0" if st == 0 else f"v[{a_}:{a_+3}]"
            M(f"v_mfma_f32_16x16x32_bf16 v[{a_}:{a_+3}], v[{w}:{w+3}], {r(hreg(st, j), 4)}, {c}")
    S_ = Sched(M.ins)
    late = []
    if setup:
        gs = []; cur = []
        for k, x in enumerate(setup):
            cur.append(I(x.text))
            nxt = setup[k + 1].text if k + 1 < len(setup) else ""
            if (len(cur) >= 4 or x.text.startswith("v_")) and not nxt.startswith("s_cselect"):
                gs.append(cur); cur = []
        if cur: gs.append(cur)
        S_.release(marks[("st", 0, 1)], "va", gs)
    for st in range(AHEAD, 36):
        B = Asm(); k5_hl(B, st)
        rel = st - AHEAD if st < NE else max(st - AHEAD, CHK)
        if st >= NE and st - AHEAD < CHK: late.extend([B.ins[:2], B.ins[2:]])
        else: S_.release(marks[("st", 0, rel)], "vm", [B.ins[:2], B.ins[2:]], every=P.get("k5_e", 3), front=(st - AHEAD != CHK))
        if st - AHEAD == CHK - 1: S_.release(marks[("st", 0, CHK)], "vm", late, front=True)
    for u in range(5, 12):
        S_.release(marks[("B", u - 3)], "vm", k5_unit(u))
    def guarded(gs, k):
        out = []
        for i in range(0, len(gs), k):
            _gn.n += 1
            lab = f"QSK{_gn.n}"
            blk = [I("s_cmp_lg_u32 s40, 0"), I(f"s_cbranch_scc1 {lab}")]
            for g in gs[i:i+k]:
                for x in g:
                    if x.text.startswith("buffer_"): blk.append(I(" " + x.text.replace(" lds", " sc1 lds"), kind="raw"))
                    elif "m0" in x.text: blk += [I(" " + x.text, kind="raw"), I(" s_nop 0", kind="raw")]
                    else: blk.append(I(" " + x.text, kind="raw"))
            blk.append(I(lab + ":", kind="label"))
            out.append(blk)
        return out
    QK_ = P.get("k5_qk", 3)
    if QK_:
        S_.release(marks[("B", 10)], "vm", guarded(qtile(3), QK_), every=P.get("k5_qe", 8))
        S_.release(marks[("B", 11)], "vm", guarded(qtile(0), QK_))
    else:
        S_.release(marks[("B", 10)], "vm", qtile(3))
        S_.release(marks[("B", 11)], "vm", qtile(0))
    def pieces(n): return [(0, 2), (2, 2)] if n == 4 else [(0, 2), (2, 1), (3, 2)]
    def pstore(a0, n, sbase, sel, tag):
        B = Asm()
        for pi, (t0, k) in enumerate(pieces(n)):
            if pi not in sel: continue
            b = a0 + 4 * t0
            for i in range(2 * k): B(f"v_cvt_pk_bf16_f32 v{b+i}, v{b+2*i}, v{b+2*i+1}")
            if k == 2: B(f"buffer_store_dwordx4 v[{b}:{b+3}], v1, s[4:7], s{sbase} offen offset:{pi*1024} sc1", tag=tag)
            else: B(f"buffer_store_dwordx2 v[{b}:{b+1}], v1, s[4:7], s{sbase} offen offset:{pi*1024} sc1", tag=tag)
        return B.ins
    def pload(dst, k, tag):
        B = Asm()
        B(f"s_add_u32 s37, s21, {k*12288}")
        for pi, (t0, kk) in enumerate(pieces(NB)):
            d = dst + 4 * pi
            if kk == 2: B(f"buffer_load_dwordx4 v[{d}:{d+3}], v1, s[4:7], s37 offen offset:{pi*1024} sc1", tag=tag)
            else: B(f"buffer_load_dwordx2 v[{d}:{d+1}], v1, s[4:7], s37 offen offset:{pi*1024} sc1", tag=tag)
        return B.ins
    def pregs(dst):
        return [dst + 4 * pi + i for pi, (t0, kk) in enumerate(pieces(NB)) for i in range(2 * kk)]
    def check(regs):
        B = Asm()
        B(f"v_max3_u32 v30, v{regs[0]}, v{regs[1]}, v{regs[2]}")
        rest_ = regs[3:]
        while len(rest_) >= 2:
            B(f"v_max3_u32 v30, v30, v{rest_[0]}, v{rest_[1]}"); rest_ = rest_[2:]
        if rest_: B(f"v_max_u32 v30, v30, v{rest_[0]}")
        B("v_cmp_eq_u32 vcc, -1, v30")
        B("s_cmp_eq_u64 vcc, 0")
        return B.ins
    RES = 16
    B = Asm()
    for t in range(NB):
        so, im = (28, t * 1024) if t < 4 else (29, 0)
        B(f"buffer_load_dwordx2 v[{RES+2*t}:{RES+2*t+1}], v11, s[4:7], s{so} offen offset:{im} sc1", tag="res")
    S_.release(marks[("st", 0, 30)], "vm", groups_vm(B.ins))
    np_ = len(pieces(NB))
    allp = range(3)
    S_.release(marks[("st", 1, 2)], "va", groups_1(pstore(acc(0, 0), NO, 16, allp, "pa") + pstore(acc(1, 0), NO, 17, allp, "pa")
                                                  + pstore(acc(1, NO), NB, 18, range(np_ - 1), "pa")))
    out, rest = S_.run(gap=8, vm_cost=8)
    assert not rest, len(rest)
    check_tags(out)
    A.ins += out
    A.stamp(10)
    A.ins += pstore(acc(1, NO), NB, 18, [np_ - 1], "pb")
    A.ins += pload(PB, 0, "p0") + pload(PB + 12, 1, "p0") + pload(PB + 24, 2, "p2")
    A("s_barrier")
    X = WR
    A.wait("res")
    for t in range(NB):
        for j in range(2):
            A(f"v_lshlrev_b32 v{X+4*t+2*j}, 16, v{RES+2*t+j}")
            A(f"v_and_b32 v{X+4*t+2*j+1}, 0xffff0000, v{RES+2*t+j}")
    for i in range(4 * NB): A(f"v_add_f32 v{X+i}, v{X+i}, v{acc(0, NO)+i}")
    def addp(b):
        for i, rg in enumerate(pregs(b)):
            A(f"v_lshlrev_b32 v30, 16, v{rg}")
            A(f"v_and_b32 v31, 0xffff0000, v{rg}")
            A(f"v_add_f32 v{X+2*i}, v{X+2*i}, v30")
            A(f"v_add_f32 v{X+2*i+1}, v{X+2*i+1}, v31")
    def spin(lab, regs, loads, tag):
        A("s_mov_b32 s39, 0x20000")
        A.wait(tag)
        A.label(lab)
        A.ins += check(regs)
        A(f"s_cbranch_scc1 {lab}_OK")
        A.save(lab)
        A(f"s_sleep {P.get('k5_sleep', 1)}")
        A.ins += loads
        A("s_waitcnt vmcnt(0)")
        A("s_sub_u32 s39, s39, 1")
        A("s_cmp_lg_u32 s39, 0")
        A(f"s_cbranch_scc1 {lab}")
        A.label(f"{lab}_OK")
        A.restore(lab)
    spin(f"K5SA{nh}", pregs(PB) + pregs(PB + 12), pload(PB, 0, None) + pload(PB + 12, 1, None), "p0")
    addp(PB); addp(PB + 12)
    spin(f"K5SB{nh}", pregs(PB + 24), pload(PB + 24, 2, None), "p2")
    A.stamp(2)
    addp(PB + 24)
    for i in range(2 * NB):
        A(f"v_cvt_pk_bf16_f32 v{RES+i}, v{X+2*i}, v{X+2*i+1}")
    A.stamp(3)
    pfx = f"K5{nh}"
    A("s_cmp_lg_u32 s40, 0")
    A(f"s_cbranch_scc1 {pfx}_FINAL")
    A.save(pfx + "fin")
    t2_store(A, NB, X, RES)
    A("s_branch K5_DONE")
    A.save(pfx + "done")
    A.label(f"{pfx}_FINAL")
    A.restore(pfx + "fin")
    final_store(A, NB, RES)
    A("s_endpgm")

def k5_phase(A0, qtile, NMID):
    AHEAD = P.get("k5_ahead", 6)
    A = A0
    if not K45:
        flagchk(A, "K5E", "fe", 15, 14, 15)
        for st in range(AHEAD): k5_hl(A, st)
        A("s_sub_u32 s24, s13, 2048")
        A.wait("d0", "d1", "d2", "d3")
        signal(A, 24, "hout")
        A.stamp(8)
        for g in k5_unit(4): A.ins += g
    else:
        A("s_sub_u32 s26, s13, 2048")
        A = Asm()
    k1_decode(A, None)
    A(f"""
    s_lshr_b32 s32, s82, 1             ; mt_own
    s_and_b32 s33, s82, 1              ; nh
    s_lshl_b32 s34, s80, 2
    s_add_u32 s34, s34, s3
    s_lshl_b32 s27, s80, 2
    s_add_u32 s27, s27, s81            ; tile
    s_mul_i32 s21, s27, {4*36864}
    s_mul_i32 s35, s3, 3072
    s_add_u32 s21, s21, s35
    s_add_u32 s21, s21, {G.PART}
    {LO2(21)}
    s_mul_i32 s35, s32, 12288
    s_add_u32 s35, s35, s21
    s_xor_b32 s36, s82, 1
    s_mul_i32 s36, s36, 36864
    s_add_u32 s16, s35, s36
    s_xor_b32 s36, s82, 3
    s_mul_i32 s36, s36, 36864
    s_add_u32 s17, s35, s36
    s_xor_b32 s36, s82, 2
    s_mul_i32 s36, s36, 36864
    s_add_u32 s18, s21, s36
    s_add_u32 s18, s18, 24576
    s_mul_i32 s36, s82, 36864
    s_add_u32 s21, s21, s36
    s_mul_i32 s13, s81, 9
    s_lshl_b32 s35, s33, 2
    s_add_u32 s13, s13, s35            ; nt0
    v_and_b32 v11, 15, v0
    v_lshlrev_b32 v11, 4, v11
    v_bfe_u32 v28, v0, 5, 1
    v_lshlrev_b32 v28, 9, v28
    v_add_u32 v11, v11, v28
    v_bfe_u32 v28, v0, 4, 1
    v_lshlrev_b32 v28, 3, v28
    v_add_u32 v11, v11, v28
    s_mul_i32 s28, s34, 36
    s_add_u32 s28, s28, s13
    s_lshl_b32 s28, s28, 10
    s_lshl_b32 s29, s32, 8
    s_add_u32 s28, s28, s29
    s_add_u32 s28, s28, s42
    s_add_u32 s22, s28, {X2I*G.XSZ}
    s_add_u32 s23, s22, 4096
    s_add_u32 s28, s28, {G.XSZ}
    s_add_u32 s29, s28, 4096
    v_and_b32 v15, 15, v0
    v_mul_u32_u24 v29, 1152, v15
    v_lshlrev_b32 v15, 3, v15
    s_lshl_b32 s35, s34, 1
    s_add_u32 s35, s35, s32            ; rb16
    s_lshl_b32 s36, s35, 10
    s_lshl_b32 s37, s81, 1
    s_add_u32 s37, s37, s33
    s_lshl_b32 s37, s37, 7
    s_add_u32 s36, s36, s37
    s_add_u32 s36, s36, s43
    s_add_u32 s36, s36, {X2I*G.SSZ}
    v_bfe_u32 v28, v0, 4, 2
    v_lshlrev_b32 v28, 3, v28
    v_add_u32 v29, v29, v28
    s_mul_i32 s31, s35, 18432
    s_lshl_b32 s37, s13, 5
    s_add_u32 s31, s31, s37
    s_sub_u32 s25, s15, {2048 << FSH}
    """)
    setup = A.ins if K45 else []
    A = A0
    A.stamp(9)
    A("s_bitcmp1_b32 s82, 0")
    A("s_cbranch_scc1 K5_N1")
    A.save("k5n1")
    k5_path(A, 0, qtile, AHEAD, setup)
    A.label("K5_N1"); A.restore("k5n1")
    k5_path(A, 1, qtile, AHEAD, setup)
    A.label("K5_DONE")
    A.restore("K51done")
    A("s_lshl_b32 s24, s80, 2")
    A("s_add_u32 s24, s24, s81")
    A("s_lshl_b32 s24, s24, 2")
    A("s_add_u32 s24, s24, s82")
    A("s_lshl_b32 s24, s24, 2")
    A("s_add_u32 s24, s24, s41")
    A("s_add_u32 s24, s24, 2048")
    rest = qtile(1) + qtile(2)
    for g in rest[:NMID]: A.ins += g
    signal(A, 24, "out")
    A.stamp(11)
    if MEGA:
        A("s_mov_b32 s101, s41")
        A(f"s_mov_b32 s40, 1")
        A(f"s_mov_b32 s41, 8192")
        A(f"s_mov_b32 s42, {G.XF + X2I*G.XSZ}")
        A(f"s_mov_b32 s43, {G.ST + X2I*G.SSZ}")
        A(f"s_mov_b32 s100, {G.LBS}")
    else:
        A("s_cmp_ge_u32 s87, 15")
        A("s_cbranch_scc1 CH_END")
    for g in rest[NMID:]: A.ins += g

def k1_decode(A, endlab):
    if MEGA and P.get("solo", 1) and P.get("early", 0):
        A("""
        s_and_b32 s86, s2, 7
        s_lshl_b32 s86, s86, 1
        s_bfe_u32 s27, s2, 0x10003
        s_add_u32 s86, s86, s27
        s_lshr_b32 s87, s2, 4
        """)
    else:
        A("""
        s_and_b32 s24, s2, 7
        s_lshr_b32 s25, s2, 3
        s_lshr_b32 s86, s24, 1
        s_lshl_b32 s86, s86, 2
        s_and_b32 s27, s25, 3
        s_add_u32 s86, s86, s27
        s_and_b32 s87, s24, 1
        s_lshl_b32 s87, s87, 3
        s_lshr_b32 s34, s25, 2
        s_add_u32 s87, s87, s34
        """)
    A(f"""
    s_lshl_b32 s78, s3, 10
    s_lshl_b32 s34, s87, 2
    s_mul_i32 s35, s87, 3
    s_add_u32 s35, s35, 9
    s_cmp_ge_u32 s87, 9
    s_cselect_b32 s34, s35, s34
    s_cmp_eq_u32 s87, 15
    s_cselect_b32 s34, 34, s34
    s_mul_i32 s76, s34, {G.T1S}
    s_add_u32 s76, s76, {G.WQ}
    s_add_u32 s77, s76, s78
    """)

def k1_main(A, NT, swapped, sc):
    xreg = lambda j, ks: (256 + 4 * ks) if ks < 36 else 8
    t1 = T1(1, xreg, lambda t, j: 64 + 16 * t, 32, 8, lambda t: t, 2, swapped)
    def xl(B, ks):
        B(f"s_add_u32 s30, s23, {(ks//4)*4096}")
        B(f"buffer_load_dwordx4 {r(xreg(0, ks), 4)}, v1, s[4:7], s30 offen offset:{(ks%4)*1024}{sc}", tag=f"x{ks}")
    AHEAD = P.get("k1_ahead", 10)
    for ks in range(2): xl(A, ks)
    stats_load(A, 1, 29, 16, 12, sc)
    for ks in range(2, AHEAD): xl(A, ks)
    A("s_barrier")
    SC = Asm()
    SC.wait("st")
    stats_compute(SC, 16, 5, 6, 12)
    SC("v_cmp_gt_u32 vcc, 512, v1")
    build_xext(SC, 5, 8, 12)
    SC("v_rsq_f32 v6, v6")
    items = [(t, ks) for ks in range(37) for t in range(NT)]
    DIST = 6
    M = Asm(); marks = {}
    for i in range(DIST): t1.read(M, i, *items[i])
    for i, (t, ks) in enumerate(items):
        if t == 0: marks[ks] = len(M.ins)
        if i + DIST < len(items): t1.read(M, i + DIST, *items[i + DIST])
        M.wait(f"wf{i}", f"x{ks}")
        if i == 0: M.stamp(14)
        t1.mfmas(M, i, t, ks)
    S_ = Sched(M.ins)
    B = Asm()
    for ks in range(AHEAD, 36): xl(B, ks)
    S_.release(0, "vm", groups_vm(B.ins), every=min(P.get("k1_e0", 2.5), NT * 0.8))
    S_.release(marks[3], "va", groups_1(SC.ins))
    out, rest = S_.run(cap=24, vm_cost=8)
    assert not rest
    check_tags(out)
    A.ins += out
    A.stamp(15)

def k1_phase(A, L, xidx, do_poll, hook=None):
    sc = " sc1" if do_poll else ""
    A(f"""
    v_mov_b32 v2, v1
    v_add_u32 v3, 0x10000, v1
    v_add_u32 v4, 0x20000, v1
    s_lshl_b32 s26, s86, 2
    s_add_u32 s26, s26, s3             ; rb
    s_mov_b32 s27, s87
    s_mul_i32 s23, s26, 36864
    s_add_u32 s23, s23, s42
    s_add_u32 s23, s23, {xidx*G.XSZ}
    s_lshl_b32 s29, s26, 11
    s_add_u32 s29, s29, s43
    s_add_u32 s29, s29, {xidx*G.SSZ}
    s_lshr_b32 s31, s26, 3
    s_mul_i32 s31, s31, {G.KVG}
    s_add_u32 s31, s31, {G.KV}
    {LO(31)}
    s_lshr_b32 s24, s26, 1
    s_lshl_b32 s24, s24, 5
    s_add_u32 s24, s24, s41
    s_add_u32 s24, s24, 2048
    """)
    if do_poll:
        if SK:
            A("s_lshl_b32 s24, s86, 6")
            A(f"s_add_u32 s24, s24, s{101 if MEGA else 41}")
            A("s_add_u32 s24, s24, 2048")
        A.stamp(12)
        poll(A, 24, 16 if SK else 8, True)
        A.wait("q0", "q1", "q2", "q3")
    if hook: hook(A)
    if MEGA:
        A("s_and_b32 s32, s27, 7")
        A("s_cmp_eq_u32 s27, 8")
        A(f"s_cbranch_scc1 {L}_EXT")
        A("s_cmp_eq_u32 s27, 15")
        A(f"s_cbranch_scc1 {L}_EXT")
        A.save(L + "ext")
    A(f"s_cmp_ge_u32 s27, 9")
    A(f"s_cbranch_scc1 {L}_V")
    A.save(L + "v")
    def pre():
        if not do_poll:
            pass
    k1_main_w(A, 4, False, sc, do_poll)
    if not MEGA:
        A("s_cmp_eq_u32 s27, 8")
        A(f"s_cbranch_scc1 {L}_EXT")
        A.save(L + "ext")
    ST_ = " sc1" if MEGA else P.get("k1_st", "")
    def fin():
        if MEGA:
            A.stamp("kf" + L)
            A(f"s_branch {L}_JOIN")
        else: A("s_endpgm")
    A(f"""
    s_and_b32 s32, s27, 3
    s_lshl_b32 s32, s32, 3
    s_lshl_b32 s33, s26, 10
    s_add_u32 s33, s33, {G.QM}
    {LO(33)}
    s_and_b32 s34, s26, 7
    s_lshl_b32 s34, s34, 10
    s_add_u32 s34, s34, s31
    s_cmp_lt_u32 s27, 4
    s_cselect_b32 s33, s33, s34
    s_mov_b32 s35, {G.KVH}
    s_cselect_b32 s35, 65536, s35
    s_mov_b32 s36, {hex(G.f32(QSCALE))}
    s_cselect_b32 s36, s36, 1.0
    s_mul_i32 s32, s32, s35
    s_add_u32 s33, s33, s32
    v_mul_f32 v6, s36, v6
    """)
    for t in range(4):
        acc = 64 + 16 * t
        for e in range(2):
            for i in range(8): A(f"v_mul_f32 v{acc+8*e+i}, v{acc+8*e+i}, v6")
            for i in range(4): A(f"v_cvt_pk_bf16_f32 v{128+8*t+4*e+i}, v{acc+8*e+2*i}, v{acc+8*e+2*i+1}")
            A(f"buffer_store_dwordx4 v[{128+8*t+4*e}:{128+8*t+4*e+3}], v1, s[4:7], s33 offen{ST_}")
            A("s_add_u32 s33, s33, s35")
    fin()
    A.label(f"{L}_EXT")
    A.restore(L + "ext")
    if MEGA:
        k1_main_w(A, 2, False, sc, do_poll)
        A(f"""
        v_and_b32 v12, 31, v0
        v_bfe_u32 v13, v0, 5, 1
        v_lshlrev_b32 v13, 10, v13
        s_cmp_eq_u32 s27, 8
        s_cselect_b32 s32, 2, 4            ; m shift
        s_cselect_b32 s33, 7, 2            ; w shift
        s_mov_b32 s36, {hex(G.f32(QSCALE))}
        s_cselect_b32 s36, s36, 1.0
        s_mov_b32 s35, {G.KVH}
        s_cselect_b32 s35, 8192, s35
        s_lshl_b32 s34, s86, 9
        s_add_u32 s34, s34, {G.QE}
        s_add_u32 s34, s34, s100
        s_and_b32 s37, s86, 1
        s_lshl_b32 s37, s37, 9
        s_add_u32 s37, s37, s31
        s_add_u32 s37, s37, 8192
        s_cmp_eq_u32 s27, 8
        s_cselect_b32 s34, s34, s37
        s_lshl_b32 s33, s3, s33
        v_lshlrev_b32 v16, s32, v12
        v_add3_u32 v16, v16, v13, s33
        v_lshlrev_b32 v18, 4, v0
        v_lshrrev_b32 v13, 5, v0
        v_mul_lo_u32 v19, v13, s35
        v_lshlrev_b32 v21, 4, v12
        v_add_u32 v19, v19, v21
        s_lshl_b32 s35, s35, 3
        v_add_u32 v17, {2*G.T1S}, v16
        v_add_u32 v22, {2*G.T1S}, v18
        v_mul_f32 v6, s36, v6
        """)
        for t in range(2):
            acc = 64 + 16 * t
            for i in range(16): A(f"v_mul_f32 v{acc+i}, v{acc+i}, v6")
            for i in range(8): A(f"v_cvt_pk_bf16_f32 v{128+8*t+i}, v{acc+2*i}, v{acc+2*i+1}")
            for i in range(8):
                hd = 16 * t + 4 * (i >> 1) + (i & 1)
                A(f"ds_write_b32 v16, v{128+8*t+i} offset:{3*G.T1S - 65536 + hd*512}" if False else f"ds_write_b32 v17, v{128+8*t+i} offset:{hd*512}")
        A.waitall(vm=False)
        A("s_barrier")
        for k in range(4):
            A(f"ds_read_b128 v[{64+4*k}:{67+4*k}], v22 offset:{k*4096}", tag=f"er{k}")
        for k in range(4):
            A.wait(f"er{k}")
            A(f"buffer_store_dwordx4 v[{64+4*k}:{67+4*k}], v19, s[4:7], s34 offen sc1")
            A("s_add_u32 s34, s34, s35")
    else:
        A(f"""
        v_and_b32 v12, 31, v0
        v_bfe_u32 v13, v0, 5, 1
        v_lshlrev_b32 v14, 2, v12
        v_mul_u32_u24 v15, 16384, v13
        v_add_u32 v14, v14, v15
        v_lshlrev_b32 v15, 4, v12
        s_mov_b32 s32, {2*G.KVH}
        v_mul_lo_u32 v13, v13, s32
        v_add_u32 v15, v15, v13
        s_lshl_b32 s33, s26, 7
        s_add_u32 s33, s33, {G.QE}
        {LO(33)}
        s_bfe_u32 s34, s26, 0x10002
        s_lshl_b32 s34, s34, 9
        s_and_b32 s35, s26, 3
        s_lshl_b32 s35, s35, 2
        s_add_u32 s34, s34, s35
        s_add_u32 s34, s34, s31
        s_add_u32 s34, s34, 8192
        v_mul_f32 v7, {hex(G.f32(QSCALE))}, v6
        """)
        if MEGA:
            A(f"""
            v_bfe_u32 v13, v0, 5, 1
            v_lshlrev_b32 v13, 10, v13         ; h*2 heads*512
            s_lshl_b32 s35, s3, 7
            v_lshlrev_b32 v16, 2, v12
            v_add3_u32 v16, v16, v13, s35      ; Q lds addr
            s_lshl_b32 s35, s3, 2
            v_lshlrev_b32 v17, 4, v12
            v_add3_u32 v17, v17, v13, s35      ; K lds addr
            v_lshlrev_b32 v18, 4, v0
            v_lshrrev_b32 v13, 5, v0
            v_lshlrev_b32 v19, 13, v13
            v_lshlrev_b32 v21, 4, v12
            v_add_u32 v19, v19, v21
            s_mov_b32 s35, {G.KVH}
            v_mul_lo_u32 v20, v13, s35
            v_add_u32 v20, v20, v21
            s_lshl_b32 s35, s3, 7
            s_sub_u32 s33, s33, s35
            s_lshl_b32 s35, s3, 2
            s_sub_u32 s34, s34, s35
            """)
        for t in range(4):
            acc = 64 + 16 * t
            sc_ = 7 if t < 2 else 6
            e = t & 1
            for i in range(16): A(f"v_mul_f32 v{acc+i}, v{acc+i}, v{sc_}")
            for i in range(8): A(f"v_cvt_pk_bf16_f32 v{128+8*t+i}, v{acc+2*i}, v{acc+2*i+1}")
            for i in range(8):
                g, par = i >> 1, i & 1
                hd = 16 * e + 4 * g + par
                if MEGA:
                    if t == 0 and i == 0:
                        A("s_barrier")
                    if t < 2: A(f"ds_write_b32 v16, v{128+8*t+i} offset:{hd*512}")
                    else: A(f"ds_write_b32 v17, v{128+8*t+i} offset:{16384 + hd*512}")
                elif t < 2:
                    A(f"s_add_u32 s30, s33, {hd*8192}")
                    A(f"buffer_store_dword v{128+8*t+i}, v14, s[4:7], s30 offen")
                else:
                    A(f"s_add_u32 s30, s34, {hd*G.KVH}")
                    A(f"buffer_store_dword v{128+8*t+i}, v15, s[4:7], s30 offen")
        if MEGA:
            A.waitall(vm=False)
            A("s_barrier")
            for k in range(8):
                A(f"ds_read_b128 v[{64+4*k}:{67+4*k}], v18 offset:{k*4096}", tag=f"er{k}")
            for k in range(8):
                A.wait(f"er{k}")
                if k < 4:
                    A(f"s_add_u32 s30, s33, {k*8*8192}")
                    A(f"buffer_store_dwordx4 v[{64+4*k}:{67+4*k}], v19, s[4:7], s30 offen sc1")
                else:
                    A(f"s_add_u32 s30, s34, {(k-4)*8*G.KVH}")
                    A(f"buffer_store_dwordx4 v[{64+4*k}:{67+4*k}], v20, s[4:7], s30 offen sc1")
    fin()
    A.label(f"{L}_V")
    A.restore(L + "v")
    k1_main_w(A, 3, True, sc, do_poll)
    A(f"""
    v_and_b32 v12, 31, v0
    v_lshlrev_b32 v13, 2, v12
    s_lshl_b32 s32, s3, 7
    s_add_u32 s32, s32, {4*G.T1S}
    v_add_u32 v13, s32, v13
    ds_write_b32 v13, v6
    v_bfe_u32 v14, v0, 5, 1
    v_lshlrev_b32 v13, 4, v14
    v_add_u32 v13, s32, v13
    """)
    A.waitall(vm=False)
    for g in range(4):
        A(f"ds_read_b128 v[{16+4*g}:{19+4*g}], v13 offset:{g*32}")
    A(f"""
    s_sub_u32 s32, s27, 9
    s_mul_i32 s32, s32, 96
    v_add_u32 v12, s32, v12
    v_mul_u32_u24 v14, 304, v14
    s_and_b32 s33, s26, 7
    s_mul_i32 s33, s33, 1216
    s_add_u32 s33, s33, s31
    s_add_u32 s33, s33, 9216
    s_mov_b32 s34, {G.KVH}
    """)
    A.waitall(vm=False)
    for t in range(3):
        acc = 64 + 16 * t
        A(f"""
        v_mul_u32_u24 v13, 3641, v12
        v_lshrrev_b32 v13, 16, v13
        v_mul_u32_u24 v15, 18, v13
        v_sub_u32 v15, v12, v15
        v_mul_lo_u32 v13, v13, s34
        v_lshlrev_b32 v15, 4, v15
        v_add3_u32 v{7+t}, v13, v15, v14
        v_add_u32 v12, 32, v12
        """)
        for i in range(16): A(f"v_mul_f32 v{acc+i}, v{acc+i}, v{16+i}")
        for i in range(8): A(f"v_cvt_pk_bf16_f32 v{128+8*t+i}, v{acc+2*i}, v{acc+2*i+1}")
        for e in range(2):
            A(f"buffer_store_dwordx4 v[{128+8*t+4*e}:{128+8*t+4*e+3}], v{7+t}, s[4:7], s33 offen offset:{e*608}{ST_}")
    fin()

def k1_main_w(A, NT, swapped, sc, prefetched):
    if prefetched:
        k1_main(A, NT, swapped, sc)
    else:
        k1_main_stream(A, NT, swapped)

def k1_main_stream(A, NT, swapped):
    xreg = lambda j, ks: (256 + 4 * ks) if ks < 36 else 8
    t1 = T1(1, xreg, lambda t, j: 64 + 16 * t, 32, 8, lambda t: t, 2, swapped)
    def issue(B, c):
        for t in range(NT):
            if c < 9: dma(B, 77, t * G.T1S + c * 4096, 78, t * G.T1S + c * 4096, 1, f"c{c}", stmp=38)
            else: dma(B, 76, t * G.T1S + 36 * 1024, None, t * G.T1S + 36 * 1024, 1, f"c{c}", stmp=38)
        if c < 9 and not XFIRST:
            for q in range(4):
                B(f"s_add_u32 s30, s23, {c*4096}")
                B(f"buffer_load_dwordx4 {r(xreg(0, 4*c+q), 4)}, v1, s[4:7], s30 offen offset:{q*1024}", tag=f"x{4*c+q}")
    AHEAD = P.get("k1s_ahead", 4 if XFIRST else 3)
    issue(A, 0)
    if not XFIRST: stats_load(A, 1, 29, 16, 12, "")
    for c in range(1, AHEAD): issue(A, c)
    SC = A if XFIRST else Asm()
    SC.wait("st")
    stats_compute(SC, 16, 5, 6, 12)
    SC("v_cmp_gt_u32 vcc, 512, v1")
    build_xext(SC, 5, 8, 12)
    SC("v_rsq_f32 v6, v6")
    items = [(t, ks) for ks in range(37) for t in range(NT)]
    DIST = 6
    M = Asm(); marks = {}
    def pre_read(i):
        t, ks = items[i]
        if t == 0 and ks % 4 == 0:
            M.wait(f"c{ks//4}"); M("s_barrier")
        t1.read(M, i, t, ks)
    for i in range(DIST): pre_read(i)
    for i, (t, ks) in enumerate(items):
        if t == 0: marks[ks] = len(M.ins)
        if i + DIST < len(items): pre_read(i + DIST)
        M.wait(f"wf{i}", f"x{ks}")
        if i == 0: M.stamp(14)
        t1.mfmas(M, i, t, ks)
    S_ = Sched(M.ins)
    for c in range(AHEAD, 10):
        B = Asm(); issue(B, c)
        S_.release(marks[4 * (c - AHEAD)], "vm", groups_vm(B.ins), every=1)
    if not XFIRST: S_.release(marks[3], "va", groups_1(SC.ins))
    out, rest = S_.run(cap=24, vm_cost=16)
    assert not rest
    check_tags(out)
    A.ins += out
    A.stamp(15)

def gen_ks():
    name = "ks_kernel"
    A = G.begin(name)
    A("""
    s_load_dwordx16 s[64:79], s[0:1], 0
    s_load_dwordx4 s[80:83], s[0:1], 64
    s_cmp_ge_u32 s2, 256
    s_cbranch_scc1 KS_END
    """)
    G.wave_id(A, 3)
    A.waitall()
    G.srd(A, 4, 82, G.WS_USED)
    G.srd(A, 12, 80, 256)
    B = Asm()
    nj = G.k0_body(B)
    sec = ""
    for i in B.ins:
        if i.kind == "label": sec = i.text
        if i.text.startswith("buffer_store") and not sec.startswith("K0_wo") and "v[8:11]" not in i.text: i.text += " sc1"
    A.extend(B)
    A.fence()
    A.waitall()
    A.stamp(0)
    A(f"""
    s_cmp_ge_u32 s2, {nj}
    s_cbranch_scc1 KS_NOSIG
    s_barrier
    s_cmp_lg_u32 s3, 0
    s_cbranch_scc1 KS_NOSIG
    s_mov_b64 exec, 1
    v_mov_b32 v30, 0
    v_mov_b32 v31, 1
    buffer_atomic_add v31, v30, s[12:15], s19 offen
    s_mov_b64 exec, -1
    """)
    A.label("KS_NOSIG")
    A(f"""
    s_mov_b32 s42, {G.XF}
    s_mov_b32 s43, {G.ST}
    s_mov_b32 s41, 0
    """)
    k1_decode(A, "KS_END")
    A("""
    s_cmp_ge_u32 s87, 15
    s_cbranch_scc1 KS_END
    v_and_b32 v1, 63, v0
    v_lshlrev_b32 v1, 4, v1
    s_mov_b32 s24, 4
    s_cmp_eq_u32 s87, 8
    s_cselect_b32 s24, 16, s24
    s_cmp_ge_u32 s87, 9
    s_cselect_b32 s24, 3, s24
    s_add_u32 s25, s87, 16
    v_and_b32 v28, 1, v0
    v_cmp_eq_u32 vcc, 1, v28
    v_mov_b32 v30, s86
    v_mov_b32 v29, s25
    v_cndmask_b32 v30, v30, v29, vcc
    v_lshlrev_b32 v30, 2, v30
    v_mov_b32 v29, s24
    v_cndmask_b32 v29, 4, v29, vcc
    s_mov_b32 s39, 0x40000
    s_cmp_lg_u32 s3, 0
    s_cbranch_scc1 KS_GO
    """)
    A.label("KS_POLL")
    A(f"""
    buffer_load_dword v31, v30, s[12:15], 0 offen sc1
    s_waitcnt vmcnt(0)
    v_cmp_eq_u32 vcc, v29, v31
    s_nop 1
    s_cmp_eq_u64 vcc, -1
    s_cbranch_scc1 KS_GO
    s_sleep {P.get('ks_sleep', 12)}
    s_sub_u32 s39, s39, 1
    s_cmp_lg_u32 s39, 0
    s_cbranch_scc1 KS_POLL
    """)
    A.label("KS_GO")
    A("s_barrier")
    A.stamp(1)
    C = Asm()
    k1_phase(C, "K1S", 0, False)
    for i in C.ins:
        if i.text.startswith("buffer_load"):
            i.text = i.text[:-4] + " sc1 lds" if i.text.endswith(" lds") else i.text + " sc1"
    A.extend(C)
    A.label("KS_END")
    A("s_endpgm")
    G.end(A, name, 400, 256)
    return (name, 256, 256, LDS_BYTES)

def gen_k0():
    name = "k0_kernel"
    A = G.begin(name)
    A("""
    s_load_dwordx16 s[64:79], s[0:1], 0
    s_load_dwordx4 s[80:83], s[0:1], 64
    """)
    G.wave_id(A, 3)
    A.waitall()
    G.srd(A, 4, 82, G.WS_USED)
    if P.get("pf", 1):
        A("""
        s_lshr_b32 s29, s2, 3
        s_lshl_b32 s29, s29, 2
        s_add_u32 s29, s29, s3
        v_and_b32 v1, 63, v0
        v_lshlrev_b32 v1, 4, v1
        """)
        if MEGA: G.code_prefetch(A, "km_kernel", "CODE_END", 16, 29, 1, 124, nper=2, stride=72*1024)
        else: G.code_prefetch(A, "k1_kernel", "kca_kernel", 16, 29, 1, 124)
    B = Asm()
    nj = G.k0_body(B)
    for i in B.ins:
        if i.text.startswith("buffer_store_dwordx4") and "v[8:11]" not in i.text and P.get("k0_sc1", 0): i.text += " sc1"
    A.extend(B)
    A("s_endpgm")
    G.end(A, name, 128)
    return (name, nj, 256, 41984)

def gen_k1s():
    name = "k1_kernel"
    A = G.begin(name)
    A(f"""
    s_load_dwordx2 s[12:13], s[0:1], 72
    s_cmp_ge_u32 s2, 256
    s_cbranch_scc1 K1S_END
    s_mov_b32 s42, {G.XF}
    s_mov_b32 s43, {G.ST}
    s_mov_b32 s41, 0
    """)
    G.wave_id(A, 3)
    k1_decode(A, "K1S_END")
    A("""
    s_cmp_ge_u32 s87, 15
    s_cbranch_scc1 K1S_END
    v_and_b32 v1, 63, v0
    v_lshlrev_b32 v1, 4, v1
    """)
    A.waitall()
    G.srd(A, 4, 12, G.WS_USED)
    k1_phase(A, "K1S", 0, False)
    A.label("K1S_END")
    A("s_endpgm")
    G.end(A, name, 400, 256)
    return (name, 256, 256, LDS_BYTES)

def gen_chain():
    A = Asm()
    names = [("kca_kernel", 0), ("kcb_kernel", 1)]
    for i, (n, fl) in enumerate(names):
        A.raw(f".globl {n}\n.p2align 8\n.type {n},@function")
        A.label(n)
        A(f"s_mov_b32 s40, {fl}")
        A(f"s_mov_b32 s41, {fl*8192}")
        A(f"s_mov_b32 s42, {G.XF + 2*fl*G.XSZ}")
        A(f"s_mov_b32 s43, {G.ST + 2*fl*G.SSZ}")
        if i < len(names) - 1: A("s_branch CH_BODY")
    A.label("CH_BODY")
    A("""
    s_load_dwordx2 s[12:13], s[0:1], 72
    s_load_dwordx2 s[14:15], s[0:1], 56
    s_cmp_ge_u32 s2, 256
    s_cbranch_scc1 CH_END
    """)
    G.wave_id(A, 3)
    t2_decode(A)
    t2_setup(A, 18, G.OF, G.WO, 0, 1)
    k4_decode(A)
    A.waitall()
    G.srd(A, 4, 12, G.WS_USED)
    G.srd(A, 8, 14, G.S * G.D * 2)
    sl4 = lambda t: t
    NTAIL = P.get("t2_ntail", 16)
    A("s_cmp_lg_u32 s83, 0")
    A("s_cbranch_scc1 K3_N5")
    A.save("k3n5")
    wt = lambda: tile_dmas([0, 1, 2, 3], sl4, 77, 76, 78, lambda t: f"w{t}" if t < 3 else "t3")
    for NT, pfx in ((4, "K3A"), (5, "K3B")):
        if NT == 5:
            A.label("K3_N5"); A.restore("k3n5")
        X, RES, left = t2_main(A, NT, 18, pfx, 0, "", wt()[:NTAIL], None, 0)
        assert not left
        t2_store(A, NT, X, RES)
        if NT == 4: A("s_branch K3_DONE")
    A.label("K3_DONE")
    if P.get("st3"): A.stamp(14)
    A("s_lshl_b32 s24, s80, 3")
    A("s_add_u32 s24, s24, s81")
    A("s_lshl_b32 s24, s24, 2")
    A("s_add_u32 s24, s24, s41")
    NMID = P.get("t2_nmid", 4)
    assert NTAIL + NMID <= 20
    for g in wt()[NTAIL:NTAIL+NMID]: A.ins += g
    signal(A, 24, "out")
    A.stamp(1)
    for g in wt()[NTAIL+NMID:]: A.ins += g
    k4_phase(A, None)
    qt = lambda: tile_dmas([0, 1, 2, 3], sl4, 77, 76, 78, lambda t: f"q{t}")
    if SK:
        k5_phase(A, lambda t: tile_dmas([t], sl4, 77, 76, 78, lambda t: f"q{t}"), P.get("k5_nmid", 6))
    else:
        A("s_lshl_b32 s24, s85, 5")
        A("s_add_u32 s24, s24, s84")
        A("s_lshl_b32 s24, s24, 2")
        A("s_add_u32 s24, s24, s41")
        A("s_add_u32 s24, s24, 1024")
        t2_setup(A, 144, G.HF, G.W2, 1, 2)
        signal(A, 24, "hout")
        A.stamp(8)
        k1_decode(A, None)
        A("s_lshr_b32 s25, s80, 2")
        A("s_lshl_b32 s25, s25, 7")
        A("s_add_u32 s25, s25, s41")
        A("s_add_u32 s25, s25, 1024")
        WPRE = 5
        poll(A, 25, 32, True)
        A.stamp(9)
        A("s_cmp_lg_u32 s83, 0")
        A("s_cbranch_scc1 K5_N5")
        A.save("k5n5")
        qt = lambda: tile_dmas([0, 1, 2, 3], sl4, 77, 76, 78, lambda t: f"q{t}")
        for NT, pfx in ((4, "K5A"), (5, "K5B")):
            if NT == 5:
                A.label("K5_N5"); A.restore("k5n5")
            X, RES, left = t2_main(A, NT, 144, pfx, WPRE, " sc1", qt()[:NTAIL], None, None)
            assert not left
            A.stamp(10)
            A("s_cmp_lg_u32 s40, 0")
            A(f"s_cbranch_scc1 {pfx}_FINAL")
            A.save(pfx + "fin")
            t2_store(A, NT, X, RES)
            A("s_branch K5_DONE")
            A.save(pfx + "done")
            A.label(f"{pfx}_FINAL")
            A.restore(pfx + "fin")
            for t in range(NT):
                A(f"buffer_store_dwordx2 v[{RES+2*t}:{RES+2*t+1}], v29, s[8:11], s31 offen offset:{t*32}")
            A("s_endpgm")
        A.label("K5_DONE")
        A.restore("K5Bdone")
        A("s_lshl_b32 s24, s80, 3")
        A("s_add_u32 s24, s24, s81")
        A("s_lshl_b32 s24, s24, 2")
        A("s_add_u32 s24, s24, s41")
        A("s_add_u32 s24, s24, 2048")
        for g in qt()[NTAIL:NTAIL+NMID]: A.ins += g
        signal(A, 24, "out")
        A.stamp(11)
        A("s_cmp_ge_u32 s87, 15")
        A("s_cbranch_scc1 CH_END")
        for g in qt()[NTAIL+NMID:]: A.ins += g
    if P.get("pf", 1):
        A("s_lshr_b32 s29, s2, 3")
        A("s_lshl_b32 s29, s29, 2")
        A("s_add_u32 s29, s29, s3")
        G.code_prefetch(A, "k2_kernel", "CODE_END", 12, 29, 1, 248)
    k1_phase(A, "K1C", 2, True)
    A.label("CH_END")
    A("s_endpgm")
    text = finalize(A)
    first = True
    for n, fl in names:
        G.kernels.append((n, text if first else "", 512, 256, 96))
        first = False
    return [(n, 256, 256, LDS_BYTES) for n, fl in names]
```

```python
from asmlib import *
import gen as G
from chain import *
import att
SOLO = P.get("solo", 1)
EARLY = SOLO and P.get("early", 0)

def k1_join(A, L):
    A.label(f"{L}_JOIN")
    A.fence()
    if SOLO and L == "K1S":
        A("v_and_b32 v30, 7, v0")
        A(f"v_lshlrev_b32 v30, {2+FSH}, v30")
        A(f"s_mov_b32 s38, {G.FLG + ((7168 + (158 if EARLY else 182)*4) << FSH)}")
        spin_flags(A, "ZBRDY", 30, 31, 4, "s38", 8)
    A.waitall()
    A.stamp("kj" + L)
    A("""
    s_lshl_b32 s24, s87, 4
    s_add_u32 s24, s24, s86
    s_lshl_b32 s24, s24, 2
    s_add_u32 s24, s24, s41
    s_add_u32 s24, s24, 4096
    """)
    if P.get("q_atomic", 0):
        A("s_andn2_b32 s24, s24, 63")
    A("s_barrier")
    B = Asm(); flag_store(B, 24)
    for i in B.ins:
        if P.get("q_atomic", 0) and "buffer_store_dword" in i.text:
            i.text = i.text.replace("buffer_store_dword", "buffer_atomic_add").replace(" sc1", "")
    A.extend(B)
    if EARLY and L == "K1S":
        A(f"""
        s_cmp_lt_u32 s2, 128
        s_cbranch_scc1 KM_NOFW
        s_cmp_lg_u32 s3, 1
        s_cbranch_scc1 KM_NOFW
        s_sub_u32 s24, s2, 128
        s_sub_u32 s25, s2, 40
        s_cmp_lt_u32 s2, 168
        s_cselect_b32 s25, s24, s25
        v_mov_b32 v30, s24
        v_mov_b32 v31, s25
        v_and_b32 v29, 2, v0
        v_cmp_eq_u32 vcc, 2, v29
        v_cndmask_b32 v30, v30, v31, vcc
        v_lshlrev_b32 v30, 1, v30
        v_and_b32 v29, 1, v0
        v_add_u32 v30, v30, v29
        v_lshlrev_b32 v30, {2+FSH}, v30
        v_mov_b32 v31, 1
        s_mov_b32 s24, {G.FLG + (5120 << FSH)}
        s_mov_b64 exec, 15
        """)
        A.raw(" buffer_store_dword v31, v30, s[4:7], s24 offen sc1")
        A("s_mov_b64 exec, -1")
        A.label("KM_NOFW")

def wo_prefetch():
    B = Asm()
    for st in range(5):
        for t in range(5):
            B(f"s_add_u32 s30, s87, {t*18*1024 + st*4096}")
            B(f"buffer_load_dwordx4 {r(t2_buf(st, 4+t), 4)}, v1, s[4:7], s30 offen sc1", tag=f"l{st}")
    return groups_vm(B.ins)

def pre_att(A):
    t2_decode(A)
    k4_decode(A)
    A(f"""
    s_mul_i32 s87, s82, {18*1024}
    s_add_u32 s87, s87, {G.WO}
    s_add_u32 s87, s87, s78
    """)

def spin_flags(A, lab, vaddr, vdat, srd, soff, nl):
    R = A.raw
    R("    s_mov_b32 s39, 0x20000")
    R(f"    s_mov_b64 exec, {hex((1 << nl) - 1)}")
    R(f"{lab}:")
    R(f"    buffer_load_dword v{vdat}, v{vaddr}, s[{srd}:{srd+3}], {soff} offen sc1")
    R("    s_waitcnt vmcnt(0)")
    R(f"    v_cmp_ne_u32 vcc, 1, v{vdat}")
    R("    s_nop 1")
    R("    s_and_b64 exec, exec, vcc")
    R(f"    s_cbranch_scc0 {lab}_X")
    R("    s_sleep 4")
    R("    s_sub_u32 s39, s39, 1")
    R("    s_cmp_lg_u32 s39, 0")
    R(f"    s_cbranch_scc1 {lab}")
    R(f"{lab}_X:")
    R("    s_mov_b64 exec, -1")

def gen_mega():
    name = "km_kernel"
    A = G.begin(name)
    if SOLO:
        A("s_load_dwordx16 s[64:79], s[0:1], 0")
        A("s_load_dwordx4 s[80:83], s[0:1], 64")
    else:
        A("s_load_dwordx2 s[82:83], s[0:1], 72")
        A("s_load_dwordx2 s[78:79], s[0:1], 56")
    A(f"""
    s_cmp_lt_u32 s2, 256
    s_cbranch_scc1 KM_GO
    s_endpgm
    """)
    A.label("KM_GO")
    if P.get("perm"):
        A("s_and_b32 s3, s2, 7")
        A("s_lshl_b32 s3, s3, 5")
        A("s_lshr_b32 s2, s2, 3")
        A("s_or_b32 s2, s2, s3")
    A(f"""
    s_mov_b32 s40, 0
    s_mov_b32 s41, 0
    s_mov_b32 s42, {G.XF}
    s_mov_b32 s43, {G.ST}
    s_mov_b32 s100, 0
    s_mov_b32 s101, 0
    """)
    G.wave_id(A, 3)
    A.waitall()
    G.srd(A, 4, 82, G.WS_USED)
    if SOLO:
        G.srd(A, 16, 80, 256)
        A("s_mov_b32 s84, s78")
        A("s_mov_b32 s85, s79")
        if P.get("wqpf", 1):
            A("s_cmp_lt_u32 s2, 192")
            A("s_cbranch_scc1 KM_NOWQ")
            G.srd(A, 8, 66, G.D * 3 * G.D * 2)
            A("""
            s_sub_u32 s29, s2, 192
            s_lshl_b32 s29, s29, 15
            v_lshlrev_b32 v1, 4, v0
            """)
            for k in range(8):
                A(f"buffer_load_dwordx4 v[{200+4*k}:{203+4*k}], v1, s[8:11], s29 offen")
                A("s_add_u32 s29, s29, 4096")
            A.label("KM_NOWQ")
        B = Asm()
        nj = G.k0_body(B)
        for i in B.ins:
            if i.text.startswith("buffer_store"): i.text += " sc1"
            if i.text.startswith("s_") and " s19," in i.text: i.text = "s_nop 0"
        A.extend(B)
        A.fence()
        A.stamp("p0")
        if not EARLY:
            A("""
            s_cmp_lt_u32 s2, 152
            s_cbranch_scc1 KM_NOPF
            s_lshr_b32 s29, s2, 3
            s_sub_u32 s29, s29, 19
            s_lshl_b32 s29, s29, 2
            s_add_u32 s29, s29, s3
            v_and_b32 v1, 63, v0
            v_lshlrev_b32 v1, 4, v1
            """)
            G.code_prefetch(A, "KM_NOPF", "CODE_END", 12, 29, 1, 248, nper=3, stride=52*1024)
            A.label("KM_NOPF")
        else:
            A("s_cmp_ge_u32 s2, 168")
            A("s_cbranch_scc1 KM_SIDE")
        A("v_and_b32 v30, 3, v0")
        A("v_lshlrev_b32 v30, 2, v30")
        spin_flags(A, "ZRDY", 30, 31, 16, "0", 4)
        A.waitall()
        A(f"""
        s_cmp_ge_u32 s2, {nj - 1}
        s_cbranch_scc1 KM_NOSIG
        s_barrier
        s_lshl_b32 s24, s2, 2
        s_add_u32 s24, s24, 7168
        """)
        flag_store(A, 24)
        A.label("KM_NOSIG")
        if EARLY:
            A("s_cmp_lt_u32 s2, 128")
            A("s_cbranch_scc1 KM_K1")
            A.label("KM_SIDE")
            A.reset()
            A("v_and_b32 v1, 63, v0")
            A("v_lshlrev_b32 v1, 4, v1")
            def pf0(B):
                B("s_lshr_b32 s29, s2, 3")
                B("s_sub_u32 s29, s29, 21")
                B("s_lshl_b32 s29, s29, 2")
                B("s_add_u32 s29, s29, s3")
                G.code_prefetch(B, "SE_DONE", "CODE_END", 12, 29, 1, 248, nper=3, stride=44*1024)
            att.side_early(A, pf0)
            G.srd(A, 16, 80, 256)
            A("v_and_b32 v30, 3, v0")
            A("v_lshlrev_b32 v30, 2, v30")
            spin_flags(A, "ZRDY2", 30, 31, 16, "0", 4)
            A.waitall()
            A.stamp("p2")
            A.label("KM_K1")
        G.srd(A, 8, 84, G.S * G.D * 2)
    else:
        G.srd(A, 8, 78, G.S * G.D * 2)
    k1_decode(A, None)
    A("""
    v_and_b32 v1, 63, v0
    v_lshlrev_b32 v1, 4, v1
    """)
    if SOLO:
        A(f"""
        s_lshl_b32 s24, s87, 2
        s_add_u32 s24, s24, 64
        s_mov_b32 s25, 3
        s_mul_i32 s26, s87, 3
        s_add_u32 s26, s26, {112 - 27}
        s_cmp_ge_u32 s87, 9
        s_cselect_b32 s24, s26, s24
        s_cselect_b32 s25, 2, s25
        s_cmp_eq_u32 s87, 8
        s_cselect_b32 s25, 7, s25
        s_cmp_eq_u32 s87, 15
        s_cselect_b32 s24, 104, s24
        s_cselect_b32 s25, 7, s25
        v_and_b32 v30, 7, v0
        v_min_u32 v30, s25, v30
        v_add_u32 v30, s24, v30
        s_lshl_b32 s26, s86, 2
        s_add_u32 s26, s26, s3
        v_mov_b32 v31, s26
        v_and_b32 v29, 8, v0
        v_cmp_eq_u32 vcc, 8, v29
        v_cndmask_b32 v30, v30, v31, vcc
        v_lshlrev_b32 v30, {2+FSH}, v30
        s_mov_b32 s38, {G.FLG + (7168 << FSH)}
        """)
        if not XFIRST:
            spin_flags(A, "PRDY", 30, 31, 4, "s38", 9)
            A.stamp("p1")
    C = Asm()
    def hook(B):
        B("v_mov_b32 v32, v30")
        B(f"s_lshl_b32 s24, s26, {2+FSH}")
        B("v_mov_b32 v33, s24")
        B(f"s_mov_b32 s38, {G.FLG + (7168 << FSH)}")
        spin_flags(B, "XRDY", 33, 34, 4, "s38", 1)
        B.stamp("px")
        stats_load(B, 1, 29, 16, 12, "")
        for ks in range(36):
            B(f"s_add_u32 s30, s23, {(ks//4)*4096}")
            B(f"buffer_load_dwordx4 a[{4*ks}:{4*ks+3}], v1, s[4:7], s30 offen offset:{(ks%4)*1024}", tag=f"x{ks}")
        spin_flags(B, "PRDY", 32, 34, 4, "s38", 8)
        B.waitall()
        B.stamp("p1")
    k1_phase(C, "K1S", 0, False, hook if XFIRST else None)
    for i in C.ins:
        if SOLO and i.text.startswith("buffer_load") and "sc1" not in i.text and not i.text.endswith(" lds"): i.text += " sc1"
    A.extend(C)
    k1_join(A, "K1S")
    A.stamp("k1e")
    if EARLY: A.label("CH_ATT")
    pre_att(A)
    def pfc(B):
        B("s_lshr_b32 s29, s2, 3")
        B("s_lshl_b32 s29, s29, 2")
        B("s_add_u32 s29, s29, s3")
        G.code_prefetch(B, "K3_DONE", "K1C_JOIN", 12, 29, 1, 248)
    att.att_phase(A, "ATA", not EARLY, wo_prefetch, pfc if P.get("pf2", 1) else None)
    A.label("CH_K3")
    A.fence()
    sl4 = lambda t: t
    t2_setup(A, 18, G.OF, G.WO, 0, 1)
    A(f"""
    s_mul_i32 s24, s84, 9
    s_lshr_b32 s24, s24, 2
    s_lshr_b32 s25, s2, 6              ; cgp
    s_mul_i32 s25, s25, 9
    s_lshr_b32 s25, s25, 2
    s_and_b32 s26, s2, 3
    s_mul_i32 s26, s26, 18
    s_add_u32 s25, s25, s26
    s_add_u32 s25, s25, 144
    v_bfe_u32 v30, v0, 1, 2
    v_min_u32 v30, 2, v30              ; 0..2
    v_bfe_u32 v31, v0, 3, 1
    v_bfe_u32 v26, v0, 4, 1
    v_cmp_eq_u32 vcc, 1, v26
    v_mov_b32 v26, 72
    v_cndmask_b32 v26, v26, 9, vcc
    v_mul_u32_u24 v31, v31, v26
    v_add_u32 v30, v30, v31
    v_mov_b32 v31, s24
    v_mov_b32 v26, s25
    v_cndmask_b32 v31, v31, v26, vcc
    v_add_u32 v30, v30, v31
    v_lshlrev_b32 v30, 1, v30
    v_and_b32 v31, 1, v0
    v_add_u32 v30, v30, v31
    v_lshlrev_b32 v30, {2+FSH}, v30
    s_mov_b32 s25, {G.FLG + (5120 << FSH)}
    """)
    A("v_mov_b32 v26, v30")
    A.raw(" buffer_load_dword v25, v26, s[4:7], s25 offen sc1")
    A("s_waitcnt vmcnt(1)")
    A("s_mov_b64 exec, 1")
    A("buffer_store_dword v99, v98, s[4:7], s86 offen sc1")
    A("s_mov_b64 exec, -1")
    A.stamp("ate")
    wt = lambda: tile_dmas([0, 1, 2, 3], sl4, 77, 76, 78, lambda t: f"w{t}" if t < 3 else "t3")
    NPRE = 0
    NTAIL = P.get("m_ntail", 16); NMID = P.get("m_nmid", 4)
    assert NPRE + NTAIL + NMID <= 20
    A("s_lshl_b32 s24, s80, 7")
    A("s_add_u32 s24, s24, s41")
    A("s_add_u32 s24, s24, 16384")
    poll(A, 24, 32, P.get('k3_allw', 0))
    A.waitall()
    flagchk(A, "WRDY", "fw", 25, 26, 25)
    A.stamp("k3p")
    A("s_cmp_lg_u32 s83, 0")
    A("s_cbranch_scc1 K3_N5")
    A.save("k3n5")
    for NT, pfx in ((4, "K3A"), (5, "K3B")):
        if NT == 5:
            A.label("K3_N5"); A.restore("k3n5")
        X, RES, left = t2_main(A, NT, 18, pfx, 5, " sc1", wt()[NPRE:NPRE+NTAIL], "bar", None)
        t2_store(A, NT, X, RES)
        if NT == 4: A("s_branch K3_DONE")
    A.label("K3_DONE")
    A.stamp("t3")
    A("s_lshl_b32 s24, s80, 3")
    A("s_add_u32 s24, s24, s81")
    A("s_lshl_b32 s24, s24, 2")
    A("s_add_u32 s24, s24, s41")
    for g in wt()[NPRE+NTAIL:NPRE+NTAIL+NMID]: A.ins += g
    signal(A, 24, "out")
    A.stamp("k3e")
    for g in wt()[NPRE+NTAIL+NMID:]: A.ins += g
    k4_phase(A, None)
    k5_phase(A, lambda t: tile_dmas([t], sl4, 77, 76, 78, lambda t: f"q{t}"), P.get("k5_nmid", 6))
    if P.get("pf2", 1) and not EARLY:
        A("s_lshr_b32 s29, s2, 3")
        A("s_lshl_b32 s29, s29, 2")
        A("s_add_u32 s29, s29, s3")
        G.code_prefetch(A, "K1C_JOIN", "CODE_END", 12, 29, 1, 248)
    k1_phase(A, "K1C", 0, True)
    k1_join(A, "K1C")
    A.stamp("k1e2")
    if EARLY:
        A("s_branch CH_ATT")
    else:
        pre_att(A)
        att.att_phase(A, "ATB", False, wo_prefetch)
        A("s_branch CH_K3")
    A.label("CH_END")
    A("s_endpgm")
    for i in A.ins:
        if i.text.endswith(" lds") and "sc1" not in i.text: i.text = i.text[:-4] + " sc1 lds"
    G.end(A, name, 512, 256, ns=102)
    return (name, 256, 256, LDS_BYTES)
```

```python
import sys, math, struct, os, json
from asmlib import *

NAME = "interleave_layers__softmax_full_mha__glu_gated_swiglu__prompt"
S, D, H, DH, F = 2048, 576, 32, 18, 4608

def al(x): return (x + 4095) // 4096 * 4096
off = 0
def region(n):
    global off
    o = off; off = al(off + n); return o
XSZ = 64 * 36 * 1024
SSZ = 2048 * 64
XF  = region(4 * XSZ)
ST  = region(4 * SSZ)
FLG = region(1 << 20)
LB0 = off
QM  = region(32 * 64 * 1024)
QE  = region(32 * 64 * 128)
KVH = 151552
KVG = 18944
KV  = region(32 * KVH + 8192)
REUSE = json.loads(os.environ.get("GP", "{}")).get("reuse", 1)
if REUSE:
    LBS = off - LB0; region(LBS)
OF  = region(128 * 18 * 1024)
OE  = region(32 * 2048 * 4)
HF  = region(128 * 144 * 1024)
PARTSZ = 64 * 4 * 3 * 4 * 3072
PART = region(PARTSZ + 65536)
if not REUSE:
    LBS = off - LB0
    region(LBS)
T1S = 37 * 1024
WQ  = region(54 * T1S)
W13 = region(288 * T1S)
WO  = region(36 * 18 * 1024)
W2  = region(36 * 144 * 1024)
WS_USED = off

def f32(x): return struct.unpack("<I", struct.pack("<f", x))[0]

import os, json
P = json.loads(os.environ.get("GP", "{}"))
kernels = []
launches = []

def begin(name):
    A = Asm()
    A.raw(f".globl {name}\n.p2align 8\n.type {name},@function")
    A.label(name)
    return A

def end(A, name, nv, acc=None, ns=96):
    acc = acc if acc is not None else (nv + 3) // 4 * 4
    kernels.append((name, finalize(A), nv, acc, ns))

def srd(A, d, lo, nbytes):
    A(f"""
    s_mov_b32 s{d}, s{lo}
    s_and_b32 s{d+1}, s{lo+1}, 0xffff
    s_mov_b32 s{d+2}, {nbytes}
    s_mov_b32 s{d+3}, 0x00020000
    """)

def wave_id(A, sreg, vtmp=1):
    A(f"v_lshrrev_b32 v{vtmp}, 6, v0")
    A(f"v_readfirstlane_b32 s{sreg}, v{vtmp}")

_pf = [0]
def code_prefetch(A, start, endl, sd, s_idx, vlane16, vdst, nper=1, stride=262144):
    lab = f"PF{_pf[0]}"; _pf[0] += 1
    A(f"s_getpc_b64 s[{sd}:{sd+1}]")
    A.label(lab)
    A(f"s_add_u32 s{sd}, s{sd}, {start}-{lab}")
    A(f"s_addc_u32 s{sd+1}, s{sd+1}, 0")
    A(f"s_and_b32 s{sd+1}, s{sd+1}, 0xffff")
    A(f"s_mov_b32 s{sd+2}, {endl}-{start}")
    A(f"s_mov_b32 s{sd+3}, 0x00020000")
    A(f"s_lshl_b32 s{s_idx}, s{s_idx}, 10")
    for i in range(nper):
        A(f"buffer_load_dwordx4 v[{vdst}:{vdst+3}], v{vlane16}, s[{sd}:{sd+3}], s{s_idx} offen", tag="pf")
        if i + 1 < nper: A(f"s_add_u32 s{s_idx}, s{s_idx}, {stride}")

def k0_units(A, nunits, rowstride, fA, fB, fC, D1, D2, unit_src, unit_dst, colsum, ext_dst=None, row_mode=None, maskq=False):
    A("""
    v_and_b32 v1, 63, v0
    v_lshrrev_b32 v2, 5, v1          ; g>>1
    v_lshlrev_b32 v2, 3, v2          ; 8*(g>>1)
    v_bfe_u32 v3, v1, 2, 2           ; t>>2
    v_add_u32 v2, v2, v3             ; kk (r=0)
    """)
    if row_mode == "woext":
        A("""
        v_lshrrev_b32 v3, 1, v2
        v_mul_u32_u24 v3, 18, v3
        v_and_b32 v2, 1, v2
        v_add_u32 v2, v2, v3
        """)
        r1add = 36 * rowstride
    else:
        r1add = 4 * rowstride
    A(f"s_mov_b32 s22, {rowstride}")
    A("v_mul_lo_u32 v2, v2, s22")
    A(f"""
    v_bfe_u32 v3, v1, 4, 1
    v_mul_u32_u24 v3, {2*fA}, v3
    v_add_u32 v2, v2, v3
    v_and_b32 v3, 1, v1
    v_mul_u32_u24 v3, {2*fB}, v3
    v_add_u32 v2, v2, v3
    v_bfe_u32 v3, v1, 1, 1
    v_mul_u32_u24 v3, {2*fC}, v3
    v_add_u32 v2, v2, v3
    v_add_u32 v3, {r1add}, v2
    """)
    A(f"""
    v_bfe_u32 v4, v1, 4, 1
    s_mov_b32 s22, {D1}
    v_mul_lo_u32 v4, v4, s22
    v_and_b32 v5, 15, v1
    v_lshlrev_b32 v5, 4, v5
    v_add_u32 v4, v4, v5
    v_lshrrev_b32 v5, 5, v1
    v_mul_u32_u24 v5, {D2}, v5
    v_add_u32 v4, v4, v5
    """)
    if maskq:
        A("""
        v_bfe_u32 v5, v1, 3, 2
        v_cmp_eq_u32 vcc, s25, v5
        v_mov_b32 v5, 0x7ffffff0
        v_cndmask_b32 v4, v5, v4, vcc
        """)
    A("""
    s_mul_i32 s22, s3, 9216
    v_lshlrev_b32 v5, 3, v1
    v_add_u32 v5, s22, v5
    v_mov_b32 v6, 0
    s_mov_b32 s23, 0x3f803f80
    """)
    for u in range(nunits):
        A(f"s_add_u32 s22, s20, {unit_src(u)}")
        A(f"buffer_load_dwordx2 v[{16+4*u}:{17+4*u}], v2, s[8:11], s22 offen", tag=f"ld{u}")
        A(f"buffer_load_dwordx2 v[{18+4*u}:{19+4*u}], v3, s[8:11], s22 offen", tag=f"ld{u}")
    for u in range(nunits):
        A.wait(f"ld{u}")
        A(f"ds_write_b64 v5, v[{16+4*u}:{17+4*u}] offset:{u*1024}", tag=f"w{u}")
        A(f"ds_write_b64 v5, v[{18+4*u}:{19+4*u}] offset:{u*1024+512}", tag=f"w{u}")
    for u in range(nunits):
        A.wait(f"w{u}")
        A(f"ds_read_b64_tr_b16 v[{56+4*u}:{57+4*u}], v5 offset:{u*1024}", tag=f"r{u}")
        A(f"ds_read_b64_tr_b16 v[{58+4*u}:{59+4*u}], v5 offset:{u*1024+512}", tag=f"r{u}")
    for u in range(nunits):
        A.wait(f"r{u}")
        A(f"s_add_u32 s22, s21, {unit_dst(u)}")
        A(f"buffer_store_dwordx4 v[{56+4*u}:{59+4*u}], v4, s[4:7], s22 offen")
        if colsum:
            for j in range(4):
                A(f"v_dot2_f32_bf16 v6, v{56+4*u+j}, s23, v6")
    if colsum:
        A("""
        s_lshl_b32 s22, s3, 8
        v_lshlrev_b32 v7, 2, v1
        v_add_u32 v7, s22, v7
        s_nop 2
        ds_write_b32 v7, v6 offset:40960
        """)
        A.waitall(vm=False)
        A("s_barrier")
        A("s_cmp_lg_u32 s3, 0")
        A("s_cbranch_scc1 K0_END")
        A("""
        v_and_b32 v7, 31, v1
        v_lshlrev_b32 v7, 2, v7
        """)
        for j in range(8):
            A(f"ds_read_b32 v{8+j}, v7 offset:{40960 + j*128}")
        A.waitall(vm=False)
        A("""
        v_add_f32 v8, v8, v9
        v_add_f32 v10, v10, v11
        v_add_f32 v12, v12, v13
        v_add_f32 v14, v14, v15
        v_add_f32 v8, v8, v10
        v_add_f32 v12, v12, v14
        v_add_f32 v8, v8, v12
        v_sub_f32 v8, 0, v8               ; c = -colsum
        v_cvt_pk_bf16_f32 v9, v8, v8
        v_lshlrev_b32 v9, 16, v9          ; c1
        v_sub_f32 v8, v8, v9
        v_cvt_pk_bf16_f32 v10, v8, v8
        v_lshlrev_b32 v10, 16, v10        ; c2
        v_sub_f32 v11, v8, v10
        v_cvt_pk_bf16_f32 v12, v9, v10
        v_cvt_pk_bf16_f32 v13, v9, v11
        v_cvt_pk_bf16_f32 v14, v10, v9
        v_mov_b32 v15, 0
        v_cmp_gt_u32 vcc, 32, v1
        v_cndmask_b32 v12, 0, v12, vcc
        v_cndmask_b32 v13, 0, v13, vcc
        v_cndmask_b32 v14, 0, v14, vcc
        """)
        A(f"s_add_u32 s22, s21, {ext_dst}")
        A("buffer_store_dwordx4 v[12:15], v4, s[4:7], s22 offen")
    A("s_branch K0_END")

def k0_body(A):
    A("s_mov_b32 s19, 252")
    jobs = [("x", 64), ("qkm", 32), ("qke", 16), ("v", 18), ("wom", 18), ("woe", 2)]
    SIDE = P.get("side", 1)
    SOLO = P.get("solo", 1) and P.get("mega", 1)
    EARLY = SOLO and P.get("early", 0)
    if SOLO: jobs += [("ones", 8 if EARLY else 32), ("zero", 8), ("zeroa", 1)]
    if not SIDE: jobs += [("w1", 144), ("w3", 144), ("w2", 144)]
    base = 0
    A("s_mov_b32 s24, s2")
    for jn, cnt in jobs:
        A(f"s_cmp_lt_u32 s24, {cnt}")
        A(f"s_cbranch_scc1 K0_{jn}")
        A(f"s_sub_u32 s24, s24, {cnt}")
        base += cnt
    A("s_branch K0_END")
    njobs = base
    A.label("K0_x")
    A("s_lshr_b32 s19, s24, 2")
    A("s_lshl_b32 s19, s19, 2")
    srd(A, 8, 64, S * D * 2)
    A("""
    v_and_b32 v1, 63, v0
    v_and_b32 v2, 31, v1
    v_mul_u32_u24 v2, 1152, v2
    v_lshrrev_b32 v3, 5, v1
    v_lshlrev_b32 v3, 4, v3
    v_add_u32 v2, v2, v3
    v_lshlrev_b32 v4, 4, v1
    s_mul_i32 s20, s24, 36864          ; rb*32*1152
    s_mul_i32 s22, s3, 288
    s_add_u32 s20, s20, s22
    s_mul_i32 s21, s24, 36864          ; rb*36*1024
    s_mul_i32 s22, s3, 9216
    s_add_u32 s21, s21, s22
    """)
    A(f"s_add_u32 s21, s21, {XF}")
    for u in range(9):
        A(f"buffer_load_dwordx4 v[{16+4*u}:{19+4*u}], v2, s[8:11], s20 offen offset:{u*32}", tag=f"x{u}")
    for u in range(9):
        A.wait(f"x{u}")
        A(f"s_add_u32 s22, s21, {u*1024}")
        A(f"buffer_store_dwordx4 v[{16+4*u}:{19+4*u}], v4, s[4:7], s22 offen")
        for j in range(4):
            A(f"v_lshlrev_b32 v{56+8*u+2*j}, 16, v{16+4*u+j}")
            A(f"v_and_b32 v{57+8*u+2*j}, 0xffff0000, v{16+4*u+j}")
    for p, (lo, hi, n) in enumerate([(56, 88, 64), (88, 128, 80)]):
        sm = 6 + 2 * p
        A(f"v_add_f32 v{sm}, v{lo}, v{lo+1}")
        for i in range(lo + 2, hi): A(f"v_add_f32 v{sm}, v{sm}, v{i}")
        A(f"v_mov_b32 v10, v{sm}")
        A(f"v_permlane32_swap_b32 v{sm}, v10")
        A(f"v_add_f32 v{sm}, v{sm}, v10")
        A(f"v_mul_f32 v{sm}, {hex(f32(1.0/n))}, v{sm}")
        A(f"v_mov_b32 v{sm+1}, 0")
        for i in range(lo, hi):
            A(f"v_sub_f32 v{i}, v{i}, v{sm}")
            A(f"v_fmac_f32 v{sm+1}, v{i}, v{i}")
        A(f"v_mov_b32 v10, v{sm+1}")
        A(f"v_permlane32_swap_b32 v{sm+1}, v10")
        A(f"v_add_f32 v{sm+1}, v{sm+1}, v10")
    A(f"""
    v_and_b32 v2, 15, v1
    v_lshlrev_b32 v2, 3, v2
    v_bfe_u32 v3, v1, 4, 1
    v_lshlrev_b32 v3, 10, v3
    v_add_u32 v2, v2, v3
    s_lshl_b32 s22, s24, 11
    s_lshl_b32 s23, s3, 8
    s_add_u32 s22, s22, s23
    s_add_u32 s22, s22, {ST}
    buffer_store_dwordx2 v[6:7], v2, s[4:7], s22 offen
    buffer_store_dwordx2 v[8:9], v2, s[4:7], s22 offen offset:128
    s_branch K0_END
    """)
    T1src = lambda rs: (lambda u: u * 16 * rs)
    T1dst = lambda u: u * 1024
    A.label("K0_qkm")
    A("s_lshr_b32 s19, s24, 2")
    A("s_lshl_b32 s19, s19, 2")
    A("s_add_u32 s19, s19, 64")
    srd(A, 8, 66, D * 3 * D * 2)
    def ones_code(zero):
        A(f"""
        v_lshrrev_b32 v1, 5, v0
        v_mul_u32_u24 v1, {KVG}, v1
        v_and_b32 v2, 31, v0
        v_mul_u32_u24 v2, 304, v2
        v_add_u32 v1, v1, v2
        s_mul_i32 s22, s24, {KVH}
        s_add_u32 s22, s22, {KV + 9216 + 288}
        v_mov_b32 v8, 0x3f803f80
        v_mov_b32 v9, 0x3f803f80
        v_mov_b32 v10, 0x3f803f80
        v_mov_b32 v11, 0x3f803f80
        buffer_store_dwordx4 v[8:11], v1, s[4:7], s22 offen
        s_add_u32 s22, s22, {LBS}
        buffer_store_dwordx4 v[8:11], v1, s[4:7], s22 offen
        """)
        if zero: A(f"""
        v_lshlrev_b32 v2, {2 + P.get("fsh", 5)}, v0
        v_mov_b32 v12, 0
        s_lshl_b32 s22, s24, {10 + P.get("fsh", 5)}
        s_add_u32 s22, s22, {FLG}
        buffer_store_dword v12, v2, s[4:7], s22 offen
        """)
    if not SOLO: ones_code(True)
    A(f"""
    s_lshr_b32 s22, s24, 4
    s_mul_i32 s20, s22, 1152
    s_and_b32 s23, s24, 15
    s_mul_i32 s23, s23, 72
    s_add_u32 s20, s20, s23
    s_mul_i32 s23, s3, {9*16*3456}
    s_add_u32 s20, s20, s23
    s_mul_i32 s21, s24, {T1S}
    s_mul_i32 s23, s3, 9216
    s_add_u32 s21, s21, s23
    s_add_u32 s21, s21, {WQ}
    """)
    k0_units(A, 9, 3456, 20, 8, 4, 256, 512, T1src(3456), T1dst, True, 36 * 1024)
    A.label("K0_qke")
    srd(A, 8, 66, D * 3 * D * 2)
    A(f"""
    s_mul_i32 s20, s24, {2*72}
    s_add_u32 s20, s20, 32
    s_mul_i32 s23, s3, {9*16*3456}
    s_add_u32 s20, s20, s23
    s_and_b32 s25, s24, 3
    s_lshr_b32 s21, s24, 2
    s_mul_i32 s21, s21, {T1S}
    s_mov_b32 s19, {4*(16+8)}
    s_mul_i32 s23, s3, 9216
    s_add_u32 s21, s21, s23
    s_add_u32 s21, s21, {WQ + 32*T1S}
    """)
    k0_units(A, 9, 3456, 0, 36, 0, 256, 512, T1src(3456), T1dst, True, 36 * 1024, maskq=True)
    A.label("K0_v")
    A("s_mul_i32 s19, s24, 21846")
    A("s_lshr_b32 s19, s19, 16")
    A("s_lshl_b32 s19, s19, 2")
    A(f"s_add_u32 s19, s19, {4*(16+9)}")
    srd(A, 8, 66, D * 3 * D * 2)
    A(f"""
    s_lshl_b32 s20, s24, 6
    s_add_u32 s20, s20, 2304
    s_mul_i32 s23, s3, {9*16*3456}
    s_add_u32 s20, s20, s23
    s_mul_i32 s21, s24, {T1S}
    s_mul_i32 s23, s3, 9216
    s_add_u32 s21, s21, s23
    s_add_u32 s21, s21, {WQ + 36*T1S}
    """)
    k0_units(A, 9, 3456, 16, 4, 8, 256, 512, T1src(3456), T1dst, True, 36 * 1024)
    for nm, ptr, add in (() if SIDE else (("w1", 72, 0), ("w3", 74, 256))):
        A.label(f"K0_{nm}")
        srd(A, 8, ptr, D * F * 2)
        A(f"""
        s_lshl_b32 s20, s24, 6
        s_mul_i32 s23, s3, {9*16*9216}
        s_add_u32 s20, s20, s23
        s_mul_i32 s21, s24, {2*T1S}
        s_mul_i32 s23, s3, 9216
        s_add_u32 s21, s21, s23
        s_add_u32 s21, s21, {W13 + add}
        """)
        k0_units(A, 9, 9216, 16, 8, 4, T1S, 512, T1src(9216), T1dst, True, 36 * 1024)
    if not SIDE:
        A.label("K0_w2")
        srd(A, 8, 76, D * F * 2)
        A(f"""
        s_mul_i32 s22, s24, 3641
        s_lshr_b32 s22, s22, 16             ; seg = j/18
        s_mul_i32 s23, s22, 18
        s_sub_u32 s23, s24, s23             ; strip
        s_mul_i32 s22, s22, 36
        s_mul_i32 s25, s3, 9
        s_add_u32 s22, s22, s25             ; U0
        s_mul_i32 s20, s22, {16*1152}
        s_lshl_b32 s25, s23, 6
        s_add_u32 s20, s20, s25
        s_lshl_b32 s21, s22, 9              ; U0*512
        s_mul_i32 s25, s23, {2*144*1024}
        s_add_u32 s21, s21, s25
        s_add_u32 s21, s21, {W2}
        """)
        k0_units(A, 9, 1152, 16, 4, 8, 144 * 1024, 256, lambda u: u * 16 * 1152, lambda u: u * 512, False)
    A.label("K0_wom")
    srd(A, 8, 68, D * D * 2)
    A(f"""
    s_mul_i32 s20, s3, {8*18*1152}
    s_lshl_b32 s25, s24, 6
    s_add_u32 s20, s20, s25
    s_lshl_b32 s21, s3, 12
    s_mul_i32 s25, s24, {2*18*1024}
    s_add_u32 s21, s21, s25
    s_add_u32 s21, s21, {WO}
    """)
    k0_units(A, 8, 1152, 16, 4, 8, 18 * 1024, 256, lambda u: u * 18 * 1152, lambda u: u * 512, False)
    A.label("K0_woe")
    srd(A, 8, 68, D * D * 2)
    A(f"""
    s_mul_i32 s20, s3, {144*1152}
    s_add_u32 s20, s20, {16*1152}
    s_mul_i32 s25, s24, {9*64}
    s_add_u32 s20, s20, s25
    s_lshl_b32 s21, s3, 9
    s_add_u32 s21, s21, {WO + 32*512}
    s_mul_i32 s25, s24, {9*2*18*1024}
    s_add_u32 s21, s21, s25
    """)
    k0_units(A, 9, 1152, 16, 4, 8, 18 * 1024, 256, lambda u: u * 64, lambda u: u * 2 * 18 * 1024, False, row_mode="woext")
    if SOLO:
        A.label("K0_ones")
        if EARLY:
            A("s_lshl_b32 s24, s24, 2")
            for k in range(4):
                ones_code(False)
                A("s_add_u32 s24, s24, 1")
        else: ones_code(False)
        A("s_branch K0_END")
        A.label("K0_zero")
        A(f"""
        v_lshlrev_b32 v2, {2 + P.get("fsh", 5)}, v0
        v_mov_b32 v12, 0
        s_lshl_b32 s22, s24, {12 + P.get("fsh", 5)}
        s_add_u32 s22, s22, {FLG}
        """)
        for k in range(4):
            if k == 3:
                A("s_cmp_eq_u32 s24, 1")
                A("s_cselect_b32 s22, 0x7fff0000, s22")
            A("buffer_store_dword v12, v2, s[4:7], s22 offen")
            A(f"s_add_u32 s22, s22, {1 << (10 + P.get('fsh', 5))}")
        A("s_branch K0_END")
        A.label("K0_zeroa")
        A(f"""
        v_lshlrev_b32 v2, {2 + P.get("fsh", 5)}, v0
        v_mov_b32 v12, 0
        s_mov_b32 s22, {FLG + (7168 << P.get("fsh", 5))}
        buffer_store_dword v12, v2, s[4:7], s22 offen
        s_waitcnt vmcnt(0)
        s_lshl_b32 s22, s3, 2
        v_mov_b32 v12, 1
        v_mov_b32 v2, 0
        s_mov_b64 exec, 1
        buffer_store_dword v12, v2, s[16:19], s22 offen
        s_mov_b64 exec, -1
        """)
    A.label("K0_END")
    return njobs

def emit(path):
    hdr = open(f"cdna_kernels/{NAME}.s.ref").read().split("; Override launch")[0]
    out = hdr
    for n, g, b, lds in launches:
        out += f"; @launch kernel={n} grid=({g},1,1) block=({b},1,1) lds={lds}\n"
    out += '.amdgcn_target "amdgcn-amd-amdhsa--gfx950"\n.text\n'
    for n, text, nv, acc, ns in kernels:
        out += "\n".join((" " + l.split(";")[0].strip()) if l.startswith(" ") else l for l in text.split("\n"))
    out += '.section .rodata,"a"\n'
    for n, text, nv, acc, ns in kernels:
        if n is None: continue
        out += f""".p2align 6
.amdhsa_kernel {n}
  .amdhsa_next_free_vgpr {nv}
  .amdhsa_next_free_sgpr {ns}
  .amdhsa_accum_offset {acc}
  .amdhsa_group_segment_fixed_size 0
  .amdhsa_kernarg_size 80
  .amdhsa_user_sgpr_count 2
  .amdhsa_user_sgpr_kernarg_segment_ptr 1
  .amdhsa_system_sgpr_workgroup_id_x 1
.end_amdhsa_kernel
"""
    open(path, "w").write(out)

if __name__ == "__main__":
    import gen as G2
    G2.main()
def main():
    import k2, chain
    if P.get("mega", 1):
        import mega
        if P.get("solo", 1):
            launches.append(mega.gen_mega())
        else:
            L0 = chain.gen_k0(); LM = mega.gen_mega()
            launches.extend([L0, LM])
        kernels.append((None, "CODE_END:\n    s_endpgm\n", 0, 0, 0))
    else:
        L0 = chain.gen_k0(); L1 = chain.gen_k1s()
        L2a = k2.gen_k2("k2a_kernel", True)
        CA, CB = chain.gen_chain()
        L2 = k2.gen_k2("k2_kernel", False)
        kernels.append((None, "CODE_END:\n    s_endpgm\n", 0, 0, 0))
        launches.extend([L0, L1, L2a, CA, L2, CB])
    emit(sys.argv[1] if len(sys.argv) > 1 else f"cdna_kernels/{NAME}.s")
```

```python
from asmlib import *
import gen as G
import chain as C
P = G.P
FSH = C.FSH
SCR = 151552
QA = P.get('q_atomic', 0)

def att_phase(A, L, side, tail_vm, post_loop=None):
    VK, VV = 2, 6
    NEG, Sr, Pr = 16, 48, 80
    T = 96
    SV, SD, SO = 112, 120, 192
    FL = 208
    aQM, aQE, aO, aKM, aV, aKE = 0, 8, 72, 104, 116, 140
    W2 = 2 * G.KVG
    A(f"""
    s_and_b32 s24, s2, 7
    s_lshl_b32 s24, s24, 2
    s_bfe_u32 s25, s2, 0x20003
    s_add_u32 s24, s24, s25            ; head
    s_lshr_b32 s26, s2, 5              ; qblk
    s_lshl_b32 s25, s26, 3
    s_lshl_b32 s27, s3, 1
    s_add_u32 s25, s25, s27
    s_lshl_b32 s29, s24, 6
    s_add_u32 s29, s29, s25
    s_lshl_b32 s27, s29, 10
    s_add_u32 s27, s27, {G.QM}
    s_add_u32 s27, s27, s100
    s_lshl_b32 s28, s29, 7
    s_add_u32 s28, s28, {G.QE}
    s_add_u32 s28, s28, s100
    s_lshl_b32 s21, s3, 10
    s_mul_i32 s20, s24, {G.KVH}
    s_add_u32 s20, s20, {G.KV}
    s_add_u32 s20, s20, s100
    s_add_u32 s20, s20, s21
    v_and_b32 v{T}, 31, v0
    v_lshlrev_b32 v{T+1}, 2, v{T}
    s_lshr_b32 s30, s24, 3
    s_add_u32 s31, s30, 4
    s_mul_i32 s32, s24, 18
    s_add_u32 s33, s32, 17
    s_mul_i32 s32, s32, 683
    s_lshr_b32 s32, s32, 16
    s_add_u32 s32, s32, 9
    s_mul_i32 s33, s33, 683
    s_lshr_b32 s33, s33, 16
    s_add_u32 s33, s33, 9
    v_bfe_u32 v{T+2}, v0, 4, 2
    v_mov_b32 v{T+3}, s31
    v_cmp_eq_u32 vcc, 1, v{T+2}
    v_cndmask_b32 v{T+3}, v{T+3}, 15, vcc
    v_mov_b32 v{T+4}, s32
    v_cmp_eq_u32 vcc, 2, v{T+2}
    v_cndmask_b32 v{T+3}, v{T+3}, v{T+4}, vcc
    v_mov_b32 v{T+4}, s33
    v_cmp_eq_u32 vcc, 3, v{T+2}
    v_cndmask_b32 v{T+3}, v{T+3}, v{T+4}, vcc
    v_lshlrev_b32 v{T+3}, 4, v{T+3}
    v_and_b32 v{T+4}, {0 if QA else 15}, v0
    v_add_u32 v{T+3}, v{T+3}, v{T+4}
    v_lshlrev_b32 v{T+3}, {2+FSH}, v{T+3}
    s_lshl_b32 s30, s30, 4
    s_lshl_b32 s31, s26, 1
    s_add_u32 s30, s30, {0 if QA else "s31"}
    v_and_b32 v{T+4}, 1, v0
    s_add_u32 s31, s31, 128
    v_mov_b32 v{T+5}, s30
    v_mov_b32 v{T+6}, s31
    v_and_b32 v{T+7}, 2, v0
    v_cmp_eq_u32 vcc, 2, v{T+7}
    v_cndmask_b32 v{T+5}, v{T+5}, v{T+6}, vcc
    v_add_u32 v{T+4}, v{T+5}, v{T+4}
    v_lshlrev_b32 v{T+4}, {2+FSH}, v{T+4}
    s_add_u32 s38, s41, 4096
    s_lshl_b32 s38, s38, {FSH}
    s_add_u32 s38, s38, {G.FLG}
    """)
    SOLO = P.get("solo", 1)
    if SOLO:
        A(f"""
        s_lshr_b32 s30, s82, 1
        s_add_u32 s30, s30, 130
        v_and_b32 v{T+8}, 3, v0
        v_min_u32 v{T+8}, 2, v{T+8}
        v_add_u32 v{T+8}, s30, v{T+8}
        v_and_b32 v{T+9}, 1, v0
        v_add_u32 v{T+9}, 148, v{T+9}
        v_and_b32 v{T+10}, 4, v0
        v_cmp_eq_u32 vcc, 4, v{T+10}
        v_cndmask_b32 v{T+8}, v{T+8}, v{T+9}, vcc
        s_lshr_b32 s30, s24, {2 if P.get("early", 0) else 0}
        s_add_u32 s30, s30, 150
        v_mov_b32 v{T+9}, s30
        v_and_b32 v{T+10}, 8, v0
        v_cmp_eq_u32 vcc, 8, v{T+10}
        v_cndmask_b32 v{T+8}, v{T+8}, v{T+9}, vcc
        v_lshlrev_b32 v{T+12}, {2+FSH}, v{T+8}
        v_add_u32 v{T+12}, {G.FLG + (7168 << FSH)}, v{T+12}
        """)
    A(f"""
    v_bfe_u32 v{T+5}, v0, 2, 1
    v_lshlrev_b32 v{T+5}, 3, v{T+5}
    v_bfe_u32 v{T+6}, v0, 3, 1
    v_lshlrev_b32 v{T+6}, 2, v{T+6}
    v_and_b32 v{T+7}, 3, v0
    v_add3_u32 v{T+5}, v{T+5}, v{T+6}, v{T+7}
    v_min_u32 v{T+6}, 18, v{T}
    v_cmp_gt_u32 vcc, 16, v{T}
    v_cndmask_b32 v{T+5}, v{T+6}, v{T+5}, vcc
    v_lshlrev_b32 v{T+5}, 4, v{T+5}
    v_bfe_u32 v{T+6}, v0, 5, 1
    v_mul_u32_u24 v{T+6}, 304, v{T+6}
    v_add_u32 v{T+5}, v{T+5}, v{T+6}
    """)
    if P.get("att_vz", 1):
        A(f"""
        v_cmp_lt_u32 vcc, 18, v{T}
        v_cmp_ne_u32 s[32:33], 22, v{T}
        s_and_b64 vcc, vcc, s[32:33]
        v_mov_b32 v{T+6}, 0x100000
        v_cndmask_b32 v{T+5}, v{T+5}, v{T+6}, vcc
        """)
    for p in range(4):
        A(f"v_add_u32 v{VK+p}, {p*W2}, v1")
        A(f"v_add_u32 v{VV+p}, {p*W2 + 9216}, v{T+5}")
    for i in range(64): A(f"v_accvgpr_write_b32 a{aQE+i}, 0")
    for i in range(4): A(f"v_mov_b32 v{FL+i}, -1")
    A(f"""
    s_mul_i32 s86, s26, {32*36864}
    s_mul_i32 s30, s24, 36864
    s_add_u32 s86, s86, s30
    s_add_u32 s86, s86, s21
    s_add_u32 s86, s86, {G.PART}
    {C.LO2(86)}
    """)
    if side: side_setup(A, L, SV, T + 8)
    if P.get("att_fillpre", 0):
        for k in range(9):
            A(f"buffer_store_dwordx4 v[{FL}:{FL+3}], v1, s[4:7], s86 offen sc1")
            A("s_add_u32 s86, s86, 4096")
    A("s_cmp_lg_u32 s3, 0")
    A(f"s_cbranch_scc1 {L}_PD")
    R = A.raw
    R("    s_mov_b32 s39, 0x20000")
    R(f"{L}_PL:")
    R(f"    buffer_load_dword v{T+6}, v{T+3}, s[4:7], s38 offen sc1")
    R(f"    buffer_load_dword v{T+7}, v{T+4}, s[4:7], s38 offen sc1")
    if SOLO: R(f"    buffer_load_dword v{T+13}, v{T+12}, s[4:7], 0 offen sc1")
    R("    s_waitcnt vmcnt(0)")
    if SOLO: R(f"    v_and_b32 v{T+6}, v{T+6}, v{T+13}")
    R(f"    v_and_b32 v{T+6}, v{T+6}, v{T+7}")
    R(f"    v_cmp_ne_u32 vcc, 1, v{T+6}")
    R("    s_nop 1")
    R("    s_and_b64 exec, exec, vcc")
    R(f"    s_cbranch_scc0 {L}_PX")
    R(f"    s_sleep {P.get('att_sleep', 2)}")
    R("    s_sub_u32 s39, s39, 1")
    R("    s_cmp_lg_u32 s39, 0")
    R(f"    s_cbranch_scc1 {L}_PL")
    R(f"{L}_PX:")
    R("    s_mov_b64 exec, -1")
    A.label(f"{L}_PD")
    A("s_barrier")
    A.stamp("a0" if side else "b0")
    def dma_round(B, j):
        g = 0 if j <= 4 else (1 if j <= 9 else 2)
        B(f"s_add_u32 s30, s20, {j*4096}")
        B(f"s_add_u32 m0, s21, {j*4096}")
        B("buffer_load_dwordx4 v1, s[4:7], s30 offen sc1 lds", tag=f"c{g}")
    for j in range(3): dma_round(A, j)
    for j in range(2):
        A(f"buffer_load_dwordx4 a[{aQM+4*j}:{aQM+4*j+3}], v1, s[4:7], s27 offen offset:{j*1024} sc1", tag="q")
        A(f"buffer_load_dword v{T+2+j}, v{T+1}, s[4:7], s28 offen offset:{j*128} sc1", tag="q")
    PRE = P.get("att_pre", 16)
    for j in range(3, PRE): dma_round(A, j)
    A.wait("q")
    A("v_cmp_gt_u32 vcc, 512, v1")
    for j in range(2):
        A(f"v_cndmask_b32 v{T+4}, 0, v{T+2+j}, vcc")
        A(f"v_cndmask_b32 v{T+5}, v{T+2+j}, 0, vcc")
        for k in range(4):
            A(f"v_accvgpr_write_b32 a{aQE+32*j+5*k}, v{T+4}")
            A(f"v_accvgpr_write_b32 a{aQE+32*j+16+5*k}, v{T+5}")
    def rdK(t):
        p = t >> 4; g = (t >> 3) & 1
        A(f"ds_read_b128 a[{aKM+4*(t%3)}:{aKM+4*(t%3)+3}], v{VK+p} offset:{g*G.KVG + (t&7)*1024}", tag=f"k{t}")
        if t % 8 == 0:
            A(f"ds_read_b128 a[{aKE+4*g}:{aKE+4*g+3}], v{VK+p} offset:{g*G.KVG + 8192}", tag=f"k{t}")
    def rdV(t, half):
        p = t >> 4; g = (t >> 3) & 1
        b = aV + 8 * (t % 3) + 4 * half
        A(f"ds_read_b128 a[{b}:{b+3}], v{VV+p} offset:{g*G.KVG + (t&7)*1216 + half*608}", tag=f"v{t}")
    def qk1(j, t, c):
        s_ = Sr + 16 * j
        A(f"v_mfma_f32_32x32x16_bf16 v[{s_}:{s_+15}], a[{aKM+4*(t%3)}:{aKM+4*(t%3)+3}], a[{aQM+4*j}:{aQM+4*j+3}], {c}")
    def qk2(j, t):
        s_ = Sr + 16 * j; g = (t >> 3) & 1; q = aQE + 32 * j + 4 * (t & 7)
        A(f"v_mfma_f32_32x32x16_bf16 v[{s_}:{s_+15}], a[{aKE+4*g}:{aKE+4*g+3}], a[{q}:{q+3}], v[{s_}:{s_+15}]")
    def pv(j, t, half, first=None):
        b = aV + 8 * (t % 3) + 4 * half; p_ = Pr + 8 * j + 4 * half; o = aO + 16 * j
        z = (t == 0 and half == 0) if first is None else first
        c = "0" if z else f"a[{o}:{o+15}]"
        A(f"v_mfma_f32_32x32x16_bf16 a[{o}:{o+15}], a[{b}:{b+3}], v[{p_}:{p_+3}], {c}")
    def maxreduce(dst, s_, first):
        i0 = 0
        if first:
            A(f"v_max3_f32 v{dst}, v{s_}, v{s_+1}, v{s_+2}")
            A(f"v_max_f32 v{dst}, v{dst}, v{s_+3}")
            i0 = 4
        for i in range(i0, 16, 2):
            A(f"v_max3_f32 v{dst}, v{dst}, v{s_+i}, v{s_+i+1}")
    def setneg(dst, j):
        A(f"v_mov_b32 v{T+7}, v{dst}")
        A(f"v_permlane32_swap_b32 v{dst}, v{T+7}")
        A(f"v_max_f32 v{dst}, v{dst}, v{T+7}")
        for i in range(16): A(f"v_sub_f32 v{NEG+16*j+i}, 0, v{dst}")
    NEGC = lambda j: f"v[{NEG+16*j}:{NEG+16*j+15}]"
    A.wait("c0")
    A("s_barrier")
    rdK(0); rdK(1)
    if P.get("att_ord", 1): rdV(0, 0); rdV(0, 1)
    A.wait("k0")
    qk1(0, 0, "0"); qk1(1, 0, "0"); qk2(0, 0); qk2(1, 0)
    maxreduce(T + 4, Sr, True); setneg(T + 4, 0)
    qk1(0, 0, NEGC(0)); qk2(0, 0)
    maxreduce(T + 5, Sr + 16, True); setneg(T + 5, 1)
    if side:
        A(f"v_mov_b32 v{SV+4}, 0"); A(f"v_mov_b32 v{SV+6}, 0")
    A.stamp("a1" if side else "b1")
    nextj = PRE
    U0, U1, US = P.get('att_u0', 3), P.get('att_u1', 13), 5
    tail = [] if P.get('att_wopost', 0) else tail_vm()
    for v in range(128):
        t, j = v >> 1, v & 1
        s_ = Sr + 16 * j; p_ = Pr + 8 * j
        jn, tn = 1 - j, t + j
        jp, tp = 1 - j, t - 1 + j
        extra = Asm()
        if j == 0:
            for _ in range(P.get("att_dpt", 3)):
                if nextj < 37:
                    dma_round(extra, nextj); nextj += 1
            if 20 <= t < 38 and t % 2 == 0 and not P.get('att_fillpre', 0):
                extra(f"buffer_store_dwordx4 v[{FL}:{FL+3}], v1, s[4:7], s86 offen sc1")
                extra("s_add_u32 s86, s86, 4096")
            if t >= P.get("att_tail0", 38) and tail: extra.ins += tail.pop(0)
        elif side:
            side_step(extra, t, U0, U1, US, SV, SD, SO, L)
        def exps(a, b):
            for i in range(a, b): A(f"v_exp_f32 v{s_+i}, v{s_+i}")
        def cvts(a, b):
            for i in range(a, b): A(f"v_cvt_pk_bf16_f32 v{p_+i}, v{s_+2*i}, v{s_+2*i+1}")
        if P.get("att_ord", 1):
            po = Pr + 8 * (1 - j); so = Sr + 16 * (1 - j)
            if tp >= 0:
                if j == 1: A.wait(f"v{tp}")
                pv(jp, tp, 0)
            exps(0, 2)
            if v > 0:
                for i in (6, 7): A(f"v_cvt_pk_bf16_f32 v{po+i}, v{so+2*i}, v{so+2*i+1}")
            exps(2, 4)
            if tn < 64:
                if j == 1: A.wait(f"k{tn}")
                qk1(jn, tn, NEGC(jn))
            exps(4, 6)
            if j == 1 and t + 1 < 64: rdV(t + 1, 0)
            elif j == 0 and t + 2 < 64:
                if t + 2 in (8, 16):
                    A.wait("c1" if t + 2 == 8 else "c2")
                    A("s_barrier")
                rdK(t + 2)
            exps(6, 8); cvts(0, 2)
            if tn < 64: qk2(jn, tn)
            exps(8, 10)
            if j == 1 and t + 1 < 64: rdV(t + 1, 1)
            A.ins += extra.ins
            exps(10, 12); cvts(2, 4)
            if tp >= 0: pv(jp, tp, 1)
            exps(12, 16); cvts(4, 6)
            if v == 127: cvts(6, 8)
            continue
        if tn < 64:
            if j == 1: A.wait(f"k{tn}")
            qk1(jn, tn, NEGC(jn))
        exps(0, 2)
        if j == 0: rdV(t, 0)
        elif t + 2 < 64:
            if t + 2 in (8, 16):
                A.wait("c1" if t + 2 == 8 else "c2")
                A("s_barrier")
            rdK(t + 2)
        exps(2, 4)
        if tn < 64: qk2(jn, tn)
        exps(4, 6)
        if j == 0: rdV(t, 1)
        exps(6, 8); cvts(0, 2)
        if tp >= 0:
            if j == 1: A.wait(f"v{tp}")
            pv(jp, tp, 0)
        exps(8, 10)
        A.ins += extra.ins
        exps(10, 12); cvts(2, 4)
        if tp >= 0: pv(jp, tp, 1)
        exps(12, 16); cvts(4, 8)
    for g in tail: A.ins += g
    pv(1, 63, 0); pv(1, 63, 1)
    if post_loop: post_loop(A)
    A.stamp("a2" if side else "b2")
    def readO():
        for j in range(2):
            for i in range(11): A(f"v_accvgpr_read_b32 v{Sr+16*j+i}, a{aO+16*j+i}")
    readO()
    A(f"""
    s_mov_b32 s30, {hex(G.f32(2.0**60))}
    v_max_f32 v{T}, v{Sr+10}, v{Sr+26}
    v_cmp_gt_f32 vcc, s30, v{Sr+10}
    v_cmp_gt_f32 s[32:33], s30, v{Sr+26}
    s_and_b64 vcc, vcc, s[32:33]
    s_cmp_eq_u64 vcc, -1
    s_cbranch_scc1 {L}_OUT
    """)
    A.save(L + "out")
    A(f"""
    s_mov_b32 s31, 0
    v_mov_b32 v{T+4}, 0xff800000
    v_mov_b32 v{T+5}, 0xff800000
    v_mov_b32 v{T+8}, v{VK}
    """)
    A.label(f"{L}_F1")
    A(f"ds_read_b128 a[{aKE}:{aKE+3}], v{T+8} offset:8192")
    for t in range(8):
        A(f"ds_read_b128 a[{aKM}:{aKM+3}], v{T+8} offset:{t*1024}")
        A.waitall(vm=False)
        for j in range(2):
            qk1(j, 0, "0")
            q = aQE + 32 * j + 4 * t; s_ = Sr + 16 * j
            A(f"v_mfma_f32_32x32x16_bf16 v[{s_}:{s_+15}], a[{aKE}:{aKE+3}], a[{q}:{q+3}], v[{s_}:{s_+15}]")
        for j in range(2): maxreduce(T + 4 + j, Sr + 16 * j, False)
    A(f"""
    v_add_u32 v{T+8}, {G.KVG}, v{T+8}
    s_add_u32 s31, s31, 1
    s_cmp_lt_u32 s31, 8
    s_cbranch_scc1 {L}_F1
    """)
    setneg(T + 4, 0); setneg(T + 5, 1)
    for i in range(32): A(f"v_accvgpr_write_b32 a{aO+i}, 0")
    A(f"""
    s_mov_b32 s31, 0
    v_mov_b32 v{T+8}, v{VK}
    v_mov_b32 v{T+9}, v{VV}
    """)
    A.label(f"{L}_F2")
    A(f"ds_read_b128 a[{aKE}:{aKE+3}], v{T+8} offset:8192")
    for t in range(8):
        A("s_nop 15")
        A(f"ds_read_b128 a[{aKM}:{aKM+3}], v{T+8} offset:{t*1024}")
        A(f"ds_read_b128 a[{aV}:{aV+3}], v{T+9} offset:{t*1216}")
        A(f"ds_read_b128 a[{aV+4}:{aV+7}], v{T+9} offset:{t*1216+608}")
        A.waitall(vm=False)
        for j in range(2):
            qk1(j, 0, NEGC(j))
            q = aQE + 32 * j + 4 * t; s_ = Sr + 16 * j
            A(f"v_mfma_f32_32x32x16_bf16 v[{s_}:{s_+15}], a[{aKE}:{aKE+3}], a[{q}:{q+3}], v[{s_}:{s_+15}]")
        for j in range(2):
            s_ = Sr + 16 * j; p_ = Pr + 8 * j
            for i in range(16): A(f"v_exp_f32 v{s_+i}, v{s_+i}")
            for i in range(8): A(f"v_cvt_pk_bf16_f32 v{p_+i}, v{s_+2*i}, v{s_+2*i+1}")
            pv(j, 0, 0, False); pv(j, 0, 1, False)
    A(f"""
    v_add_u32 v{T+8}, {G.KVG}, v{T+8}
    v_add_u32 v{T+9}, {G.KVG}, v{T+9}
    s_add_u32 s31, s31, 1
    s_cmp_lt_u32 s31, 8
    s_nop 15
    s_cbranch_scc1 {L}_F2
    """)
    readO()
    A.label(f"{L}_OUT")
    A.restore(L + "out")
    A(f"""
    v_rcp_f32 v{T+4}, v{Sr+10}
    v_rcp_f32 v{T+5}, v{Sr+26}
    v_bfe_u32 v{T}, v0, 4, 1
    v_mul_u32_u24 v{T}, 18432, v{T}
    v_and_b32 v{T+1}, 15, v0
    v_lshlrev_b32 v{T+1}, 4, v{T+1}
    v_add_u32 v{T}, v{T}, v{T+1}
    v_bfe_u32 v{T+1}, v0, 5, 1
    v_lshlrev_b32 v{T+1}, 8, v{T+1}
    v_add_u32 v{T+1}, v{T}, v{T+1}
    s_mul_i32 s30, s25, 36864
    s_add_u32 s30, s30, {G.OF}
    {C.LO2(30)}
    s_lshl_b32 s31, s24, 9
    s_add_u32 s31, s31, s30
    s_lshr_b32 s32, s24, 2
    s_lshl_b32 s32, s32, 8
    s_and_b32 s33, s24, 3
    s_lshl_b32 s33, s33, 2
    s_add_u32 s32, s32, s33
    s_add_u32 s32, s32, s30
    s_add_u32 s32, s32, 16384
    s_add_u32 s33, s31, 36864
    """)
    for j in range(2):
        o = Sr + 16 * j; p_ = Pr + 8 * j
        for i in range(10): A(f"v_mul_f32 v{o+i}, v{o+i}, v{T+4+j}")
        for i in range(5): A(f"v_cvt_pk_bf16_f32 v{p_+i}, v{o+2*i}, v{o+2*i+1}")
        A(f"buffer_store_dwordx4 v[{p_}:{p_+3}], v{T+1}, s[4:7], s{31 if j == 0 else 33} offen sc1", tag="o")
    A(f"v_permlane32_swap_b32 v{Pr+4}, v{Pr+12}")
    A(f"v_lshrrev_b32 v{T}, 2, v1")
    A("s_lshl_b32 s32, s24, 13")
    A("s_lshl_b32 s33, s25, 7")
    A("s_add_u32 s32, s32, s33")
    A(f"s_add_u32 s32, s32, {G.OE}")
    A(f"buffer_store_dword v{Pr+4}, v{T}, s[4:7], s32 offen sc1", tag="o")
    A(f"""
    s_lshl_b32 s30, s26, 2
    s_add_u32 s30, s30, s3
    s_lshl_b32 s30, s30, 5
    s_add_u32 s30, s30, s24
    s_lshl_b32 s30, s30, 2
    s_add_u32 s30, s30, s41
    s_add_u32 s30, s30, 16384
    s_lshl_b32 s30, s30, {FSH}
    s_add_u32 s31, s30, {G.FLG}
    v_mov_b32 v{T+2}, 0
    v_mov_b32 v{T+3}, 1
    """)
    A("s_mov_b32 s86, s31")

def side_setup(A, L, SV, t0, sj=2, scr=SCR):
    t1, t2 = t0 + 1, t0 + 2
    A("s_load_dwordx4 s[72:75], s[0:1], 32")
    A("s_load_dwordx2 s[70:71], s[0:1], 48")
    A(f"""
    s_mov_b32 s19, 0x3f803f80
    s_mov_b32 s14, {G.D*G.F*2}
    s_mov_b32 s15, 0x00020000
    v_and_b32 v{t0}, 63, v0
    v_lshrrev_b32 v{SV}, 3, v{t0}
    v_and_b32 v{SV+2}, 15, v{t0}
    v_lshlrev_b32 v{SV+2}, 4, v{SV+2}
    s_lshl_b32 s30, s3, 11
    s_add_u32 s30, s30, {scr}
    v_add_u32 v{SV+3}, s30, v1
    v_lshrrev_b32 v{SV+5}, 5, v{t0}
    v_lshlrev_b32 v{SV+5}, 3, v{SV+5}
    v_bfe_u32 v{t1}, v{t0}, 2, 2
    v_add_u32 v{SV+5}, v{SV+5}, v{t1}
    v_lshlrev_b32 v{SV+5}, 7, v{SV+5}
    v_add_u32 v{SV+5}, s30, v{SV+5}
    v_bfe_u32 v{t1}, v{t0}, 4, 1
    v_lshlrev_b32 v{t1}, 5, v{t1}
    v_add_u32 v{SV+5}, v{SV+5}, v{t1}
    s_lshl_b32 s30, s3, 8
    s_add_u32 s30, s30, {SCR + 8192}
    v_lshlrev_b32 v{SV+7}, 2, v{t0}
    v_add_u32 v{SV+7}, s30, v{SV+7}
    s_lshl_b32 s18, s{sj}, 1
    s_add_u32 s18, s18, s3
    s_lshl_b32 s18, s18, {2+FSH}
    s_add_u32 s18, s18, {G.FLG + (5120 << FSH)}
    """)
    A.waitall(vm=False)
    A(f"""
    s_cmp_ge_u32 s{sj}, 144
    s_cbranch_scc1 {L}_SW2
    s_cmp_ge_u32 s{sj}, 72
    s_cselect_b32 s12, s74, s72
    s_cselect_b32 s13, s75, s73
    s_cselect_b32 s30, 72, 0
    s_cselect_b32 s36, 256, 0
    s_and_b32 s13, s13, 0xffff
    s_sub_u32 s29, s{sj}, s30
    s_lshl_b32 s34, s29, 7
    s_mul_i32 s30, s3, {9*16*9216}
    s_add_u32 s34, s34, s30
    s_mov_b32 s35, {16*9216}
    s_mul_i32 s30, s29, {4*G.T1S}
    s_add_u32 s36, s36, s30
    s_add_u32 s16, s36, {G.W13 + 36*1024}
    s_mul_i32 s30, s3, 9216
    s_add_u32 s36, s36, s30
    s_add_u32 s36, s36, {G.W13}
    s_mov_b32 s37, 1024
    s_mov_b32 s17, {2*G.T1S}
    s_mov_b32 s30, 9216
    s_mov_b32 s32, 16
    s_mov_b32 s33, 8
    s_mov_b32 s22, {G.T1S}
    s_mov_b32 s23, 512
    s_branch {L}_SCOM
    """)
    A.label(f"{L}_SW2")
    A(f"""
    s_mov_b32 s12, s70
    s_and_b32 s13, s71, 0xffff
    s_sub_u32 s29, s{sj}, 144
    s_mul_i32 s30, s29, 7282
    s_lshr_b32 s30, s30, 16             ; seg = j/9
    s_mul_i32 s32, s30, 9
    s_sub_u32 s32, s29, s32
    s_mul_i32 s30, s30, 36
    s_mul_i32 s33, s3, 9
    s_add_u32 s30, s30, s33             ; U0
    s_mul_i32 s34, s30, {16*1152}
    s_lshl_b32 s33, s32, 7
    s_add_u32 s34, s34, s33
    s_mov_b32 s35, {16*1152}
    s_lshl_b32 s36, s30, 9
    s_mul_i32 s33, s32, {4*144*1024}
    s_add_u32 s36, s36, s33
    s_add_u32 s36, s36, {G.W2}
    s_mov_b32 s16, 0x7fff0000
    s_cmp_ge_u32 s{sj}, 216
    s_cselect_b32 s14, 0, s14
    s_cselect_b32 s36, s16, s36
    s_mov_b32 s37, 512
    s_mov_b32 s17, {2*144*1024}
    s_mov_b32 s30, 1152
    s_mov_b32 s32, 8
    s_mov_b32 s33, 16
    s_mov_b32 s22, {144*1024}
    s_mov_b32 s23, 256
    """)
    A.label(f"{L}_SCOM")
    A(f"""
    v_mul_lo_u32 v{SV}, v{SV}, s30
    v_and_b32 v{t1}, 7, v{t0}
    v_lshlrev_b32 v{t1}, 4, v{t1}
    v_add_u32 v{SV}, v{SV}, v{t1}
    s_lshl_b32 s30, s30, 3
    v_add_u32 v{SV+1}, s30, v{SV}
    v_bfe_u32 v{t1}, v{t0}, 4, 1
    v_mul_lo_u32 v{t1}, v{t1}, s22
    v_add_u32 v{SV+2}, v{SV+2}, v{t1}
    v_lshrrev_b32 v{t1}, 5, v{t0}
    v_mul_lo_u32 v{t1}, v{t1}, s23
    v_add_u32 v{SV+2}, v{SV+2}, v{t1}
    v_and_b32 v{t1}, 1, v{t0}
    v_mul_lo_u32 v{t1}, v{t1}, s32
    v_add_u32 v{SV+5}, v{SV+5}, v{t1}
    v_bfe_u32 v{t1}, v{t0}, 1, 1
    v_mul_lo_u32 v{t1}, v{t1}, s33
    v_add_u32 v{SV+5}, v{SV+5}, v{t1}
    """)

def side_step(A, t, U0, U1, US, SV, SD, SO, L):
    u, ph = divmod(t - U0, US)
    if 0 <= u < 9 and ph == 0:
        A(f"buffer_load_dwordx4 v[{SD+8*u}:{SD+8*u+3}], v{SV}, s[12:15], s34 offen", tag=f"sl{u}")
        A(f"buffer_load_dwordx4 v[{SD+8*u+4}:{SD+8*u+7}], v{SV+1}, s[12:15], s34 offen", tag=f"sl{u}")
        A("s_add_u32 s34, s34, s35")
    u, ph = divmod(t - U1, US)
    if 0 <= u < 9:
        if ph == 0:
            A.wait(f"sl{u}")
            A(f"ds_write_b128 v{SV+3}, v[{SD+8*u}:{SD+8*u+3}]", tag=f"sw{u}")
            A(f"ds_write_b128 v{SV+3}, v[{SD+8*u+4}:{SD+8*u+7}] offset:1024", tag=f"sw{u}")
        elif ph == 1:
            A.wait(f"sw{u}")
            for k in range(2):
                A(f"ds_read_b64_tr_b16 v[{SO+4*k}:{SO+4*k+1}], v{SV+5} offset:{k*64}", tag=f"sr{u}")
                A(f"ds_read_b64_tr_b16 v[{SO+4*k+2}:{SO+4*k+3}], v{SV+5} offset:{k*64+512}", tag=f"sr{u}")
        elif ph == 2:
            A.wait(f"sr{u}")
            A(f"buffer_store_dwordx4 v[{SO}:{SO+3}], v{SV+2}, s[4:7], s36 offen sc1", tag="ss")
            A("s_add_u32 s30, s36, s17")
            A(f"buffer_store_dwordx4 v[{SO+4}:{SO+7}], v{SV+2}, s[4:7], s30 offen sc1", tag="ss")
            A("s_add_u32 s36, s36, s37")
        elif ph == 3:
            for k in range(2):
                for j in range(4): A(f"v_dot2_f32_bf16 v{SV+4+2*k}, v{SO+4*k+j}, s19, v{SV+4+2*k}")
    TE = U1 + 9 * US
    if t == TE:
        A(f"ds_write_b32 v{SV+7}, v{SV+4}", tag="cs")
        A(f"ds_write_b32 v{SV+7}, v{SV+6} offset:1024", tag="cs")
        A.wait("cs", "ss")
        A("s_barrier")
        b = SD
        A(f"v_and_b32 v{b}, 31, v0")
        A(f"v_lshlrev_b32 v{b}, 2, v{b}")
        A("s_and_b32 s30, s3, 1")
        A("s_lshl_b32 s30, s30, 10")
        A(f"s_add_u32 s30, s30, {SCR + 8192}")
        A(f"v_add_u32 v{b}, s30, v{b}")
        for j in range(8): A(f"ds_read_b32 v{b+8+j}, v{b} offset:{j*128}", tag="cr")
    if t == TE + 1:
        b = SD
        A.wait("cr")
        A(f"""
        v_add_f32 v{b+8}, v{b+8}, v{b+9}
        v_add_f32 v{b+10}, v{b+10}, v{b+11}
        v_add_f32 v{b+12}, v{b+12}, v{b+13}
        v_add_f32 v{b+14}, v{b+14}, v{b+15}
        v_add_f32 v{b+8}, v{b+8}, v{b+10}
        v_add_f32 v{b+12}, v{b+12}, v{b+14}
        v_add_f32 v{b+8}, v{b+8}, v{b+12}
        v_sub_f32 v{b+8}, 0, v{b+8}
        v_cvt_pk_bf16_f32 v{b+9}, v{b+8}, v{b+8}
        v_lshlrev_b32 v{b+9}, 16, v{b+9}
        v_sub_f32 v{b+8}, v{b+8}, v{b+9}
        v_cvt_pk_bf16_f32 v{b+10}, v{b+8}, v{b+8}
        v_lshlrev_b32 v{b+10}, 16, v{b+10}
        v_sub_f32 v{b+11}, v{b+8}, v{b+10}
        v_cvt_pk_bf16_f32 v{b+12}, v{b+9}, v{b+10}
        v_cvt_pk_bf16_f32 v{b+13}, v{b+9}, v{b+11}
        v_cvt_pk_bf16_f32 v{b+14}, v{b+10}, v{b+9}
        v_mov_b32 v{b+15}, 0
        v_cmp_gt_u32 vcc, 512, v1
        v_cndmask_b32 v{b+12}, 0, v{b+12}, vcc
        v_cndmask_b32 v{b+13}, 0, v{b+13}, vcc
        v_cndmask_b32 v{b+14}, 0, v{b+14}, vcc
        s_and_b32 s30, s3, 1
        s_mul_i32 s30, s30, s17
        s_add_u32 s30, s30, s16
        """)
        A(f"buffer_store_dwordx4 v[{b+12}:{b+15}], v{SV+2}, s[4:7], s30 offen sc1", tag="se")
    if t == TE + P.get("att_fd", 5):
        b = SD
        A.wait("se")
        A(f"v_mov_b32 v{b}, 0")
        A(f"v_mov_b32 v{b+1}, 1")
        A("s_cmp_ge_u32 s3, 2")
        A("s_cselect_b32 s30, 0x7fff0000, s18")
        A("s_mov_b64 exec, 1")
        A(f"buffer_store_dword v{b+1}, v{b}, s[4:7], s30 offen sc1")
        A("s_mov_b64 exec, -1")


def side_early(A, pf):
    def loads(SV, SD, tg):
        for u in range(9):
            A(f"buffer_load_dwordx4 v[{SD+8*u}:{SD+8*u+3}], v{SV}, s[12:15], s34 offen", tag=f"{tg}{u}")
            A(f"buffer_load_dwordx4 v[{SD+8*u+4}:{SD+8*u+7}], v{SV+1}, s[12:15], s34 offen", tag=f"{tg}{u}")
            A("s_add_u32 s34, s34, s35")
    def process(SV, SD, tg, d, ds, ext, s2d, fl):
        SO = 224
        A(f"v_mov_b32 v{SV+4}, 0"); A(f"v_mov_b32 v{SV+6}, 0")
        def wr(u):
            A.wait(f"{tg}{u}")
            o = (u % 3) * 8192
            A(f"ds_write_b128 v{SV+3}, v[{SD+8*u}:{SD+8*u+3}] offset:{o}", tag=f"w{tg}{u}")
            A(f"ds_write_b128 v{SV+3}, v[{SD+8*u+4}:{SD+8*u+7}] offset:{o+1024}", tag=f"w{tg}{u}")
        def rd(u):
            A.wait(f"w{tg}{u}")
            o = (u % 3) * 8192; so = SO + 8 * (u % 3)
            for k in range(2):
                A(f"ds_read_b64_tr_b16 v[{so+4*k}:{so+4*k+1}], v{SV+5} offset:{o+k*64}", tag=f"r{tg}{u}")
                A(f"ds_read_b64_tr_b16 v[{so+4*k+2}:{so+4*k+3}], v{SV+5} offset:{o+k*64+512}", tag=f"r{tg}{u}")
        def st(u):
            A.wait(f"r{tg}{u}")
            so = SO + 8 * (u % 3)
            A(f"buffer_store_dwordx4 v[{so}:{so+3}], v{SV+2}, s[4:7], s{d} offen sc1")
            A(f"s_add_u32 s30, s{d}, s{s2d}")
            A(f"buffer_store_dwordx4 v[{so+4}:{so+7}], v{SV+2}, s[4:7], s30 offen sc1")
            A(f"s_add_u32 s{d}, s{d}, s{ds}")
            for k in range(2):
                for j in range(4): A(f"v_dot2_f32_bf16 v{SV+4+2*k}, v{so+4*k+j}, s19, v{SV+4+2*k}")
        for u in range(11):
            if u < 9: wr(u)
            if 1 <= u < 10: rd(u - 1)
            if u >= 2: st(u - 2)
        A("s_nop 2")
        A(f"ds_write_b32 v{SV+7}, v{SV+4}")
        A(f"ds_write_b32 v{SV+7}, v{SV+6} offset:1024")
        A.waitall(vm=False)
        A("s_barrier")
        b = SD
        A(f"v_and_b32 v{b}, 31, v0")
        A(f"v_lshlrev_b32 v{b}, 2, v{b}")
        A("s_and_b32 s30, s3, 1")
        A("s_lshl_b32 s30, s30, 10")
        A(f"s_add_u32 s30, s30, {SCR + 8192}")
        A(f"v_add_u32 v{b}, s30, v{b}")
        for j in range(8): A(f"ds_read_b32 v{b+8+j}, v{b} offset:{j*128}")
        A.waitall(vm=False)
        A("s_barrier")
        A(f"""
        v_add_f32 v{b+8}, v{b+8}, v{b+9}
        v_add_f32 v{b+10}, v{b+10}, v{b+11}
        v_add_f32 v{b+12}, v{b+12}, v{b+13}
        v_add_f32 v{b+14}, v{b+14}, v{b+15}
        v_add_f32 v{b+8}, v{b+8}, v{b+10}
        v_add_f32 v{b+12}, v{b+12}, v{b+14}
        v_add_f32 v{b+8}, v{b+8}, v{b+12}
        v_sub_f32 v{b+8}, 0, v{b+8}
        v_cvt_pk_bf16_f32 v{b+9}, v{b+8}, v{b+8}
        v_lshlrev_b32 v{b+9}, 16, v{b+9}
        v_sub_f32 v{b+8}, v{b+8}, v{b+9}
        v_cvt_pk_bf16_f32 v{b+10}, v{b+8}, v{b+8}
        v_lshlrev_b32 v{b+10}, 16, v{b+10}
        v_sub_f32 v{b+11}, v{b+8}, v{b+10}
        v_cvt_pk_bf16_f32 v{b+12}, v{b+9}, v{b+10}
        v_cvt_pk_bf16_f32 v{b+13}, v{b+9}, v{b+11}
        v_cvt_pk_bf16_f32 v{b+14}, v{b+10}, v{b+9}
        v_mov_b32 v{b+15}, 0
        v_cmp_gt_u32 vcc, 512, v1
        v_cndmask_b32 v{b+12}, 0, v{b+12}, vcc
        v_cndmask_b32 v{b+13}, 0, v{b+13}, vcc
        v_cndmask_b32 v{b+14}, 0, v{b+14}, vcc
        s_and_b32 s30, s3, 1
        s_mul_i32 s30, s30, s{s2d}
        s_add_u32 s30, s30, s{ext}
        """)
        A(f"buffer_store_dwordx4 v[{b+12}:{b+15}], v{SV+2}, s[4:7], s30 offen sc1")
    A("s_sub_u32 s31, s2, 128")
    side_setup(A, "SE1", 8, 24, sj=31, scr=0)
    loads(8, 32, "a")
    A("""
    s_mov_b32 s24, s36
    s_mov_b32 s25, s37
    s_mov_b32 s26, s16
    s_mov_b32 s27, s17
    s_cmp_lt_u32 s2, 168
    s_cbranch_scc1 SE_ONE
    s_sub_u32 s31, s2, 40
    """)
    A.save("se1")
    side_setup(A, "SE2", 16, 24, sj=31, scr=0)
    loads(16, 112, "b")
    pf(A)
    process(8, 32, "a", 24, 25, 26, 27, 28)
    process(16, 112, "b", 36, 37, 16, 17, 18)
    A("s_branch SE_DONE")
    A.label("SE_ONE")
    A.restore("se1")
    process(8, 32, "a", 24, 25, 26, 27, 28)
    A.label("SE_DONE")
    A.fence()
```

```python
from asmlib import *
import gen as G
from t1 import *
import k4 as K4M
P = G.P
QSCALE = (18 ** -0.5) * LOG2E
SK = P.get("sk", 1)
MEGA = P.get("mega", 1)
K45 = P.get("k45", 1)
XFIRST = MEGA and P.get("solo", 1) and P.get("xfirst", 0)
X2I = 0 if (MEGA and P.get("xreuse", 0)) else 2
LO = (lambda r_: f"s_add_u32 s{r_}, s{r_}, s100") if MEGA else (lambda r_: "")
LO2 = (lambda r_: "") if G.REUSE else LO
FSH = P.get("fsh", 5)
RED = 102400 if (MEGA and P.get('red2', 0)) else 2 * G.T1S
LDS_BYTES = 163840


def signal(A, nflag_sgpr, store_tag):
    A.wait(store_tag)
    A.stamp("sg" + store_tag + str(nflag_sgpr))
    A("s_barrier")
    lab = f"SIG{signal.n}"; signal.n += 1
    A("s_cmp_lg_u32 s3, 0")
    A(f"s_cbranch_scc1 {lab}")
    A.raw("    s_mov_b64 exec, 1")
    A.raw("    v_mov_b32 v30, 0")
    A.raw("    v_mov_b32 v31, 1")
    A.raw(f"    s_lshl_b32 s38, s{nflag_sgpr}, {FSH}")
    A.raw(f"    s_add_u32 s38, s38, {G.FLG}")
    A.raw(f"    buffer_store_dword v31, v30, s[4:7], s38 offen sc1")
    A.raw("    s_mov_b64 exec, -1")
    A.label(lab)
signal.n = 0

def poll(A, base_sgpr, n, allwaves=False):
    lab = f"POLL{poll.n}"; poll.n += 1
    if not allwaves:
        A("s_cmp_lg_u32 s3, 0")
        A(f"s_cbranch_scc1 {lab}_D")
    R = A.raw
    R(f"    v_and_b32 v30, {n-1}, v0")
    R(f"    v_lshlrev_b32 v30, {2+FSH}, v30")
    R(f"    s_lshl_b32 s38, s{base_sgpr}, {FSH}")
    R(f"    s_add_u32 s38, s38, {G.FLG}")
    R("    s_mov_b32 s39, 0x20000")
    if n < 64: R(f"    s_mov_b64 exec, {hex((1 << n) - 1)}" if n < 32 else "    s_mov_b32 exec_hi, 0")
    R(f"{lab}:")
    R(f"    buffer_load_dword v31, v30, s[4:7], s38 offen sc1")
    R("    s_waitcnt vmcnt(0)")
    R("    v_cmp_ne_u32 vcc, 1, v31")
    R("    s_nop 1")
    R("    s_and_b64 exec, exec, vcc")
    R(f"    s_cbranch_scc0 {lab}_X")
    R(f"    s_sleep {P.get('sleep', 1)}")
    R("    s_sub_u32 s39, s39, 1")
    R("    s_cmp_lg_u32 s39, 0")
    R(f"    s_cbranch_scc1 {lab}")
    R(f"{lab}_X:")
    R("    s_mov_b64 exec, -1")
    A.label(f"{lab}_D")
    if not allwaves: A("s_barrier")
poll.n = 0

def t2_decode(A):
    A("""
    s_and_b32 s24, s2, 7
    s_lshr_b32 s25, s2, 3
    s_lshr_b32 s80, s24, 1
    s_lshl_b32 s80, s80, 3
    s_and_b32 s27, s25, 7
    s_add_u32 s80, s80, s27            ; rg
    s_and_b32 s81, s24, 1
    s_lshl_b32 s81, s81, 2
    s_lshr_b32 s28, s25, 3
    s_add_u32 s81, s81, s28            ; cg
    s_lshr_b32 s82, s81, 1
    s_mul_i32 s82, s82, 9
    s_and_b32 s83, s81, 1
    s_lshl_b32 s34, s83, 2
    s_add_u32 s82, s82, s34            ; nt0
    """)

def t2_setup(A, KS, ACT, WP, xin, xout):
    A(f"""
    v_and_b32 v1, 63, v0
    v_lshlrev_b32 v1, 4, v1
    s_mov_b32 s34, s3
    """)
    for i in range(4):
        A(f"s_mul_i32 s35, s34, {KS*1024}")
        A(f"v_add_u32 v{2+i}, s35, v1")
        if i > 0:
            A(f"s_mul_i32 s35, s34, 15360")
            A(f"s_add_u32 s35, s35, {RED + (i-1)*5120}")
            A(f"v_add_u32 v{11+i}, s35, v1")
        A("s_add_u32 s34, s34, 1")
        A("s_and_b32 s34, s34, 3")
    A(f"""
    v_mov_b32 v6, v1
    v_add_u32 v7, {KS*1024}, v1
    v_add_u32 v8, {2*KS*1024}, v1
    v_add_u32 v9, {3*KS*1024}, v1
    v_add_u32 v10, {4*KS*1024}, v1
    s_lshl_b32 s34, s3, 10
    s_mul_i32 s20, s80, {4*KS*1024}
    s_add_u32 s20, s20, {ACT}
    {LO2(20)}
    s_add_u32 s20, s20, s34
    s_mul_i32 s21, s82, {KS*1024}
    s_add_u32 s21, s21, {WP}
    s_add_u32 s21, s21, s34
    v_and_b32 v11, 15, v0
    v_lshlrev_b32 v11, 4, v11
    v_bfe_u32 v28, v0, 5, 1
    v_lshlrev_b32 v28, 9, v28
    v_add_u32 v11, v11, v28
    v_bfe_u32 v28, v0, 4, 1
    v_lshlrev_b32 v28, 3, v28
    v_add_u32 v11, v11, v28
    s_lshl_b32 s28, s80, 1
    s_lshr_b32 s29, s3, 1
    s_add_u32 s28, s28, s29            ; rb32
    s_mul_i32 s28, s28, 36
    s_add_u32 s28, s28, s82
    s_lshl_b32 s28, s28, 10
    s_and_b32 s29, s3, 1
    s_lshl_b32 s29, s29, 8
    s_add_u32 s28, s28, s29
    s_add_u32 s28, s28, s42
    s_add_u32 s22, s28, {xout*G.XSZ}
    s_add_u32 s23, s22, 4096
    s_add_u32 s28, s28, {xin*G.XSZ}
    s_add_u32 s29, s28, 4096
    s_mul_i32 s34, s3, 15360
    s_add_u32 s34, s34, {RED}
    v_add_u32 v27, s34, v1             ; lds read addr
    v_and_b32 v15, 15, v0
    v_mul_u32_u24 v29, 1152, v15
    v_lshlrev_b32 v15, 3, v15
    s_lshl_b32 s34, s80, 2
    s_add_u32 s34, s34, s3             ; rb16
    s_lshl_b32 s30, s34, 10
    s_lshl_b32 s35, s81, 7
    s_add_u32 s30, s30, s35
    s_add_u32 s30, s30, s43
    s_add_u32 s36, s30, {xout*G.SSZ}
    v_bfe_u32 v28, v0, 4, 2
    v_lshlrev_b32 v28, 3, v28
    v_add_u32 v29, v29, v28
    s_mul_i32 s31, s34, 18432
    s_lshl_b32 s35, s82, 5
    s_add_u32 s31, s31, s35
    """)

DEPTH = 6
def t2_buf(st, i):
    if MEGA: return 256 + 16 * st + 4 * i if i < 4 else 256 + 156 + 20 * st + 4 * (i - 4)
    return 256 + (st % DEPTH) * 36 + 4 * i
def t2_wload(A, NT, st):
    off = st * 4096
    A(f"s_add_u32 s37, s21, {off}")
    for t in range(NT):
        A(f"buffer_load_dwordx4 {r(t2_buf(st, 4+t), 4)}, v{6+t}, s[4:7], s37 offen", tag=f"l{st}")
def t2_aload(A, st, sc):
    if MEGA and st == 4:
        A(f"""
        v_bfe_u32 v30, v0, 4, 2
        v_lshlrev_b32 v30, 15, v30
        v_and_b32 v31, 15, v0
        v_lshlrev_b32 v31, 2, v31
        v_add_u32 v30, v30, v31
        s_and_b32 s37, s3, 1
        s_lshl_b32 s37, s37, 17
        s_lshl_b32 s34, s80, 8
        s_add_u32 s37, s37, s34
        s_add_u32 s37, s37, {G.OE}
        """)
        for i in range(4):
            A(f"s_add_u32 s34, s3, {i}")
            A("s_and_b32 s34, s34, 3")
            A("s_lshl_b32 s34, s34, 6")
            A("s_add_u32 s34, s34, s37")
            for j in range(4):
                A(f"buffer_load_dword {r(t2_buf(st, i) + j)}, v30, s[4:7], s34 offen{sc}", tag=f"l{st}")
                if j < 3: A("s_add_u32 s34, s34, 8192")
        return
    A(f"s_add_u32 s37, s20, {st*4096}")
    for i in range(4):
        A(f"buffer_load_dwordx4 {r(t2_buf(st, i), 4)}, v{2+i}, s[4:7], s37 offen{sc}", tag=f"l{st}")

def t2_main(A, NT, KS, pfx, wpre, sc, extra_vm, mid_hook, st0):
    nsteps = (KS + 3) // 4
    partial_last = (KS % 4) != 0
    ACC, RES = 32, 16
    def stage_loads(st):
        B = Asm()
        if st >= wpre: t2_wload(B, NT, st)
        t2_aload(B, st, sc)
        return B.ins
    PRE = min(P.get("t2_pre", 5 if MEGA else 2), nsteps)
    for st in range(PRE): A.ins += stage_loads(st)
    for t in range(NT):
        so, im = (28, t * 1024) if t < 4 else (29, 0)
        A(f"buffer_load_dwordx2 v[{RES+2*t}:{RES+2*t+1}], v11, s[4:7], s{so} offen offset:{im}{sc}", tag="res")
    if mid_hook == "bar": A("s_barrier")
    M = Asm(); marks = {}
    for st in range(nsteps):
        marks[st] = len(M.ins)
        M.wait(f"l{st}")
        if st == 0: M.stamp("t0")
        if st == 0 and st0 is not None: M.stamp(st0)
        if partial_last and st == nsteps - 1:
            M(f"s_cmp_ge_u32 s3, {KS % 4}")
            M(f"s_cbranch_scc1 {pfx}_SKIP")
        for mt in range(4):
            for t in range(NT):
                acc = ACC + 4 * (mt * NT + t)
                c = "0" if st == 0 else f"v[{acc}:{acc+3}]"
                M(f"v_mfma_f32_16x16x32_bf16 v[{acc}:{acc+3}], {r(t2_buf(st, 4+t), 4)}, {r(t2_buf(st, mt), 4)}, {c}")
    S_ = Sched(M.ins)
    first = []
    for st in range(PRE, min(DEPTH - 1, nsteps)): first += groups_vm(stage_loads(st))
    S_.release(0, "vm", first, every=1)
    for st in range(nsteps):
        n = st + DEPTH - 1
        if n < nsteps and n >= min(DEPTH - 1, nsteps):
            S_.release(marks[st], "vm", groups_vm(stage_loads(n)))
    out, rest = S_.run(gap=8, vm_every=1)
    check_tags(out + rest)
    assert not rest
    T = Asm()
    lastld = max([i for i, x in enumerate(out) if x.text.startswith("buffer_load")], default=-1)
    A.ins += out[:lastld + 1]
    T.ins += out[lastld + 1:]
    if partial_last: T.label(f"{pfx}_SKIP")
    T("s_nop 7")
    T.stamp("t1")
    for mt in range(1, 4):
        for t in range(NT):
            acc = ACC + 4 * (mt * NT + t)
            T(f"ds_write_b128 v{11+mt}, v[{acc}:{acc+3}] offset:{t*1024}")
    T.wait("res")
    X = ACC + 16 * NT
    for t in range(NT):
        for j in range(2):
            T(f"v_lshlrev_b32 v{X+4*t+2*j}, 16, v{RES+2*t+j}")
            T(f"v_and_b32 v{X+4*t+2*j+1}, 0xffff0000, v{RES+2*t+j}")
    for i in range(4 * NT): T(f"v_add_f32 v{X+i}, v{X+i}, v{ACC+i}")
    T.waitall(vm=False)
    T("s_barrier")
    tl, left = pace(T.ins, extra_vm or [], P.get("t2_pace", 70), first=P.get("t2_first", 100))
    A.ins += tl
    if left: print(pfx, "tail leftover", len(left))
    for g in left: A.ins += g
    left = []
    A.stamp("t2")
    for k in range(3):
        for t in range(NT):
            d = ACC + 4 * ((k + 1) * NT + t)
            A(f"ds_read_b128 v[{d}:{d+3}], v27 offset:{k*5120+t*1024}", tag=f"rd{k}")
    for k in range(3):
        A.wait(f"rd{k}")
        for i in range(4 * NT):
            A(f"v_add_f32 v{X+i}, v{X+i}, v{ACC+4*(k+1)*NT+i}")
    for i in range(2 * NT):
        A(f"v_cvt_pk_bf16_f32 v{RES+i}, v{X+2*i}, v{X+2*i+1}")
    return X, RES, left

def widen(A, RES):
    for p in range(2):
        for k in range(2):
            A(f"v_permlane16_swap_b32 v{RES+4*p+k}, v{RES+4*p+2+k}")

def final_store(A, NT, RES):
    A("""
    v_bfe_u32 v28, v0, 4, 1
    v_lshlrev_b32 v28, 5, v28
    v_bfe_u32 v30, v0, 5, 1
    v_lshlrev_b32 v30, 4, v30
    v_and_b32 v31, 15, v0
    v_mul_u32_u24 v31, 1152, v31
    v_add3_u32 v28, v28, v30, v31
    """)
    widen(A, RES)
    for p in range(2):
        A(f"buffer_store_dwordx4 v[{RES+4*p}:{RES+4*p+3}], v28, s[8:11], s31 offen offset:{p*64}")
    if NT == 5: A(f"buffer_store_dwordx2 v[{RES+8}:{RES+9}], v29, s[8:11], s31 offen offset:128")

def t2_store(A, NT, X, RES):
    A("""
    v_bfe_u32 v28, v0, 4, 1
    v_lshlrev_b32 v28, 10, v28
    v_bfe_u32 v30, v0, 5, 1
    v_lshlrev_b32 v30, 9, v30
    v_and_b32 v31, 15, v0
    v_lshlrev_b32 v31, 4, v31
    v_add3_u32 v30, v28, v30, v31
    """)
    widen(A, RES)
    for p in range(2):
        A(f"buffer_store_dwordx4 v[{RES+4*p}:{RES+4*p+3}], v30, s[4:7], s22 offen offset:{p*2048} sc1", tag="out")
    if NT == 5: A(f"buffer_store_dwordx2 v[{RES+8}:{RES+9}], v11, s[4:7], s23 offen sc1", tag="out")
    for i in range(2 * NT):
        A(f"v_lshlrev_b32 v{X+2*i}, 16, v{RES+i}")
        A(f"v_and_b32 v{X+2*i+1}, 0xffff0000, v{RES+i}")
    def xreduce(dst):
        A(f"v_mov_b32 v28, v{dst}")
        A(f"v_permlane16_swap_b32 v{dst}, v28")
        A(f"v_add_f32 v{dst}, v{dst}, v28")
        A(f"v_mov_b32 v28, v{dst}")
        A(f"v_permlane32_swap_b32 v{dst}, v28")
        A(f"v_add_f32 v{dst}, v{dst}, v28")
    A(f"v_add_f32 v26, v{X}, v{X+1}")
    A(f"v_add_f32 v27, v{X+2}, v{X+3}")
    for i in range(4, 4 * NT): A(f"v_add_f32 v{26+(i&1)}, v{26+(i&1)}, v{X+i}")
    A("v_add_f32 v26, v26, v27")
    xreduce(26)
    A(f"v_mul_f32 v26, {hex(G.f32(1.0/(16*NT)))}, v26")
    A("v_mov_b32 v27, 0")
    for i in range(4 * NT):
        A(f"v_sub_f32 v{X+i}, v{X+i}, v26")
        A(f"v_fmac_f32 v27, v{X+i}, v{X+i}")
    xreduce(27)
    A("buffer_store_dwordx2 v[26:27], v15, s[4:7], s36 offen sc1", tag="out")

def tile_dmas(tiles, slot_of, s_srcw, s_src, s_ldsw, tag):
    B = Asm()
    for t in tiles:
        for c in range(10):
            if c < 9: dma(B, s_srcw, t * G.T1S + c * 4096, s_ldsw, slot_of(t) * G.T1S + c * 4096, 1, tag(t), stmp=38)
            else: dma(B, s_src, t * G.T1S + 36 * 1024, None, slot_of(t) * G.T1S + 36 * 1024, 1, tag(t), stmp=38)
    return groups_vm(B.ins)

def k4_decode(A):
    A(f"""
    s_and_b32 s84, s2, 7
    s_lshl_b32 s84, s84, 2
    s_bfe_u32 s25, s2, 0x20003
    s_add_u32 s84, s84, s25            ; cb
    s_lshr_b32 s85, s2, 5              ; rb8
    s_lshl_b32 s78, s3, 10
    s_mul_i32 s76, s84, {9*G.T1S}
    s_add_u32 s76, s76, {G.W13}
    s_add_u32 s77, s76, s78
    """)

def k4_phase(A, tail_vm):
    def xreg(j, ks):
        if ks == 36: return 16 + 4 * j
        idx = j * 36 + ks
        if idx < 64: return 256 + 4 * idx
        return 24 + 4 * (idx - 64)
    sl = {0: 0, 1: 1, 2: 2, 3: 3, 4: 0, 5: 1, 6: 2, 7: 3, 8: 0}
    accreg = lambda t, j: 88 + 32 * sl[t] + 16 * j
    t1 = T1(2, xreg, accreg, 56, 8, lambda t: sl[t], 2)
    A(f"""
    v_mov_b32 v2, v1
    v_add_u32 v3, 0x10000, v1
    v_add_u32 v4, 0x20000, v1
    s_lshl_b32 s26, s85, 3
    s_lshl_b32 s27, s3, 1
    s_add_u32 s26, s26, s27
    s_mul_i32 s23, s26, 36864
    s_add_u32 s23, s23, s42
    s_add_u32 s23, s23, {G.XSZ}
    s_lshl_b32 s29, s26, 11
    s_add_u32 s29, s29, s43
    s_add_u32 s29, s29, {G.SSZ}
    v_bfe_u32 v5, v0, 4, 1
    v_mul_u32_u24 v5, {144*1024}, v5
    v_and_b32 v10, 15, v0
    v_lshlrev_b32 v10, 4, v10
    v_add_u32 v5, v5, v10
    v_bfe_u32 v10, v0, 5, 1
    v_lshlrev_b32 v10, 8, v10
    v_add_u32 v5, v5, v10
    s_mul_i32 s31, s26, {2*144*1024}
    s_mul_i32 s32, s84, {9*512}
    s_add_u32 s31, s31, s32
    s_add_u32 s31, s31, {G.HF}
    {LO2(31)}
    s_lshl_b32 s24, s26, 4
    s_add_u32 s24, s24, s41
    s_mul_i32 s79, s82, {144*1024}
    s_add_u32 s79, s79, {G.W2}
    s_add_u32 s79, s79, s78
    """)
    if SK: k5_decode(A)
    if not SK: A.stamp(2)
    poll(A, 24, 8, True)
    A.wait("w0", "w1", "w2", "t3")
    if not SK: A.stamp(3)
    LATE = tail_vm or []
    def xl(B, ks):
        for j in range(2):
            B(f"s_add_u32 s30, s23, {j*36864 + (ks//4)*4096}")
            B(f"buffer_load_dwordx4 {r(xreg(j, ks), 4)}, v1, s[4:7], s30 offen offset:{(ks%4)*1024} sc1", tag=f"x{ks}")
    AHEAD = P.get("k4_ahead", 6)
    for ks in range(2): xl(A, ks)
    stats_load(A, 2, 29, 216, 10, " sc1")
    for ks in range(2, AHEAD): xl(A, ks)
    A("s_barrier")
    SC = Asm()
    SC.wait("st")
    SC("v_cmp_gt_u32 vcc, 512, v1")
    for j in range(2):
        stats_compute(SC, 216 + 16 * j, 12, 8 + j, 10)
        build_xext(SC, 12, 16 + 4 * j, 13)
        SC(f"v_rsq_f32 v{6+j}, v{8+j}")
        SC(f"v_mul_f32 v{6+j}, {hex(G.f32(-LOG2E))}, v{6+j}")
    def epilogue(t):
        E = Asm()
        for j in range(2):
            acc = accreg(t, j)
            tm = 216 + 20 * j
            for i in range(8): E(f"v_mul_f32 v{tm+i}, v{acc+i}, v{6+j}")
            for i in range(8): E(f"v_exp_f32 v{tm+i}, v{tm+i}")
            for i in range(8): E(f"v_mul_f32 v{tm+8+i}, v{acc+i}, v{acc+8+i}")
            for i in range(8): E(f"v_fma_f32 v{tm+i}, v{tm+i}, v{8+j}, v{8+j}")
            for i in range(8): E(f"v_rcp_f32 v{tm+i}, v{tm+i}")
            for i in range(8): E(f"v_mul_f32 v{tm+8+i}, v{tm+8+i}, v{tm+i}")
            for i in range(4): E(f"v_cvt_pk_bf16_f32 v{tm+16+i}, v{tm+8+2*i}, v{tm+9+2*i}")
            E(f"s_add_u32 s33, s31, {j*2*144*1024 + t*512}")
            E(f"buffer_store_dwordx4 v[{tm+16}:{tm+19}], v5, s[4:7], s33 offen sc1", tag="hout" if t > (5 if K45 else 6) else "hE")
        return E.ins
    items = [(t, ks) for ks in range(37) for t in range(3)] + [(t, ks) for t in range(3, 9) for ks in range(37)]
    DIST = 6
    M = Asm(); marks = {}
    def pre_read(i):
        t, ks = items[i]
        if LATE and (t, ks) in ((2, 24), (3, 0)):
            M.wait("lw2" if t == 2 else "lt3"); M("s_barrier")
        if t >= 4 and ks == 0:
            M.wait(f"t{t}")
            if K45 and t == 8: M.wait("hE")
            M("s_barrier")
            if K45 and t == 8:
                flag_store(M, 13, 14)
                M("v_and_b32 v14, 7, v0")
                M(f"v_lshlrev_b32 v14, {2+FSH}, v14")
            if t in (5, 6): marks[("dma", t + 2)] = len(M.ins)
        t1.read(M, i, t, ks)
    for i in range(DIST): pre_read(i)
    for i, (t, ks) in enumerate(items):
        if t == 0: marks[("ks", ks)] = len(M.ins)
        if t == 8: marks[("ks8", ks)] = len(M.ins)
        if i + DIST < len(items): pre_read(i + DIST)
        if ks == 0 and t >= 3:
            if t in (3, 6): M.stamp(5 if t == 3 else 6)
            marks[("tile", t)] = len(M.ins)
        M.wait(f"wf{i}", f"x{ks}")
        if i == 0: M.stamp(4)
        t1.mfmas(M, i, t, ks)
        if t == 3 and ks == 2:
            M("s_barrier")
            marks[("dma", 4)] = len(M.ins)
        if t in (7, 8) and ks in (0, 18): M.stamp(f"t{t}k{ks}")
        if t == 8 and ks == 36: M.stamp("t8e")
        if K45 and t == 8:
            if ks == 4:
                M("s_barrier")
                marks[("q2",)] = len(M.ins)
            if ks == P.get("k45_fl", 20):
                M("buffer_load_dword v15, v14, s[4:7], s15 offen sc1", tag="fe")
            if ks == P.get("k45_ck", 26):
                flagchk(M, "K5E", "fe", 15, 14, 15)
                marks[("hgo",)] = len(M.ins)
        elif SK and t == 8 and ks == 8:
            M.wait("hE")
            M("s_barrier")
            flag_store(M, 13, 14)
            M("v_and_b32 v14, 7, v0")
            M(f"v_lshlrev_b32 v14, {2+FSH}, v14")
            marks[("q2",)] = len(M.ins)
        elif SK and t == 8 and ks == 36:
            M("buffer_load_dword v15, v14, s[4:7], s15 offen sc1", tag="fe")
    dm = lambda ts: tile_dmas(ts, lambda t: sl[t], 77, 76, 78, lambda t: f"t{t}")
    S_ = Sched(M.ins)
    B = Asm()
    for ks in range(AHEAD, 36): xl(B, ks)
    xg = groups_vm(B.ins)
    if LATE:
        n2 = sum(1 for g in LATE if g[-1].tag == "lw2")
        mix = []
        for k, g in enumerate(xg):
            mix.append(g)
            if k % 4 == 3 and k // 4 < n2: mix.append(LATE[k // 4])
        xg = mix + LATE[n2:]
    S_.release(0, "vm", xg, every=P.get("k4_e0", 2.5))
    S_.release(marks[("ks", 4)], "va", groups_1(SC.ins))
    S_.release(marks[("tile", 3)], "va", groups_1(epilogue(0) + epilogue(1) + epilogue(2)), skip=3)
    S_.release(marks[("dma", 4)], "vm", dm([4, 5, 6]), every=3)
    S_.release(marks[("dma", 7)], "vm", dm([7]))
    S_.release(marks[("dma", 8)], "vm", dm([8]))
    for t in range(4, 9):
        S_.release(marks[("tile", t)], "va", groups_1(epilogue(t - 1)), skip=3)
    def w2pre(st):
        B = Asm()
        for t in range(5):
            B(f"s_add_u32 s37, s79, {t*144*1024 + st*4096}")
            B(f"buffer_load_dwordx4 {r(t2_buf(st, 4+t), 4)}, v1, s[4:7], s37 offen", tag=f"l{st}")
        return groups_vm(B.ins)
    if SK:
        S_.release(marks[("ks8", 0)], "vm", k5_unit(0) + k5_unit(1), every=2)
        S_.release(marks[("q2",)], "vm", k5_unit(2) + k5_unit(3))
        if K45:
            B = Asm()
            for st in range(P.get("k5_ahead", 6)): k5_hl(B, st)
            S_.release(marks[("hgo",)], "vm", groups_vm(B.ins), front=True)
        out, rest = S_.run(cap=24, vm_cost=16)
        e8 = epilogue(8)
        if K45:
            B = Asm(); B.wait("d0", "d1"); B("s_barrier")
            e8 = B.ins + pace(e8, k5_unit(4), 60)[0]
    else:
        S_.release(marks[("ks8", 9)], "vm", w2pre(0) + w2pre(4), every=2)
        S_.release(marks[("ks8", 18)], "vm", w2pre(1))
        S_.release(marks[("ks8", 27)], "vm", w2pre(2))
        out, rest = S_.run(cap=24, vm_cost=16)
        e8, left = pace(epilogue(8), w2pre(3), 40)
        assert not left
    lst = out + rest + e8
    K4M.check_order(lst, accreg)
    check_tags(lst)
    A.ins += lst
    A.stamp(7)

TS = 144 * 1024
ORD = [0, 1, 2, 5, 6, 7, 3, 4, 8] if not P.get('k45', 1) else [0, 1, 2, 5, 6, 3, 7, 4, 8]
K5P = [37888, 66560, 95232, 123904, 0]
def k5_decode(A):
    A(f"""
    s_and_b32 s82, s2, 3
    s_bfe_u32 s80, s2, 0x10002
    s_lshl_b32 s80, s80, 3
    s_bfe_u32 s81, s2, 0x30003
    s_add_u32 s80, s80, s81            ; rg128
    s_lshr_b32 s81, s2, 6              ; cgp
    s_mul_i32 s79, s81, {9*TS}
    s_mul_i32 s83, s82, {36*1024}
    s_add_u32 s79, s79, s83
    s_mul_i32 s83, s3, 9216
    s_add_u32 s79, s79, s83
    s_add_u32 s79, s79, {G.W2}
    s_add_u32 s83, s79, {4*TS}
    s_sub_u32 s19, s79, {5*TS}
    s_bitcmp1_b32 s82, 0               ; nh
    s_cselect_b32 s19, s79, s19
    s_cselect_b32 s79, s79, s83
    s_mul_i32 s83, s3, 7168
    s_lshl_b32 s14, s3, 11
    s_lshr_b32 s15, s80, 1
    s_lshl_b32 s15, s15, 2
    s_add_u32 s15, s15, s82
    s_lshl_b32 s15, s15, 5
    s_add_u32 s15, s15, s41
    s_add_u32 s15, s15, 3072
    s_lshl_b32 s15, s15, {FSH}
    s_add_u32 s15, s15, {G.FLG}
    s_lshl_b32 s13, s85, 5
    s_add_u32 s13, s13, s84
    s_lshl_b32 s13, s13, 2
    s_add_u32 s13, s13, s41
    s_add_u32 s13, s13, 3072
    s_lshl_b32 s34, s80, 2
    s_add_u32 s34, s34, s3
    s_mul_i32 s20, s34, {2*144*1024}
    s_mul_i32 s21, s82, {36*1024}
    s_add_u32 s20, s20, s21
    s_add_u32 s20, s20, {G.HF}
    {LO2(20)}
    s_add_u32 s12, s20, {144*1024}
    s_bitcmp1_b32 s82, 1               ; mt_own
    s_cselect_b32 s21, s12, s20
    s_cselect_b32 s12, s20, s12
    s_mov_b32 s20, s21
    """)
def k5_unit(u):
    B = Asm()
    if u < 9:
        for j in range(7):
            dma(B, 79 if j < 5 else 19, j * TS + ORD[u] * 1024, 83, K5P[u % 5] + j * 1024, 1, f"d{u}", stmp=38)
    else:
        for qq in range(3):
            for j in range(7, 9):
                dma(B, 19, j * TS + ORD[3 * (u - 9) + qq] * 1024, 14, K5P[u % 5] + qq * 8192 + (j - 7) * 1024, 1, f"d{u}", stmp=38)
    return groups_vm(B.ins)

def flagchk(A, lab, tag, vreg, vaddr, sbase):
    A.wait(tag)
    A(f"v_cmp_eq_u32 vcc, 1, v{vreg}")
    A("s_cmp_eq_u64 vcc, -1")
    A(f"s_cbranch_scc1 {lab}_OK")
    R = A.raw
    R("    s_mov_b32 s39, 0x20000")
    R(f"{lab}:")
    R("    s_sleep 1")
    R(f"    buffer_load_dword v{vreg}, v{vaddr}, s[4:7], s{sbase} offen sc1")
    R("    s_waitcnt vmcnt(0)")
    R(f"    v_cmp_eq_u32 vcc, 1, v{vreg}")
    R("    s_nop 1")
    R("    s_cmp_eq_u64 vcc, -1")
    R(f"    s_cbranch_scc1 {lab}_OK")
    R("    s_sub_u32 s39, s39, 1")
    R("    s_cmp_lg_u32 s39, 0")
    R(f"    s_cbranch_scc1 {lab}")
    A.label(f"{lab}_OK")

def flag_store(A, sgpr, vt=30):
    lab = f"SIG{signal.n}"; signal.n += 1
    A("s_cmp_lg_u32 s3, 0")
    A(f"s_cbranch_scc1 {lab}")
    A.raw("    s_mov_b64 exec, 1")
    A.raw(f"    v_mov_b32 v{vt}, 0")
    A.raw(f"    v_mov_b32 v{vt+1}, 1")
    A.raw(f"    s_lshl_b32 s38, s{sgpr}, {FSH}")
    A.raw(f"    s_add_u32 s38, s38, {G.FLG}")
    A.raw(f"    buffer_store_dword v{vt+1}, v{vt}, s[4:7], s38 offen sc1")
    A.raw("    s_mov_b64 exec, -1")
    A.label(lab)

def k5_hreg(st, j):
    return 256 + 8 * st + 4 * j if st < 32 else 168 + 8 * (st - 32) + 4 * j
def k5_hl(B, st):
    ph = 9 * (st % 4) + ORD[st // 4]
    for j in range(2):
        B(f"s_add_u32 s30, s{20 if j == 0 else 12}, {(ph//4)*4096}")
        B(f"buffer_load_dwordx4 {r(k5_hreg(st, j), 4)}, v1, s[4:7], s30 offen offset:{(ph%4)*1024} sc1", tag=f"h{st}")

class guarded: n = 0
_gn = guarded
def k5_path(A, nh, qtile, AHEAD, setup):
    NO, NB = (5, 4) if nh == 0 else (4, 5)
    ACC, WR, R, PB = 32, 104, P.get('k5_r', 12), 200
    acc = lambda j, sl: ACC + 36 * j + 4 * sl
    hreg = k5_hreg
    items = [(0, st, sl) for st in range(36) for sl in range(7)] + [(1, st, sl) for st in range(36) for sl in (7, 8)]
    DIST = P.get("k5_dist", 9)
    M = Asm(); marks = {}
    def rd(i):
        ps, st, sl = items[i]
        if ps == 0:
            u = st // 4; first = (st % 4 == 0 and sl == 0)
            off = K5P[u % 5] + (st % 4) * 7168 + sl * 1024
        else:
            u = 9 + st // 12; first = (st % 12 == 0 and sl == 7)
            off = K5P[u % 5] + ((st // 4) % 3) * 8192 + (st % 4) * 2048 + (sl - 7) * 1024
        if first and u >= 2:
            M.wait(f"d{u}")
            if K45 and u == 2: M.wait("hout")
            M("s_barrier")
            if K45 and u == 2: flag_store(M, 26)
            marks[("B", u)] = len(M.ins)
        w = WR + 4 * (i % R)
        M(f"ds_read_b128 v[{w}:{w+3}], v{2 + (off >> 16)} offset:{off & 0xffff}", tag=f"wf{i}")
    for i in range(DIST): rd(i)
    WG_ = P.get('k5_wg', 3)
    assert DIST + 1 <= R and WG_ <= DIST
    NE = 20 if K45 else 24
    LA = P.get('k5_la', 4) if K45 else AHEAD
    CHK = NE - LA
    for i, (ps, st, sl) in enumerate(items):
        if sl in (0, 7):
            if (ps, st) == (0, CHK - P.get("k5_fl", 3)):
                M("buffer_load_dword v13, v14, s[4:7], s25 offen sc1", tag="fl")
            if ps == 0 and st % 4 == 0: M.stamp(f"s{st}")
            if (ps, st) == (0, CHK):
                flagchk(M, f"K5L{nh}", "fl", 13, 14, 25)
                M.stamp("sc")
            marks[("st", ps, st)] = len(M.ins)
        if (ps, st, sl) == (1, 0, 7): M.stamp(13)
        if i + DIST < len(items): rd(i + DIST)
        tags = []
        if i % WG_ == 0: tags.append(f"wf{min(i + WG_ - 1, len(items) - 1)}")
        if ps == 0 and sl == 0: tags.append(f"h{st}")
        if tags: M.wait(*tags)
        w = WR + 4 * (i % R)
        for j in range(2):
            a_ = acc(j, sl)
            c = "0" if st == 0 else f"v[{a_}:{a_+3}]"
            M(f"v_mfma_f32_16x16x32_bf16 v[{a_}:{a_+3}], v[{w}:{w+3}], {r(hreg(st, j), 4)}, {c}")
    S_ = Sched(M.ins)
    late = []
    if setup:
        gs = []; cur = []
        for k, x in enumerate(setup):
            cur.append(I(x.text))
            nxt = setup[k + 1].text if k + 1 < len(setup) else ""
            if (len(cur) >= 4 or x.text.startswith("v_")) and not nxt.startswith("s_cselect"):
                gs.append(cur); cur = []
        if cur: gs.append(cur)
        S_.release(marks[("st", 0, 1)], "va", gs)
    for st in range(AHEAD, 36):
        B = Asm(); k5_hl(B, st)
        rel = st - AHEAD if st < NE else max(st - AHEAD, CHK)
        if st >= NE and st - AHEAD < CHK: late.extend([B.ins[:2], B.ins[2:]])
        else: S_.release(marks[("st", 0, rel)], "vm", [B.ins[:2], B.ins[2:]], every=P.get("k5_e", 3), front=(st - AHEAD != CHK))
        if st - AHEAD == CHK - 1: S_.release(marks[("st", 0, CHK)], "vm", late, front=True)
    for u in range(5, 12):
        S_.release(marks[("B", u - 3)], "vm", k5_unit(u))
    def guarded(gs, k):
        out = []
        for i in range(0, len(gs), k):
            _gn.n += 1
            lab = f"QSK{_gn.n}"
            blk = [I("s_cmp_lg_u32 s40, 0"), I(f"s_cbranch_scc1 {lab}")]
            for g in gs[i:i+k]:
                for x in g:
                    if x.text.startswith("buffer_"): blk.append(I(" " + x.text.replace(" lds", " sc1 lds"), kind="raw"))
                    elif "m0" in x.text: blk += [I(" " + x.text, kind="raw"), I(" s_nop 0", kind="raw")]
                    else: blk.append(I(" " + x.text, kind="raw"))
            blk.append(I(lab + ":", kind="label"))
            out.append(blk)
        return out
    QK_ = P.get("k5_qk", 3)
    if QK_:
        S_.release(marks[("B", 10)], "vm", guarded(qtile(3), QK_), every=P.get("k5_qe", 8))
        S_.release(marks[("B", 11)], "vm", guarded(qtile(0), QK_))
    else:
        S_.release(marks[("B", 10)], "vm", qtile(3))
        S_.release(marks[("B", 11)], "vm", qtile(0))
    def pieces(n): return [(0, 2), (2, 2)] if n == 4 else [(0, 2), (2, 1), (3, 2)]
    def pstore(a0, n, sbase, sel, tag):
        B = Asm()
        for pi, (t0, k) in enumerate(pieces(n)):
            if pi not in sel: continue
            b = a0 + 4 * t0
            for i in range(2 * k): B(f"v_cvt_pk_bf16_f32 v{b+i}, v{b+2*i}, v{b+2*i+1}")
            if k == 2: B(f"buffer_store_dwordx4 v[{b}:{b+3}], v1, s[4:7], s{sbase} offen offset:{pi*1024} sc1", tag=tag)
            else: B(f"buffer_store_dwordx2 v[{b}:{b+1}], v1, s[4:7], s{sbase} offen offset:{pi*1024} sc1", tag=tag)
        return B.ins
    def pload(dst, k, tag):
        B = Asm()
        B(f"s_add_u32 s37, s21, {k*12288}")
        for pi, (t0, kk) in enumerate(pieces(NB)):
            d = dst + 4 * pi
            if kk == 2: B(f"buffer_load_dwordx4 v[{d}:{d+3}], v1, s[4:7], s37 offen offset:{pi*1024} sc1", tag=tag)
            else: B(f"buffer_load_dwordx2 v[{d}:{d+1}], v1, s[4:7], s37 offen offset:{pi*1024} sc1", tag=tag)
        return B.ins
    def pregs(dst):
        return [dst + 4 * pi + i for pi, (t0, kk) in enumerate(pieces(NB)) for i in range(2 * kk)]
    def check(regs):
        B = Asm()
        B(f"v_max3_u32 v30, v{regs[0]}, v{regs[1]}, v{regs[2]}")
        rest_ = regs[3:]
        while len(rest_) >= 2:
            B(f"v_max3_u32 v30, v30, v{rest_[0]}, v{rest_[1]}"); rest_ = rest_[2:]
        if rest_: B(f"v_max_u32 v30, v30, v{rest_[0]}")
        B("v_cmp_eq_u32 vcc, -1, v30")
        B("s_cmp_eq_u64 vcc, 0")
        return B.ins
    RES = 16
    B = Asm()
    for t in range(NB):
        so, im = (28, t * 1024) if t < 4 else (29, 0)
        B(f"buffer_load_dwordx2 v[{RES+2*t}:{RES+2*t+1}], v11, s[4:7], s{so} offen offset:{im} sc1", tag="res")
    S_.release(marks[("st", 0, 30)], "vm", groups_vm(B.ins))
    np_ = len(pieces(NB))
    allp = range(3)
    S_.release(marks[("st", 1, 2)], "va", groups_1(pstore(acc(0, 0), NO, 16, allp, "pa") + pstore(acc(1, 0), NO, 17, allp, "pa")
                                                  + pstore(acc(1, NO), NB, 18, range(np_ - 1), "pa")))
    out, rest = S_.run(gap=8, vm_cost=8)
    assert not rest, len(rest)
    check_tags(out)
    A.ins += out
    A.stamp(10)
    A.ins += pstore(acc(1, NO), NB, 18, [np_ - 1], "pb")
    A.ins += pload(PB, 0, "p0") + pload(PB + 12, 1, "p0") + pload(PB + 24, 2, "p2")
    A("s_barrier")
    X = WR
    A.wait("res")
    for t in range(NB):
        for j in range(2):
            A(f"v_lshlrev_b32 v{X+4*t+2*j}, 16, v{RES+2*t+j}")
            A(f"v_and_b32 v{X+4*t+2*j+1}, 0xffff0000, v{RES+2*t+j}")
    for i in range(4 * NB): A(f"v_add_f32 v{X+i}, v{X+i}, v{acc(0, NO)+i}")
    def addp(b):
        for i, rg in enumerate(pregs(b)):
            A(f"v_lshlrev_b32 v30, 16, v{rg}")
            A(f"v_and_b32 v31, 0xffff0000, v{rg}")
            A(f"v_add_f32 v{X+2*i}, v{X+2*i}, v30")
            A(f"v_add_f32 v{X+2*i+1}, v{X+2*i+1}, v31")
    def spin(lab, regs, loads, tag):
        A("s_mov_b32 s39, 0x20000")
        A.wait(tag)
        A.label(lab)
        A.ins += check(regs)
        A(f"s_cbranch_scc1 {lab}_OK")
        A.save(lab)
        A(f"s_sleep {P.get('k5_sleep', 1)}")
        A.ins += loads
        A("s_waitcnt vmcnt(0)")
        A("s_sub_u32 s39, s39, 1")
        A("s_cmp_lg_u32 s39, 0")
        A(f"s_cbranch_scc1 {lab}")
        A.label(f"{lab}_OK")
        A.restore(lab)
    spin(f"K5SA{nh}", pregs(PB) + pregs(PB + 12), pload(PB, 0, None) + pload(PB + 12, 1, None), "p0")
    addp(PB); addp(PB + 12)
    spin(f"K5SB{nh}", pregs(PB + 24), pload(PB + 24, 2, None), "p2")
    A.stamp(2)
    addp(PB + 24)
    for i in range(2 * NB):
        A(f"v_cvt_pk_bf16_f32 v{RES+i}, v{X+2*i}, v{X+2*i+1}")
    A.stamp(3)
    pfx = f"K5{nh}"
    A("s_cmp_lg_u32 s40, 0")
    A(f"s_cbranch_scc1 {pfx}_FINAL")
    A.save(pfx + "fin")
    t2_store(A, NB, X, RES)
    A("s_branch K5_DONE")
    A.save(pfx + "done")
    A.label(f"{pfx}_FINAL")
    A.restore(pfx + "fin")
    final_store(A, NB, RES)
    A("s_endpgm")

def k5_phase(A0, qtile, NMID):
    AHEAD = P.get("k5_ahead", 6)
    A = A0
    if not K45:
        flagchk(A, "K5E", "fe", 15, 14, 15)
        for st in range(AHEAD): k5_hl(A, st)
        A("s_sub_u32 s24, s13, 2048")
        A.wait("d0", "d1", "d2", "d3")
        signal(A, 24, "hout")
        A.stamp(8)
        for g in k5_unit(4): A.ins += g
    else:
        A("s_sub_u32 s26, s13, 2048")
        A = Asm()
    k1_decode(A, None)
    A(f"""
    s_lshr_b32 s32, s82, 1             ; mt_own
    s_and_b32 s33, s82, 1              ; nh
    s_lshl_b32 s34, s80, 2
    s_add_u32 s34, s34, s3
    s_lshl_b32 s27, s80, 2
    s_add_u32 s27, s27, s81            ; tile
    s_mul_i32 s21, s27, {4*36864}
    s_mul_i32 s35, s3, 3072
    s_add_u32 s21, s21, s35
    s_add_u32 s21, s21, {G.PART}
    {LO2(21)}
    s_mul_i32 s35, s32, 12288
    s_add_u32 s35, s35, s21
    s_xor_b32 s36, s82, 1
    s_mul_i32 s36, s36, 36864
    s_add_u32 s16, s35, s36
    s_xor_b32 s36, s82, 3
    s_mul_i32 s36, s36, 36864
    s_add_u32 s17, s35, s36
    s_xor_b32 s36, s82, 2
    s_mul_i32 s36, s36, 36864
    s_add_u32 s18, s21, s36
    s_add_u32 s18, s18, 24576
    s_mul_i32 s36, s82, 36864
    s_add_u32 s21, s21, s36
    s_mul_i32 s13, s81, 9
    s_lshl_b32 s35, s33, 2
    s_add_u32 s13, s13, s35            ; nt0
    v_and_b32 v11, 15, v0
    v_lshlrev_b32 v11, 4, v11
    v_bfe_u32 v28, v0, 5, 1
    v_lshlrev_b32 v28, 9, v28
    v_add_u32 v11, v11, v28
    v_bfe_u32 v28, v0, 4, 1
    v_lshlrev_b32 v28, 3, v28
    v_add_u32 v11, v11, v28
    s_mul_i32 s28, s34, 36
    s_add_u32 s28, s28, s13
    s_lshl_b32 s28, s28, 10
    s_lshl_b32 s29, s32, 8
    s_add_u32 s28, s28, s29
    s_add_u32 s28, s28, s42
    s_add_u32 s22, s28, {X2I*G.XSZ}
    s_add_u32 s23, s22, 4096
    s_add_u32 s28, s28, {G.XSZ}
    s_add_u32 s29, s28, 4096
    v_and_b32 v15, 15, v0
    v_mul_u32_u24 v29, 1152, v15
    v_lshlrev_b32 v15, 3, v15
    s_lshl_b32 s35, s34, 1
    s_add_u32 s35, s35, s32            ; rb16
    s_lshl_b32 s36, s35, 10
    s_lshl_b32 s37, s81, 1
    s_add_u32 s37, s37, s33
    s_lshl_b32 s37, s37, 7
    s_add_u32 s36, s36, s37
    s_add_u32 s36, s36, s43
    s_add_u32 s36, s36, {X2I*G.SSZ}
    v_bfe_u32 v28, v0, 4, 2
    v_lshlrev_b32 v28, 3, v28
    v_add_u32 v29, v29, v28
    s_mul_i32 s31, s35, 18432
    s_lshl_b32 s37, s13, 5
    s_add_u32 s31, s31, s37
    s_sub_u32 s25, s15, {2048 << FSH}
    """)
    setup = A.ins if K45 else []
    A = A0
    A.stamp(9)
    A("s_bitcmp1_b32 s82, 0")
    A("s_cbranch_scc1 K5_N1")
    A.save("k5n1")
    k5_path(A, 0, qtile, AHEAD, setup)
    A.label("K5_N1"); A.restore("k5n1")
    k5_path(A, 1, qtile, AHEAD, setup)
    A.label("K5_DONE")
    A.restore("K51done")
    A("s_lshl_b32 s24, s80, 2")
    A("s_add_u32 s24, s24, s81")
    A("s_lshl_b32 s24, s24, 2")
    A("s_add_u32 s24, s24, s82")
    A("s_lshl_b32 s24, s24, 2")
    A("s_add_u32 s24, s24, s41")
    A("s_add_u32 s24, s24, 2048")
    rest = qtile(1) + qtile(2)
    for g in rest[:NMID]: A.ins += g
    signal(A, 24, "out")
    A.stamp(11)
    if MEGA:
        A("s_mov_b32 s101, s41")
        A(f"s_mov_b32 s40, 1")
        A(f"s_mov_b32 s41, 8192")
        A(f"s_mov_b32 s42, {G.XF + X2I*G.XSZ}")
        A(f"s_mov_b32 s43, {G.ST + X2I*G.SSZ}")
        A(f"s_mov_b32 s100, {G.LBS}")
    else:
        A("s_cmp_ge_u32 s87, 15")
        A("s_cbranch_scc1 CH_END")
    for g in rest[NMID:]: A.ins += g

def k1_decode(A, endlab):
    if MEGA and P.get("solo", 1) and P.get("early", 0):
        A("""
        s_and_b32 s86, s2, 7
        s_lshl_b32 s86, s86, 1
        s_bfe_u32 s27, s2, 0x10003
        s_add_u32 s86, s86, s27
        s_lshr_b32 s87, s2, 4
        """)
    else:
        A("""
        s_and_b32 s24, s2, 7
        s_lshr_b32 s25, s2, 3
        s_lshr_b32 s86, s24, 1
        s_lshl_b32 s86, s86, 2
        s_and_b32 s27, s25, 3
        s_add_u32 s86, s86, s27
        s_and_b32 s87, s24, 1
        s_lshl_b32 s87, s87, 3
        s_lshr_b32 s34, s25, 2
        s_add_u32 s87, s87, s34
        """)
    A(f"""
    s_lshl_b32 s78, s3, 10
    s_lshl_b32 s34, s87, 2
    s_mul_i32 s35, s87, 3
    s_add_u32 s35, s35, 9
    s_cmp_ge_u32 s87, 9
    s_cselect_b32 s34, s35, s34
    s_cmp_eq_u32 s87, 15
    s_cselect_b32 s34, 34, s34
    s_mul_i32 s76, s34, {G.T1S}
    s_add_u32 s76, s76, {G.WQ}
    s_add_u32 s77, s76, s78
    """)

def k1_main(A, NT, swapped, sc, epi=None):
    xreg = lambda j, ks: (256 + 4 * ks) if ks < 36 else 8
    t1 = T1(1, xreg, lambda t, j: 64 + 16 * t, 32, 8, lambda t: t, 2, swapped)
    def xl(B, ks):
        B(f"s_add_u32 s30, s23, {(ks//4)*4096}")
        B(f"buffer_load_dwordx4 {r(xreg(0, ks), 4)}, v1, s[4:7], s30 offen offset:{(ks%4)*1024}{sc}", tag=f"x{ks}")
    AHEAD = P.get("k1_ahead", 10)
    for ks in range(2): xl(A, ks)
    stats_load(A, 1, 29, 16, 12, sc)
    for ks in range(2, AHEAD): xl(A, ks)
    A("s_barrier")
    SC = Asm()
    SC.wait("st")
    stats_compute(SC, 16, 5, 6, 12)
    SC("v_cmp_gt_u32 vcc, 512, v1")
    build_xext(SC, 5, 8, 12)
    SC("v_rsq_f32 v6, v6")
    items = [(t, ks) for ks in range(37) for t in range(NT)]
    if epi: items = [(t, ks) for ks in range(37) for t in range(NT - 1)] + [(NT - 1, ks) for ks in range(37)]
    DIST = 6
    M = Asm(); marks = {}
    for i in range(DIST): t1.read(M, i, *items[i])
    for i, (t, ks) in enumerate(items):
        if t == 0: marks[ks] = len(M.ins)
        if (t, ks) == (NT - 1, 0): marks["last"] = len(M.ins)
        if i + DIST < len(items): t1.read(M, i + DIST, *items[i + DIST])
        M.wait(f"wf{i}", f"x{ks}")
        if i == 0: M.stamp(14)
        t1.mfmas(M, i, t, ks)
    S_ = Sched(M.ins)
    B = Asm()
    for ks in range(AHEAD, 36): xl(B, ks)
    S_.release(0, "vm", groups_vm(B.ins), every=min(P.get("k1_e0", 2.5), (NT - (1 if epi else 0)) * 0.8))
    S_.release(marks[3], "va", groups_1(SC.ins) + ([epi[0]] if epi else []))
    if epi: S_.release(marks["last"], "va", groups_1(epi[1]), skip=2)
    out, rest = S_.run(cap=24, vm_cost=8, gap=P.get("k1_gap", 28))
    assert epi or not rest
    check_tags(out)
    A.ins += out + rest
    A.stamp(15)

def k1_phase(A, L, xidx, do_poll, hook=None):
    sc = " sc1" if do_poll else ""
    A(f"""
    v_mov_b32 v2, v1
    v_add_u32 v3, 0x10000, v1
    v_add_u32 v4, 0x20000, v1
    s_lshl_b32 s26, s86, 2
    s_add_u32 s26, s26, s3             ; rb
    s_mov_b32 s27, s87
    s_mul_i32 s23, s26, 36864
    s_add_u32 s23, s23, s42
    s_add_u32 s23, s23, {xidx*G.XSZ}
    s_lshl_b32 s29, s26, 11
    s_add_u32 s29, s29, s43
    s_add_u32 s29, s29, {xidx*G.SSZ}
    s_lshr_b32 s31, s26, 3
    s_mul_i32 s31, s31, {G.KVG}
    s_add_u32 s31, s31, {G.KV}
    {LO(31)}
    s_lshr_b32 s24, s26, 1
    s_lshl_b32 s24, s24, 5
    s_add_u32 s24, s24, s41
    s_add_u32 s24, s24, 2048
    """)
    if do_poll:
        if SK:
            A("s_lshl_b32 s24, s86, 6")
            A(f"s_add_u32 s24, s24, s{101 if MEGA else 41}")
            A("s_add_u32 s24, s24, 2048")
        A.stamp(12)
        poll(A, 24, 16 if SK else 8, True)
        A.wait("q0", "q1", "q2", "q3")
    if hook: hook(A)
    if MEGA:
        A("s_and_b32 s32, s27, 7")
        A("s_cmp_eq_u32 s27, 8")
        A(f"s_cbranch_scc1 {L}_EXT")
        A("s_cmp_eq_u32 s27, 15")
        A(f"s_cbranch_scc1 {L}_EXT")
        A.save(L + "ext")
    A(f"s_cmp_ge_u32 s27, 9")
    A(f"s_cbranch_scc1 {L}_V")
    A.save(L + "v")
    def pre():
        if not do_poll:
            pass
    OV = MEGA and do_poll and P.get("k1_ov", 1)
    if not OV: k1_main_w(A, 4, False, sc, do_poll)
    if not MEGA:
        A("s_cmp_eq_u32 s27, 8")
        A(f"s_cbranch_scc1 {L}_EXT")
        A.save(L + "ext")
    ST_ = " sc1" if MEGA else P.get("k1_st", "")
    def fin():
        if MEGA:
            A.stamp("kf" + L)
            A(f"s_branch {L}_JOIN")
        else: A("s_endpgm")
    E0 = Asm()
    E0(f"""
    s_and_b32 s32, s27, 3
    s_lshl_b32 s32, s32, 3
    s_lshl_b32 s33, s26, 10
    s_add_u32 s33, s33, {G.QM}
    {LO(33)}
    s_and_b32 s34, s26, 7
    s_lshl_b32 s34, s34, 10
    s_add_u32 s34, s34, s31
    s_cmp_lt_u32 s27, 4
    s_cselect_b32 s33, s33, s34
    s_mov_b32 s35, {G.KVH}
    s_cselect_b32 s35, 65536, s35
    s_mov_b32 s36, {hex(G.f32(QSCALE))}
    s_cselect_b32 s36, s36, 1.0
    s_mul_i32 s32, s32, s35
    s_add_u32 s33, s33, s32
    """)
    def etile(t):
        E = Asm(); acc = 64 + 16 * t
        for e in range(2):
            for i in range(8): E(f"v_mul_f32 v{acc+8*e+i}, v{acc+8*e+i}, v7")
            for i in range(4): E(f"v_cvt_pk_bf16_f32 v{128+8*t+4*e+i}, v{acc+8*e+2*i}, v{acc+8*e+2*i+1}")
            E(f"buffer_store_dwordx4 v[{128+8*t+4*e}:{128+8*t+4*e+3}], v1, s[4:7], s33 offen{ST_}")
            E("s_add_u32 s33, s33, s35")
        return E.ins
    if OV:
        A.extend(E0)
        k1_main_w(A, 4, False, sc, do_poll, ([I("v_mul_f32 v7, s36, v6")], etile(0) + etile(1) + etile(2)))
        A.ins += etile(3)
    else:
        A.extend(E0)
        A("v_mul_f32 v7, s36, v6")
        for t in range(4): A.ins += etile(t)
    fin()
    A.label(f"{L}_EXT")
    A.restore(L + "ext")
    if MEGA:
        k1_main_w(A, 2, False, sc, do_poll)
        A(f"""
        v_and_b32 v12, 31, v0
        v_bfe_u32 v13, v0, 5, 1
        v_lshlrev_b32 v13, 10, v13
        s_cmp_eq_u32 s27, 8
        s_cselect_b32 s32, 2, 4            ; m shift
        s_cselect_b32 s33, 7, 2            ; w shift
        s_mov_b32 s36, {hex(G.f32(QSCALE))}
        s_cselect_b32 s36, s36, 1.0
        s_mov_b32 s35, {G.KVH}
        s_cselect_b32 s35, 8192, s35
        s_lshl_b32 s34, s86, 9
        s_add_u32 s34, s34, {G.QE}
        s_add_u32 s34, s34, s100
        s_and_b32 s37, s86, 1
        s_lshl_b32 s37, s37, 9
        s_add_u32 s37, s37, s31
        s_add_u32 s37, s37, 8192
        s_cmp_eq_u32 s27, 8
        s_cselect_b32 s34, s34, s37
        s_lshl_b32 s33, s3, s33
        v_lshlrev_b32 v16, s32, v12
        v_add3_u32 v16, v16, v13, s33
        v_lshlrev_b32 v18, 4, v0
        v_lshrrev_b32 v13, 5, v0
        v_mul_lo_u32 v19, v13, s35
        v_lshlrev_b32 v21, 4, v12
        v_add_u32 v19, v19, v21
        s_lshl_b32 s35, s35, 3
        v_add_u32 v17, {2*G.T1S}, v16
        v_add_u32 v22, {2*G.T1S}, v18
        v_mul_f32 v6, s36, v6
        """)
        for t in range(2):
            acc = 64 + 16 * t
            for i in range(16): A(f"v_mul_f32 v{acc+i}, v{acc+i}, v6")
            for i in range(8): A(f"v_cvt_pk_bf16_f32 v{128+8*t+i}, v{acc+2*i}, v{acc+2*i+1}")
            for i in range(8):
                hd = 16 * t + 4 * (i >> 1) + (i & 1)
                A(f"ds_write_b32 v16, v{128+8*t+i} offset:{3*G.T1S - 65536 + hd*512}" if False else f"ds_write_b32 v17, v{128+8*t+i} offset:{hd*512}")
        A.waitall(vm=False)
        A("s_barrier")
        for k in range(4):
            A(f"ds_read_b128 v[{64+4*k}:{67+4*k}], v22 offset:{k*4096}", tag=f"er{k}")
        for k in range(4):
            A.wait(f"er{k}")
            A(f"buffer_store_dwordx4 v[{64+4*k}:{67+4*k}], v19, s[4:7], s34 offen sc1")
            A("s_add_u32 s34, s34, s35")
    else:
        A(f"""
        v_and_b32 v12, 31, v0
        v_bfe_u32 v13, v0, 5, 1
        v_lshlrev_b32 v14, 2, v12
        v_mul_u32_u24 v15, 16384, v13
        v_add_u32 v14, v14, v15
        v_lshlrev_b32 v15, 4, v12
        s_mov_b32 s32, {2*G.KVH}
        v_mul_lo_u32 v13, v13, s32
        v_add_u32 v15, v15, v13
        s_lshl_b32 s33, s26, 7
        s_add_u32 s33, s33, {G.QE}
        {LO(33)}
        s_bfe_u32 s34, s26, 0x10002
        s_lshl_b32 s34, s34, 9
        s_and_b32 s35, s26, 3
        s_lshl_b32 s35, s35, 2
        s_add_u32 s34, s34, s35
        s_add_u32 s34, s34, s31
        s_add_u32 s34, s34, 8192
        v_mul_f32 v7, {hex(G.f32(QSCALE))}, v6
        """)
        if MEGA:
            A(f"""
            v_bfe_u32 v13, v0, 5, 1
            v_lshlrev_b32 v13, 10, v13         ; h*2 heads*512
            s_lshl_b32 s35, s3, 7
            v_lshlrev_b32 v16, 2, v12
            v_add3_u32 v16, v16, v13, s35      ; Q lds addr
            s_lshl_b32 s35, s3, 2
            v_lshlrev_b32 v17, 4, v12
            v_add3_u32 v17, v17, v13, s35      ; K lds addr
            v_lshlrev_b32 v18, 4, v0
            v_lshrrev_b32 v13, 5, v0
            v_lshlrev_b32 v19, 13, v13
            v_lshlrev_b32 v21, 4, v12
            v_add_u32 v19, v19, v21
            s_mov_b32 s35, {G.KVH}
            v_mul_lo_u32 v20, v13, s35
            v_add_u32 v20, v20, v21
            s_lshl_b32 s35, s3, 7
            s_sub_u32 s33, s33, s35
            s_lshl_b32 s35, s3, 2
            s_sub_u32 s34, s34, s35
            """)
        for t in range(4):
            acc = 64 + 16 * t
            sc_ = 7 if t < 2 else 6
            e = t & 1
            for i in range(16): A(f"v_mul_f32 v{acc+i}, v{acc+i}, v{sc_}")
            for i in range(8): A(f"v_cvt_pk_bf16_f32 v{128+8*t+i}, v{acc+2*i}, v{acc+2*i+1}")
            for i in range(8):
                g, par = i >> 1, i & 1
                hd = 16 * e + 4 * g + par
                if MEGA:
                    if t == 0 and i == 0:
                        A("s_barrier")
                    if t < 2: A(f"ds_write_b32 v16, v{128+8*t+i} offset:{hd*512}")
                    else: A(f"ds_write_b32 v17, v{128+8*t+i} offset:{16384 + hd*512}")
                elif t < 2:
                    A(f"s_add_u32 s30, s33, {hd*8192}")
                    A(f"buffer_store_dword v{128+8*t+i}, v14, s[4:7], s30 offen")
                else:
                    A(f"s_add_u32 s30, s34, {hd*G.KVH}")
                    A(f"buffer_store_dword v{128+8*t+i}, v15, s[4:7], s30 offen")
        if MEGA:
            A.waitall(vm=False)
            A("s_barrier")
            for k in range(8):
                A(f"ds_read_b128 v[{64+4*k}:{67+4*k}], v18 offset:{k*4096}", tag=f"er{k}")
            for k in range(8):
                A.wait(f"er{k}")
                if k < 4:
                    A(f"s_add_u32 s30, s33, {k*8*8192}")
                    A(f"buffer_store_dwordx4 v[{64+4*k}:{67+4*k}], v19, s[4:7], s30 offen sc1")
                else:
                    A(f"s_add_u32 s30, s34, {(k-4)*8*G.KVH}")
                    A(f"buffer_store_dwordx4 v[{64+4*k}:{67+4*k}], v20, s[4:7], s30 offen sc1")
    fin()
    A.label(f"{L}_V")
    A.restore(L + "v")
    k1_main_w(A, 3, True, sc, do_poll)
    A(f"""
    v_and_b32 v12, 31, v0
    v_lshlrev_b32 v13, 2, v12
    s_lshl_b32 s32, s3, 7
    s_add_u32 s32, s32, {4*G.T1S}
    v_add_u32 v13, s32, v13
    ds_write_b32 v13, v6
    v_bfe_u32 v14, v0, 5, 1
    v_lshlrev_b32 v13, 4, v14
    v_add_u32 v13, s32, v13
    """)
    A.waitall(vm=False)
    for g in range(4):
        A(f"ds_read_b128 v[{16+4*g}:{19+4*g}], v13 offset:{g*32}")
    A(f"""
    s_sub_u32 s32, s27, 9
    s_mul_i32 s32, s32, 96
    v_add_u32 v12, s32, v12
    v_mul_u32_u24 v14, 304, v14
    s_and_b32 s33, s26, 7
    s_mul_i32 s33, s33, 1216
    s_add_u32 s33, s33, s31
    s_add_u32 s33, s33, 9216
    s_mov_b32 s34, {G.KVH}
    """)
    A.waitall(vm=False)
    for t in range(3):
        acc = 64 + 16 * t
        A(f"""
        v_mul_u32_u24 v13, 3641, v12
        v_lshrrev_b32 v13, 16, v13
        v_mul_u32_u24 v15, 18, v13
        v_sub_u32 v15, v12, v15
        v_mul_lo_u32 v13, v13, s34
        v_lshlrev_b32 v15, 4, v15
        v_add3_u32 v{7+t}, v13, v15, v14
        v_add_u32 v12, 32, v12
        """)
        for i in range(16): A(f"v_mul_f32 v{acc+i}, v{acc+i}, v{16+i}")
        for i in range(8): A(f"v_cvt_pk_bf16_f32 v{128+8*t+i}, v{acc+2*i}, v{acc+2*i+1}")
        for e in range(2):
            A(f"buffer_store_dwordx4 v[{128+8*t+4*e}:{128+8*t+4*e+3}], v{7+t}, s[4:7], s33 offen offset:{e*608}{ST_}")
    fin()

def k1_main_w(A, NT, swapped, sc, prefetched, epi=None):
    if prefetched:
        k1_main(A, NT, swapped, sc, epi)
    else:
        k1_main_stream(A, NT, swapped, epi)

def k1_main_stream(A, NT, swapped, epi=None):
    xreg = lambda j, ks: (256 + 4 * ks) if ks < 36 else 8
    t1 = T1(1, xreg, lambda t, j: 64 + 16 * t, 32, 8, lambda t: t, 2, swapped)
    def issue(B, c):
        for t in range(NT):
            if c < 9: dma(B, 77, t * G.T1S + c * 4096, 78, t * G.T1S + c * 4096, 1, f"c{c}", stmp=38)
            else: dma(B, 76, t * G.T1S + 36 * 1024, None, t * G.T1S + 36 * 1024, 1, f"c{c}", stmp=38)
        if c < 9 and not XFIRST:
            for q in range(4):
                B(f"s_add_u32 s30, s23, {c*4096}")
                B(f"buffer_load_dwordx4 {r(xreg(0, 4*c+q), 4)}, v1, s[4:7], s30 offen offset:{q*1024}", tag=f"x{4*c+q}")
    AHEAD = P.get("k1s_ahead", 4 if XFIRST else 3)
    issue(A, 0)
    if not XFIRST: stats_load(A, 1, 29, 16, 12, "")
    for c in range(1, AHEAD): issue(A, c)
    SC = A if XFIRST else Asm()
    SC.wait("st")
    stats_compute(SC, 16, 5, 6, 12)
    SC("v_cmp_gt_u32 vcc, 512, v1")
    build_xext(SC, 5, 8, 12)
    SC("v_rsq_f32 v6, v6")
    items = [(t, ks) for ks in range(37) for t in range(NT)]
    DIST = 6
    M = Asm(); marks = {}
    def pre_read(i):
        t, ks = items[i]
        if t == 0 and ks % 4 == 0:
            M.wait(f"c{ks//4}"); M("s_barrier")
        t1.read(M, i, t, ks)
    for i in range(DIST): pre_read(i)
    for i, (t, ks) in enumerate(items):
        if t == 0: marks[ks] = len(M.ins)
        if i + DIST < len(items): pre_read(i + DIST)
        M.wait(f"wf{i}", f"x{ks}")
        if i == 0: M.stamp(14)
        t1.mfmas(M, i, t, ks)
    S_ = Sched(M.ins)
    for c in range(AHEAD, 10):
        B = Asm(); issue(B, c)
        S_.release(marks[4 * (c - AHEAD)], "vm", groups_vm(B.ins), every=1)
    if not XFIRST: S_.release(marks[3], "va", groups_1(SC.ins))
    out, rest = S_.run(cap=24, vm_cost=16)
    assert not rest
    check_tags(out)
    A.ins += out
    A.stamp(15)

def gen_ks():
    name = "ks_kernel"
    A = G.begin(name)
    A("""
    s_load_dwordx16 s[64:79], s[0:1], 0
    s_load_dwordx4 s[80:83], s[0:1], 64
    s_cmp_ge_u32 s2, 256
    s_cbranch_scc1 KS_END
    """)
    G.wave_id(A, 3)
    A.waitall()
    G.srd(A, 4, 82, G.WS_USED)
    G.srd(A, 12, 80, 256)
    B = Asm()
    nj = G.k0_body(B)
    sec = ""
    for i in B.ins:
        if i.kind == "label": sec = i.text
        if i.text.startswith("buffer_store") and not sec.startswith("K0_wo") and "v[8:11]" not in i.text: i.text += " sc1"
    A.extend(B)
    A.fence()
    A.waitall()
    A.stamp(0)
    A(f"""
    s_cmp_ge_u32 s2, {nj}
    s_cbranch_scc1 KS_NOSIG
    s_barrier
    s_cmp_lg_u32 s3, 0
    s_cbranch_scc1 KS_NOSIG
    s_mov_b64 exec, 1
    v_mov_b32 v30, 0
    v_mov_b32 v31, 1
    buffer_atomic_add v31, v30, s[12:15], s19 offen
    s_mov_b64 exec, -1
    """)
    A.label("KS_NOSIG")
    A(f"""
    s_mov_b32 s42, {G.XF}
    s_mov_b32 s43, {G.ST}
    s_mov_b32 s41, 0
    """)
    k1_decode(A, "KS_END")
    A("""
    s_cmp_ge_u32 s87, 15
    s_cbranch_scc1 KS_END
    v_and_b32 v1, 63, v0
    v_lshlrev_b32 v1, 4, v1
    s_mov_b32 s24, 4
    s_cmp_eq_u32 s87, 8
    s_cselect_b32 s24, 16, s24
    s_cmp_ge_u32 s87, 9
    s_cselect_b32 s24, 3, s24
    s_add_u32 s25, s87, 16
    v_and_b32 v28, 1, v0
    v_cmp_eq_u32 vcc, 1, v28
    v_mov_b32 v30, s86
    v_mov_b32 v29, s25
    v_cndmask_b32 v30, v30, v29, vcc
    v_lshlrev_b32 v30, 2, v30
    v_mov_b32 v29, s24
    v_cndmask_b32 v29, 4, v29, vcc
    s_mov_b32 s39, 0x40000
    s_cmp_lg_u32 s3, 0
    s_cbranch_scc1 KS_GO
    """)
    A.label("KS_POLL")
    A(f"""
    buffer_load_dword v31, v30, s[12:15], 0 offen sc1
    s_waitcnt vmcnt(0)
    v_cmp_eq_u32 vcc, v29, v31
    s_nop 1
    s_cmp_eq_u64 vcc, -1
    s_cbranch_scc1 KS_GO
    s_sleep {P.get('ks_sleep', 12)}
    s_sub_u32 s39, s39, 1
    s_cmp_lg_u32 s39, 0
    s_cbranch_scc1 KS_POLL
    """)
    A.label("KS_GO")
    A("s_barrier")
    A.stamp(1)
    C = Asm()
    k1_phase(C, "K1S", 0, False)
    for i in C.ins:
        if i.text.startswith("buffer_load"):
            i.text = i.text[:-4] + " sc1 lds" if i.text.endswith(" lds") else i.text + " sc1"
    A.extend(C)
    A.label("KS_END")
    A("s_endpgm")
    G.end(A, name, 400, 256)
    return (name, 256, 256, LDS_BYTES)

def gen_k0():
    name = "k0_kernel"
    A = G.begin(name)
    A("""
    s_load_dwordx16 s[64:79], s[0:1], 0
    s_load_dwordx4 s[80:83], s[0:1], 64
    """)
    G.wave_id(A, 3)
    A.waitall()
    G.srd(A, 4, 82, G.WS_USED)
    if P.get("pf", 1):
        A("""
        s_lshr_b32 s29, s2, 3
        s_lshl_b32 s29, s29, 2
        s_add_u32 s29, s29, s3
        v_and_b32 v1, 63, v0
        v_lshlrev_b32 v1, 4, v1
        """)
        if MEGA: G.code_prefetch(A, "km_kernel", "CODE_END", 16, 29, 1, 124, nper=2, stride=72*1024)
        else: G.code_prefetch(A, "k1_kernel", "kca_kernel", 16, 29, 1, 124)
    B = Asm()
    nj = G.k0_body(B)
    for i in B.ins:
        if i.text.startswith("buffer_store_dwordx4") and "v[8:11]" not in i.text and P.get("k0_sc1", 0): i.text += " sc1"
    A.extend(B)
    A("s_endpgm")
    G.end(A, name, 128)
    return (name, nj, 256, 41984)

def gen_k1s():
    name = "k1_kernel"
    A = G.begin(name)
    A(f"""
    s_load_dwordx2 s[12:13], s[0:1], 72
    s_cmp_ge_u32 s2, 256
    s_cbranch_scc1 K1S_END
    s_mov_b32 s42, {G.XF}
    s_mov_b32 s43, {G.ST}
    s_mov_b32 s41, 0
    """)
    G.wave_id(A, 3)
    k1_decode(A, "K1S_END")
    A("""
    s_cmp_ge_u32 s87, 15
    s_cbranch_scc1 K1S_END
    v_and_b32 v1, 63, v0
    v_lshlrev_b32 v1, 4, v1
    """)
    A.waitall()
    G.srd(A, 4, 12, G.WS_USED)
    k1_phase(A, "K1S", 0, False)
    A.label("K1S_END")
    A("s_endpgm")
    G.end(A, name, 400, 256)
    return (name, 256, 256, LDS_BYTES)

def gen_chain():
    A = Asm()
    names = [("kca_kernel", 0), ("kcb_kernel", 1)]
    for i, (n, fl) in enumerate(names):
        A.raw(f".globl {n}\n.p2align 8\n.type {n},@function")
        A.label(n)
        A(f"s_mov_b32 s40, {fl}")
        A(f"s_mov_b32 s41, {fl*8192}")
        A(f"s_mov_b32 s42, {G.XF + 2*fl*G.XSZ}")
        A(f"s_mov_b32 s43, {G.ST + 2*fl*G.SSZ}")
        if i < len(names) - 1: A("s_branch CH_BODY")
    A.label("CH_BODY")
    A("""
    s_load_dwordx2 s[12:13], s[0:1], 72
    s_load_dwordx2 s[14:15], s[0:1], 56
    s_cmp_ge_u32 s2, 256
    s_cbranch_scc1 CH_END
    """)
    G.wave_id(A, 3)
    t2_decode(A)
    t2_setup(A, 18, G.OF, G.WO, 0, 1)
    k4_decode(A)
    A.waitall()
    G.srd(A, 4, 12, G.WS_USED)
    G.srd(A, 8, 14, G.S * G.D * 2)
    sl4 = lambda t: t
    NTAIL = P.get("t2_ntail", 16)
    A("s_cmp_lg_u32 s83, 0")
    A("s_cbranch_scc1 K3_N5")
    A.save("k3n5")
    wt = lambda: tile_dmas([0, 1, 2, 3], sl4, 77, 76, 78, lambda t: f"w{t}" if t < 3 else "t3")
    for NT, pfx in ((4, "K3A"), (5, "K3B")):
        if NT == 5:
            A.label("K3_N5"); A.restore("k3n5")
        X, RES, left = t2_main(A, NT, 18, pfx, 0, "", wt()[:NTAIL], None, 0)
        assert not left
        t2_store(A, NT, X, RES)
        if NT == 4: A("s_branch K3_DONE")
    A.label("K3_DONE")
    if P.get("st3"): A.stamp(14)
    A("s_lshl_b32 s24, s80, 3")
    A("s_add_u32 s24, s24, s81")
    A("s_lshl_b32 s24, s24, 2")
    A("s_add_u32 s24, s24, s41")
    NMID = P.get("t2_nmid", 4)
    assert NTAIL + NMID <= 20
    for g in wt()[NTAIL:NTAIL+NMID]: A.ins += g
    signal(A, 24, "out")
    A.stamp(1)
    for g in wt()[NTAIL+NMID:]: A.ins += g
    k4_phase(A, None)
    qt = lambda: tile_dmas([0, 1, 2, 3], sl4, 77, 76, 78, lambda t: f"q{t}")
    if SK:
        k5_phase(A, lambda t: tile_dmas([t], sl4, 77, 76, 78, lambda t: f"q{t}"), P.get("k5_nmid", 6))
    else:
        A("s_lshl_b32 s24, s85, 5")
        A("s_add_u32 s24, s24, s84")
        A("s_lshl_b32 s24, s24, 2")
        A("s_add_u32 s24, s24, s41")
        A("s_add_u32 s24, s24, 1024")
        t2_setup(A, 144, G.HF, G.W2, 1, 2)
        signal(A, 24, "hout")
        A.stamp(8)
        k1_decode(A, None)
        A("s_lshr_b32 s25, s80, 2")
        A("s_lshl_b32 s25, s25, 7")
        A("s_add_u32 s25, s25, s41")
        A("s_add_u32 s25, s25, 1024")
        WPRE = 5
        poll(A, 25, 32, True)
        A.stamp(9)
        A("s_cmp_lg_u32 s83, 0")
        A("s_cbranch_scc1 K5_N5")
        A.save("k5n5")
        qt = lambda: tile_dmas([0, 1, 2, 3], sl4, 77, 76, 78, lambda t: f"q{t}")
        for NT, pfx in ((4, "K5A"), (5, "K5B")):
            if NT == 5:
                A.label("K5_N5"); A.restore("k5n5")
            X, RES, left = t2_main(A, NT, 144, pfx, WPRE, " sc1", qt()[:NTAIL], None, None)
            assert not left
            A.stamp(10)
            A("s_cmp_lg_u32 s40, 0")
            A(f"s_cbranch_scc1 {pfx}_FINAL")
            A.save(pfx + "fin")
            t2_store(A, NT, X, RES)
            A("s_branch K5_DONE")
            A.save(pfx + "done")
            A.label(f"{pfx}_FINAL")
            A.restore(pfx + "fin")
            for t in range(NT):
                A(f"buffer_store_dwordx2 v[{RES+2*t}:{RES+2*t+1}], v29, s[8:11], s31 offen offset:{t*32}")
            A("s_endpgm")
        A.label("K5_DONE")
        A.restore("K5Bdone")
        A("s_lshl_b32 s24, s80, 3")
        A("s_add_u32 s24, s24, s81")
        A("s_lshl_b32 s24, s24, 2")
        A("s_add_u32 s24, s24, s41")
        A("s_add_u32 s24, s24, 2048")
        for g in qt()[NTAIL:NTAIL+NMID]: A.ins += g
        signal(A, 24, "out")
        A.stamp(11)
        A("s_cmp_ge_u32 s87, 15")
        A("s_cbranch_scc1 CH_END")
        for g in qt()[NTAIL+NMID:]: A.ins += g
    if P.get("pf", 1):
        A("s_lshr_b32 s29, s2, 3")
        A("s_lshl_b32 s29, s29, 2")
        A("s_add_u32 s29, s29, s3")
        G.code_prefetch(A, "k2_kernel", "CODE_END", 12, 29, 1, 248)
    k1_phase(A, "K1C", 2, True)
    A.label("CH_END")
    A("s_endpgm")
    text = finalize(A)
    first = True
    for n, fl in names:
        G.kernels.append((n, text if first else "", 512, 256, 96))
        first = False
    return [(n, 256, 256, LDS_BYTES) for n, fl in names]
```

```python
from asmlib import *
import gen as G
from chain import *
import att
SOLO = P.get("solo", 1)
EARLY = SOLO and P.get("early", 0)

def k1_join(A, L):
    A.label(f"{L}_JOIN")
    A.fence()
    if SOLO and L == "K1S":
        A("v_and_b32 v30, 7, v0")
        A(f"v_lshlrev_b32 v30, {2+FSH}, v30")
        A(f"s_mov_b32 s38, {G.FLG + ((7168 + (158 if EARLY else 182)*4) << FSH)}")
        spin_flags(A, "ZBRDY", 30, 31, 4, "s38", 8)
    A.waitall()
    A.stamp("kj" + L)
    A("""
    s_lshl_b32 s24, s87, 4
    s_add_u32 s24, s24, s86
    s_lshl_b32 s24, s24, 2
    s_add_u32 s24, s24, s41
    s_add_u32 s24, s24, 4096
    """)
    if P.get("q_atomic", 0):
        A("s_andn2_b32 s24, s24, 63")
    A("s_barrier")
    B = Asm(); flag_store(B, 24)
    for i in B.ins:
        if P.get("q_atomic", 0) and "buffer_store_dword" in i.text:
            i.text = i.text.replace("buffer_store_dword", "buffer_atomic_add").replace(" sc1", "")
    A.extend(B)
    if EARLY and L == "K1S":
        A(f"""
        s_cmp_lt_u32 s2, 128
        s_cbranch_scc1 KM_NOFW
        s_cmp_lg_u32 s3, 1
        s_cbranch_scc1 KM_NOFW
        s_sub_u32 s24, s2, 128
        s_sub_u32 s25, s2, 40
        s_cmp_lt_u32 s2, 168
        s_cselect_b32 s25, s24, s25
        v_mov_b32 v30, s24
        v_mov_b32 v31, s25
        v_and_b32 v29, 2, v0
        v_cmp_eq_u32 vcc, 2, v29
        v_cndmask_b32 v30, v30, v31, vcc
        v_lshlrev_b32 v30, 1, v30
        v_and_b32 v29, 1, v0
        v_add_u32 v30, v30, v29
        v_lshlrev_b32 v30, {2+FSH}, v30
        v_mov_b32 v31, 1
        s_mov_b32 s24, {G.FLG + (5120 << FSH)}
        s_mov_b64 exec, 15
        """)
        A.raw(" buffer_store_dword v31, v30, s[4:7], s24 offen sc1")
        A("s_mov_b64 exec, -1")
        A.label("KM_NOFW")

def wo_prefetch():
    B = Asm()
    for st in range(5):
        for t in range(5):
            B(f"s_add_u32 s30, s87, {t*18*1024 + st*4096}")
            B(f"buffer_load_dwordx4 {r(t2_buf(st, 4+t), 4)}, v1, s[4:7], s30 offen sc1", tag=f"l{st}")
    return groups_vm(B.ins)

def pre_att(A):
    t2_decode(A)
    k4_decode(A)
    A(f"""
    s_mul_i32 s87, s82, {18*1024}
    s_add_u32 s87, s87, {G.WO}
    s_add_u32 s87, s87, s78
    """)

def spin_flags(A, lab, vaddr, vdat, srd, soff, nl):
    R = A.raw
    R("    s_mov_b32 s39, 0x20000")
    R(f"    s_mov_b64 exec, {hex((1 << nl) - 1)}")
    R(f"{lab}:")
    R(f"    buffer_load_dword v{vdat}, v{vaddr}, s[{srd}:{srd+3}], {soff} offen sc1")
    R("    s_waitcnt vmcnt(0)")
    R(f"    v_cmp_ne_u32 vcc, 1, v{vdat}")
    R("    s_nop 1")
    R("    s_and_b64 exec, exec, vcc")
    R(f"    s_cbranch_scc0 {lab}_X")
    R("    s_sleep 4")
    R("    s_sub_u32 s39, s39, 1")
    R("    s_cmp_lg_u32 s39, 0")
    R(f"    s_cbranch_scc1 {lab}")
    R(f"{lab}_X:")
    R("    s_mov_b64 exec, -1")

def gen_mega():
    name = "km_kernel"
    A = G.begin(name)
    if SOLO:
        A("s_load_dwordx16 s[64:79], s[0:1], 0")
        A("s_load_dwordx4 s[80:83], s[0:1], 64")
    else:
        A("s_load_dwordx2 s[82:83], s[0:1], 72")
        A("s_load_dwordx2 s[78:79], s[0:1], 56")
    A(f"""
    s_cmp_lt_u32 s2, 256
    s_cbranch_scc1 KM_GO
    s_endpgm
    """)
    A.label("KM_GO")
    if P.get("perm"):
        A("s_and_b32 s3, s2, 7")
        A("s_lshl_b32 s3, s3, 5")
        A("s_lshr_b32 s2, s2, 3")
        A("s_or_b32 s2, s2, s3")
    A(f"""
    s_mov_b32 s40, 0
    s_mov_b32 s41, 0
    s_mov_b32 s42, {G.XF}
    s_mov_b32 s43, {G.ST}
    s_mov_b32 s100, 0
    s_mov_b32 s101, 0
    """)
    G.wave_id(A, 3)
    A.waitall()
    G.srd(A, 4, 82, G.WS_USED)
    if SOLO:
        G.srd(A, 16, 80, 256)
        A("s_mov_b32 s84, s78")
        A("s_mov_b32 s85, s79")
        if P.get("wqpf", 1):
            A("s_cmp_lt_u32 s2, 192")
            A("s_cbranch_scc1 KM_NOWQ")
            G.srd(A, 8, 66, G.D * 3 * G.D * 2)
            A("""
            s_sub_u32 s29, s2, 192
            s_lshl_b32 s29, s29, 15
            v_lshlrev_b32 v1, 4, v0
            """)
            for k in range(8):
                A(f"buffer_load_dwordx4 v[{200+4*k}:{203+4*k}], v1, s[8:11], s29 offen")
                A("s_add_u32 s29, s29, 4096")
            A.label("KM_NOWQ")
        B = Asm()
        nj = G.k0_body(B)
        for i in B.ins:
            if i.text.startswith("buffer_store"): i.text += " sc1"
            if i.text.startswith("s_") and " s19," in i.text: i.text = "s_nop 0"
        A.extend(B)
        A.fence()
        A.stamp("p0")
        if not EARLY:
            A("""
            s_cmp_lt_u32 s2, 152
            s_cbranch_scc1 KM_NOPF
            s_lshr_b32 s29, s2, 3
            s_sub_u32 s29, s29, 19
            s_lshl_b32 s29, s29, 2
            s_add_u32 s29, s29, s3
            v_and_b32 v1, 63, v0
            v_lshlrev_b32 v1, 4, v1
            """)
            G.code_prefetch(A, "KM_NOPF", "CODE_END", 12, 29, 1, 248, nper=3, stride=52*1024)
            A.label("KM_NOPF")
        else:
            A("s_cmp_ge_u32 s2, 168")
            A("s_cbranch_scc1 KM_SIDE")
        A("v_and_b32 v30, 3, v0")
        A("v_lshlrev_b32 v30, 2, v30")
        spin_flags(A, "ZRDY", 30, 31, 16, "0", 4)
        A.waitall()
        A(f"""
        s_cmp_ge_u32 s2, {nj - 1}
        s_cbranch_scc1 KM_NOSIG
        s_barrier
        s_lshl_b32 s24, s2, 2
        s_add_u32 s24, s24, 7168
        """)
        flag_store(A, 24)
        A.label("KM_NOSIG")
        if EARLY:
            A("s_cmp_lt_u32 s2, 128")
            A("s_cbranch_scc1 KM_K1")
            A.label("KM_SIDE")
            A.reset()
            A("v_and_b32 v1, 63, v0")
            A("v_lshlrev_b32 v1, 4, v1")
            def pf0(B):
                B("s_lshr_b32 s29, s2, 3")
                B("s_sub_u32 s29, s29, 21")
                B("s_lshl_b32 s29, s29, 2")
                B("s_add_u32 s29, s29, s3")
                G.code_prefetch(B, "SE_DONE", "CODE_END", 12, 29, 1, 248, nper=3, stride=44*1024)
            att.side_early(A, pf0)
            G.srd(A, 16, 80, 256)
            A("v_and_b32 v30, 3, v0")
            A("v_lshlrev_b32 v30, 2, v30")
            spin_flags(A, "ZRDY2", 30, 31, 16, "0", 4)
            A.waitall()
            A.stamp("p2")
            A.label("KM_K1")
        G.srd(A, 8, 84, G.S * G.D * 2)
    else:
        G.srd(A, 8, 78, G.S * G.D * 2)
    k1_decode(A, None)
    A("""
    v_and_b32 v1, 63, v0
    v_lshlrev_b32 v1, 4, v1
    """)
    if SOLO:
        A(f"""
        s_lshl_b32 s24, s87, 2
        s_add_u32 s24, s24, 64
        s_mov_b32 s25, 3
        s_mul_i32 s26, s87, 3
        s_add_u32 s26, s26, {112 - 27}
        s_cmp_ge_u32 s87, 9
        s_cselect_b32 s24, s26, s24
        s_cselect_b32 s25, 2, s25
        s_cmp_eq_u32 s87, 8
        s_cselect_b32 s25, 7, s25
        s_cmp_eq_u32 s87, 15
        s_cselect_b32 s24, 104, s24
        s_cselect_b32 s25, 7, s25
        v_and_b32 v30, 7, v0
        v_min_u32 v30, s25, v30
        v_add_u32 v30, s24, v30
        s_lshl_b32 s26, s86, 2
        s_add_u32 s26, s26, s3
        v_mov_b32 v31, s26
        v_and_b32 v29, 8, v0
        v_cmp_eq_u32 vcc, 8, v29
        v_cndmask_b32 v30, v30, v31, vcc
        v_lshlrev_b32 v30, {2+FSH}, v30
        s_mov_b32 s38, {G.FLG + (7168 << FSH)}
        """)
        if not XFIRST:
            spin_flags(A, "PRDY", 30, 31, 4, "s38", 9)
            A.stamp("p1")
    C = Asm()
    def hook(B):
        B("v_mov_b32 v32, v30")
        B(f"s_lshl_b32 s24, s26, {2+FSH}")
        B("v_mov_b32 v33, s24")
        B(f"s_mov_b32 s38, {G.FLG + (7168 << FSH)}")
        spin_flags(B, "XRDY", 33, 34, 4, "s38", 1)
        B.stamp("px")
        stats_load(B, 1, 29, 16, 12, "")
        for ks in range(36):
            B(f"s_add_u32 s30, s23, {(ks//4)*4096}")
            B(f"buffer_load_dwordx4 a[{4*ks}:{4*ks+3}], v1, s[4:7], s30 offen offset:{(ks%4)*1024}", tag=f"x{ks}")
        spin_flags(B, "PRDY", 32, 34, 4, "s38", 8)
        B.waitall()
        B.stamp("p1")
    k1_phase(C, "K1S", 0, False, hook if XFIRST else None)
    for i in C.ins:
        if SOLO and i.text.startswith("buffer_load") and "sc1" not in i.text and not i.text.endswith(" lds"): i.text += " sc1"
    A.extend(C)
    k1_join(A, "K1S")
    A.stamp("k1e")
    if EARLY: A.label("CH_ATT")
    pre_att(A)
    def pfc(B):
        B("s_lshr_b32 s29, s2, 3")
        B("s_lshl_b32 s29, s29, 2")
        B("s_add_u32 s29, s29, s3")
        G.code_prefetch(B, "K3_DONE", "K1C_JOIN", 12, 29, 1, 248)
    att.att_phase(A, "ATA", not EARLY, wo_prefetch, pfc if P.get("pf2", 1) else None)
    A.label("CH_K3")
    A.fence()
    sl4 = lambda t: t
    t2_setup(A, 18, G.OF, G.WO, 0, 1)
    A(f"""
    s_mul_i32 s24, s84, 9
    s_lshr_b32 s24, s24, 2
    s_lshr_b32 s25, s2, 6              ; cgp
    s_mul_i32 s25, s25, 9
    s_lshr_b32 s25, s25, 2
    s_and_b32 s26, s2, 3
    s_mul_i32 s26, s26, 18
    s_add_u32 s25, s25, s26
    s_add_u32 s25, s25, 144
    v_bfe_u32 v30, v0, 1, 2
    v_min_u32 v30, 2, v30              ; 0..2
    v_bfe_u32 v31, v0, 3, 1
    v_bfe_u32 v26, v0, 4, 1
    v_cmp_eq_u32 vcc, 1, v26
    v_mov_b32 v26, 72
    v_cndmask_b32 v26, v26, 9, vcc
    v_mul_u32_u24 v31, v31, v26
    v_add_u32 v30, v30, v31
    v_mov_b32 v31, s24
    v_mov_b32 v26, s25
    v_cndmask_b32 v31, v31, v26, vcc
    v_add_u32 v30, v30, v31
    v_lshlrev_b32 v30, 1, v30
    v_and_b32 v31, 1, v0
    v_add_u32 v30, v30, v31
    v_lshlrev_b32 v30, {2+FSH}, v30
    s_mov_b32 s25, {G.FLG + (5120 << FSH)}
    """)
    A("v_mov_b32 v26, v30")
    A.raw(" buffer_load_dword v25, v26, s[4:7], s25 offen sc1")
    A("s_waitcnt vmcnt(1)")
    A("s_mov_b64 exec, 1")
    A("buffer_store_dword v99, v98, s[4:7], s86 offen sc1")
    A("s_mov_b64 exec, -1")
    A.stamp("ate")
    wt = lambda: tile_dmas([0, 1, 2, 3], sl4, 77, 76, 78, lambda t: f"w{t}" if t < 3 else "t3")
    NPRE = 0
    R2 = P.get("red2", 0)
    NTAIL = P.get("m_ntail", 22 if R2 else 16); NMID = P.get("m_nmid", 4)
    assert NPRE + NTAIL + NMID <= (26 if R2 else 20)
    A("s_lshl_b32 s24, s80, 7")
    A("s_add_u32 s24, s24, s41")
    A("s_add_u32 s24, s24, 16384")
    poll(A, 24, 32, P.get('k3_allw', 0))
    A.waitall()
    flagchk(A, "WRDY", "fw", 25, 26, 25)
    A.stamp("k3p")
    A("s_cmp_lg_u32 s83, 0")
    A("s_cbranch_scc1 K3_N5")
    A.save("k3n5")
    for NT, pfx in ((4, "K3A"), (5, "K3B")):
        if NT == 5:
            A.label("K3_N5"); A.restore("k3n5")
        X, RES, left = t2_main(A, NT, 18, pfx, 5, " sc1", wt()[NPRE:NPRE+NTAIL], "bar", None)
        t2_store(A, NT, X, RES)
        if NT == 4: A("s_branch K3_DONE")
    A.label("K3_DONE")
    A.stamp("t3")
    A("s_lshl_b32 s24, s80, 3")
    A("s_add_u32 s24, s24, s81")
    A("s_lshl_b32 s24, s24, 2")
    A("s_add_u32 s24, s24, s41")
    for g in wt()[NPRE+NTAIL:NPRE+NTAIL+NMID]: A.ins += g
    signal(A, 24, "out")
    A.stamp("k3e")
    if R2:
        for g in wt()[NPRE+NTAIL+NMID:26]: A.ins += g
        late = wt()[26:]
        for g in late: g[-1].tag = "l" + g[-1].tag
        k4_phase(A, late)
    else:
        for g in wt()[NPRE+NTAIL+NMID:]: A.ins += g
        k4_phase(A, None)
    k5_phase(A, lambda t: tile_dmas([t], sl4, 77, 76, 78, lambda t: f"q{t}"), P.get("k5_nmid", 6))
    if P.get("pf2", 1) and not EARLY:
        A("s_lshr_b32 s29, s2, 3")
        A("s_lshl_b32 s29, s29, 2")
        A("s_add_u32 s29, s29, s3")
        G.code_prefetch(A, "K1C_JOIN", "CODE_END", 12, 29, 1, 248)
    k1_phase(A, "K1C", 0, True)
    k1_join(A, "K1C")
    A.stamp("k1e2")
    if EARLY:
        A("s_branch CH_ATT")
    else:
        pre_att(A)
        att.att_phase(A, "ATB", False, wo_prefetch)
        A("s_branch CH_K3")
    A.label("CH_END")
    A("s_endpgm")
    for i in A.ins:
        if i.text.endswith(" lds") and "sc1" not in i.text: i.text = i.text[:-4] + " sc1 lds"
    G.end(A, name, 512, 256, ns=102)
    return (name, 256, 256, LDS_BYTES)
```

```python
from asmlib import *
import gen as G
from chain import *
import att
SOLO = P.get("solo", 1)
EARLY = SOLO and P.get("early", 0)

def k1_join(A, L):
    A.label(f"{L}_JOIN")
    A.fence()
    if SOLO and L == "K1S":
        A("v_and_b32 v30, 7, v0")
        A(f"v_lshlrev_b32 v30, {2+FSH}, v30")
        A(f"s_mov_b32 s38, {G.FLG + ((7168 + (158 if EARLY else 182)*4) << FSH)}")
        spin_flags(A, "ZBRDY", 30, 31, 4, "s38", 8)
    A.waitall()
    A.stamp("kj" + L)
    A("""
    s_lshl_b32 s24, s87, 4
    s_add_u32 s24, s24, s86
    s_lshl_b32 s24, s24, 2
    s_add_u32 s24, s24, s41
    s_add_u32 s24, s24, 4096
    """)
    if P.get("q_atomic", 0):
        A("s_andn2_b32 s24, s24, 63")
    A("s_barrier")
    B = Asm(); flag_store(B, 24)
    for i in B.ins:
        if P.get("q_atomic", 0) and "buffer_store_dword" in i.text:
            i.text = i.text.replace("buffer_store_dword", "buffer_atomic_add").replace(" sc1", "")
    A.extend(B)
    if EARLY and L == "K1S":
        A(f"""
        s_cmp_lt_u32 s2, 128
        s_cbranch_scc1 KM_NOFW
        s_cmp_lg_u32 s3, 1
        s_cbranch_scc1 KM_NOFW
        s_sub_u32 s24, s2, 128
        s_sub_u32 s25, s2, 40
        s_cmp_lt_u32 s2, 168
        s_cselect_b32 s25, s24, s25
        v_mov_b32 v30, s24
        v_mov_b32 v31, s25
        v_and_b32 v29, 2, v0
        v_cmp_eq_u32 vcc, 2, v29
        v_cndmask_b32 v30, v30, v31, vcc
        v_lshlrev_b32 v30, 1, v30
        v_and_b32 v29, 1, v0
        v_add_u32 v30, v30, v29
        v_lshlrev_b32 v30, {2+FSH}, v30
        v_mov_b32 v31, 1
        s_mov_b32 s24, {G.FLG + (5120 << FSH)}
        s_mov_b64 exec, 15
        """)
        A.raw(" buffer_store_dword v31, v30, s[4:7], s24 offen sc1")
        A("s_mov_b64 exec, -1")
        A.label("KM_NOFW")

def wo_prefetch():
    B = Asm()
    for st in range(5):
        for t in range(5):
            B(f"s_add_u32 s30, s87, {t*18*1024 + st*4096}")
            B(f"buffer_load_dwordx4 {r(t2_buf(st, 4+t), 4)}, v1, s[4:7], s30 offen sc1", tag=f"l{st}")
    return groups_vm(B.ins)

def pre_att(A):
    t2_decode(A)
    k4_decode(A)
    A(f"""
    s_mul_i32 s87, s82, {18*1024}
    s_add_u32 s87, s87, {G.WO}
    s_add_u32 s87, s87, s78
    """)

def spin_flags(A, lab, vaddr, vdat, srd, soff, nl):
    R = A.raw
    R("    s_mov_b32 s39, 0x20000")
    R(f"    s_mov_b64 exec, {hex((1 << nl) - 1)}")
    R(f"{lab}:")
    R(f"    buffer_load_dword v{vdat}, v{vaddr}, s[{srd}:{srd+3}], {soff} offen sc1")
    R("    s_waitcnt vmcnt(0)")
    R(f"    v_cmp_ne_u32 vcc, 1, v{vdat}")
    R("    s_nop 1")
    R("    s_and_b64 exec, exec, vcc")
    R(f"    s_cbranch_scc0 {lab}_X")
    R("    s_sleep 4")
    R("    s_sub_u32 s39, s39, 1")
    R("    s_cmp_lg_u32 s39, 0")
    R(f"    s_cbranch_scc1 {lab}")
    R(f"{lab}_X:")
    R("    s_mov_b64 exec, -1")

def gen_mega():
    name = "km_kernel"
    A = G.begin(name)
    if SOLO:
        A("s_load_dwordx16 s[64:79], s[0:1], 0")
        A("s_load_dwordx4 s[80:83], s[0:1], 64")
    else:
        A("s_load_dwordx2 s[82:83], s[0:1], 72")
        A("s_load_dwordx2 s[78:79], s[0:1], 56")
    A(f"""
    s_cmp_lt_u32 s2, 256
    s_cbranch_scc1 KM_GO
    s_endpgm
    """)
    A.label("KM_GO")
    if P.get("perm"):
        A("s_and_b32 s3, s2, 7")
        A("s_lshl_b32 s3, s3, 5")
        A("s_lshr_b32 s2, s2, 3")
        A("s_or_b32 s2, s2, s3")
    A(f"""
    s_mov_b32 s40, 0
    s_mov_b32 s41, 0
    s_mov_b32 s42, {G.XF}
    s_mov_b32 s43, {G.ST}
    s_mov_b32 s100, 0
    s_mov_b32 s101, 0
    """)
    G.wave_id(A, 3)
    A.waitall()
    G.srd(A, 4, 82, G.WS_USED)
    if SOLO:
        G.srd(A, 16, 80, 256)
        A("s_mov_b32 s84, s78")
        A("s_mov_b32 s85, s79")
        if P.get("wqpf", 1):
            A("s_cmp_lt_u32 s2, 192")
            A("s_cbranch_scc1 KM_NOWQ")
            G.srd(A, 8, 66, G.D * 3 * G.D * 2)
            A("""
            s_sub_u32 s29, s2, 192
            s_lshl_b32 s29, s29, 15
            v_lshlrev_b32 v1, 4, v0
            """)
            for k in range(8):
                A(f"buffer_load_dwordx4 v[{200+4*k}:{203+4*k}], v1, s[8:11], s29 offen")
                A("s_add_u32 s29, s29, 4096")
            A.label("KM_NOWQ")
        B = Asm()
        nj = G.k0_body(B)
        for i in B.ins:
            if i.text.startswith("buffer_store"): i.text += " sc1"
            if i.text.startswith("s_") and " s19," in i.text: i.text = "s_nop 0"
        A.extend(B)
        A.fence()
        A.stamp("p0")
        if not EARLY:
            A("""
            s_cmp_lt_u32 s2, 152
            s_cbranch_scc1 KM_NOPF
            s_lshr_b32 s29, s2, 3
            s_sub_u32 s29, s29, 19
            s_lshl_b32 s29, s29, 2
            s_add_u32 s29, s29, s3
            v_and_b32 v1, 63, v0
            v_lshlrev_b32 v1, 4, v1
            """)
            G.code_prefetch(A, "ATB_BEGIN", "CODE_END", 12, 29, 1, 248, nper=3, stride=52*1024, back=True)
            A.label("KM_NOPF")
        else:
            A("s_cmp_ge_u32 s2, 168")
            A("s_cbranch_scc1 KM_SIDE")
        A("v_and_b32 v30, 3, v0")
        A("v_lshlrev_b32 v30, 2, v30")
        spin_flags(A, "ZRDY", 30, 31, 16, "0", 4)
        A.waitall()
        A(f"""
        s_cmp_ge_u32 s2, {nj - 1}
        s_cbranch_scc1 KM_NOSIG
        s_barrier
        s_lshl_b32 s24, s2, 2
        s_add_u32 s24, s24, 7168
        """)
        flag_store(A, 24)
        A.label("KM_NOSIG")
        if EARLY:
            A("s_cmp_lt_u32 s2, 128")
            A("s_cbranch_scc1 KM_K1")
            A.label("KM_SIDE")
            A.reset()
            A("v_and_b32 v1, 63, v0")
            A("v_lshlrev_b32 v1, 4, v1")
            def pf0(B):
                B("s_lshr_b32 s29, s2, 3")
                B("s_sub_u32 s29, s29, 21")
                B("s_lshl_b32 s29, s29, 2")
                B("s_add_u32 s29, s29, s3")
                G.code_prefetch(B, "SE_DONE", "CODE_END", 12, 29, 1, 248, nper=3, stride=44*1024)
            att.side_early(A, pf0)
            G.srd(A, 16, 80, 256)
            A("v_and_b32 v30, 3, v0")
            A("v_lshlrev_b32 v30, 2, v30")
            spin_flags(A, "ZRDY2", 30, 31, 16, "0", 4)
            A.waitall()
            A.stamp("p2")
            A.label("KM_K1")
        G.srd(A, 8, 84, G.S * G.D * 2)
    else:
        G.srd(A, 8, 78, G.S * G.D * 2)
    k1_decode(A, None)
    A("""
    v_and_b32 v1, 63, v0
    v_lshlrev_b32 v1, 4, v1
    """)
    if SOLO:
        A(f"""
        s_lshl_b32 s24, s87, 2
        s_add_u32 s24, s24, 64
        s_mov_b32 s25, 3
        s_mul_i32 s26, s87, 3
        s_add_u32 s26, s26, {112 - 27}
        s_cmp_ge_u32 s87, 9
        s_cselect_b32 s24, s26, s24
        s_cselect_b32 s25, 2, s25
        s_cmp_eq_u32 s87, 8
        s_cselect_b32 s25, 7, s25
        s_cmp_eq_u32 s87, 15
        s_cselect_b32 s24, 104, s24
        s_cselect_b32 s25, 7, s25
        v_and_b32 v30, 7, v0
        v_min_u32 v30, s25, v30
        v_add_u32 v30, s24, v30
        s_lshl_b32 s26, s86, 2
        s_add_u32 s26, s26, s3
        v_mov_b32 v31, s26
        v_and_b32 v29, 8, v0
        v_cmp_eq_u32 vcc, 8, v29
        v_cndmask_b32 v30, v30, v31, vcc
        v_lshlrev_b32 v30, {2+FSH}, v30
        s_mov_b32 s38, {G.FLG + (7168 << FSH)}
        """)
        if not XFIRST:
            spin_flags(A, "PRDY", 30, 31, 4, "s38", 9)
            A.stamp("p1")
    C = Asm()
    def hook(B):
        B("v_mov_b32 v32, v30")
        B(f"s_lshl_b32 s24, s26, {2+FSH}")
        B("v_mov_b32 v33, s24")
        B(f"s_mov_b32 s38, {G.FLG + (7168 << FSH)}")
        spin_flags(B, "XRDY", 33, 34, 4, "s38", 1)
        B.stamp("px")
        stats_load(B, 1, 29, 16, 12, "")
        for ks in range(36):
            B(f"s_add_u32 s30, s23, {(ks//4)*4096}")
            B(f"buffer_load_dwordx4 a[{4*ks}:{4*ks+3}], v1, s[4:7], s30 offen offset:{(ks%4)*1024}", tag=f"x{ks}")
        spin_flags(B, "PRDY", 32, 34, 4, "s38", 8)
        B.waitall()
        B.stamp("p1")
    k1_phase(C, "K1S", 0, False, hook if XFIRST else None)
    for i in C.ins:
        if SOLO and i.text.startswith("buffer_load") and "sc1" not in i.text and not i.text.endswith(" lds"): i.text += " sc1"
    A.extend(C)
    k1_join(A, "K1S")
    A.stamp("k1e")
    if EARLY: A.label("CH_ATT")
    pre_att(A)
    def pfc(B):
        B("s_lshr_b32 s29, s2, 3")
        B("s_lshl_b32 s29, s29, 2")
        B("s_add_u32 s29, s29, s3")
        G.code_prefetch(B, "K3_DONE", "K1C_JOIN", 12, 29, 1, 248)
    att.att_phase(A, "ATA", not EARLY, wo_prefetch, pfc if P.get("pf2", 1) else None)
    A.label("CH_K3")
    A.fence()
    sl4 = lambda t: t
    t2_setup(A, 18, G.OF, G.WO, 0, 1)
    A(f"""
    s_mul_i32 s24, s84, 9
    s_lshr_b32 s24, s24, 2
    s_lshr_b32 s25, s2, 6              ; cgp
    s_mul_i32 s25, s25, 9
    s_lshr_b32 s25, s25, 2
    s_and_b32 s26, s2, 3
    s_mul_i32 s26, s26, 18
    s_add_u32 s25, s25, s26
    s_add_u32 s25, s25, 144
    v_bfe_u32 v30, v0, 1, 2
    v_min_u32 v30, 2, v30              ; 0..2
    v_bfe_u32 v31, v0, 3, 1
    v_bfe_u32 v26, v0, 4, 1
    v_cmp_eq_u32 vcc, 1, v26
    v_mov_b32 v26, 72
    v_cndmask_b32 v26, v26, 9, vcc
    v_mul_u32_u24 v31, v31, v26
    v_add_u32 v30, v30, v31
    v_mov_b32 v31, s24
    v_mov_b32 v26, s25
    v_cndmask_b32 v31, v31, v26, vcc
    v_add_u32 v30, v30, v31
    v_lshlrev_b32 v30, 1, v30
    v_and_b32 v31, 1, v0
    v_add_u32 v30, v30, v31
    v_lshlrev_b32 v30, {2+FSH}, v30
    s_mov_b32 s25, {G.FLG + (5120 << FSH)}
    """)
    A("v_mov_b32 v26, v30")
    A.raw(" buffer_load_dword v25, v26, s[4:7], s25 offen sc1")
    A("s_waitcnt vmcnt(1)")
    A("s_mov_b64 exec, 1")
    A("buffer_store_dword v99, v98, s[4:7], s86 offen sc1")
    A("s_mov_b64 exec, -1")
    A.stamp("ate")
    wt = lambda: tile_dmas([0, 1, 2, 3], sl4, 77, 76, 78, lambda t: f"w{t}" if t < 3 else "t3")
    NPRE = 0
    R2 = P.get("red2", 0)
    NTAIL = P.get("m_ntail", 22 if R2 else 16); NMID = P.get("m_nmid", 4)
    assert NPRE + NTAIL + NMID <= (26 if R2 else 20)
    A("s_lshl_b32 s24, s80, 7")
    A("s_add_u32 s24, s24, s41")
    A("s_add_u32 s24, s24, 16384")
    poll(A, 24, 32, P.get('k3_allw', 0))
    A.waitall()
    flagchk(A, "WRDY", "fw", 25, 26, 25)
    A.stamp("k3p")
    A("s_cmp_lg_u32 s83, 0")
    A("s_cbranch_scc1 K3_N5")
    A.save("k3n5")
    for NT, pfx in ((4, "K3A"), (5, "K3B")):
        if NT == 5:
            A.label("K3_N5"); A.restore("k3n5")
        X, RES, left = t2_main(A, NT, 18, pfx, 5, " sc1", wt()[NPRE:NPRE+NTAIL], "bar", None)
        t2_store(A, NT, X, RES)
        if NT == 4: A("s_branch K3_DONE")
    A.label("K3_DONE")
    A.stamp("t3")
    A("s_lshl_b32 s24, s80, 3")
    A("s_add_u32 s24, s24, s81")
    A("s_lshl_b32 s24, s24, 2")
    A("s_add_u32 s24, s24, s41")
    for g in wt()[NPRE+NTAIL:NPRE+NTAIL+NMID]: A.ins += g
    signal(A, 24, "out")
    A.stamp("k3e")
    if R2:
        for g in wt()[NPRE+NTAIL+NMID:26]: A.ins += g
        late = wt()[26:]
        for g in late: g[-1].tag = "l" + g[-1].tag
        k4_phase(A, late)
    else:
        for g in wt()[NPRE+NTAIL+NMID:]: A.ins += g
        k4_phase(A, None)
    k5_phase(A, lambda t: tile_dmas([t], sl4, 77, 76, 78, lambda t: f"q{t}"), P.get("k5_nmid", 6))
    if P.get("pf2", 1) and not EARLY:
        A("s_lshr_b32 s29, s2, 3")
        A("s_lshl_b32 s29, s29, 2")
        A("s_add_u32 s29, s29, s3")
        G.code_prefetch(A, "ATB_BEGIN", "ATB_END", 12, 29, 1, 248, back=True)
    k1_phase(A, "K1C", 0, True)
    if EARLY:
        k1_join(A, "K1C")
        A.stamp("k1e2")
        A("s_branch CH_ATT")
    else:
        A.label("K1C_JOIN")
        A("s_getpc_b64 s[24:25]")
        A.label("FARJ")
        A("s_sub_u32 s24, s24, FARJ-K1D_JOIN")
        A("s_subb_u32 s25, s25, 0")
        A("s_setpc_b64 s[24:25]")
        F = Asm()
        F.label("ATB_BEGIN")
        k1_join(F, "K1D")
        F.stamp("k1e2")
        pre_att(F)
        att.att_phase(F, "ATB", False, wo_prefetch)
        F("s_branch CH_K3")
        F.label("ATB_END")
        A.ins = F.ins + A.ins
    A.label("CH_END")
    A("s_endpgm")
    for i in A.ins:
        if i.text.endswith(" lds") and "sc1" not in i.text: i.text = i.text[:-4] + " sc1 lds"
    G.end(A, name, 512, 256, ns=102)
    return (name, 256, 256, LDS_BYTES)
```

```python
import sys, math, struct, os, json
from asmlib import *

NAME = "interleave_layers__softmax_full_mha__glu_gated_swiglu__prompt"
S, D, H, DH, F = 2048, 576, 32, 18, 4608

def al(x): return (x + 4095) // 4096 * 4096
off = 0
def region(n):
    global off
    o = off; off = al(off + n); return o
XSZ = 64 * 36 * 1024
SSZ = 2048 * 64
XF  = region(4 * XSZ)
ST  = region(4 * SSZ)
FLG = region(1 << 20)
LB0 = off
QM  = region(32 * 64 * 1024)
QE  = region(32 * 64 * 128)
KVH = 151552
KVG = 18944
KV  = region(32 * KVH + 8192)
REUSE = json.loads(os.environ.get("GP", "{}")).get("reuse", 1)
if REUSE:
    LBS = off - LB0; region(LBS)
OF  = region(128 * 18 * 1024)
OE  = region(32 * 2048 * 4)
HF  = region(128 * 144 * 1024)
PARTSZ = 64 * 4 * 3 * 4 * 3072
PART = region(PARTSZ + 65536)
if not REUSE:
    LBS = off - LB0
    region(LBS)
T1S = 37 * 1024
WQ  = region(54 * T1S)
W13 = region(288 * T1S)
WO  = region(36 * 18 * 1024)
W2  = region(36 * 144 * 1024)
WS_USED = off

def f32(x): return struct.unpack("<I", struct.pack("<f", x))[0]

import os, json
P = json.loads(os.environ.get("GP", "{}"))
kernels = []
launches = []

def begin(name):
    A = Asm()
    A.raw(f".globl {name}\n.p2align 8\n.type {name},@function")
    A.label(name)
    return A

def end(A, name, nv, acc=None, ns=96):
    acc = acc if acc is not None else (nv + 3) // 4 * 4
    kernels.append((name, finalize(A), nv, acc, ns))

def srd(A, d, lo, nbytes):
    A(f"""
    s_mov_b32 s{d}, s{lo}
    s_and_b32 s{d+1}, s{lo+1}, 0xffff
    s_mov_b32 s{d+2}, {nbytes}
    s_mov_b32 s{d+3}, 0x00020000
    """)

def wave_id(A, sreg, vtmp=1):
    A(f"v_lshrrev_b32 v{vtmp}, 6, v0")
    A(f"v_readfirstlane_b32 s{sreg}, v{vtmp}")

_pf = [0]
def code_prefetch(A, start, endl, sd, s_idx, vlane16, vdst, nper=1, stride=262144, back=False):
    lab = f"PF{_pf[0]}"; _pf[0] += 1
    A(f"s_getpc_b64 s[{sd}:{sd+1}]")
    A.label(lab)
    if back:
        A(f"s_sub_u32 s{sd}, s{sd}, {lab}-{start}")
        A(f"s_subb_u32 s{sd+1}, s{sd+1}, 0")
    else:
        A(f"s_add_u32 s{sd}, s{sd}, {start}-{lab}")
        A(f"s_addc_u32 s{sd+1}, s{sd+1}, 0")
    A(f"s_and_b32 s{sd+1}, s{sd+1}, 0xffff")
    A(f"s_mov_b32 s{sd+2}, {endl}-{start}")
    A(f"s_mov_b32 s{sd+3}, 0x00020000")
    A(f"s_lshl_b32 s{s_idx}, s{s_idx}, 10")
    for i in range(nper):
        A(f"buffer_load_dwordx4 v[{vdst}:{vdst+3}], v{vlane16}, s[{sd}:{sd+3}], s{s_idx} offen", tag="pf")
        if i + 1 < nper: A(f"s_add_u32 s{s_idx}, s{s_idx}, {stride}")

def k0_units(A, nunits, rowstride, fA, fB, fC, D1, D2, unit_src, unit_dst, colsum, ext_dst=None, row_mode=None, maskq=False):
    A("""
    v_and_b32 v1, 63, v0
    v_lshrrev_b32 v2, 5, v1          ; g>>1
    v_lshlrev_b32 v2, 3, v2          ; 8*(g>>1)
    v_bfe_u32 v3, v1, 2, 2           ; t>>2
    v_add_u32 v2, v2, v3             ; kk (r=0)
    """)
    if row_mode == "woext":
        A("""
        v_lshrrev_b32 v3, 1, v2
        v_mul_u32_u24 v3, 18, v3
        v_and_b32 v2, 1, v2
        v_add_u32 v2, v2, v3
        """)
        r1add = 36 * rowstride
    else:
        r1add = 4 * rowstride
    A(f"s_mov_b32 s22, {rowstride}")
    A("v_mul_lo_u32 v2, v2, s22")
    A(f"""
    v_bfe_u32 v3, v1, 4, 1
    v_mul_u32_u24 v3, {2*fA}, v3
    v_add_u32 v2, v2, v3
    v_and_b32 v3, 1, v1
    v_mul_u32_u24 v3, {2*fB}, v3
    v_add_u32 v2, v2, v3
    v_bfe_u32 v3, v1, 1, 1
    v_mul_u32_u24 v3, {2*fC}, v3
    v_add_u32 v2, v2, v3
    v_add_u32 v3, {r1add}, v2
    """)
    A(f"""
    v_bfe_u32 v4, v1, 4, 1
    s_mov_b32 s22, {D1}
    v_mul_lo_u32 v4, v4, s22
    v_and_b32 v5, 15, v1
    v_lshlrev_b32 v5, 4, v5
    v_add_u32 v4, v4, v5
    v_lshrrev_b32 v5, 5, v1
    v_mul_u32_u24 v5, {D2}, v5
    v_add_u32 v4, v4, v5
    """)
    if maskq:
        A("""
        v_bfe_u32 v5, v1, 3, 2
        v_cmp_eq_u32 vcc, s25, v5
        v_mov_b32 v5, 0x7ffffff0
        v_cndmask_b32 v4, v5, v4, vcc
        """)
    A("""
    s_mul_i32 s22, s3, 9216
    v_lshlrev_b32 v5, 3, v1
    v_add_u32 v5, s22, v5
    v_mov_b32 v6, 0
    s_mov_b32 s23, 0x3f803f80
    """)
    for u in range(nunits):
        A(f"s_add_u32 s22, s20, {unit_src(u)}")
        A(f"buffer_load_dwordx2 v[{16+4*u}:{17+4*u}], v2, s[8:11], s22 offen", tag=f"ld{u}")
        A(f"buffer_load_dwordx2 v[{18+4*u}:{19+4*u}], v3, s[8:11], s22 offen", tag=f"ld{u}")
    for u in range(nunits):
        A.wait(f"ld{u}")
        A(f"ds_write_b64 v5, v[{16+4*u}:{17+4*u}] offset:{u*1024}", tag=f"w{u}")
        A(f"ds_write_b64 v5, v[{18+4*u}:{19+4*u}] offset:{u*1024+512}", tag=f"w{u}")
    for u in range(nunits):
        A.wait(f"w{u}")
        A(f"ds_read_b64_tr_b16 v[{56+4*u}:{57+4*u}], v5 offset:{u*1024}", tag=f"r{u}")
        A(f"ds_read_b64_tr_b16 v[{58+4*u}:{59+4*u}], v5 offset:{u*1024+512}", tag=f"r{u}")
    for u in range(nunits):
        A.wait(f"r{u}")
        A(f"s_add_u32 s22, s21, {unit_dst(u)}")
        A(f"buffer_store_dwordx4 v[{56+4*u}:{59+4*u}], v4, s[4:7], s22 offen")
        if colsum:
            for j in range(4):
                A(f"v_dot2_f32_bf16 v6, v{56+4*u+j}, s23, v6")
    if colsum:
        A("""
        s_lshl_b32 s22, s3, 8
        v_lshlrev_b32 v7, 2, v1
        v_add_u32 v7, s22, v7
        s_nop 2
        ds_write_b32 v7, v6 offset:40960
        """)
        A.waitall(vm=False)
        A("s_barrier")
        A("s_cmp_lg_u32 s3, 0")
        A("s_cbranch_scc1 K0_END")
        A("""
        v_and_b32 v7, 31, v1
        v_lshlrev_b32 v7, 2, v7
        """)
        for j in range(8):
            A(f"ds_read_b32 v{8+j}, v7 offset:{40960 + j*128}")
        A.waitall(vm=False)
        A("""
        v_add_f32 v8, v8, v9
        v_add_f32 v10, v10, v11
        v_add_f32 v12, v12, v13
        v_add_f32 v14, v14, v15
        v_add_f32 v8, v8, v10
        v_add_f32 v12, v12, v14
        v_add_f32 v8, v8, v12
        v_sub_f32 v8, 0, v8               ; c = -colsum
        v_cvt_pk_bf16_f32 v9, v8, v8
        v_lshlrev_b32 v9, 16, v9          ; c1
        v_sub_f32 v8, v8, v9
        v_cvt_pk_bf16_f32 v10, v8, v8
        v_lshlrev_b32 v10, 16, v10        ; c2
        v_sub_f32 v11, v8, v10
        v_cvt_pk_bf16_f32 v12, v9, v10
        v_cvt_pk_bf16_f32 v13, v9, v11
        v_cvt_pk_bf16_f32 v14, v10, v9
        v_mov_b32 v15, 0
        v_cmp_gt_u32 vcc, 32, v1
        v_cndmask_b32 v12, 0, v12, vcc
        v_cndmask_b32 v13, 0, v13, vcc
        v_cndmask_b32 v14, 0, v14, vcc
        """)
        A(f"s_add_u32 s22, s21, {ext_dst}")
        A("buffer_store_dwordx4 v[12:15], v4, s[4:7], s22 offen")
    A("s_branch K0_END")

def k0_body(A):
    A("s_mov_b32 s19, 252")
    jobs = [("x", 64), ("qkm", 32), ("qke", 16), ("v", 18), ("wom", 18), ("woe", 2)]
    SIDE = P.get("side", 1)
    SOLO = P.get("solo", 1) and P.get("mega", 1)
    EARLY = SOLO and P.get("early", 0)
    if SOLO: jobs += [("ones", 8 if EARLY else 32), ("zero", 8), ("zeroa", 1)]
    if not SIDE: jobs += [("w1", 144), ("w3", 144), ("w2", 144)]
    base = 0
    A("s_mov_b32 s24, s2")
    for jn, cnt in jobs:
        A(f"s_cmp_lt_u32 s24, {cnt}")
        A(f"s_cbranch_scc1 K0_{jn}")
        A(f"s_sub_u32 s24, s24, {cnt}")
        base += cnt
    A("s_branch K0_END")
    njobs = base
    A.label("K0_x")
    A("s_lshr_b32 s19, s24, 2")
    A("s_lshl_b32 s19, s19, 2")
    srd(A, 8, 64, S * D * 2)
    A("""
    v_and_b32 v1, 63, v0
    v_and_b32 v2, 31, v1
    v_mul_u32_u24 v2, 1152, v2
    v_lshrrev_b32 v3, 5, v1
    v_lshlrev_b32 v3, 4, v3
    v_add_u32 v2, v2, v3
    v_lshlrev_b32 v4, 4, v1
    s_mul_i32 s20, s24, 36864          ; rb*32*1152
    s_mul_i32 s22, s3, 288
    s_add_u32 s20, s20, s22
    s_mul_i32 s21, s24, 36864          ; rb*36*1024
    s_mul_i32 s22, s3, 9216
    s_add_u32 s21, s21, s22
    """)
    A(f"s_add_u32 s21, s21, {XF}")
    for u in range(9):
        A(f"buffer_load_dwordx4 v[{16+4*u}:{19+4*u}], v2, s[8:11], s20 offen offset:{u*32}", tag=f"x{u}")
    for u in range(9):
        A.wait(f"x{u}")
        A(f"s_add_u32 s22, s21, {u*1024}")
        A(f"buffer_store_dwordx4 v[{16+4*u}:{19+4*u}], v4, s[4:7], s22 offen")
        for j in range(4):
            A(f"v_lshlrev_b32 v{56+8*u+2*j}, 16, v{16+4*u+j}")
            A(f"v_and_b32 v{57+8*u+2*j}, 0xffff0000, v{16+4*u+j}")
    for p, (lo, hi, n) in enumerate([(56, 88, 64), (88, 128, 80)]):
        sm = 6 + 2 * p
        A(f"v_add_f32 v{sm}, v{lo}, v{lo+1}")
        for i in range(lo + 2, hi): A(f"v_add_f32 v{sm}, v{sm}, v{i}")
        A(f"v_mov_b32 v10, v{sm}")
        A(f"v_permlane32_swap_b32 v{sm}, v10")
        A(f"v_add_f32 v{sm}, v{sm}, v10")
        A(f"v_mul_f32 v{sm}, {hex(f32(1.0/n))}, v{sm}")
        A(f"v_mov_b32 v{sm+1}, 0")
        for i in range(lo, hi):
            A(f"v_sub_f32 v{i}, v{i}, v{sm}")
            A(f"v_fmac_f32 v{sm+1}, v{i}, v{i}")
        A(f"v_mov_b32 v10, v{sm+1}")
        A(f"v_permlane32_swap_b32 v{sm+1}, v10")
        A(f"v_add_f32 v{sm+1}, v{sm+1}, v10")
    A(f"""
    v_and_b32 v2, 15, v1
    v_lshlrev_b32 v2, 3, v2
    v_bfe_u32 v3, v1, 4, 1
    v_lshlrev_b32 v3, 10, v3
    v_add_u32 v2, v2, v3
    s_lshl_b32 s22, s24, 11
    s_lshl_b32 s23, s3, 8
    s_add_u32 s22, s22, s23
    s_add_u32 s22, s22, {ST}
    buffer_store_dwordx2 v[6:7], v2, s[4:7], s22 offen
    buffer_store_dwordx2 v[8:9], v2, s[4:7], s22 offen offset:128
    s_branch K0_END
    """)
    T1src = lambda rs: (lambda u: u * 16 * rs)
    T1dst = lambda u: u * 1024
    A.label("K0_qkm")
    A("s_lshr_b32 s19, s24, 2")
    A("s_lshl_b32 s19, s19, 2")
    A("s_add_u32 s19, s19, 64")
    srd(A, 8, 66, D * 3 * D * 2)
    def ones_code(zero):
        A(f"""
        v_lshrrev_b32 v1, 5, v0
        v_mul_u32_u24 v1, {KVG}, v1
        v_and_b32 v2, 31, v0
        v_mul_u32_u24 v2, 304, v2
        v_add_u32 v1, v1, v2
        s_mul_i32 s22, s24, {KVH}
        s_add_u32 s22, s22, {KV + 9216 + 288}
        v_mov_b32 v8, 0x3f803f80
        v_mov_b32 v9, 0x3f803f80
        v_mov_b32 v10, 0x3f803f80
        v_mov_b32 v11, 0x3f803f80
        buffer_store_dwordx4 v[8:11], v1, s[4:7], s22 offen
        s_add_u32 s22, s22, {LBS}
        buffer_store_dwordx4 v[8:11], v1, s[4:7], s22 offen
        """)
        if zero: A(f"""
        v_lshlrev_b32 v2, {2 + P.get("fsh", 5)}, v0
        v_mov_b32 v12, 0
        s_lshl_b32 s22, s24, {10 + P.get("fsh", 5)}
        s_add_u32 s22, s22, {FLG}
        buffer_store_dword v12, v2, s[4:7], s22 offen
        """)
    if not SOLO: ones_code(True)
    A(f"""
    s_lshr_b32 s22, s24, 4
    s_mul_i32 s20, s22, 1152
    s_and_b32 s23, s24, 15
    s_mul_i32 s23, s23, 72
    s_add_u32 s20, s20, s23
    s_mul_i32 s23, s3, {9*16*3456}
    s_add_u32 s20, s20, s23
    s_mul_i32 s21, s24, {T1S}
    s_mul_i32 s23, s3, 9216
    s_add_u32 s21, s21, s23
    s_add_u32 s21, s21, {WQ}
    """)
    k0_units(A, 9, 3456, 20, 8, 4, 256, 512, T1src(3456), T1dst, True, 36 * 1024)
    A.label("K0_qke")
    srd(A, 8, 66, D * 3 * D * 2)
    A(f"""
    s_mul_i32 s20, s24, {2*72}
    s_add_u32 s20, s20, 32
    s_mul_i32 s23, s3, {9*16*3456}
    s_add_u32 s20, s20, s23
    s_and_b32 s25, s24, 3
    s_lshr_b32 s21, s24, 2
    s_mul_i32 s21, s21, {T1S}
    s_mov_b32 s19, {4*(16+8)}
    s_mul_i32 s23, s3, 9216
    s_add_u32 s21, s21, s23
    s_add_u32 s21, s21, {WQ + 32*T1S}
    """)
    k0_units(A, 9, 3456, 0, 36, 0, 256, 512, T1src(3456), T1dst, True, 36 * 1024, maskq=True)
    A.label("K0_v")
    A("s_mul_i32 s19, s24, 21846")
    A("s_lshr_b32 s19, s19, 16")
    A("s_lshl_b32 s19, s19, 2")
    A(f"s_add_u32 s19, s19, {4*(16+9)}")
    srd(A, 8, 66, D * 3 * D * 2)
    A(f"""
    s_lshl_b32 s20, s24, 6
    s_add_u32 s20, s20, 2304
    s_mul_i32 s23, s3, {9*16*3456}
    s_add_u32 s20, s20, s23
    s_mul_i32 s21, s24, {T1S}
    s_mul_i32 s23, s3, 9216
    s_add_u32 s21, s21, s23
    s_add_u32 s21, s21, {WQ + 36*T1S}
    """)
    k0_units(A, 9, 3456, 16, 4, 8, 256, 512, T1src(3456), T1dst, True, 36 * 1024)
    for nm, ptr, add in (() if SIDE else (("w1", 72, 0), ("w3", 74, 256))):
        A.label(f"K0_{nm}")
        srd(A, 8, ptr, D * F * 2)
        A(f"""
        s_lshl_b32 s20, s24, 6
        s_mul_i32 s23, s3, {9*16*9216}
        s_add_u32 s20, s20, s23
        s_mul_i32 s21, s24, {2*T1S}
        s_mul_i32 s23, s3, 9216
        s_add_u32 s21, s21, s23
        s_add_u32 s21, s21, {W13 + add}
        """)
        k0_units(A, 9, 9216, 16, 8, 4, T1S, 512, T1src(9216), T1dst, True, 36 * 1024)
    if not SIDE:
        A.label("K0_w2")
        srd(A, 8, 76, D * F * 2)
        A(f"""
        s_mul_i32 s22, s24, 3641
        s_lshr_b32 s22, s22, 16             ; seg = j/18
        s_mul_i32 s23, s22, 18
        s_sub_u32 s23, s24, s23             ; strip
        s_mul_i32 s22, s22, 36
        s_mul_i32 s25, s3, 9
        s_add_u32 s22, s22, s25             ; U0
        s_mul_i32 s20, s22, {16*1152}
        s_lshl_b32 s25, s23, 6
        s_add_u32 s20, s20, s25
        s_lshl_b32 s21, s22, 9              ; U0*512
        s_mul_i32 s25, s23, {2*144*1024}
        s_add_u32 s21, s21, s25
        s_add_u32 s21, s21, {W2}
        """)
        k0_units(A, 9, 1152, 16, 4, 8, 144 * 1024, 256, lambda u: u * 16 * 1152, lambda u: u * 512, False)
    A.label("K0_wom")
    srd(A, 8, 68, D * D * 2)
    A(f"""
    s_mul_i32 s20, s3, {8*18*1152}
    s_lshl_b32 s25, s24, 6
    s_add_u32 s20, s20, s25
    s_lshl_b32 s21, s3, 12
    s_mul_i32 s25, s24, {2*18*1024}
    s_add_u32 s21, s21, s25
    s_add_u32 s21, s21, {WO}
    """)
    k0_units(A, 8, 1152, 16, 4, 8, 18 * 1024, 256, lambda u: u * 18 * 1152, lambda u: u * 512, False)
    A.label("K0_woe")
    srd(A, 8, 68, D * D * 2)
    A(f"""
    s_mul_i32 s20, s3, {144*1152}
    s_add_u32 s20, s20, {16*1152}
    s_mul_i32 s25, s24, {9*64}
    s_add_u32 s20, s20, s25
    s_lshl_b32 s21, s3, 9
    s_add_u32 s21, s21, {WO + 32*512}
    s_mul_i32 s25, s24, {9*2*18*1024}
    s_add_u32 s21, s21, s25
    """)
    k0_units(A, 9, 1152, 16, 4, 8, 18 * 1024, 256, lambda u: u * 64, lambda u: u * 2 * 18 * 1024, False, row_mode="woext")
    if SOLO:
        A.label("K0_ones")
        if EARLY:
            A("s_lshl_b32 s24, s24, 2")
            for k in range(4):
                ones_code(False)
                A("s_add_u32 s24, s24, 1")
        else: ones_code(False)
        A("s_branch K0_END")
        A.label("K0_zero")
        A(f"""
        v_lshlrev_b32 v2, {2 + P.get("fsh", 5)}, v0
        v_mov_b32 v12, 0
        s_lshl_b32 s22, s24, {12 + P.get("fsh", 5)}
        s_add_u32 s22, s22, {FLG}
        """)
        for k in range(4):
            if k == 3:
                A("s_cmp_eq_u32 s24, 1")
                A("s_cselect_b32 s22, 0x7fff0000, s22")
            A("buffer_store_dword v12, v2, s[4:7], s22 offen")
            A(f"s_add_u32 s22, s22, {1 << (10 + P.get('fsh', 5))}")
        A("s_branch K0_END")
        A.label("K0_zeroa")
        A(f"""
        v_lshlrev_b32 v2, {2 + P.get("fsh", 5)}, v0
        v_mov_b32 v12, 0
        s_mov_b32 s22, {FLG + (7168 << P.get("fsh", 5))}
        buffer_store_dword v12, v2, s[4:7], s22 offen
        s_waitcnt vmcnt(0)
        s_lshl_b32 s22, s3, 2
        v_mov_b32 v12, 1
        v_mov_b32 v2, 0
        s_mov_b64 exec, 1
        buffer_store_dword v12, v2, s[16:19], s22 offen
        s_mov_b64 exec, -1
        """)
    A.label("K0_END")
    return njobs

def emit(path):
    hdr = open(f"cdna_kernels/{NAME}.s.ref").read().split("; Override launch")[0]
    out = hdr
    for n, g, b, lds in launches:
        out += f"; @launch kernel={n} grid=({g},1,1) block=({b},1,1) lds={lds}\n"
    out += '.amdgcn_target "amdgcn-amd-amdhsa--gfx950"\n.text\n'
    for n, text, nv, acc, ns in kernels:
        out += "\n".join((" " + l.split(";")[0].strip()) if l.startswith(" ") else l for l in text.split("\n"))
    out += '.section .rodata,"a"\n'
    for n, text, nv, acc, ns in kernels:
        if n is None: continue
        out += f""".p2align 6
.amdhsa_kernel {n}
  .amdhsa_next_free_vgpr {nv}
  .amdhsa_next_free_sgpr {ns}
  .amdhsa_accum_offset {acc}
  .amdhsa_group_segment_fixed_size 0
  .amdhsa_kernarg_size 80
  .amdhsa_user_sgpr_count 2
  .amdhsa_user_sgpr_kernarg_segment_ptr 1
  .amdhsa_system_sgpr_workgroup_id_x 1
.end_amdhsa_kernel
"""
    open(path, "w").write(out)

if __name__ == "__main__":
    import gen as G2
    G2.main()
def main():
    import k2, chain
    if P.get("mega", 1):
        import mega
        if P.get("solo", 1):
            launches.append(mega.gen_mega())
        else:
            L0 = chain.gen_k0(); LM = mega.gen_mega()
            launches.extend([L0, LM])
        kernels.append((None, "CODE_END:\n    s_endpgm\n", 0, 0, 0))
    else:
        L0 = chain.gen_k0(); L1 = chain.gen_k1s()
        L2a = k2.gen_k2("k2a_kernel", True)
        CA, CB = chain.gen_chain()
        L2 = k2.gen_k2("k2_kernel", False)
        kernels.append((None, "CODE_END:\n    s_endpgm\n", 0, 0, 0))
        launches.extend([L0, L1, L2a, CA, L2, CB])
    emit(sys.argv[1] if len(sys.argv) > 1 else f"cdna_kernels/{NAME}.s")
```

```python
from asmlib import *
import gen as G
from t1 import *
import k4 as K4M
P = G.P
QSCALE = (18 ** -0.5) * LOG2E
SK = P.get("sk", 1)
MEGA = P.get("mega", 1)
K45 = P.get("k45", 1)
XFIRST = MEGA and P.get("solo", 1) and P.get("xfirst", 0)
X2I = 0 if (MEGA and P.get("xreuse", 0)) else 2
LO = (lambda r_: f"s_add_u32 s{r_}, s{r_}, s100") if MEGA else (lambda r_: "")
LO2 = (lambda r_: "") if G.REUSE else LO
FSH = P.get("fsh", 5)
RED = 102400 if (MEGA and P.get('red2', 0)) else 2 * G.T1S
LDS_BYTES = 163840


def signal(A, nflag_sgpr, store_tag):
    A.wait(store_tag)
    A.stamp("sg" + store_tag + str(nflag_sgpr))
    A("s_barrier")
    lab = f"SIG{signal.n}"; signal.n += 1
    A("s_cmp_lg_u32 s3, 0")
    A(f"s_cbranch_scc1 {lab}")
    A.raw("    s_mov_b64 exec, 1")
    A.raw("    v_mov_b32 v30, 0")
    A.raw("    v_mov_b32 v31, 1")
    A.raw(f"    s_lshl_b32 s38, s{nflag_sgpr}, {FSH}")
    A.raw(f"    s_add_u32 s38, s38, {G.FLG}")
    A.raw(f"    buffer_store_dword v31, v30, s[4:7], s38 offen sc1")
    A.raw("    s_mov_b64 exec, -1")
    A.label(lab)
signal.n = 0

def poll(A, base_sgpr, n, allwaves=False):
    lab = f"POLL{poll.n}"; poll.n += 1
    if not allwaves:
        A("s_cmp_lg_u32 s3, 0")
        A(f"s_cbranch_scc1 {lab}_D")
    R = A.raw
    R(f"    v_and_b32 v30, {n-1}, v0")
    R(f"    v_lshlrev_b32 v30, {2+FSH}, v30")
    R(f"    s_lshl_b32 s38, s{base_sgpr}, {FSH}")
    R(f"    s_add_u32 s38, s38, {G.FLG}")
    R("    s_mov_b32 s39, 0x20000")
    if n < 64: R(f"    s_mov_b64 exec, {hex((1 << n) - 1)}" if n < 32 else "    s_mov_b32 exec_hi, 0")
    R(f"{lab}:")
    R(f"    buffer_load_dword v31, v30, s[4:7], s38 offen sc1")
    R("    s_waitcnt vmcnt(0)")
    R("    v_cmp_ne_u32 vcc, 1, v31")
    R("    s_nop 1")
    R("    s_and_b64 exec, exec, vcc")
    R(f"    s_cbranch_scc0 {lab}_X")
    R(f"    s_sleep {P.get('sleep', 1)}")
    R("    s_sub_u32 s39, s39, 1")
    R("    s_cmp_lg_u32 s39, 0")
    R(f"    s_cbranch_scc1 {lab}")
    R(f"{lab}_X:")
    R("    s_mov_b64 exec, -1")
    A.label(f"{lab}_D")
    if not allwaves: A("s_barrier")
poll.n = 0

def t2_decode(A):
    if P.get("k3map", 0):
        A("""
        s_and_b32 s80, s2, 7
        s_lshl_b32 s80, s80, 2
        s_bfe_u32 s27, s2, 0x20003
        s_add_u32 s80, s80, s27
        s_lshr_b32 s81, s2, 5
        """)
    else:
        A("""
        s_and_b32 s24, s2, 7
        s_lshr_b32 s25, s2, 3
        s_lshr_b32 s80, s24, 1
        s_lshl_b32 s80, s80, 3
        s_and_b32 s27, s25, 7
        s_add_u32 s80, s80, s27
        s_and_b32 s81, s24, 1
        s_lshl_b32 s81, s81, 2
        s_lshr_b32 s28, s25, 3
        s_add_u32 s81, s81, s28
        """)
    A("""
    s_lshr_b32 s82, s81, 1
    s_mul_i32 s82, s82, 9
    s_and_b32 s83, s81, 1
    s_lshl_b32 s34, s83, 2
    s_add_u32 s82, s82, s34            ; nt0
    """)

def t2_setup(A, KS, ACT, WP, xin, xout):
    A(f"""
    v_and_b32 v1, 63, v0
    v_lshlrev_b32 v1, 4, v1
    s_mov_b32 s34, s3
    """)
    for i in range(4):
        A(f"s_mul_i32 s35, s34, {KS*1024}")
        A(f"v_add_u32 v{2+i}, s35, v1")
        if i > 0:
            A(f"s_mul_i32 s35, s34, 15360")
            A(f"s_add_u32 s35, s35, {RED + (i-1)*5120}")
            A(f"v_add_u32 v{11+i}, s35, v1")
        A("s_add_u32 s34, s34, 1")
        A("s_and_b32 s34, s34, 3")
    A(f"""
    v_mov_b32 v6, v1
    v_add_u32 v7, {KS*1024}, v1
    v_add_u32 v8, {2*KS*1024}, v1
    v_add_u32 v9, {3*KS*1024}, v1
    v_add_u32 v10, {4*KS*1024}, v1
    s_lshl_b32 s34, s3, 10
    s_mul_i32 s20, s80, {4*KS*1024}
    s_add_u32 s20, s20, {ACT}
    {LO2(20)}
    s_add_u32 s20, s20, s34
    s_mul_i32 s21, s82, {KS*1024}
    s_add_u32 s21, s21, {WP}
    s_add_u32 s21, s21, s34
    v_and_b32 v11, 15, v0
    v_lshlrev_b32 v11, 4, v11
    v_bfe_u32 v28, v0, 5, 1
    v_lshlrev_b32 v28, 9, v28
    v_add_u32 v11, v11, v28
    v_bfe_u32 v28, v0, 4, 1
    v_lshlrev_b32 v28, 3, v28
    v_add_u32 v11, v11, v28
    s_lshl_b32 s28, s80, 1
    s_lshr_b32 s29, s3, 1
    s_add_u32 s28, s28, s29            ; rb32
    s_mul_i32 s28, s28, 36
    s_add_u32 s28, s28, s82
    s_lshl_b32 s28, s28, 10
    s_and_b32 s29, s3, 1
    s_lshl_b32 s29, s29, 8
    s_add_u32 s28, s28, s29
    s_add_u32 s28, s28, s42
    s_add_u32 s22, s28, {xout*G.XSZ}
    s_add_u32 s23, s22, 4096
    s_add_u32 s28, s28, {xin*G.XSZ}
    s_add_u32 s29, s28, 4096
    s_mul_i32 s34, s3, 15360
    s_add_u32 s34, s34, {RED}
    v_add_u32 v27, s34, v1             ; lds read addr
    v_and_b32 v15, 15, v0
    v_mul_u32_u24 v29, 1152, v15
    v_lshlrev_b32 v15, 3, v15
    s_lshl_b32 s34, s80, 2
    s_add_u32 s34, s34, s3             ; rb16
    s_lshl_b32 s30, s34, 10
    s_lshl_b32 s35, s81, 7
    s_add_u32 s30, s30, s35
    s_add_u32 s30, s30, s43
    s_add_u32 s36, s30, {xout*G.SSZ}
    v_bfe_u32 v28, v0, 4, 2
    v_lshlrev_b32 v28, 3, v28
    v_add_u32 v29, v29, v28
    s_mul_i32 s31, s34, 18432
    s_lshl_b32 s35, s82, 5
    s_add_u32 s31, s31, s35
    """)

DEPTH = 6
def t2_buf(st, i):
    if MEGA: return 256 + 16 * st + 4 * i if i < 4 else 256 + 156 + 20 * st + 4 * (i - 4)
    return 256 + (st % DEPTH) * 36 + 4 * i
def t2_wload(A, NT, st):
    off = st * 4096
    A(f"s_add_u32 s37, s21, {off}")
    for t in range(NT):
        A(f"buffer_load_dwordx4 {r(t2_buf(st, 4+t), 4)}, v{6+t}, s[4:7], s37 offen", tag=f"l{st}")
def t2_aload(A, st, sc):
    if MEGA and st == 4:
        A(f"""
        v_bfe_u32 v30, v0, 4, 2
        v_lshlrev_b32 v30, 15, v30
        v_and_b32 v31, 15, v0
        v_lshlrev_b32 v31, 2, v31
        v_add_u32 v30, v30, v31
        s_and_b32 s37, s3, 1
        s_lshl_b32 s37, s37, 17
        s_lshl_b32 s34, s80, 8
        s_add_u32 s37, s37, s34
        s_add_u32 s37, s37, {G.OE}
        """)
        for i in range(4):
            A(f"s_add_u32 s34, s3, {i}")
            A("s_and_b32 s34, s34, 3")
            A("s_lshl_b32 s34, s34, 6")
            A("s_add_u32 s34, s34, s37")
            for j in range(4):
                A(f"buffer_load_dword {r(t2_buf(st, i) + j)}, v30, s[4:7], s34 offen{sc}", tag=f"l{st}")
                if j < 3: A("s_add_u32 s34, s34, 8192")
        return
    A(f"s_add_u32 s37, s20, {st*4096}")
    for i in range(4):
        A(f"buffer_load_dwordx4 {r(t2_buf(st, i), 4)}, v{2+i}, s[4:7], s37 offen{sc}", tag=f"l{st}")

def t2_main(A, NT, KS, pfx, wpre, sc, extra_vm, mid_hook, st0):
    nsteps = (KS + 3) // 4
    partial_last = (KS % 4) != 0
    ACC, RES = 32, 16
    def stage_loads(st):
        B = Asm()
        if st >= wpre: t2_wload(B, NT, st)
        t2_aload(B, st, sc)
        return B.ins
    PRE = min(P.get("t2_pre", 5 if MEGA else 2), nsteps)
    for st in range(PRE): A.ins += stage_loads(st)
    for t in range(NT):
        so, im = (28, t * 1024) if t < 4 else (29, 0)
        A(f"buffer_load_dwordx2 v[{RES+2*t}:{RES+2*t+1}], v11, s[4:7], s{so} offen offset:{im}{sc}", tag="res")
    if mid_hook == "bar": A("s_barrier")
    M = Asm(); marks = {}
    for st in range(nsteps):
        marks[st] = len(M.ins)
        M.wait(f"l{st}")
        if st == 0: M.stamp("t0")
        if st == 0 and st0 is not None: M.stamp(st0)
        if partial_last and st == nsteps - 1:
            M(f"s_cmp_ge_u32 s3, {KS % 4}")
            M(f"s_cbranch_scc1 {pfx}_SKIP")
        for mt in range(4):
            for t in range(NT):
                acc = ACC + 4 * (mt * NT + t)
                c = "0" if st == 0 else f"v[{acc}:{acc+3}]"
                M(f"v_mfma_f32_16x16x32_bf16 v[{acc}:{acc+3}], {r(t2_buf(st, 4+t), 4)}, {r(t2_buf(st, mt), 4)}, {c}")
    S_ = Sched(M.ins)
    first = []
    for st in range(PRE, min(DEPTH - 1, nsteps)): first += groups_vm(stage_loads(st))
    S_.release(0, "vm", first, every=1)
    for st in range(nsteps):
        n = st + DEPTH - 1
        if n < nsteps and n >= min(DEPTH - 1, nsteps):
            S_.release(marks[st], "vm", groups_vm(stage_loads(n)))
    out, rest = S_.run(gap=8, vm_every=1)
    check_tags(out + rest)
    assert not rest
    T = Asm()
    lastld = max([i for i, x in enumerate(out) if x.text.startswith("buffer_load")], default=-1)
    A.ins += out[:lastld + 1]
    T.ins += out[lastld + 1:]
    if partial_last: T.label(f"{pfx}_SKIP")
    T("s_nop 7")
    T.stamp("t1")
    for mt in range(1, 4):
        for t in range(NT):
            acc = ACC + 4 * (mt * NT + t)
            T(f"ds_write_b128 v{11+mt}, v[{acc}:{acc+3}] offset:{t*1024}")
    T.wait("res")
    X = ACC + 16 * NT
    for t in range(NT):
        for j in range(2):
            T(f"v_lshlrev_b32 v{X+4*t+2*j}, 16, v{RES+2*t+j}")
            T(f"v_and_b32 v{X+4*t+2*j+1}, 0xffff0000, v{RES+2*t+j}")
    for i in range(4 * NT): T(f"v_add_f32 v{X+i}, v{X+i}, v{ACC+i}")
    T.waitall(vm=False)
    T("s_barrier")
    tl, left = pace(T.ins, extra_vm or [], P.get("t2_pace", 70), first=P.get("t2_first", 100))
    A.ins += tl
    if left: print(pfx, "tail leftover", len(left))
    for g in left: A.ins += g
    left = []
    A.stamp("t2")
    for k in range(3):
        for t in range(NT):
            d = ACC + 4 * ((k + 1) * NT + t)
            A(f"ds_read_b128 v[{d}:{d+3}], v27 offset:{k*5120+t*1024}", tag=f"rd{k}")
    for k in range(3):
        A.wait(f"rd{k}")
        for i in range(4 * NT):
            A(f"v_add_f32 v{X+i}, v{X+i}, v{ACC+4*(k+1)*NT+i}")
    for i in range(2 * NT):
        A(f"v_cvt_pk_bf16_f32 v{RES+i}, v{X+2*i}, v{X+2*i+1}")
    return X, RES, left

def widen(A, RES):
    for p in range(2):
        for k in range(2):
            A(f"v_permlane16_swap_b32 v{RES+4*p+k}, v{RES+4*p+2+k}")

def final_store(A, NT, RES):
    A("""
    v_bfe_u32 v28, v0, 4, 1
    v_lshlrev_b32 v28, 5, v28
    v_bfe_u32 v30, v0, 5, 1
    v_lshlrev_b32 v30, 4, v30
    v_and_b32 v31, 15, v0
    v_mul_u32_u24 v31, 1152, v31
    v_add3_u32 v28, v28, v30, v31
    """)
    widen(A, RES)
    for p in range(2):
        A(f"buffer_store_dwordx4 v[{RES+4*p}:{RES+4*p+3}], v28, s[8:11], s31 offen offset:{p*64}")
    if NT == 5: A(f"buffer_store_dwordx2 v[{RES+8}:{RES+9}], v29, s[8:11], s31 offen offset:128")

def t2_store(A, NT, X, RES):
    A("""
    v_bfe_u32 v28, v0, 4, 1
    v_lshlrev_b32 v28, 10, v28
    v_bfe_u32 v30, v0, 5, 1
    v_lshlrev_b32 v30, 9, v30
    v_and_b32 v31, 15, v0
    v_lshlrev_b32 v31, 4, v31
    v_add3_u32 v30, v28, v30, v31
    """)
    widen(A, RES)
    for p in range(2):
        A(f"buffer_store_dwordx4 v[{RES+4*p}:{RES+4*p+3}], v30, s[4:7], s22 offen offset:{p*2048} sc1", tag="out")
    if NT == 5: A(f"buffer_store_dwordx2 v[{RES+8}:{RES+9}], v11, s[4:7], s23 offen sc1", tag="out")
    for i in range(2 * NT):
        A(f"v_lshlrev_b32 v{X+2*i}, 16, v{RES+i}")
        A(f"v_and_b32 v{X+2*i+1}, 0xffff0000, v{RES+i}")
    def xreduce(dst):
        A(f"v_mov_b32 v28, v{dst}")
        A(f"v_permlane16_swap_b32 v{dst}, v28")
        A(f"v_add_f32 v{dst}, v{dst}, v28")
        A(f"v_mov_b32 v28, v{dst}")
        A(f"v_permlane32_swap_b32 v{dst}, v28")
        A(f"v_add_f32 v{dst}, v{dst}, v28")
    A(f"v_add_f32 v26, v{X}, v{X+1}")
    A(f"v_add_f32 v27, v{X+2}, v{X+3}")
    for i in range(4, 4 * NT): A(f"v_add_f32 v{26+(i&1)}, v{26+(i&1)}, v{X+i}")
    A("v_add_f32 v26, v26, v27")
    xreduce(26)
    A(f"v_mul_f32 v26, {hex(G.f32(1.0/(16*NT)))}, v26")
    A("v_mov_b32 v27, 0")
    for i in range(4 * NT):
        A(f"v_sub_f32 v{X+i}, v{X+i}, v26")
        A(f"v_fmac_f32 v27, v{X+i}, v{X+i}")
    xreduce(27)
    A("buffer_store_dwordx2 v[26:27], v15, s[4:7], s36 offen sc1", tag="out")

def tile_dmas(tiles, slot_of, s_srcw, s_src, s_ldsw, tag):
    B = Asm()
    for t in tiles:
        for c in range(10):
            if c < 9: dma(B, s_srcw, t * G.T1S + c * 4096, s_ldsw, slot_of(t) * G.T1S + c * 4096, 1, tag(t), stmp=38)
            else: dma(B, s_src, t * G.T1S + 36 * 1024, None, slot_of(t) * G.T1S + 36 * 1024, 1, tag(t), stmp=38)
    return groups_vm(B.ins)

def k4_decode(A):
    if P.get("k4map", 1) == 2:
        A("""
        s_and_b32 s84, s2, 1
        s_lshl_b32 s84, s84, 4
        s_bfe_u32 s25, s2, 0x40003
        s_add_u32 s84, s84, s25
        s_bfe_u32 s85, s2, 0x20001
        s_lshl_b32 s85, s85, 1
        s_lshr_b32 s25, s2, 7
        s_add_u32 s85, s85, s25
        """)
    elif P.get("k4map", 1):
        A("""
        s_and_b32 s84, s2, 3
        s_lshl_b32 s84, s84, 3
        s_bfe_u32 s25, s2, 0x30003
        s_add_u32 s84, s84, s25
        s_bfe_u32 s85, s2, 0x10002
        s_lshl_b32 s85, s85, 2
        s_lshr_b32 s25, s2, 6
        s_add_u32 s85, s85, s25
        """)
    else:
        A("""
        s_and_b32 s84, s2, 7
        s_lshl_b32 s84, s84, 2
        s_bfe_u32 s25, s2, 0x20003
        s_add_u32 s84, s84, s25
        s_lshr_b32 s85, s2, 5
        """)
    A(f"""
    s_lshl_b32 s78, s3, 10
    s_mul_i32 s76, s84, {9*G.T1S}
    s_add_u32 s76, s76, {G.W13}
    s_add_u32 s77, s76, s78
    """)

def k4_phase(A, tail_vm):
    def xreg(j, ks):
        if ks == 36: return 16 + 4 * j
        idx = j * 36 + ks
        if idx < 64: return 256 + 4 * idx
        return 24 + 4 * (idx - 64)
    sl = {0: 0, 1: 1, 2: 2, 3: 3, 4: 0, 5: 1, 6: 2, 7: 3, 8: 0}
    accreg = lambda t, j: 88 + 32 * sl[t] + 16 * j
    t1 = T1(2, xreg, accreg, 56, 8, lambda t: sl[t], 2)
    A(f"""
    v_mov_b32 v2, v1
    v_add_u32 v3, 0x10000, v1
    v_add_u32 v4, 0x20000, v1
    s_lshl_b32 s26, s85, 3
    s_lshl_b32 s27, s3, 1
    s_add_u32 s26, s26, s27
    s_mul_i32 s23, s26, 36864
    s_add_u32 s23, s23, s42
    s_add_u32 s23, s23, {G.XSZ}
    s_lshl_b32 s29, s26, 11
    s_add_u32 s29, s29, s43
    s_add_u32 s29, s29, {G.SSZ}
    v_bfe_u32 v5, v0, 4, 1
    v_mul_u32_u24 v5, {144*1024}, v5
    v_and_b32 v10, 15, v0
    v_lshlrev_b32 v10, 4, v10
    v_add_u32 v5, v5, v10
    v_bfe_u32 v10, v0, 5, 1
    v_lshlrev_b32 v10, 8, v10
    v_add_u32 v5, v5, v10
    s_mul_i32 s31, s26, {2*144*1024}
    s_mul_i32 s32, s84, {9*512}
    s_add_u32 s31, s31, s32
    s_add_u32 s31, s31, {G.HF}
    {LO2(31)}
    s_lshl_b32 s24, s26, 4
    s_add_u32 s24, s24, s41
    s_mul_i32 s79, s82, {144*1024}
    s_add_u32 s79, s79, {G.W2}
    s_add_u32 s79, s79, s78
    """)
    if SK: k5_decode(A)
    if not SK: A.stamp(2)
    poll(A, 24, 8, True)
    A.wait("w0", "w1", "w2", "t3")
    if not SK: A.stamp(3)
    LATE = tail_vm or []
    def xl(B, ks):
        for j in range(2):
            B(f"s_add_u32 s30, s23, {j*36864 + (ks//4)*4096}")
            B(f"buffer_load_dwordx4 {r(xreg(j, ks), 4)}, v1, s[4:7], s30 offen offset:{(ks%4)*1024} sc1", tag=f"x{ks}")
    AHEAD = P.get("k4_ahead", 6)
    for ks in range(2): xl(A, ks)
    stats_load(A, 2, 29, 216, 10, " sc1")
    for ks in range(2, AHEAD): xl(A, ks)
    A("s_barrier")
    SC = Asm()
    SC.wait("st")
    SC("v_cmp_gt_u32 vcc, 512, v1")
    for j in range(2):
        stats_compute(SC, 216 + 16 * j, 12, 8 + j, 10)
        build_xext(SC, 12, 16 + 4 * j, 13)
        SC(f"v_rsq_f32 v{6+j}, v{8+j}")
        SC(f"v_mul_f32 v{6+j}, {hex(G.f32(-LOG2E))}, v{6+j}")
    def epilogue(t):
        E = Asm()
        for j in range(2):
            acc = accreg(t, j)
            tm = 216 + 20 * j
            for i in range(8): E(f"v_mul_f32 v{tm+i}, v{acc+i}, v{6+j}")
            for i in range(8): E(f"v_exp_f32 v{tm+i}, v{tm+i}")
            for i in range(8): E(f"v_mul_f32 v{tm+8+i}, v{acc+i}, v{acc+8+i}")
            for i in range(8): E(f"v_fma_f32 v{tm+i}, v{tm+i}, v{8+j}, v{8+j}")
            for i in range(8): E(f"v_rcp_f32 v{tm+i}, v{tm+i}")
            for i in range(8): E(f"v_mul_f32 v{tm+8+i}, v{tm+8+i}, v{tm+i}")
            for i in range(4): E(f"v_cvt_pk_bf16_f32 v{tm+16+i}, v{tm+8+2*i}, v{tm+9+2*i}")
            E(f"s_add_u32 s33, s31, {j*2*144*1024 + t*512}")
            E(f"buffer_store_dwordx4 v[{tm+16}:{tm+19}], v5, s[4:7], s33 offen sc1", tag="hout" if t > (5 if K45 else 6) else "hE")
        return E.ins
    items = [(t, ks) for ks in range(37) for t in range(3)] + [(t, ks) for t in range(3, 9) for ks in range(37)]
    DIST = 6
    M = Asm(); marks = {}
    def pre_read(i):
        t, ks = items[i]
        if LATE and (t, ks) in ((2, 24), (3, 0)):
            M.wait("lw2" if t == 2 else "lt3"); M("s_barrier")
        if t >= 4 and ks == 0:
            M.wait(f"t{t}")
            if K45 and t == 8: M.wait("hE")
            M("s_barrier")
            if K45 and t == 8:
                flag_store(M, 13, 14)
                M("v_and_b32 v14, 7, v0")
                M(f"v_lshlrev_b32 v14, {2+FSH}, v14")
            if t in (5, 6): marks[("dma", t + 2)] = len(M.ins)
        t1.read(M, i, t, ks)
    for i in range(DIST): pre_read(i)
    for i, (t, ks) in enumerate(items):
        if t == 0: marks[("ks", ks)] = len(M.ins)
        if t == 8: marks[("ks8", ks)] = len(M.ins)
        if i + DIST < len(items): pre_read(i + DIST)
        if ks == 0 and t >= 3:
            if t in (3, 6): M.stamp(5 if t == 3 else 6)
            marks[("tile", t)] = len(M.ins)
        M.wait(f"wf{i}", f"x{ks}")
        if i == 0: M.stamp(4)
        t1.mfmas(M, i, t, ks)
        if t == 3 and ks == 2:
            M("s_barrier")
            marks[("dma", 4)] = len(M.ins)
        if t in (7, 8) and ks in (0, 18): M.stamp(f"t{t}k{ks}")
        if t == 8 and ks == 36: M.stamp("t8e")
        if K45 and t == 8:
            if ks == 4:
                M("s_barrier")
                marks[("q2",)] = len(M.ins)
            if ks == P.get("k45_fl", 20):
                M("buffer_load_dword v15, v14, s[4:7], s15 offen sc1", tag="fe")
            if ks == P.get("k45_ck", 26):
                flagchk(M, "K5E", "fe", 15, 14, 15)
                marks[("hgo",)] = len(M.ins)
        elif SK and t == 8 and ks == 8:
            M.wait("hE")
            M("s_barrier")
            flag_store(M, 13, 14)
            M("v_and_b32 v14, 7, v0")
            M(f"v_lshlrev_b32 v14, {2+FSH}, v14")
            marks[("q2",)] = len(M.ins)
        elif SK and t == 8 and ks == 36:
            M("buffer_load_dword v15, v14, s[4:7], s15 offen sc1", tag="fe")
    dm = lambda ts: tile_dmas(ts, lambda t: sl[t], 77, 76, 78, lambda t: f"t{t}")
    S_ = Sched(M.ins)
    B = Asm()
    for ks in range(AHEAD, 36): xl(B, ks)
    xg = groups_vm(B.ins)
    if LATE:
        n2 = sum(1 for g in LATE if g[-1].tag == "lw2")
        mix = []
        for k, g in enumerate(xg):
            mix.append(g)
            if k % 4 == 3 and k // 4 < n2: mix.append(LATE[k // 4])
        xg = mix + LATE[n2:]
    S_.release(0, "vm", xg, every=P.get("k4_e0", 2.5))
    S_.release(marks[("ks", 4)], "va", groups_1(SC.ins))
    S_.release(marks[("tile", 3)], "va", groups_1(epilogue(0) + epilogue(1) + epilogue(2)), skip=3)
    S_.release(marks[("dma", 4)], "vm", dm([4, 5, 6]), every=3)
    S_.release(marks[("dma", 7)], "vm", dm([7]))
    S_.release(marks[("dma", 8)], "vm", dm([8]))
    for t in range(4, 9):
        S_.release(marks[("tile", t)], "va", groups_1(epilogue(t - 1)), skip=3)
    def w2pre(st):
        B = Asm()
        for t in range(5):
            B(f"s_add_u32 s37, s79, {t*144*1024 + st*4096}")
            B(f"buffer_load_dwordx4 {r(t2_buf(st, 4+t), 4)}, v1, s[4:7], s37 offen", tag=f"l{st}")
        return groups_vm(B.ins)
    if SK:
        S_.release(marks[("ks8", 0)], "vm", k5_unit(0) + k5_unit(1), every=2)
        S_.release(marks[("q2",)], "vm", k5_unit(2) + k5_unit(3))
        if K45:
            B = Asm()
            for st in range(P.get("k5_ahead", 6)): k5_hl(B, st)
            S_.release(marks[("hgo",)], "vm", groups_vm(B.ins), front=True)
        out, rest = S_.run(cap=24, vm_cost=16)
        e8 = epilogue(8)
        if K45:
            B = Asm(); B.wait("d0", "d1"); B("s_barrier")
            e8 = B.ins + pace(e8, k5_unit(4), 60)[0]
    else:
        S_.release(marks[("ks8", 9)], "vm", w2pre(0) + w2pre(4), every=2)
        S_.release(marks[("ks8", 18)], "vm", w2pre(1))
        S_.release(marks[("ks8", 27)], "vm", w2pre(2))
        out, rest = S_.run(cap=24, vm_cost=16)
        e8, left = pace(epilogue(8), w2pre(3), 40)
        assert not left
    lst = out + rest + e8
    K4M.check_order(lst, accreg)
    check_tags(lst)
    A.ins += lst
    A.stamp(7)

TS = 144 * 1024
ORD = [0, 1, 2, 5, 6, 7, 3, 4, 8] if not P.get('k45', 1) else [0, 1, 2, 5, 6, 3, 7, 4, 8]
K5P = [37888, 66560, 95232, 123904, 0]
def k5_decode(A):
    A(f"""
    s_and_b32 s82, s2, 3
    s_bfe_u32 s80, s2, 0x10002
    s_lshl_b32 s80, s80, 3
    s_bfe_u32 s81, s2, 0x30003
    s_add_u32 s80, s80, s81            ; rg128
    s_lshr_b32 s81, s2, 6              ; cgp
    s_mul_i32 s79, s81, {9*TS}
    s_mul_i32 s83, s82, {36*1024}
    s_add_u32 s79, s79, s83
    s_mul_i32 s83, s3, 9216
    s_add_u32 s79, s79, s83
    s_add_u32 s79, s79, {G.W2}
    s_add_u32 s83, s79, {4*TS}
    s_sub_u32 s19, s79, {5*TS}
    s_bitcmp1_b32 s82, 0               ; nh
    s_cselect_b32 s19, s79, s19
    s_cselect_b32 s79, s79, s83
    s_mul_i32 s83, s3, 7168
    s_lshl_b32 s14, s3, 11
    s_lshr_b32 s15, s80, 1
    s_lshl_b32 s15, s15, 2
    s_add_u32 s15, s15, s82
    s_lshl_b32 s15, s15, 5
    s_add_u32 s15, s15, s41
    s_add_u32 s15, s15, 3072
    s_lshl_b32 s15, s15, {FSH}
    s_add_u32 s15, s15, {G.FLG}
    s_lshl_b32 s13, s85, 5
    s_add_u32 s13, s13, s84
    s_lshl_b32 s13, s13, 2
    s_add_u32 s13, s13, s41
    s_add_u32 s13, s13, 3072
    s_lshl_b32 s34, s80, 2
    s_add_u32 s34, s34, s3
    s_mul_i32 s20, s34, {2*144*1024}
    s_mul_i32 s21, s82, {36*1024}
    s_add_u32 s20, s20, s21
    s_add_u32 s20, s20, {G.HF}
    {LO2(20)}
    s_add_u32 s12, s20, {144*1024}
    s_bitcmp1_b32 s82, 1               ; mt_own
    s_cselect_b32 s21, s12, s20
    s_cselect_b32 s12, s20, s12
    s_mov_b32 s20, s21
    """)
def k5_unit(u):
    B = Asm()
    if u < 9:
        for j in range(7):
            dma(B, 79 if j < 5 else 19, j * TS + ORD[u] * 1024, 83, K5P[u % 5] + j * 1024, 1, f"d{u}", stmp=38)
    else:
        for qq in range(3):
            for j in range(7, 9):
                dma(B, 19, j * TS + ORD[3 * (u - 9) + qq] * 1024, 14, K5P[u % 5] + qq * 8192 + (j - 7) * 1024, 1, f"d{u}", stmp=38)
    return groups_vm(B.ins)

def flagchk(A, lab, tag, vreg, vaddr, sbase):
    A.wait(tag)
    A(f"v_cmp_eq_u32 vcc, 1, v{vreg}")
    A("s_cmp_eq_u64 vcc, -1")
    A(f"s_cbranch_scc1 {lab}_OK")
    R = A.raw
    R("    s_mov_b32 s39, 0x20000")
    R(f"{lab}:")
    R("    s_sleep 1")
    R(f"    buffer_load_dword v{vreg}, v{vaddr}, s[4:7], s{sbase} offen sc1")
    R("    s_waitcnt vmcnt(0)")
    R(f"    v_cmp_eq_u32 vcc, 1, v{vreg}")
    R("    s_nop 1")
    R("    s_cmp_eq_u64 vcc, -1")
    R(f"    s_cbranch_scc1 {lab}_OK")
    R("    s_sub_u32 s39, s39, 1")
    R("    s_cmp_lg_u32 s39, 0")
    R(f"    s_cbranch_scc1 {lab}")
    A.label(f"{lab}_OK")

def flag_store(A, sgpr, vt=30):
    lab = f"SIG{signal.n}"; signal.n += 1
    A("s_cmp_lg_u32 s3, 0")
    A(f"s_cbranch_scc1 {lab}")
    A.raw("    s_mov_b64 exec, 1")
    A.raw(f"    v_mov_b32 v{vt}, 0")
    A.raw(f"    v_mov_b32 v{vt+1}, 1")
    A.raw(f"    s_lshl_b32 s38, s{sgpr}, {FSH}")
    A.raw(f"    s_add_u32 s38, s38, {G.FLG}")
    A.raw(f"    buffer_store_dword v{vt+1}, v{vt}, s[4:7], s38 offen sc1")
    A.raw("    s_mov_b64 exec, -1")
    A.label(lab)

def k5_hreg(st, j):
    return 256 + 8 * st + 4 * j if st < 32 else 168 + 8 * (st - 32) + 4 * j
def k5_hl(B, st):
    ph = 9 * (st % 4) + ORD[st // 4]
    for j in range(2):
        B(f"s_add_u32 s30, s{20 if j == 0 else 12}, {(ph//4)*4096}")
        B(f"buffer_load_dwordx4 {r(k5_hreg(st, j), 4)}, v1, s[4:7], s30 offen offset:{(ph%4)*1024} sc1", tag=f"h{st}")

class guarded: n = 0
_gn = guarded
def k5_path(A, nh, qtile, AHEAD, setup):
    NO, NB = (5, 4) if nh == 0 else (4, 5)
    ACC, WR, R, PB = 32, 104, P.get('k5_r', 12), 200
    acc = lambda j, sl: ACC + 36 * j + 4 * sl
    hreg = k5_hreg
    items = [(0, st, sl) for st in range(36) for sl in range(7)] + [(1, st, sl) for st in range(36) for sl in (7, 8)]
    DIST = P.get("k5_dist", 9)
    M = Asm(); marks = {}
    def rd(i):
        ps, st, sl = items[i]
        if ps == 0:
            u = st // 4; first = (st % 4 == 0 and sl == 0)
            off = K5P[u % 5] + (st % 4) * 7168 + sl * 1024
        else:
            u = 9 + st // 12; first = (st % 12 == 0 and sl == 7)
            off = K5P[u % 5] + ((st // 4) % 3) * 8192 + (st % 4) * 2048 + (sl - 7) * 1024
        if first and u >= 2:
            M.wait(f"d{u}")
            if K45 and u == 2: M.wait("hout")
            M("s_barrier")
            if K45 and u == 2: flag_store(M, 26)
            marks[("B", u)] = len(M.ins)
        w = WR + 4 * (i % R)
        M(f"ds_read_b128 v[{w}:{w+3}], v{2 + (off >> 16)} offset:{off & 0xffff}", tag=f"wf{i}")
    for i in range(DIST): rd(i)
    WG_ = P.get('k5_wg', 3)
    assert DIST + 1 <= R and WG_ <= DIST
    NE = 20 if K45 else 24
    LA = P.get('k5_la', 4) if K45 else AHEAD
    CHK = NE - LA
    for i, (ps, st, sl) in enumerate(items):
        if sl in (0, 7):
            if (ps, st) == (0, CHK - P.get("k5_fl", 3)):
                M("buffer_load_dword v13, v14, s[4:7], s25 offen sc1", tag="fl")
            if ps == 0 and st % 4 == 0: M.stamp(f"s{st}")
            if (ps, st) == (0, CHK):
                flagchk(M, f"K5L{nh}", "fl", 13, 14, 25)
                M.stamp("sc")
            marks[("st", ps, st)] = len(M.ins)
        if (ps, st, sl) == (1, 0, 7): M.stamp(13)
        if i + DIST < len(items): rd(i + DIST)
        tags = []
        if i % WG_ == 0: tags.append(f"wf{min(i + WG_ - 1, len(items) - 1)}")
        if ps == 0 and sl == 0: tags.append(f"h{st}")
        if tags: M.wait(*tags)
        w = WR + 4 * (i % R)
        for j in range(2):
            a_ = acc(j, sl)
            c = "0" if st == 0 else f"v[{a_}:{a_+3}]"
            M(f"v_mfma_f32_16x16x32_bf16 v[{a_}:{a_+3}], v[{w}:{w+3}], {r(hreg(st, j), 4)}, {c}")
    S_ = Sched(M.ins)
    late = []
    if setup:
        gs = []; cur = []
        for k, x in enumerate(setup):
            cur.append(I(x.text))
            nxt = setup[k + 1].text if k + 1 < len(setup) else ""
            if (len(cur) >= 4 or x.text.startswith("v_")) and not nxt.startswith("s_cselect"):
                gs.append(cur); cur = []
        if cur: gs.append(cur)
        S_.release(marks[("st", 0, 1)], "va", gs)
    for st in range(AHEAD, 36):
        B = Asm(); k5_hl(B, st)
        rel = st - AHEAD if st < NE else max(st - AHEAD, CHK)
        if st >= NE and st - AHEAD < CHK: late.extend([B.ins[:2], B.ins[2:]])
        else: S_.release(marks[("st", 0, rel)], "vm", [B.ins[:2], B.ins[2:]], every=P.get("k5_e", 3), front=(st - AHEAD != CHK))
        if st - AHEAD == CHK - 1: S_.release(marks[("st", 0, CHK)], "vm", late, front=True)
    for u in range(5, 12):
        S_.release(marks[("B", u - 3)], "vm", k5_unit(u))
    def guarded(gs, k):
        out = []
        for i in range(0, len(gs), k):
            _gn.n += 1
            lab = f"QSK{_gn.n}"
            blk = [I("s_cmp_lg_u32 s40, 0"), I(f"s_cbranch_scc1 {lab}")]
            for g in gs[i:i+k]:
                for x in g:
                    if x.text.startswith("buffer_"): blk.append(I(" " + x.text.replace(" lds", " sc1 lds"), kind="raw"))
                    elif "m0" in x.text: blk += [I(" " + x.text, kind="raw"), I(" s_nop 0", kind="raw")]
                    else: blk.append(I(" " + x.text, kind="raw"))
            blk.append(I(lab + ":", kind="label"))
            out.append(blk)
        return out
    QK_ = P.get("k5_qk", 3)
    if QK_:
        S_.release(marks[("B", 10)], "vm", guarded(qtile(3), QK_), every=P.get("k5_qe", 8))
        S_.release(marks[("B", 11)], "vm", guarded(qtile(0), QK_))
    else:
        S_.release(marks[("B", 10)], "vm", qtile(3))
        S_.release(marks[("B", 11)], "vm", qtile(0))
    def pieces(n): return [(0, 2), (2, 2)] if n == 4 else [(0, 2), (2, 1), (3, 2)]
    def pstore(a0, n, sbase, sel, tag):
        B = Asm()
        for pi, (t0, k) in enumerate(pieces(n)):
            if pi not in sel: continue
            b = a0 + 4 * t0
            for i in range(2 * k): B(f"v_cvt_pk_bf16_f32 v{b+i}, v{b+2*i}, v{b+2*i+1}")
            if k == 2: B(f"buffer_store_dwordx4 v[{b}:{b+3}], v1, s[4:7], s{sbase} offen offset:{pi*1024} sc1", tag=tag)
            else: B(f"buffer_store_dwordx2 v[{b}:{b+1}], v1, s[4:7], s{sbase} offen offset:{pi*1024} sc1", tag=tag)
        return B.ins
    def pload(dst, k, tag):
        B = Asm()
        B(f"s_add_u32 s37, s21, {k*12288}")
        for pi, (t0, kk) in enumerate(pieces(NB)):
            d = dst + 4 * pi
            if kk == 2: B(f"buffer_load_dwordx4 v[{d}:{d+3}], v1, s[4:7], s37 offen offset:{pi*1024} sc1", tag=tag)
            else: B(f"buffer_load_dwordx2 v[{d}:{d+1}], v1, s[4:7], s37 offen offset:{pi*1024} sc1", tag=tag)
        return B.ins
    def pregs(dst):
        return [dst + 4 * pi + i for pi, (t0, kk) in enumerate(pieces(NB)) for i in range(2 * kk)]
    def check(regs):
        B = Asm()
        B(f"v_max3_u32 v30, v{regs[0]}, v{regs[1]}, v{regs[2]}")
        rest_ = regs[3:]
        while len(rest_) >= 2:
            B(f"v_max3_u32 v30, v30, v{rest_[0]}, v{rest_[1]}"); rest_ = rest_[2:]
        if rest_: B(f"v_max_u32 v30, v30, v{rest_[0]}")
        B("v_cmp_eq_u32 vcc, -1, v30")
        B("s_cmp_eq_u64 vcc, 0")
        return B.ins
    RES = 16
    B = Asm()
    for t in range(NB):
        so, im = (28, t * 1024) if t < 4 else (29, 0)
        B(f"buffer_load_dwordx2 v[{RES+2*t}:{RES+2*t+1}], v11, s[4:7], s{so} offen offset:{im} sc1", tag="res")
    S_.release(marks[("st", 0, 30)], "vm", groups_vm(B.ins))
    np_ = len(pieces(NB))
    allp = range(3)
    S_.release(marks[("st", 1, 2)], "va", groups_1(pstore(acc(0, 0), NO, 16, allp, "pa") + pstore(acc(1, 0), NO, 17, allp, "pa")
                                                  + pstore(acc(1, NO), NB, 18, range(np_ - 1), "pa")))
    out, rest = S_.run(gap=8, vm_cost=8)
    assert not rest, len(rest)
    check_tags(out)
    A.ins += out
    A.stamp(10)
    A.ins += pstore(acc(1, NO), NB, 18, [np_ - 1], "pb")
    A.ins += pload(PB, 0, "p0") + pload(PB + 12, 1, "p0") + pload(PB + 24, 2, "p2")
    A("s_barrier")
    X = WR
    A.wait("res")
    for t in range(NB):
        for j in range(2):
            A(f"v_lshlrev_b32 v{X+4*t+2*j}, 16, v{RES+2*t+j}")
            A(f"v_and_b32 v{X+4*t+2*j+1}, 0xffff0000, v{RES+2*t+j}")
    for i in range(4 * NB): A(f"v_add_f32 v{X+i}, v{X+i}, v{acc(0, NO)+i}")
    def addp(b):
        for i, rg in enumerate(pregs(b)):
            A(f"v_lshlrev_b32 v30, 16, v{rg}")
            A(f"v_and_b32 v31, 0xffff0000, v{rg}")
            A(f"v_add_f32 v{X+2*i}, v{X+2*i}, v30")
            A(f"v_add_f32 v{X+2*i+1}, v{X+2*i+1}, v31")
    def spin(lab, regs, loads, tag):
        A("s_mov_b32 s39, 0x20000")
        A.wait(tag)
        A.label(lab)
        A.ins += check(regs)
        A(f"s_cbranch_scc1 {lab}_OK")
        A.save(lab)
        A(f"s_sleep {P.get('k5_sleep', 1)}")
        A.ins += loads
        A("s_waitcnt vmcnt(0)")
        A("s_sub_u32 s39, s39, 1")
        A("s_cmp_lg_u32 s39, 0")
        A(f"s_cbranch_scc1 {lab}")
        A.label(f"{lab}_OK")
        A.restore(lab)
    spin(f"K5SA{nh}", pregs(PB) + pregs(PB + 12), pload(PB, 0, None) + pload(PB + 12, 1, None), "p0")
    addp(PB); addp(PB + 12)
    spin(f"K5SB{nh}", pregs(PB + 24), pload(PB + 24, 2, None), "p2")
    A.stamp(2)
    addp(PB + 24)
    for i in range(2 * NB):
        A(f"v_cvt_pk_bf16_f32 v{RES+i}, v{X+2*i}, v{X+2*i+1}")
    A.stamp(3)
    pfx = f"K5{nh}"
    A("s_cmp_lg_u32 s40, 0")
    A(f"s_cbranch_scc1 {pfx}_FINAL")
    A.save(pfx + "fin")
    t2_store(A, NB, X, RES)
    A("s_branch K5_DONE")
    A.save(pfx + "done")
    A.label(f"{pfx}_FINAL")
    A.restore(pfx + "fin")
    final_store(A, NB, RES)
    A("s_endpgm")

def k5_phase(A0, qtile, NMID):
    AHEAD = P.get("k5_ahead", 6)
    A = A0
    if not K45:
        flagchk(A, "K5E", "fe", 15, 14, 15)
        for st in range(AHEAD): k5_hl(A, st)
        A("s_sub_u32 s24, s13, 2048")
        A.wait("d0", "d1", "d2", "d3")
        signal(A, 24, "hout")
        A.stamp(8)
        for g in k5_unit(4): A.ins += g
    else:
        A("s_sub_u32 s26, s13, 2048")
        A = Asm()
    k1_decode(A, None)
    A(f"""
    s_lshr_b32 s32, s82, 1             ; mt_own
    s_and_b32 s33, s82, 1              ; nh
    s_lshl_b32 s34, s80, 2
    s_add_u32 s34, s34, s3
    s_lshl_b32 s27, s80, 2
    s_add_u32 s27, s27, s81            ; tile
    s_mul_i32 s21, s27, {4*36864}
    s_mul_i32 s35, s3, 3072
    s_add_u32 s21, s21, s35
    s_add_u32 s21, s21, {G.PART}
    {LO2(21)}
    s_mul_i32 s35, s32, 12288
    s_add_u32 s35, s35, s21
    s_xor_b32 s36, s82, 1
    s_mul_i32 s36, s36, 36864
    s_add_u32 s16, s35, s36
    s_xor_b32 s36, s82, 3
    s_mul_i32 s36, s36, 36864
    s_add_u32 s17, s35, s36
    s_xor_b32 s36, s82, 2
    s_mul_i32 s36, s36, 36864
    s_add_u32 s18, s21, s36
    s_add_u32 s18, s18, 24576
    s_mul_i32 s36, s82, 36864
    s_add_u32 s21, s21, s36
    s_mul_i32 s13, s81, 9
    s_lshl_b32 s35, s33, 2
    s_add_u32 s13, s13, s35            ; nt0
    v_and_b32 v11, 15, v0
    v_lshlrev_b32 v11, 4, v11
    v_bfe_u32 v28, v0, 5, 1
    v_lshlrev_b32 v28, 9, v28
    v_add_u32 v11, v11, v28
    v_bfe_u32 v28, v0, 4, 1
    v_lshlrev_b32 v28, 3, v28
    v_add_u32 v11, v11, v28
    s_mul_i32 s28, s34, 36
    s_add_u32 s28, s28, s13
    s_lshl_b32 s28, s28, 10
    s_lshl_b32 s29, s32, 8
    s_add_u32 s28, s28, s29
    s_add_u32 s28, s28, s42
    s_add_u32 s22, s28, {X2I*G.XSZ}
    s_add_u32 s23, s22, 4096
    s_add_u32 s28, s28, {G.XSZ}
    s_add_u32 s29, s28, 4096
    v_and_b32 v15, 15, v0
    v_mul_u32_u24 v29, 1152, v15
    v_lshlrev_b32 v15, 3, v15
    s_lshl_b32 s35, s34, 1
    s_add_u32 s35, s35, s32            ; rb16
    s_lshl_b32 s36, s35, 10
    s_lshl_b32 s37, s81, 1
    s_add_u32 s37, s37, s33
    s_lshl_b32 s37, s37, 7
    s_add_u32 s36, s36, s37
    s_add_u32 s36, s36, s43
    s_add_u32 s36, s36, {X2I*G.SSZ}
    v_bfe_u32 v28, v0, 4, 2
    v_lshlrev_b32 v28, 3, v28
    v_add_u32 v29, v29, v28
    s_mul_i32 s31, s35, 18432
    s_lshl_b32 s37, s13, 5
    s_add_u32 s31, s31, s37
    s_sub_u32 s25, s15, {2048 << FSH}
    """)
    setup = A.ins if K45 else []
    A = A0
    A.stamp(9)
    A("s_bitcmp1_b32 s82, 0")
    A("s_cbranch_scc1 K5_N1")
    A.save("k5n1")
    k5_path(A, 0, qtile, AHEAD, setup)
    A.label("K5_N1"); A.restore("k5n1")
    k5_path(A, 1, qtile, AHEAD, setup)
    A.label("K5_DONE")
    A.restore("K51done")
    A("s_lshl_b32 s24, s80, 2")
    A("s_add_u32 s24, s24, s81")
    A("s_lshl_b32 s24, s24, 2")
    A("s_add_u32 s24, s24, s82")
    A("s_lshl_b32 s24, s24, 2")
    A("s_add_u32 s24, s24, s41")
    A("s_add_u32 s24, s24, 2048")
    rest = qtile(1) + qtile(2)
    for g in rest[:NMID]: A.ins += g
    signal(A, 24, "out")
    A.stamp(11)
    if MEGA:
        A("s_mov_b32 s101, s41")
        A(f"s_mov_b32 s40, 1")
        A(f"s_mov_b32 s41, 8192")
        A(f"s_mov_b32 s42, {G.XF + X2I*G.XSZ}")
        A(f"s_mov_b32 s43, {G.ST + X2I*G.SSZ}")
        A(f"s_mov_b32 s100, {G.LBS}")
    else:
        A("s_cmp_ge_u32 s87, 15")
        A("s_cbranch_scc1 CH_END")
    for g in rest[NMID:]: A.ins += g

def k1_decode(A, endlab):
    if MEGA and (P.get("early", 0) or P.get("k1map", 0)):
        A("""
        s_and_b32 s86, s2, 7
        s_lshl_b32 s86, s86, 1
        s_bfe_u32 s27, s2, 0x10003
        s_add_u32 s86, s86, s27
        s_lshr_b32 s87, s2, 4
        """)
    else:
        A("""
        s_and_b32 s24, s2, 7
        s_lshr_b32 s25, s2, 3
        s_lshr_b32 s86, s24, 1
        s_lshl_b32 s86, s86, 2
        s_and_b32 s27, s25, 3
        s_add_u32 s86, s86, s27
        s_and_b32 s87, s24, 1
        s_lshl_b32 s87, s87, 3
        s_lshr_b32 s34, s25, 2
        s_add_u32 s87, s87, s34
        """)
    A(f"""
    s_lshl_b32 s78, s3, 10
    s_lshl_b32 s34, s87, 2
    s_mul_i32 s35, s87, 3
    s_add_u32 s35, s35, 9
    s_cmp_ge_u32 s87, 9
    s_cselect_b32 s34, s35, s34
    s_cmp_eq_u32 s87, 15
    s_cselect_b32 s34, 34, s34
    s_mul_i32 s76, s34, {G.T1S}
    s_add_u32 s76, s76, {G.WQ}
    s_add_u32 s77, s76, s78
    """)

def k1_main(A, NT, swapped, sc, epi=None):
    xreg = lambda j, ks: (256 + 4 * ks) if ks < 36 else 8
    t1 = T1(1, xreg, lambda t, j: 64 + 16 * t, 32, 8, lambda t: t, 2, swapped)
    def xl(B, ks):
        B(f"s_add_u32 s30, s23, {(ks//4)*4096}")
        B(f"buffer_load_dwordx4 {r(xreg(0, ks), 4)}, v1, s[4:7], s30 offen offset:{(ks%4)*1024}{sc}", tag=f"x{ks}")
    AHEAD = P.get("k1_ahead", 10)
    for ks in range(2): xl(A, ks)
    stats_load(A, 1, 29, 16, 12, sc)
    for ks in range(2, AHEAD): xl(A, ks)
    A("s_barrier")
    SC = Asm()
    SC.wait("st")
    stats_compute(SC, 16, 5, 6, 12)
    SC("v_cmp_gt_u32 vcc, 512, v1")
    build_xext(SC, 5, 8, 12)
    SC("v_rsq_f32 v6, v6")
    items = [(t, ks) for ks in range(37) for t in range(NT)]
    if epi: items = [(t, ks) for ks in range(37) for t in range(NT - 1)] + [(NT - 1, ks) for ks in range(37)]
    DIST = 6
    M = Asm(); marks = {}
    for i in range(DIST): t1.read(M, i, *items[i])
    for i, (t, ks) in enumerate(items):
        if t == 0: marks[ks] = len(M.ins)
        if (t, ks) == (NT - 1, 0): marks["last"] = len(M.ins)
        if i + DIST < len(items): t1.read(M, i + DIST, *items[i + DIST])
        M.wait(f"wf{i}", f"x{ks}")
        if i == 0: M.stamp(14)
        t1.mfmas(M, i, t, ks)
    S_ = Sched(M.ins)
    B = Asm()
    for ks in range(AHEAD, 36): xl(B, ks)
    S_.release(0, "vm", groups_vm(B.ins), every=min(P.get("k1_e0", 2.5), (NT - (1 if epi else 0)) * 0.8))
    S_.release(marks[3], "va", groups_1(SC.ins) + ([epi[0]] if epi else []))
    if epi: S_.release(marks["last"], "va", groups_1(epi[1]), skip=2)
    out, rest = S_.run(cap=24, vm_cost=8, gap=P.get("k1_gap", 28))
    assert epi or not rest
    check_tags(out)
    A.ins += out + rest
    A.stamp(15)

def k1_phase(A, L, xidx, do_poll, hook=None):
    sc = " sc1" if do_poll else ""
    A(f"""
    v_mov_b32 v2, v1
    v_add_u32 v3, 0x10000, v1
    v_add_u32 v4, 0x20000, v1
    s_lshl_b32 s26, s86, 2
    s_add_u32 s26, s26, s3             ; rb
    s_mov_b32 s27, s87
    s_mul_i32 s23, s26, 36864
    s_add_u32 s23, s23, s42
    s_add_u32 s23, s23, {xidx*G.XSZ}
    s_lshl_b32 s29, s26, 11
    s_add_u32 s29, s29, s43
    s_add_u32 s29, s29, {xidx*G.SSZ}
    s_lshr_b32 s31, s26, 3
    s_mul_i32 s31, s31, {G.KVG}
    s_add_u32 s31, s31, {G.KV}
    {LO(31)}
    s_lshr_b32 s24, s26, 1
    s_lshl_b32 s24, s24, 5
    s_add_u32 s24, s24, s41
    s_add_u32 s24, s24, 2048
    """)
    if do_poll:
        if SK:
            A("s_lshl_b32 s24, s86, 6")
            A(f"s_add_u32 s24, s24, s{101 if MEGA else 41}")
            A("s_add_u32 s24, s24, 2048")
        A.stamp(12)
        poll(A, 24, 16 if SK else 8, True)
        A.wait("q0", "q1", "q2", "q3")
    if hook: hook(A)
    if MEGA:
        A("s_and_b32 s32, s27, 7")
        A("s_cmp_eq_u32 s27, 8")
        A(f"s_cbranch_scc1 {L}_EXT")
        A("s_cmp_eq_u32 s27, 15")
        A(f"s_cbranch_scc1 {L}_EXT")
        A.save(L + "ext")
    A(f"s_cmp_ge_u32 s27, 9")
    A(f"s_cbranch_scc1 {L}_V")
    A.save(L + "v")
    def pre():
        if not do_poll:
            pass
    OV = MEGA and do_poll and P.get("k1_ov", 1)
    if not OV: k1_main_w(A, 4, False, sc, do_poll)
    if not MEGA:
        A("s_cmp_eq_u32 s27, 8")
        A(f"s_cbranch_scc1 {L}_EXT")
        A.save(L + "ext")
    ST_ = " sc1" if MEGA else P.get("k1_st", "")
    def fin():
        if MEGA:
            A.stamp("kf" + L)
            A(f"s_branch {L}_JOIN")
        else: A("s_endpgm")
    E0 = Asm()
    E0(f"""
    s_and_b32 s32, s27, 3
    s_lshl_b32 s32, s32, 3
    s_lshl_b32 s33, s26, 10
    s_add_u32 s33, s33, {G.QM}
    {LO(33)}
    s_and_b32 s34, s26, 7
    s_lshl_b32 s34, s34, 10
    s_add_u32 s34, s34, s31
    s_cmp_lt_u32 s27, 4
    s_cselect_b32 s33, s33, s34
    s_mov_b32 s35, {G.KVH}
    s_cselect_b32 s35, 65536, s35
    s_mov_b32 s36, {hex(G.f32(QSCALE))}
    s_cselect_b32 s36, s36, 1.0
    s_mul_i32 s32, s32, s35
    s_add_u32 s33, s33, s32
    """)
    def etile(t):
        E = Asm(); acc = 64 + 16 * t
        for e in range(2):
            for i in range(8): E(f"v_mul_f32 v{acc+8*e+i}, v{acc+8*e+i}, v7")
            for i in range(4): E(f"v_cvt_pk_bf16_f32 v{128+8*t+4*e+i}, v{acc+8*e+2*i}, v{acc+8*e+2*i+1}")
            E(f"buffer_store_dwordx4 v[{128+8*t+4*e}:{128+8*t+4*e+3}], v1, s[4:7], s33 offen{ST_}")
            E("s_add_u32 s33, s33, s35")
        return E.ins
    if OV:
        A.extend(E0)
        k1_main_w(A, 4, False, sc, do_poll, ([I("v_mul_f32 v7, s36, v6")], etile(0) + etile(1) + etile(2)))
        A.ins += etile(3)
    else:
        A.extend(E0)
        A("v_mul_f32 v7, s36, v6")
        for t in range(4): A.ins += etile(t)
    fin()
    A.label(f"{L}_EXT")
    A.restore(L + "ext")
    if MEGA:
        k1_main_w(A, 2, False, sc, do_poll)
        A(f"""
        v_and_b32 v12, 31, v0
        v_bfe_u32 v13, v0, 5, 1
        v_lshlrev_b32 v13, 10, v13
        s_cmp_eq_u32 s27, 8
        s_cselect_b32 s32, 2, 4            ; m shift
        s_cselect_b32 s33, 7, 2            ; w shift
        s_mov_b32 s36, {hex(G.f32(QSCALE))}
        s_cselect_b32 s36, s36, 1.0
        s_mov_b32 s35, {G.KVH}
        s_cselect_b32 s35, 8192, s35
        s_lshl_b32 s34, s86, 9
        s_add_u32 s34, s34, {G.QE}
        s_add_u32 s34, s34, s100
        s_and_b32 s37, s86, 1
        s_lshl_b32 s37, s37, 9
        s_add_u32 s37, s37, s31
        s_add_u32 s37, s37, 8192
        s_cmp_eq_u32 s27, 8
        s_cselect_b32 s34, s34, s37
        s_lshl_b32 s33, s3, s33
        v_lshlrev_b32 v16, s32, v12
        v_add3_u32 v16, v16, v13, s33
        v_lshlrev_b32 v18, 4, v0
        v_lshrrev_b32 v13, 5, v0
        v_mul_lo_u32 v19, v13, s35
        v_lshlrev_b32 v21, 4, v12
        v_add_u32 v19, v19, v21
        s_lshl_b32 s35, s35, 3
        v_add_u32 v17, {2*G.T1S}, v16
        v_add_u32 v22, {2*G.T1S}, v18
        v_mul_f32 v6, s36, v6
        """)
        for t in range(2):
            acc = 64 + 16 * t
            for i in range(16): A(f"v_mul_f32 v{acc+i}, v{acc+i}, v6")
            for i in range(8): A(f"v_cvt_pk_bf16_f32 v{128+8*t+i}, v{acc+2*i}, v{acc+2*i+1}")
            for i in range(8):
                hd = 16 * t + 4 * (i >> 1) + (i & 1)
                A(f"ds_write_b32 v16, v{128+8*t+i} offset:{3*G.T1S - 65536 + hd*512}" if False else f"ds_write_b32 v17, v{128+8*t+i} offset:{hd*512}")
        A.waitall(vm=False)
        A("s_barrier")
        for k in range(4):
            A(f"ds_read_b128 v[{64+4*k}:{67+4*k}], v22 offset:{k*4096}", tag=f"er{k}")
        for k in range(4):
            A.wait(f"er{k}")
            A(f"buffer_store_dwordx4 v[{64+4*k}:{67+4*k}], v19, s[4:7], s34 offen sc1")
            A("s_add_u32 s34, s34, s35")
    else:
        A(f"""
        v_and_b32 v12, 31, v0
        v_bfe_u32 v13, v0, 5, 1
        v_lshlrev_b32 v14, 2, v12
        v_mul_u32_u24 v15, 16384, v13
        v_add_u32 v14, v14, v15
        v_lshlrev_b32 v15, 4, v12
        s_mov_b32 s32, {2*G.KVH}
        v_mul_lo_u32 v13, v13, s32
        v_add_u32 v15, v15, v13
        s_lshl_b32 s33, s26, 7
        s_add_u32 s33, s33, {G.QE}
        {LO(33)}
        s_bfe_u32 s34, s26, 0x10002
        s_lshl_b32 s34, s34, 9
        s_and_b32 s35, s26, 3
        s_lshl_b32 s35, s35, 2
        s_add_u32 s34, s34, s35
        s_add_u32 s34, s34, s31
        s_add_u32 s34, s34, 8192
        v_mul_f32 v7, {hex(G.f32(QSCALE))}, v6
        """)
        if MEGA:
            A(f"""
            v_bfe_u32 v13, v0, 5, 1
            v_lshlrev_b32 v13, 10, v13         ; h*2 heads*512
            s_lshl_b32 s35, s3, 7
            v_lshlrev_b32 v16, 2, v12
            v_add3_u32 v16, v16, v13, s35      ; Q lds addr
            s_lshl_b32 s35, s3, 2
            v_lshlrev_b32 v17, 4, v12
            v_add3_u32 v17, v17, v13, s35      ; K lds addr
            v_lshlrev_b32 v18, 4, v0
            v_lshrrev_b32 v13, 5, v0
            v_lshlrev_b32 v19, 13, v13
            v_lshlrev_b32 v21, 4, v12
            v_add_u32 v19, v19, v21
            s_mov_b32 s35, {G.KVH}
            v_mul_lo_u32 v20, v13, s35
            v_add_u32 v20, v20, v21
            s_lshl_b32 s35, s3, 7
            s_sub_u32 s33, s33, s35
            s_lshl_b32 s35, s3, 2
            s_sub_u32 s34, s34, s35
            """)
        for t in range(4):
            acc = 64 + 16 * t
            sc_ = 7 if t < 2 else 6
            e = t & 1
            for i in range(16): A(f"v_mul_f32 v{acc+i}, v{acc+i}, v{sc_}")
            for i in range(8): A(f"v_cvt_pk_bf16_f32 v{128+8*t+i}, v{acc+2*i}, v{acc+2*i+1}")
            for i in range(8):
                g, par = i >> 1, i & 1
                hd = 16 * e + 4 * g + par
                if MEGA:
                    if t == 0 and i == 0:
                        A("s_barrier")
                    if t < 2: A(f"ds_write_b32 v16, v{128+8*t+i} offset:{hd*512}")
                    else: A(f"ds_write_b32 v17, v{128+8*t+i} offset:{16384 + hd*512}")
                elif t < 2:
                    A(f"s_add_u32 s30, s33, {hd*8192}")
                    A(f"buffer_store_dword v{128+8*t+i}, v14, s[4:7], s30 offen")
                else:
                    A(f"s_add_u32 s30, s34, {hd*G.KVH}")
                    A(f"buffer_store_dword v{128+8*t+i}, v15, s[4:7], s30 offen")
        if MEGA:
            A.waitall(vm=False)
            A("s_barrier")
            for k in range(8):
                A(f"ds_read_b128 v[{64+4*k}:{67+4*k}], v18 offset:{k*4096}", tag=f"er{k}")
            for k in range(8):
                A.wait(f"er{k}")
                if k < 4:
                    A(f"s_add_u32 s30, s33, {k*8*8192}")
                    A(f"buffer_store_dwordx4 v[{64+4*k}:{67+4*k}], v19, s[4:7], s30 offen sc1")
                else:
                    A(f"s_add_u32 s30, s34, {(k-4)*8*G.KVH}")
                    A(f"buffer_store_dwordx4 v[{64+4*k}:{67+4*k}], v20, s[4:7], s30 offen sc1")
    fin()
    A.label(f"{L}_V")
    A.restore(L + "v")
    k1_main_w(A, 3, True, sc, do_poll)
    A(f"""
    v_and_b32 v12, 31, v0
    v_lshlrev_b32 v13, 2, v12
    s_lshl_b32 s32, s3, 7
    s_add_u32 s32, s32, {4*G.T1S}
    v_add_u32 v13, s32, v13
    ds_write_b32 v13, v6
    v_bfe_u32 v14, v0, 5, 1
    v_lshlrev_b32 v13, 4, v14
    v_add_u32 v13, s32, v13
    """)
    A.waitall(vm=False)
    for g in range(4):
        A(f"ds_read_b128 v[{16+4*g}:{19+4*g}], v13 offset:{g*32}")
    A(f"""
    s_sub_u32 s32, s27, 9
    s_mul_i32 s32, s32, 96
    v_add_u32 v12, s32, v12
    v_mul_u32_u24 v14, 304, v14
    s_and_b32 s33, s26, 7
    s_mul_i32 s33, s33, 1216
    s_add_u32 s33, s33, s31
    s_add_u32 s33, s33, 9216
    s_mov_b32 s34, {G.KVH}
    """)
    A.waitall(vm=False)
    for t in range(3):
        acc = 64 + 16 * t
        A(f"""
        v_mul_u32_u24 v13, 3641, v12
        v_lshrrev_b32 v13, 16, v13
        v_mul_u32_u24 v15, 18, v13
        v_sub_u32 v15, v12, v15
        v_mul_lo_u32 v13, v13, s34
        v_lshlrev_b32 v15, 4, v15
        v_add3_u32 v{7+t}, v13, v15, v14
        v_add_u32 v12, 32, v12
        """)
        for i in range(16): A(f"v_mul_f32 v{acc+i}, v{acc+i}, v{16+i}")
        for i in range(8): A(f"v_cvt_pk_bf16_f32 v{128+8*t+i}, v{acc+2*i}, v{acc+2*i+1}")
        for e in range(2):
            A(f"buffer_store_dwordx4 v[{128+8*t+4*e}:{128+8*t+4*e+3}], v{7+t}, s[4:7], s33 offen offset:{e*608}{ST_}")
    fin()

def k1_main_w(A, NT, swapped, sc, prefetched, epi=None):
    if prefetched:
        k1_main(A, NT, swapped, sc, epi)
    else:
        k1_main_stream(A, NT, swapped, epi)

def k1_main_stream(A, NT, swapped, epi=None):
    xreg = lambda j, ks: (256 + 4 * ks) if ks < 36 else 8
    t1 = T1(1, xreg, lambda t, j: 64 + 16 * t, 32, 8, lambda t: t, 2, swapped)
    def issue(B, c):
        for t in range(NT):
            if c < 9: dma(B, 77, t * G.T1S + c * 4096, 78, t * G.T1S + c * 4096, 1, f"c{c}", stmp=38)
            else: dma(B, 76, t * G.T1S + 36 * 1024, None, t * G.T1S + 36 * 1024, 1, f"c{c}", stmp=38)
        if c < 9 and not XFIRST:
            for q in range(4):
                B(f"s_add_u32 s30, s23, {c*4096}")
                B(f"buffer_load_dwordx4 {r(xreg(0, 4*c+q), 4)}, v1, s[4:7], s30 offen offset:{q*1024}", tag=f"x{4*c+q}")
    AHEAD = P.get("k1s_ahead", 4 if XFIRST else 3)
    issue(A, 0)
    if not XFIRST: stats_load(A, 1, 29, 16, 12, "")
    for c in range(1, AHEAD): issue(A, c)
    SC = A if XFIRST else Asm()
    SC.wait("st")
    stats_compute(SC, 16, 5, 6, 12)
    SC("v_cmp_gt_u32 vcc, 512, v1")
    build_xext(SC, 5, 8, 12)
    SC("v_rsq_f32 v6, v6")
    items = [(t, ks) for ks in range(37) for t in range(NT)]
    DIST = 6
    M = Asm(); marks = {}
    def pre_read(i):
        t, ks = items[i]
        if t == 0 and ks % 4 == 0:
            M.wait(f"c{ks//4}"); M("s_barrier")
        t1.read(M, i, t, ks)
    for i in range(DIST): pre_read(i)
    for i, (t, ks) in enumerate(items):
        if t == 0: marks[ks] = len(M.ins)
        if i + DIST < len(items): pre_read(i + DIST)
        M.wait(f"wf{i}", f"x{ks}")
        if i == 0: M.stamp(14)
        t1.mfmas(M, i, t, ks)
    S_ = Sched(M.ins)
    for c in range(AHEAD, 10):
        B = Asm(); issue(B, c)
        S_.release(marks[4 * (c - AHEAD)], "vm", groups_vm(B.ins), every=1)
    if not XFIRST: S_.release(marks[3], "va", groups_1(SC.ins))
    out, rest = S_.run(cap=24, vm_cost=16)
    assert not rest
    check_tags(out)
    A.ins += out
    A.stamp(15)

def gen_ks():
    name = "ks_kernel"
    A = G.begin(name)
    A("""
    s_load_dwordx16 s[64:79], s[0:1], 0
    s_load_dwordx4 s[80:83], s[0:1], 64
    s_cmp_ge_u32 s2, 256
    s_cbranch_scc1 KS_END
    """)
    G.wave_id(A, 3)
    A.waitall()
    G.srd(A, 4, 82, G.WS_USED)
    G.srd(A, 12, 80, 256)
    B = Asm()
    nj = G.k0_body(B)
    sec = ""
    for i in B.ins:
        if i.kind == "label": sec = i.text
        if i.text.startswith("buffer_store") and not sec.startswith("K0_wo") and "v[8:11]" not in i.text: i.text += " sc1"
    A.extend(B)
    A.fence()
    A.waitall()
    A.stamp(0)
    A(f"""
    s_cmp_ge_u32 s2, {nj}
    s_cbranch_scc1 KS_NOSIG
    s_barrier
    s_cmp_lg_u32 s3, 0
    s_cbranch_scc1 KS_NOSIG
    s_mov_b64 exec, 1
    v_mov_b32 v30, 0
    v_mov_b32 v31, 1
    buffer_atomic_add v31, v30, s[12:15], s19 offen
    s_mov_b64 exec, -1
    """)
    A.label("KS_NOSIG")
    A(f"""
    s_mov_b32 s42, {G.XF}
    s_mov_b32 s43, {G.ST}
    s_mov_b32 s41, 0
    """)
    k1_decode(A, "KS_END")
    A("""
    s_cmp_ge_u32 s87, 15
    s_cbranch_scc1 KS_END
    v_and_b32 v1, 63, v0
    v_lshlrev_b32 v1, 4, v1
    s_mov_b32 s24, 4
    s_cmp_eq_u32 s87, 8
    s_cselect_b32 s24, 16, s24
    s_cmp_ge_u32 s87, 9
    s_cselect_b32 s24, 3, s24
    s_add_u32 s25, s87, 16
    v_and_b32 v28, 1, v0
    v_cmp_eq_u32 vcc, 1, v28
    v_mov_b32 v30, s86
    v_mov_b32 v29, s25
    v_cndmask_b32 v30, v30, v29, vcc
    v_lshlrev_b32 v30, 2, v30
    v_mov_b32 v29, s24
    v_cndmask_b32 v29, 4, v29, vcc
    s_mov_b32 s39, 0x40000
    s_cmp_lg_u32 s3, 0
    s_cbranch_scc1 KS_GO
    """)
    A.label("KS_POLL")
    A(f"""
    buffer_load_dword v31, v30, s[12:15], 0 offen sc1
    s_waitcnt vmcnt(0)
    v_cmp_eq_u32 vcc, v29, v31
    s_nop 1
    s_cmp_eq_u64 vcc, -1
    s_cbranch_scc1 KS_GO
    s_sleep {P.get('ks_sleep', 12)}
    s_sub_u32 s39, s39, 1
    s_cmp_lg_u32 s39, 0
    s_cbranch_scc1 KS_POLL
    """)
    A.label("KS_GO")
    A("s_barrier")
    A.stamp(1)
    C = Asm()
    k1_phase(C, "K1S", 0, False)
    for i in C.ins:
        if i.text.startswith("buffer_load"):
            i.text = i.text[:-4] + " sc1 lds" if i.text.endswith(" lds") else i.text + " sc1"
    A.extend(C)
    A.label("KS_END")
    A("s_endpgm")
    G.end(A, name, 400, 256)
    return (name, 256, 256, LDS_BYTES)

def gen_k0():
    name = "k0_kernel"
    A = G.begin(name)
    A("""
    s_load_dwordx16 s[64:79], s[0:1], 0
    s_load_dwordx4 s[80:83], s[0:1], 64
    """)
    G.wave_id(A, 3)
    A.waitall()
    G.srd(A, 4, 82, G.WS_USED)
    if P.get("pf", 1):
        A("""
        s_lshr_b32 s29, s2, 3
        s_lshl_b32 s29, s29, 2
        s_add_u32 s29, s29, s3
        v_and_b32 v1, 63, v0
        v_lshlrev_b32 v1, 4, v1
        """)
        if MEGA: G.code_prefetch(A, "km_kernel", "CODE_END", 16, 29, 1, 124, nper=2, stride=72*1024)
        else: G.code_prefetch(A, "k1_kernel", "kca_kernel", 16, 29, 1, 124)
    B = Asm()
    nj = G.k0_body(B)
    for i in B.ins:
        if i.text.startswith("buffer_store_dwordx4") and "v[8:11]" not in i.text and P.get("k0_sc1", 0): i.text += " sc1"
    A.extend(B)
    A("s_endpgm")
    G.end(A, name, 128)
    return (name, nj, 256, 41984)

def gen_k1s():
    name = "k1_kernel"
    A = G.begin(name)
    A(f"""
    s_load_dwordx2 s[12:13], s[0:1], 72
    s_cmp_ge_u32 s2, 256
    s_cbranch_scc1 K1S_END
    s_mov_b32 s42, {G.XF}
    s_mov_b32 s43, {G.ST}
    s_mov_b32 s41, 0
    """)
    G.wave_id(A, 3)
    k1_decode(A, "K1S_END")
    A("""
    s_cmp_ge_u32 s87, 15
    s_cbranch_scc1 K1S_END
    v_and_b32 v1, 63, v0
    v_lshlrev_b32 v1, 4, v1
    """)
    A.waitall()
    G.srd(A, 4, 12, G.WS_USED)
    k1_phase(A, "K1S", 0, False)
    A.label("K1S_END")
    A("s_endpgm")
    G.end(A, name, 400, 256)
    return (name, 256, 256, LDS_BYTES)

def gen_chain():
    A = Asm()
    names = [("kca_kernel", 0), ("kcb_kernel", 1)]
    for i, (n, fl) in enumerate(names):
        A.raw(f".globl {n}\n.p2align 8\n.type {n},@function")
        A.label(n)
        A(f"s_mov_b32 s40, {fl}")
        A(f"s_mov_b32 s41, {fl*8192}")
        A(f"s_mov_b32 s42, {G.XF + 2*fl*G.XSZ}")
        A(f"s_mov_b32 s43, {G.ST + 2*fl*G.SSZ}")
        if i < len(names) - 1: A("s_branch CH_BODY")
    A.label("CH_BODY")
    A("""
    s_load_dwordx2 s[12:13], s[0:1], 72
    s_load_dwordx2 s[14:15], s[0:1], 56
    s_cmp_ge_u32 s2, 256
    s_cbranch_scc1 CH_END
    """)
    G.wave_id(A, 3)
    t2_decode(A)
    t2_setup(A, 18, G.OF, G.WO, 0, 1)
    k4_decode(A)
    A.waitall()
    G.srd(A, 4, 12, G.WS_USED)
    G.srd(A, 8, 14, G.S * G.D * 2)
    sl4 = lambda t: t
    NTAIL = P.get("t2_ntail", 16)
    A("s_cmp_lg_u32 s83, 0")
    A("s_cbranch_scc1 K3_N5")
    A.save("k3n5")
    wt = lambda: tile_dmas([0, 1, 2, 3], sl4, 77, 76, 78, lambda t: f"w{t}" if t < 3 else "t3")
    for NT, pfx in ((4, "K3A"), (5, "K3B")):
        if NT == 5:
            A.label("K3_N5"); A.restore("k3n5")
        X, RES, left = t2_main(A, NT, 18, pfx, 0, "", wt()[:NTAIL], None, 0)
        assert not left
        t2_store(A, NT, X, RES)
        if NT == 4: A("s_branch K3_DONE")
    A.label("K3_DONE")
    if P.get("st3"): A.stamp(14)
    A("s_lshl_b32 s24, s80, 3")
    A("s_add_u32 s24, s24, s81")
    A("s_lshl_b32 s24, s24, 2")
    A("s_add_u32 s24, s24, s41")
    NMID = P.get("t2_nmid", 4)
    assert NTAIL + NMID <= 20
    for g in wt()[NTAIL:NTAIL+NMID]: A.ins += g
    signal(A, 24, "out")
    A.stamp(1)
    for g in wt()[NTAIL+NMID:]: A.ins += g
    k4_phase(A, None)
    qt = lambda: tile_dmas([0, 1, 2, 3], sl4, 77, 76, 78, lambda t: f"q{t}")
    if SK:
        k5_phase(A, lambda t: tile_dmas([t], sl4, 77, 76, 78, lambda t: f"q{t}"), P.get("k5_nmid", 6))
    else:
        A("s_lshl_b32 s24, s85, 5")
        A("s_add_u32 s24, s24, s84")
        A("s_lshl_b32 s24, s24, 2")
        A("s_add_u32 s24, s24, s41")
        A("s_add_u32 s24, s24, 1024")
        t2_setup(A, 144, G.HF, G.W2, 1, 2)
        signal(A, 24, "hout")
        A.stamp(8)
        k1_decode(A, None)
        A("s_lshr_b32 s25, s80, 2")
        A("s_lshl_b32 s25, s25, 7")
        A("s_add_u32 s25, s25, s41")
        A("s_add_u32 s25, s25, 1024")
        WPRE = 5
        poll(A, 25, 32, True)
        A.stamp(9)
        A("s_cmp_lg_u32 s83, 0")
        A("s_cbranch_scc1 K5_N5")
        A.save("k5n5")
        qt = lambda: tile_dmas([0, 1, 2, 3], sl4, 77, 76, 78, lambda t: f"q{t}")
        for NT, pfx in ((4, "K5A"), (5, "K5B")):
            if NT == 5:
                A.label("K5_N5"); A.restore("k5n5")
            X, RES, left = t2_main(A, NT, 144, pfx, WPRE, " sc1", qt()[:NTAIL], None, None)
            assert not left
            A.stamp(10)
            A("s_cmp_lg_u32 s40, 0")
            A(f"s_cbranch_scc1 {pfx}_FINAL")
            A.save(pfx + "fin")
            t2_store(A, NT, X, RES)
            A("s_branch K5_DONE")
            A.save(pfx + "done")
            A.label(f"{pfx}_FINAL")
            A.restore(pfx + "fin")
            for t in range(NT):
                A(f"buffer_store_dwordx2 v[{RES+2*t}:{RES+2*t+1}], v29, s[8:11], s31 offen offset:{t*32}")
            A("s_endpgm")
        A.label("K5_DONE")
        A.restore("K5Bdone")
        A("s_lshl_b32 s24, s80, 3")
        A("s_add_u32 s24, s24, s81")
        A("s_lshl_b32 s24, s24, 2")
        A("s_add_u32 s24, s24, s41")
        A("s_add_u32 s24, s24, 2048")
        for g in qt()[NTAIL:NTAIL+NMID]: A.ins += g
        signal(A, 24, "out")
        A.stamp(11)
        A("s_cmp_ge_u32 s87, 15")
        A("s_cbranch_scc1 CH_END")
        for g in qt()[NTAIL+NMID:]: A.ins += g
    if P.get("pf", 1):
        A("s_lshr_b32 s29, s2, 3")
        A("s_lshl_b32 s29, s29, 2")
        A("s_add_u32 s29, s29, s3")
        G.code_prefetch(A, "k2_kernel", "CODE_END", 12, 29, 1, 248)
    k1_phase(A, "K1C", 2, True)
    A.label("CH_END")
    A("s_endpgm")
    text = finalize(A)
    first = True
    for n, fl in names:
        G.kernels.append((n, text if first else "", 512, 256, 96))
        first = False
    return [(n, 256, 256, LDS_BYTES) for n, fl in names]
```

```python
from asmlib import *
import gen as G
from chain import *
import att
SOLO = P.get("solo", 1)
EARLY = SOLO and P.get("early", 0)

def k1_join(A, L):
    A.label(f"{L}_JOIN")
    A.fence()
    if SOLO and L == "K1S":
        A("v_and_b32 v30, 7, v0")
        A(f"v_lshlrev_b32 v30, {2+FSH}, v30")
        A(f"s_mov_b32 s38, {G.FLG + ((7168 + (158 if EARLY else 182)*4) << FSH)}")
        spin_flags(A, "ZBRDY", 30, 31, 4, "s38", 8)
    A.waitall()
    A.stamp("kj" + L)
    A("""
    s_lshl_b32 s24, s87, 4
    s_add_u32 s24, s24, s86
    s_lshl_b32 s24, s24, 2
    s_add_u32 s24, s24, s41
    s_add_u32 s24, s24, 4096
    """)
    if P.get("q_atomic", 0):
        A("s_andn2_b32 s24, s24, 63")
    A("s_barrier")
    B = Asm(); flag_store(B, 24)
    for i in B.ins:
        if P.get("q_atomic", 0) and "buffer_store_dword" in i.text:
            i.text = i.text.replace("buffer_store_dword", "buffer_atomic_add").replace(" sc1", "")
    A.extend(B)
    if EARLY and L == "K1S":
        A(f"""
        s_cmp_lt_u32 s2, 128
        s_cbranch_scc1 KM_NOFW
        s_cmp_lg_u32 s3, 1
        s_cbranch_scc1 KM_NOFW
        s_sub_u32 s24, s2, 128
        s_sub_u32 s25, s2, 40
        s_cmp_lt_u32 s2, 168
        s_cselect_b32 s25, s24, s25
        v_mov_b32 v30, s24
        v_mov_b32 v31, s25
        v_and_b32 v29, 2, v0
        v_cmp_eq_u32 vcc, 2, v29
        v_cndmask_b32 v30, v30, v31, vcc
        v_lshlrev_b32 v30, 1, v30
        v_and_b32 v29, 1, v0
        v_add_u32 v30, v30, v29
        v_lshlrev_b32 v30, {2+FSH}, v30
        v_mov_b32 v31, 1
        s_mov_b32 s24, {G.FLG + (5120 << FSH)}
        s_mov_b64 exec, 15
        """)
        A.raw(" buffer_store_dword v31, v30, s[4:7], s24 offen sc1")
        A("s_mov_b64 exec, -1")
        A.label("KM_NOFW")

def wo_prefetch():
    B = Asm()
    for st in range(5):
        for t in range(5):
            B(f"s_add_u32 s30, s87, {t*18*1024 + st*4096}")
            B(f"buffer_load_dwordx4 {r(t2_buf(st, 4+t), 4)}, v1, s[4:7], s30 offen sc1", tag=f"l{st}")
    return groups_vm(B.ins)

def pre_att(A):
    t2_decode(A)
    k4_decode(A)
    A(f"""
    s_mul_i32 s87, s82, {18*1024}
    s_add_u32 s87, s87, {G.WO}
    s_add_u32 s87, s87, s78
    """)

def spin_flags(A, lab, vaddr, vdat, srd, soff, nl):
    R = A.raw
    R("    s_mov_b32 s39, 0x20000")
    R(f"    s_mov_b64 exec, {hex((1 << nl) - 1)}")
    R(f"{lab}:")
    R(f"    buffer_load_dword v{vdat}, v{vaddr}, s[{srd}:{srd+3}], {soff} offen sc1")
    R("    s_waitcnt vmcnt(0)")
    R(f"    v_cmp_ne_u32 vcc, 1, v{vdat}")
    R("    s_nop 1")
    R("    s_and_b64 exec, exec, vcc")
    R(f"    s_cbranch_scc0 {lab}_X")
    R("    s_sleep 4")
    R("    s_sub_u32 s39, s39, 1")
    R("    s_cmp_lg_u32 s39, 0")
    R(f"    s_cbranch_scc1 {lab}")
    R(f"{lab}_X:")
    R("    s_mov_b64 exec, -1")

def gen_mega():
    name = "km_kernel"
    A = G.begin(name)
    if SOLO:
        A("s_load_dwordx16 s[64:79], s[0:1], 0")
        A("s_load_dwordx4 s[80:83], s[0:1], 64")
    else:
        A("s_load_dwordx2 s[82:83], s[0:1], 72")
        A("s_load_dwordx2 s[78:79], s[0:1], 56")
    A(f"""
    s_cmp_lt_u32 s2, 256
    s_cbranch_scc1 KM_GO
    s_endpgm
    """)
    A.label("KM_GO")
    if P.get("perm"):
        A("s_and_b32 s3, s2, 7")
        A("s_lshl_b32 s3, s3, 5")
        A("s_lshr_b32 s2, s2, 3")
        A("s_or_b32 s2, s2, s3")
    A(f"""
    s_mov_b32 s40, 0
    s_mov_b32 s41, 0
    s_mov_b32 s42, {G.XF}
    s_mov_b32 s43, {G.ST}
    s_mov_b32 s100, 0
    s_mov_b32 s101, 0
    """)
    G.wave_id(A, 3)
    A.waitall()
    G.srd(A, 4, 82, G.WS_USED)
    if SOLO:
        G.srd(A, 16, 80, 256)
        A("s_mov_b32 s84, s78")
        A("s_mov_b32 s85, s79")
        if P.get("wqpf", 1):
            A("s_cmp_lt_u32 s2, 192")
            A("s_cbranch_scc1 KM_NOWQ")
            G.srd(A, 8, 66, G.D * 3 * G.D * 2)
            A("""
            s_sub_u32 s29, s2, 192
            s_lshl_b32 s29, s29, 15
            v_lshlrev_b32 v1, 4, v0
            """)
            for k in range(8):
                A(f"buffer_load_dwordx4 v[{200+4*k}:{203+4*k}], v1, s[8:11], s29 offen")
                A("s_add_u32 s29, s29, 4096")
            A.label("KM_NOWQ")
        B = Asm()
        nj = G.k0_body(B)
        for i in B.ins:
            if i.text.startswith("buffer_store"): i.text += " sc1"
            if i.text.startswith("s_") and " s19," in i.text: i.text = "s_nop 0"
        A.extend(B)
        A.fence()
        A.stamp("p0")
        if not EARLY:
            A("""
            s_cmp_lt_u32 s2, 152
            s_cbranch_scc1 KM_NOPF
            s_lshr_b32 s29, s2, 3
            s_sub_u32 s29, s29, 19
            s_lshl_b32 s29, s29, 2
            s_add_u32 s29, s29, s3
            v_and_b32 v1, 63, v0
            v_lshlrev_b32 v1, 4, v1
            """)
            G.code_prefetch(A, "ATB_BEGIN", "CODE_END", 12, 29, 1, 248, nper=3, stride=52*1024, back=True)
            A.label("KM_NOPF")
        else:
            A("s_cmp_ge_u32 s2, 168")
            A("s_cbranch_scc1 KM_SIDE")
        XID = P.get("xid", 1)
        if XID:
            A("""
            s_cmp_lg_u32 s3, 1
            s_cbranch_scc1 KM_NOTK
            s_getreg_b32 s26, hwreg(HW_REG_XCC_ID)
            s_and_b32 s26, s26, 7
            s_mov_b32 s27, 8
            v_mov_b32 v28, 0
            s_mov_b64 exec, 1
            """)
            A.label("KM_TK")
            A("""
            v_mov_b32 v29, 1
            s_lshl_b32 s28, s26, 2
            s_add_u32 s28, s28, 128
            buffer_atomic_add v29, v28, s[16:19], s28 offen sc0
            s_waitcnt vmcnt(0)
            v_readfirstlane_b32 s29, v29
            s_cmp_lt_u32 s29, 32
            s_cbranch_scc1 KM_TKOK
            s_add_u32 s26, s26, 1
            s_and_b32 s26, s26, 7
            s_sub_u32 s27, s27, 1
            s_cmp_lg_u32 s27, 0
            s_cbranch_scc1 KM_TK
            """)
            A.label("KM_TKOK")
            A(f"""
            s_lshl_b32 s29, s29, 3
            s_add_u32 s29, s29, s26
            s_and_b32 s29, s29, 255
            v_mov_b32 v29, s29
            v_mov_b32 v28, {LDS_BYTES - 16}
            ds_write_b32 v28, v29
            s_mov_b64 exec, -1
            """)
            A.label("KM_NOTK")
        A("v_and_b32 v30, 3, v0")
        A("v_lshlrev_b32 v30, 2, v30")
        spin_flags(A, "ZRDY", 30, 31, 16, "0", 4)
        A.waitall()
        if XID:
            A("s_barrier")
            A(f"v_mov_b32 v28, {LDS_BYTES - 16}")
            A("ds_read_b32 v29, v28")
            A(f"""
            s_cmp_ge_u32 s2, {nj - 1}
            s_cbranch_scc1 KM_NOSIG
            s_lshl_b32 s24, s2, 2
            s_add_u32 s24, s24, 7168
            """)
        else:
            A(f"""
            s_cmp_ge_u32 s2, {nj - 1}
            s_cbranch_scc1 KM_NOSIG
            s_barrier
            s_lshl_b32 s24, s2, 2
            s_add_u32 s24, s24, 7168
            """)
        flag_store(A, 24)
        A.label("KM_NOSIG")
        if XID:
            A.waitall(vm=False)
            A("v_readfirstlane_b32 s2, v29")
            A("s_and_b32 s2, s2, 255")
        if EARLY:
            A("s_cmp_lt_u32 s2, 128")
            A("s_cbranch_scc1 KM_K1")
            A.label("KM_SIDE")
            A.reset()
            A("v_and_b32 v1, 63, v0")
            A("v_lshlrev_b32 v1, 4, v1")
            def pf0(B):
                B("s_lshr_b32 s29, s2, 3")
                B("s_sub_u32 s29, s29, 21")
                B("s_lshl_b32 s29, s29, 2")
                B("s_add_u32 s29, s29, s3")
                G.code_prefetch(B, "SE_DONE", "CODE_END", 12, 29, 1, 248, nper=3, stride=44*1024)
            att.side_early(A, pf0)
            G.srd(A, 16, 80, 256)
            A("v_and_b32 v30, 3, v0")
            A("v_lshlrev_b32 v30, 2, v30")
            spin_flags(A, "ZRDY2", 30, 31, 16, "0", 4)
            A.waitall()
            A.stamp("p2")
            A.label("KM_K1")
        G.srd(A, 8, 84, G.S * G.D * 2)
    else:
        G.srd(A, 8, 78, G.S * G.D * 2)
    k1_decode(A, None)
    A("""
    v_and_b32 v1, 63, v0
    v_lshlrev_b32 v1, 4, v1
    """)
    if SOLO:
        A(f"""
        s_lshl_b32 s24, s87, 2
        s_add_u32 s24, s24, 64
        s_mov_b32 s25, 3
        s_mul_i32 s26, s87, 3
        s_add_u32 s26, s26, {112 - 27}
        s_cmp_ge_u32 s87, 9
        s_cselect_b32 s24, s26, s24
        s_cselect_b32 s25, 2, s25
        s_cmp_eq_u32 s87, 8
        s_cselect_b32 s25, 7, s25
        s_cmp_eq_u32 s87, 15
        s_cselect_b32 s24, 104, s24
        s_cselect_b32 s25, 7, s25
        v_and_b32 v30, 7, v0
        v_min_u32 v30, s25, v30
        v_add_u32 v30, s24, v30
        s_lshl_b32 s26, s86, 2
        s_add_u32 s26, s26, s3
        v_mov_b32 v31, s26
        v_and_b32 v29, 8, v0
        v_cmp_eq_u32 vcc, 8, v29
        v_cndmask_b32 v30, v30, v31, vcc
        v_lshlrev_b32 v30, {2+FSH}, v30
        s_mov_b32 s38, {G.FLG + (7168 << FSH)}
        """)
        if not XFIRST:
            spin_flags(A, "PRDY", 30, 31, 4, "s38", 9)
            A.stamp("p1")
    C = Asm()
    def hook(B):
        B("v_mov_b32 v32, v30")
        B(f"s_lshl_b32 s24, s26, {2+FSH}")
        B("v_mov_b32 v33, s24")
        B(f"s_mov_b32 s38, {G.FLG + (7168 << FSH)}")
        spin_flags(B, "XRDY", 33, 34, 4, "s38", 1)
        B.stamp("px")
        stats_load(B, 1, 29, 16, 12, "")
        for ks in range(36):
            B(f"s_add_u32 s30, s23, {(ks//4)*4096}")
            B(f"buffer_load_dwordx4 a[{4*ks}:{4*ks+3}], v1, s[4:7], s30 offen offset:{(ks%4)*1024}", tag=f"x{ks}")
        spin_flags(B, "PRDY", 32, 34, 4, "s38", 8)
        B.waitall()
        B.stamp("p1")
    k1_phase(C, "K1S", 0, False, hook if XFIRST else None)
    for i in C.ins:
        if SOLO and i.text.startswith("buffer_load") and "sc1" not in i.text and not i.text.endswith(" lds"): i.text += " sc1"
    A.extend(C)
    k1_join(A, "K1S")
    A.stamp("k1e")
    if EARLY: A.label("CH_ATT")
    pre_att(A)
    def pfc(B):
        B("s_lshr_b32 s29, s2, 3")
        B("s_lshl_b32 s29, s29, 2")
        B("s_add_u32 s29, s29, s3")
        G.code_prefetch(B, "K3_DONE", "K1C_JOIN", 12, 29, 1, 248)
    att.att_phase(A, "ATA", not EARLY, wo_prefetch, pfc if P.get("pf2", 1) else None)
    A.label("CH_K3")
    A.fence()
    sl4 = lambda t: t
    t2_setup(A, 18, G.OF, G.WO, 0, 1)
    A(f"""
    s_mul_i32 s24, s84, 9
    s_lshr_b32 s24, s24, 2
    s_lshr_b32 s25, s2, 6              ; cgp
    s_mul_i32 s25, s25, 9
    s_lshr_b32 s25, s25, 2
    s_and_b32 s26, s2, 3
    s_mul_i32 s26, s26, 18
    s_add_u32 s25, s25, s26
    s_add_u32 s25, s25, 144
    v_bfe_u32 v30, v0, 1, 2
    v_min_u32 v30, 2, v30              ; 0..2
    v_bfe_u32 v31, v0, 3, 1
    v_bfe_u32 v26, v0, 4, 1
    v_cmp_eq_u32 vcc, 1, v26
    v_mov_b32 v26, 72
    v_cndmask_b32 v26, v26, 9, vcc
    v_mul_u32_u24 v31, v31, v26
    v_add_u32 v30, v30, v31
    v_mov_b32 v31, s24
    v_mov_b32 v26, s25
    v_cndmask_b32 v31, v31, v26, vcc
    v_add_u32 v30, v30, v31
    v_lshlrev_b32 v30, 1, v30
    v_and_b32 v31, 1, v0
    v_add_u32 v30, v30, v31
    v_lshlrev_b32 v30, {2+FSH}, v30
    s_mov_b32 s25, {G.FLG + (5120 << FSH)}
    """)
    A("v_mov_b32 v26, v30")
    A.raw(" buffer_load_dword v25, v26, s[4:7], s25 offen sc1")
    A("s_waitcnt vmcnt(1)")
    A("s_mov_b64 exec, 1")
    A("buffer_store_dword v99, v98, s[4:7], s86 offen sc1")
    A("s_mov_b64 exec, -1")
    A.stamp("ate")
    wt = lambda: tile_dmas([0, 1, 2, 3], sl4, 77, 76, 78, lambda t: f"w{t}" if t < 3 else "t3")
    NPRE = 0
    R2 = P.get("red2", 0)
    NTAIL = P.get("m_ntail", 22 if R2 else 16); NMID = P.get("m_nmid", 4)
    assert NPRE + NTAIL + NMID <= (26 if R2 else 20)
    A("s_lshl_b32 s24, s80, 7")
    A("s_add_u32 s24, s24, s41")
    A("s_add_u32 s24, s24, 16384")
    poll(A, 24, 32, P.get('k3_allw', 0))
    A.waitall()
    flagchk(A, "WRDY", "fw", 25, 26, 25)
    A.stamp("k3p")
    A("s_cmp_lg_u32 s83, 0")
    A("s_cbranch_scc1 K3_N5")
    A.save("k3n5")
    for NT, pfx in ((4, "K3A"), (5, "K3B")):
        if NT == 5:
            A.label("K3_N5"); A.restore("k3n5")
        X, RES, left = t2_main(A, NT, 18, pfx, 5, " sc1", wt()[NPRE:NPRE+NTAIL], "bar", None)
        t2_store(A, NT, X, RES)
        if NT == 4: A("s_branch K3_DONE")
    A.label("K3_DONE")
    A.stamp("t3")
    A("s_lshl_b32 s24, s80, 3")
    A("s_add_u32 s24, s24, s81")
    A("s_lshl_b32 s24, s24, 2")
    A("s_add_u32 s24, s24, s41")
    for g in wt()[NPRE+NTAIL:NPRE+NTAIL+NMID]: A.ins += g
    signal(A, 24, "out")
    A.stamp("k3e")
    if R2:
        for g in wt()[NPRE+NTAIL+NMID:26]: A.ins += g
        late = wt()[26:]
        for g in late: g[-1].tag = "l" + g[-1].tag
        k4_phase(A, late)
    else:
        for g in wt()[NPRE+NTAIL+NMID:]: A.ins += g
        k4_phase(A, None)
    k5_phase(A, lambda t: tile_dmas([t], sl4, 77, 76, 78, lambda t: f"q{t}"), P.get("k5_nmid", 6))
    if P.get("pf2", 1) and not EARLY:
        A("s_lshr_b32 s29, s2, 3")
        A("s_lshl_b32 s29, s29, 2")
        A("s_add_u32 s29, s29, s3")
        G.code_prefetch(A, "ATB_BEGIN", "ATB_END", 12, 29, 1, 248, back=True)
    k1_phase(A, "K1C", 0, True)
    if EARLY:
        k1_join(A, "K1C")
        A.stamp("k1e2")
        A("s_branch CH_ATT")
    else:
        A.label("K1C_JOIN")
        A("s_getpc_b64 s[24:25]")
        A.label("FARJ")
        A("s_sub_u32 s24, s24, FARJ-K1D_JOIN")
        A("s_subb_u32 s25, s25, 0")
        A("s_setpc_b64 s[24:25]")
        F = Asm()
        F.label("ATB_BEGIN")
        k1_join(F, "K1D")
        F.stamp("k1e2")
        pre_att(F)
        att.att_phase(F, "ATB", False, wo_prefetch)
        F("s_branch CH_K3")
        F.label("ATB_END")
        A.ins = F.ins + A.ins
    A.label("CH_END")
    A("s_endpgm")
    for i in A.ins:
        if i.text.endswith(" lds") and "sc1" not in i.text: i.text = i.text[:-4] + " sc1 lds"
    G.end(A, name, 512, 256, ns=102)
    return (name, 256, 256, LDS_BYTES)
```

```python
from asmlib import *
import gen as G
from t1 import *
import k4 as K4M
P = G.P
QSCALE = (18 ** -0.5) * LOG2E
SK = P.get("sk", 1)
MEGA = P.get("mega", 1)
K45 = P.get("k45", 1)
XFIRST = MEGA and P.get("solo", 1) and P.get("xfirst", 0)
X2I = 0 if (MEGA and P.get("xreuse", 0)) else 2
LO = (lambda r_: f"s_add_u32 s{r_}, s{r_}, s100") if MEGA else (lambda r_: "")
LO2 = (lambda r_: "") if G.REUSE else LO
FSH = P.get("fsh", 5)
RED = 102400 if (MEGA and P.get('red2', 0)) else 2 * G.T1S
LDS_BYTES = 163840


def signal(A, nflag_sgpr, store_tag):
    A.wait(store_tag)
    A.stamp("sg" + store_tag + str(nflag_sgpr))
    A("s_barrier")
    lab = f"SIG{signal.n}"; signal.n += 1
    A("s_cmp_lg_u32 s3, 0")
    A(f"s_cbranch_scc1 {lab}")
    A.raw("    s_mov_b64 exec, 1")
    A.raw("    v_mov_b32 v30, 0")
    A.raw("    v_mov_b32 v31, 1")
    A.raw(f"    s_lshl_b32 s38, s{nflag_sgpr}, {FSH}")
    A.raw(f"    s_add_u32 s38, s38, {G.FLG}")
    A.raw(f"    buffer_store_dword v31, v30, s[4:7], s38 offen sc1")
    A.raw("    s_mov_b64 exec, -1")
    A.label(lab)
signal.n = 0

def poll(A, base_sgpr, n, allwaves=False):
    lab = f"POLL{poll.n}"; poll.n += 1
    if not allwaves:
        A("s_cmp_lg_u32 s3, 0")
        A(f"s_cbranch_scc1 {lab}_D")
    R = A.raw
    R(f"    v_and_b32 v30, {n-1}, v0")
    R(f"    v_lshlrev_b32 v30, {2+FSH}, v30")
    R(f"    s_lshl_b32 s38, s{base_sgpr}, {FSH}")
    R(f"    s_add_u32 s38, s38, {G.FLG}")
    R("    s_mov_b32 s39, 0x20000")
    if n < 64: R(f"    s_mov_b64 exec, {hex((1 << n) - 1)}" if n < 32 else "    s_mov_b32 exec_hi, 0")
    PP = P.get("pp", 1)
    if PP > 1:
        regs = [253, 254, 255][:PP]
        for k, rg in enumerate(regs):
            R(f"    buffer_load_dword v{rg}, v30, s[4:7], s38 offen sc1")
            if k + 1 < PP: R(f"    s_sleep {P.get('pp_sl', 5)}")
        R(f"{lab}:")
        for rg in regs:
            R(f"    s_waitcnt vmcnt({PP-1})")
            R(f"    v_cmp_ne_u32 vcc, 1, v{rg}")
            R("    s_nop 1")
            R("    s_and_b64 exec, exec, vcc")
            R(f"    s_cbranch_scc0 {lab}_X")
            R(f"    buffer_load_dword v{rg}, v30, s[4:7], s38 offen sc1")
        R("    s_sub_u32 s39, s39, 1")
        R("    s_cmp_lg_u32 s39, 0")
        R(f"    s_cbranch_scc1 {lab}")
    else:
        R(f"{lab}:")
        R(f"    buffer_load_dword v31, v30, s[4:7], s38 offen sc1")
        R("    s_waitcnt vmcnt(0)")
        R("    v_cmp_ne_u32 vcc, 1, v31")
        R("    s_nop 1")
        R("    s_and_b64 exec, exec, vcc")
        R(f"    s_cbranch_scc0 {lab}_X")
        R(f"    s_sleep {P.get('sleep', 1)}")
        R("    s_sub_u32 s39, s39, 1")
        R("    s_cmp_lg_u32 s39, 0")
        R(f"    s_cbranch_scc1 {lab}")
    R(f"{lab}_X:")
    R("    s_mov_b64 exec, -1")
    A.label(f"{lab}_D")
    if not allwaves: A("s_barrier")
poll.n = 0

def t2_decode(A):
    if P.get("k3map", 0):
        A("""
        s_and_b32 s80, s2, 7
        s_lshl_b32 s80, s80, 2
        s_bfe_u32 s27, s2, 0x20003
        s_add_u32 s80, s80, s27
        s_lshr_b32 s81, s2, 5
        """)
    else:
        A("""
        s_and_b32 s24, s2, 7
        s_lshr_b32 s25, s2, 3
        s_lshr_b32 s80, s24, 1
        s_lshl_b32 s80, s80, 3
        s_and_b32 s27, s25, 7
        s_add_u32 s80, s80, s27
        s_and_b32 s81, s24, 1
        s_lshl_b32 s81, s81, 2
        s_lshr_b32 s28, s25, 3
        s_add_u32 s81, s81, s28
        """)
    A("""
    s_lshr_b32 s82, s81, 1
    s_mul_i32 s82, s82, 9
    s_and_b32 s83, s81, 1
    s_lshl_b32 s34, s83, 2
    s_add_u32 s82, s82, s34            ; nt0
    """)

def t2_setup(A, KS, ACT, WP, xin, xout):
    A(f"""
    v_and_b32 v1, 63, v0
    v_lshlrev_b32 v1, 4, v1
    s_mov_b32 s34, s3
    """)
    for i in range(4):
        A(f"s_mul_i32 s35, s34, {KS*1024}")
        A(f"v_add_u32 v{2+i}, s35, v1")
        if i > 0:
            A(f"s_mul_i32 s35, s34, 15360")
            A(f"s_add_u32 s35, s35, {RED + (i-1)*5120}")
            A(f"v_add_u32 v{11+i}, s35, v1")
        A("s_add_u32 s34, s34, 1")
        A("s_and_b32 s34, s34, 3")
    A(f"""
    v_mov_b32 v6, v1
    v_add_u32 v7, {KS*1024}, v1
    v_add_u32 v8, {2*KS*1024}, v1
    v_add_u32 v9, {3*KS*1024}, v1
    v_add_u32 v10, {4*KS*1024}, v1
    s_lshl_b32 s34, s3, 10
    s_mul_i32 s20, s80, {4*KS*1024}
    s_add_u32 s20, s20, {ACT}
    {LO2(20)}
    s_add_u32 s20, s20, s34
    s_mul_i32 s21, s82, {KS*1024}
    s_add_u32 s21, s21, {WP}
    s_add_u32 s21, s21, s34
    v_and_b32 v11, 15, v0
    v_lshlrev_b32 v11, 4, v11
    v_bfe_u32 v28, v0, 5, 1
    v_lshlrev_b32 v28, 9, v28
    v_add_u32 v11, v11, v28
    v_bfe_u32 v28, v0, 4, 1
    v_lshlrev_b32 v28, 3, v28
    v_add_u32 v11, v11, v28
    s_lshl_b32 s28, s80, 1
    s_lshr_b32 s29, s3, 1
    s_add_u32 s28, s28, s29            ; rb32
    s_mul_i32 s28, s28, 36
    s_add_u32 s28, s28, s82
    s_lshl_b32 s28, s28, 10
    s_and_b32 s29, s3, 1
    s_lshl_b32 s29, s29, 8
    s_add_u32 s28, s28, s29
    s_add_u32 s28, s28, s42
    s_add_u32 s22, s28, {xout*G.XSZ}
    s_add_u32 s23, s22, 4096
    s_add_u32 s28, s28, {xin*G.XSZ}
    s_add_u32 s29, s28, 4096
    s_mul_i32 s34, s3, 15360
    s_add_u32 s34, s34, {RED}
    v_add_u32 v27, s34, v1             ; lds read addr
    v_and_b32 v15, 15, v0
    v_mul_u32_u24 v29, 1152, v15
    v_lshlrev_b32 v15, 3, v15
    s_lshl_b32 s34, s80, 2
    s_add_u32 s34, s34, s3             ; rb16
    s_lshl_b32 s30, s34, 10
    s_lshl_b32 s35, s81, 7
    s_add_u32 s30, s30, s35
    s_add_u32 s30, s30, s43
    s_add_u32 s36, s30, {xout*G.SSZ}
    v_bfe_u32 v28, v0, 4, 2
    v_lshlrev_b32 v28, 3, v28
    v_add_u32 v29, v29, v28
    s_mul_i32 s31, s34, 18432
    s_lshl_b32 s35, s82, 5
    s_add_u32 s31, s31, s35
    """)

DEPTH = 6
def t2_buf(st, i):
    if MEGA: return 256 + 16 * st + 4 * i if i < 4 else 256 + 156 + 20 * st + 4 * (i - 4)
    return 256 + (st % DEPTH) * 36 + 4 * i
def t2_wload(A, NT, st):
    off = st * 4096
    A(f"s_add_u32 s37, s21, {off}")
    for t in range(NT):
        A(f"buffer_load_dwordx4 {r(t2_buf(st, 4+t), 4)}, v{6+t}, s[4:7], s37 offen", tag=f"l{st}")
def t2_aload(A, st, sc):
    if MEGA and st == 4:
        A(f"""
        v_bfe_u32 v30, v0, 4, 2
        v_lshlrev_b32 v30, 15, v30
        v_and_b32 v31, 15, v0
        v_lshlrev_b32 v31, 2, v31
        v_add_u32 v30, v30, v31
        s_and_b32 s37, s3, 1
        s_lshl_b32 s37, s37, 17
        s_lshl_b32 s34, s80, 8
        s_add_u32 s37, s37, s34
        s_add_u32 s37, s37, {G.OE}
        """)
        for i in range(4):
            A(f"s_add_u32 s34, s3, {i}")
            A("s_and_b32 s34, s34, 3")
            A("s_lshl_b32 s34, s34, 6")
            A("s_add_u32 s34, s34, s37")
            for j in range(4):
                A(f"buffer_load_dword {r(t2_buf(st, i) + j)}, v30, s[4:7], s34 offen{sc}", tag=f"l{st}")
                if j < 3: A("s_add_u32 s34, s34, 8192")
        return
    A(f"s_add_u32 s37, s20, {st*4096}")
    for i in range(4):
        A(f"buffer_load_dwordx4 {r(t2_buf(st, i), 4)}, v{2+i}, s[4:7], s37 offen{sc}", tag=f"l{st}")

def t2_main(A, NT, KS, pfx, wpre, sc, extra_vm, mid_hook, st0):
    nsteps = (KS + 3) // 4
    partial_last = (KS % 4) != 0
    ACC, RES = 32, 16
    def stage_loads(st):
        B = Asm()
        if st >= wpre: t2_wload(B, NT, st)
        t2_aload(B, st, sc)
        return B.ins
    PRE = min(P.get("t2_pre", 4 if MEGA else 2), nsteps)
    for st in range(PRE): A.ins += stage_loads(st)
    for t in range(NT if mid_hook != "pre" else 0):
        so, im = (28, t * 1024) if t < 4 else (29, 0)
        A(f"buffer_load_dwordx2 v[{RES+2*t}:{RES+2*t+1}], v11, s[4:7], s{so} offen offset:{im}{sc}", tag="res")
    if mid_hook == "bar": A("s_barrier")
    M = Asm(); marks = {}
    for st in range(nsteps):
        marks[st] = len(M.ins)
        M.wait(f"l{st}")
        if st == 0: M.stamp("t0")
        if st == 0 and st0 is not None: M.stamp(st0)
        if partial_last and st == nsteps - 1:
            M(f"s_cmp_ge_u32 s3, {KS % 4}")
            M(f"s_cbranch_scc1 {pfx}_SKIP")
        for mt in range(4):
            for t in range(NT):
                acc = ACC + 4 * (mt * NT + t)
                c = "0" if st == 0 else f"v[{acc}:{acc+3}]"
                M(f"v_mfma_f32_16x16x32_bf16 v[{acc}:{acc+3}], {r(t2_buf(st, 4+t), 4)}, {r(t2_buf(st, mt), 4)}, {c}")
    S_ = Sched(M.ins)
    first = []
    for st in range(PRE, min(DEPTH - 1, nsteps)): first += groups_vm(stage_loads(st))
    S_.release(0, "vm", first, every=1)
    for st in range(nsteps):
        n = st + DEPTH - 1
        if n < nsteps and n >= min(DEPTH - 1, nsteps):
            S_.release(marks[st], "vm", groups_vm(stage_loads(n)))
    out, rest = S_.run(gap=8, vm_every=1)
    check_tags(out + rest)
    assert not rest
    T = Asm()
    lastld = max([i for i, x in enumerate(out) if x.text.startswith("buffer_load")], default=-1)
    A.ins += out[:lastld + 1]
    T.ins += out[lastld + 1:]
    if partial_last: T.label(f"{pfx}_SKIP")
    T("s_nop 7")
    T.stamp("t1")
    for mt in range(1, 4):
        for t in range(NT):
            acc = ACC + 4 * (mt * NT + t)
            T(f"ds_write_b128 v{11+mt}, v[{acc}:{acc+3}] offset:{t*1024}")
    T.wait("res")
    X = ACC + 16 * NT
    for t in range(NT):
        for j in range(2):
            T(f"v_lshlrev_b32 v{X+4*t+2*j}, 16, v{RES+2*t+j}")
            T(f"v_and_b32 v{X+4*t+2*j+1}, 0xffff0000, v{RES+2*t+j}")
    for i in range(4 * NT): T(f"v_add_f32 v{X+i}, v{X+i}, v{ACC+i}")
    T.waitall(vm=False)
    T("s_barrier")
    tl, left = pace(T.ins, extra_vm or [], P.get("t2_pace", 70), first=P.get("t2_first", 100))
    A.ins += tl
    if left: print(pfx, "tail leftover", len(left))
    for g in left: A.ins += g
    left = []
    A.stamp("t2")
    for k in range(3):
        for t in range(NT):
            d = ACC + 4 * ((k + 1) * NT + t)
            A(f"ds_read_b128 v[{d}:{d+3}], v27 offset:{k*5120+t*1024}", tag=f"rd{k}")
    for k in range(3):
        A.wait(f"rd{k}")
        for i in range(4 * NT):
            A(f"v_add_f32 v{X+i}, v{X+i}, v{ACC+4*(k+1)*NT+i}")
    for i in range(2 * NT):
        A(f"v_cvt_pk_bf16_f32 v{RES+i}, v{X+2*i}, v{X+2*i+1}")
    return X, RES, left

def widen(A, RES):
    for p in range(2):
        for k in range(2):
            A(f"v_permlane16_swap_b32 v{RES+4*p+k}, v{RES+4*p+2+k}")

def final_store(A, NT, RES):
    A("""
    v_bfe_u32 v28, v0, 4, 1
    v_lshlrev_b32 v28, 5, v28
    v_bfe_u32 v30, v0, 5, 1
    v_lshlrev_b32 v30, 4, v30
    v_and_b32 v31, 15, v0
    v_mul_u32_u24 v31, 1152, v31
    v_add3_u32 v28, v28, v30, v31
    """)
    widen(A, RES)
    for p in range(2):
        A(f"buffer_store_dwordx4 v[{RES+4*p}:{RES+4*p+3}], v28, s[8:11], s31 offen offset:{p*64}")
    if NT == 5: A(f"buffer_store_dwordx2 v[{RES+8}:{RES+9}], v29, s[8:11], s31 offen offset:128")

def t2_store(A, NT, X, RES):
    A("""
    v_bfe_u32 v28, v0, 4, 1
    v_lshlrev_b32 v28, 10, v28
    v_bfe_u32 v30, v0, 5, 1
    v_lshlrev_b32 v30, 9, v30
    v_and_b32 v31, 15, v0
    v_lshlrev_b32 v31, 4, v31
    v_add3_u32 v30, v28, v30, v31
    """)
    widen(A, RES)
    for p in range(2):
        A(f"buffer_store_dwordx4 v[{RES+4*p}:{RES+4*p+3}], v30, s[4:7], s22 offen offset:{p*2048} sc1", tag="out")
    if NT == 5: A(f"buffer_store_dwordx2 v[{RES+8}:{RES+9}], v11, s[4:7], s23 offen sc1", tag="out")
    for i in range(2 * NT):
        A(f"v_lshlrev_b32 v{X+2*i}, 16, v{RES+i}")
        A(f"v_and_b32 v{X+2*i+1}, 0xffff0000, v{RES+i}")
    def xreduce(dst):
        A(f"v_mov_b32 v28, v{dst}")
        A(f"v_permlane16_swap_b32 v{dst}, v28")
        A(f"v_add_f32 v{dst}, v{dst}, v28")
        A(f"v_mov_b32 v28, v{dst}")
        A(f"v_permlane32_swap_b32 v{dst}, v28")
        A(f"v_add_f32 v{dst}, v{dst}, v28")
    A(f"v_add_f32 v26, v{X}, v{X+1}")
    A(f"v_add_f32 v27, v{X+2}, v{X+3}")
    for i in range(4, 4 * NT): A(f"v_add_f32 v{26+(i&1)}, v{26+(i&1)}, v{X+i}")
    A("v_add_f32 v26, v26, v27")
    xreduce(26)
    A(f"v_mul_f32 v26, {hex(G.f32(1.0/(16*NT)))}, v26")
    A("v_mov_b32 v27, 0")
    for i in range(4 * NT):
        A(f"v_sub_f32 v{X+i}, v{X+i}, v26")
        A(f"v_fmac_f32 v27, v{X+i}, v{X+i}")
    xreduce(27)
    A("buffer_store_dwordx2 v[26:27], v15, s[4:7], s36 offen sc1", tag="out")

def tile_dmas(tiles, slot_of, s_srcw, s_src, s_ldsw, tag):
    B = Asm()
    for t in tiles:
        for c in range(10):
            if c < 9: dma(B, s_srcw, t * G.T1S + c * 4096, s_ldsw, slot_of(t) * G.T1S + c * 4096, 1, tag(t), stmp=38)
            else: dma(B, s_src, t * G.T1S + 36 * 1024, None, slot_of(t) * G.T1S + 36 * 1024, 1, tag(t), stmp=38)
    return groups_vm(B.ins)

def k4_decode(A):
    if P.get("k4map", 1) == 2:
        A("""
        s_and_b32 s84, s2, 1
        s_lshl_b32 s84, s84, 4
        s_bfe_u32 s25, s2, 0x40003
        s_add_u32 s84, s84, s25
        s_bfe_u32 s85, s2, 0x20001
        s_lshl_b32 s85, s85, 1
        s_lshr_b32 s25, s2, 7
        s_add_u32 s85, s85, s25
        """)
    elif P.get("k4map", 1):
        A("""
        s_and_b32 s84, s2, 3
        s_lshl_b32 s84, s84, 3
        s_bfe_u32 s25, s2, 0x30003
        s_add_u32 s84, s84, s25
        s_bfe_u32 s85, s2, 0x10002
        s_lshl_b32 s85, s85, 2
        s_lshr_b32 s25, s2, 6
        s_add_u32 s85, s85, s25
        """)
    else:
        A("""
        s_and_b32 s84, s2, 7
        s_lshl_b32 s84, s84, 2
        s_bfe_u32 s25, s2, 0x20003
        s_add_u32 s84, s84, s25
        s_lshr_b32 s85, s2, 5
        """)
    A(f"""
    s_lshl_b32 s78, s3, 10
    s_mul_i32 s76, s84, {9*G.T1S}
    s_add_u32 s76, s76, {G.W13}
    s_add_u32 s77, s76, s78
    """)

def k4_phase(A, tail_vm):
    def xreg(j, ks):
        if ks == 36: return 16 + 4 * j
        idx = j * 36 + ks
        if idx < 64: return 256 + 4 * idx
        return 24 + 4 * (idx - 64)
    sl = {0: 0, 1: 1, 2: 2, 3: 3, 4: 0, 5: 1, 6: 2, 7: 3, 8: 0}
    accreg = lambda t, j: 88 + 32 * sl[t] + 16 * j
    t1 = T1(2, xreg, accreg, 56, 8, lambda t: sl[t], 2)
    A(f"""
    v_mov_b32 v2, v1
    v_add_u32 v3, 0x10000, v1
    v_add_u32 v4, 0x20000, v1
    s_lshl_b32 s26, s85, 3
    s_lshl_b32 s27, s3, 1
    s_add_u32 s26, s26, s27
    s_mul_i32 s23, s26, 36864
    s_add_u32 s23, s23, s42
    s_add_u32 s23, s23, {G.XSZ}
    s_lshl_b32 s29, s26, 11
    s_add_u32 s29, s29, s43
    s_add_u32 s29, s29, {G.SSZ}
    v_bfe_u32 v5, v0, 4, 1
    v_mul_u32_u24 v5, {144*1024}, v5
    v_and_b32 v10, 15, v0
    v_lshlrev_b32 v10, 4, v10
    v_add_u32 v5, v5, v10
    v_bfe_u32 v10, v0, 5, 1
    v_lshlrev_b32 v10, 8, v10
    v_add_u32 v5, v5, v10
    s_mul_i32 s31, s26, {2*144*1024}
    s_mul_i32 s32, s84, {9*512}
    s_add_u32 s31, s31, s32
    s_add_u32 s31, s31, {G.HF}
    {LO2(31)}
    s_lshl_b32 s24, s26, 4
    s_add_u32 s24, s24, s41
    s_mul_i32 s79, s82, {144*1024}
    s_add_u32 s79, s79, {G.W2}
    s_add_u32 s79, s79, s78
    """)
    if SK: k5_decode(A)
    if not SK: A.stamp(2)
    BF = MEGA and P.get("bf", 1)
    if BF:
        A.wait("w0", "w1", "w2", "t3")
        A("s_barrier")
        for i in range(6): t1.read(A, i, i % 3, i // 3)
    poll(A, 24, 8, True)
    A.wait("w0", "w1", "w2", "t3")
    if not SK: A.stamp(3)
    LATE = tail_vm or []
    def xl(B, ks):
        for j in range(2):
            B(f"s_add_u32 s30, s23, {j*36864 + (ks//4)*4096}")
            B(f"buffer_load_dwordx4 {r(xreg(j, ks), 4)}, v1, s[4:7], s30 offen offset:{(ks%4)*1024} sc1", tag=f"x{ks}")
    AHEAD = P.get("k4_ahead", 6)
    SL_ = Asm(); stats_load(SL_, 2, 29, 216, 10, " sc1")
    if BF:
        for ks in range(AHEAD): xl(A, ks)
    else:
        for ks in range(2): xl(A, ks)
        A.extend(SL_)
        for ks in range(2, AHEAD): xl(A, ks)
        A("s_barrier")
    SC = Asm()
    SC.wait("st")
    SC("v_cmp_gt_u32 vcc, 512, v1")
    for j in range(2):
        stats_compute(SC, 216 + 16 * j, 12, 8 + j, 10)
        build_xext(SC, 12, 16 + 4 * j, 13)
        SC(f"v_rsq_f32 v{6+j}, v{8+j}")
        SC(f"v_mul_f32 v{6+j}, {hex(G.f32(-LOG2E))}, v{6+j}")
    def epilogue(t):
        E = Asm()
        for j in range(2):
            acc = accreg(t, j)
            tm = 216 + 20 * j
            for i in range(8): E(f"v_mul_f32 v{tm+i}, v{acc+i}, v{6+j}")
            for i in range(8): E(f"v_exp_f32 v{tm+i}, v{tm+i}")
            for i in range(8): E(f"v_mul_f32 v{tm+8+i}, v{acc+i}, v{acc+8+i}")
            for i in range(8): E(f"v_fma_f32 v{tm+i}, v{tm+i}, v{8+j}, v{8+j}")
            for i in range(8): E(f"v_rcp_f32 v{tm+i}, v{tm+i}")
            for i in range(8): E(f"v_mul_f32 v{tm+8+i}, v{tm+8+i}, v{tm+i}")
            for i in range(4): E(f"v_cvt_pk_bf16_f32 v{tm+16+i}, v{tm+8+2*i}, v{tm+9+2*i}")
            E(f"s_add_u32 s33, s31, {j*2*144*1024 + t*512}")
            E(f"buffer_store_dwordx4 v[{tm+16}:{tm+19}], v5, s[4:7], s33 offen sc1", tag="hout" if t > (5 if K45 else 6) else "hE")
        return E.ins
    items = [(t, ks) for ks in range(37) for t in range(3)] + [(t, ks) for t in range(3, 9) for ks in range(37)]
    DIST = 6
    M = Asm(); marks = {}
    def pre_read(i):
        t, ks = items[i]
        if LATE and (t, ks) in ((2, 24), (3, 0)):
            M.wait("lw2" if t == 2 else "lt3"); M("s_barrier")
        if t >= 4 and ks == 0:
            M.wait(f"t{t}")
            if K45 and t == 8: M.wait("hE")
            M("s_barrier")
            if K45 and t == 8:
                flag_store(M, 13, 14)
                M("v_and_b32 v14, 7, v0")
                M(f"v_lshlrev_b32 v14, {2+FSH}, v14")
            if t in (5, 6): marks[("dma", t + 2)] = len(M.ins)
        t1.read(M, i, t, ks)
    if not BF:
        for i in range(DIST): pre_read(i)
    for i, (t, ks) in enumerate(items):
        if t == 0: marks[("ks", ks)] = len(M.ins)
        if t == 8: marks[("ks8", ks)] = len(M.ins)
        if i + DIST < len(items): pre_read(i + DIST)
        if ks == 0 and t >= 3:
            if t in (3, 6): M.stamp(5 if t == 3 else 6)
            marks[("tile", t)] = len(M.ins)
        M.wait(f"wf{i}", f"x{ks}")
        if i == 0: M.stamp(4)
        t1.mfmas(M, i, t, ks)
        if t == 3 and ks == 2:
            M("s_barrier")
            marks[("dma", 4)] = len(M.ins)
        if t in (7, 8) and ks in (0, 18): M.stamp(f"t{t}k{ks}")
        if t == 8 and ks == 36: M.stamp("t8e")
        if K45 and t == 8:
            if ks == 4:
                M("s_barrier")
                marks[("q2",)] = len(M.ins)
            if ks == P.get("k45_fl", 20):
                M("buffer_load_dword v15, v14, s[4:7], s15 offen sc1", tag="fe")
            if ks == P.get("k45_ck", 26):
                flagchk(M, "K5E", "fe", 15, 14, 15)
                marks[("hgo",)] = len(M.ins)
        elif SK and t == 8 and ks == 8:
            M.wait("hE")
            M("s_barrier")
            flag_store(M, 13, 14)
            M("v_and_b32 v14, 7, v0")
            M(f"v_lshlrev_b32 v14, {2+FSH}, v14")
            marks[("q2",)] = len(M.ins)
        elif SK and t == 8 and ks == 36:
            M("buffer_load_dword v15, v14, s[4:7], s15 offen sc1", tag="fe")
    dm = lambda ts: tile_dmas(ts, lambda t: sl[t], 77, 76, 78, lambda t: f"t{t}")
    S_ = Sched(M.ins)
    B = Asm()
    for ks in range(AHEAD, 36): xl(B, ks)
    xg = groups_vm(B.ins)
    if LATE:
        n2 = sum(1 for g in LATE if g[-1].tag == "lw2")
        mix = []
        for k, g in enumerate(xg):
            mix.append(g)
            if k % 4 == 3 and k // 4 < n2: mix.append(LATE[k // 4])
        xg = mix + LATE[n2:]
    if BF:
        sg = groups_vm(SL_.ins)
        sg = [sg[k] + sg[k + 1] for k in range(0, 16, 2)]
        mix = []
        for k, g in enumerate(xg):
            mix.append(g)
            if k % 2 == 1 and sg: mix.append(sg.pop(0))
        xg = mix
    S_.release(0, "vm", xg, every=P.get("k4_e0", 2.2 if BF else 2.5))
    S_.release(marks[("ks", 14 if BF else 4)], "va", groups_1(SC.ins))
    S_.release(marks[("tile", 3)], "va", groups_1(epilogue(0) + epilogue(1) + epilogue(2)), skip=3)
    S_.release(marks[("dma", 4)], "vm", dm([4, 5, 6]), every=3)
    S_.release(marks[("dma", 7)], "vm", dm([7]))
    S_.release(marks[("dma", 8)], "vm", dm([8]))
    for t in range(4, 9):
        S_.release(marks[("tile", t)], "va", groups_1(epilogue(t - 1)), skip=3)
    def w2pre(st):
        B = Asm()
        for t in range(5):
            B(f"s_add_u32 s37, s79, {t*144*1024 + st*4096}")
            B(f"buffer_load_dwordx4 {r(t2_buf(st, 4+t), 4)}, v1, s[4:7], s37 offen", tag=f"l{st}")
        return groups_vm(B.ins)
    if SK:
        S_.release(marks[("ks8", 0)], "vm", k5_unit(0) + k5_unit(1), every=2)
        S_.release(marks[("q2",)], "vm", k5_unit(2) + k5_unit(3))
        if K45:
            B = Asm()
            for st in range(P.get("k5_ahead", 6)): k5_hl(B, st)
            S_.release(marks[("hgo",)], "vm", groups_vm(B.ins), front=True)
        out, rest = S_.run(cap=24, vm_cost=16)
        e8 = epilogue(8)
        if K45:
            B = Asm(); B.wait("d0", "d1"); B("s_barrier")
            e8 = B.ins + pace(e8, k5_unit(4), 60)[0]
    else:
        S_.release(marks[("ks8", 9)], "vm", w2pre(0) + w2pre(4), every=2)
        S_.release(marks[("ks8", 18)], "vm", w2pre(1))
        S_.release(marks[("ks8", 27)], "vm", w2pre(2))
        out, rest = S_.run(cap=24, vm_cost=16)
        e8, left = pace(epilogue(8), w2pre(3), 40)
        assert not left
    lst = out + rest + e8
    K4M.check_order(lst, accreg)
    check_tags(lst)
    A.ins += lst
    A.stamp(7)

TS = 144 * 1024
ORD = [0, 1, 2, 5, 6, 7, 3, 4, 8] if not P.get('k45', 1) else [0, 1, 2, 5, 6, 3, 7, 4, 8]
K5P = [37888, 66560, 95232, 123904, 0]
def k5_decode(A):
    A(f"""
    s_and_b32 s82, s2, 3
    s_bfe_u32 s80, s2, 0x10002
    s_lshl_b32 s80, s80, 3
    s_bfe_u32 s81, s2, 0x30003
    s_add_u32 s80, s80, s81            ; rg128
    s_lshr_b32 s81, s2, 6              ; cgp
    s_mul_i32 s79, s81, {9*TS}
    s_mul_i32 s83, s82, {36*1024}
    s_add_u32 s79, s79, s83
    s_mul_i32 s83, s3, 9216
    s_add_u32 s79, s79, s83
    s_add_u32 s79, s79, {G.W2}
    s_add_u32 s83, s79, {4*TS}
    s_sub_u32 s19, s79, {5*TS}
    s_bitcmp1_b32 s82, 0               ; nh
    s_cselect_b32 s19, s79, s19
    s_cselect_b32 s79, s79, s83
    s_mul_i32 s83, s3, 7168
    s_lshl_b32 s14, s3, 11
    s_lshr_b32 s15, s80, 1
    s_lshl_b32 s15, s15, 2
    s_add_u32 s15, s15, s82
    s_lshl_b32 s15, s15, 5
    s_add_u32 s15, s15, s41
    s_add_u32 s15, s15, 3072
    s_lshl_b32 s15, s15, {FSH}
    s_add_u32 s15, s15, {G.FLG}
    s_lshl_b32 s13, s85, 5
    s_add_u32 s13, s13, s84
    s_lshl_b32 s13, s13, 2
    s_add_u32 s13, s13, s41
    s_add_u32 s13, s13, 3072
    s_lshl_b32 s34, s80, 2
    s_add_u32 s34, s34, s3
    s_mul_i32 s20, s34, {2*144*1024}
    s_mul_i32 s21, s82, {36*1024}
    s_add_u32 s20, s20, s21
    s_add_u32 s20, s20, {G.HF}
    {LO2(20)}
    s_add_u32 s12, s20, {144*1024}
    s_bitcmp1_b32 s82, 1               ; mt_own
    s_cselect_b32 s21, s12, s20
    s_cselect_b32 s12, s20, s12
    s_mov_b32 s20, s21
    """)
def k5_unit(u):
    B = Asm()
    if u < 9:
        for j in range(7):
            dma(B, 79 if j < 5 else 19, j * TS + ORD[u] * 1024, 83, K5P[u % 5] + j * 1024, 1, f"d{u}", stmp=38)
    else:
        for qq in range(3):
            for j in range(7, 9):
                dma(B, 19, j * TS + ORD[3 * (u - 9) + qq] * 1024, 14, K5P[u % 5] + qq * 8192 + (j - 7) * 1024, 1, f"d{u}", stmp=38)
    return groups_vm(B.ins)

def flagchk(A, lab, tag, vreg, vaddr, sbase):
    A.wait(tag)
    A(f"v_cmp_eq_u32 vcc, 1, v{vreg}")
    A("s_cmp_eq_u64 vcc, -1")
    A(f"s_cbranch_scc1 {lab}_OK")
    R = A.raw
    R("    s_mov_b32 s39, 0x20000")
    R(f"{lab}:")
    R("    s_sleep 1")
    R(f"    buffer_load_dword v{vreg}, v{vaddr}, s[4:7], s{sbase} offen sc1")
    R("    s_waitcnt vmcnt(0)")
    R(f"    v_cmp_eq_u32 vcc, 1, v{vreg}")
    R("    s_nop 1")
    R("    s_cmp_eq_u64 vcc, -1")
    R(f"    s_cbranch_scc1 {lab}_OK")
    R("    s_sub_u32 s39, s39, 1")
    R("    s_cmp_lg_u32 s39, 0")
    R(f"    s_cbranch_scc1 {lab}")
    A.label(f"{lab}_OK")

def flag_store(A, sgpr, vt=30):
    lab = f"SIG{signal.n}"; signal.n += 1
    A("s_cmp_lg_u32 s3, 0")
    A(f"s_cbranch_scc1 {lab}")
    A.raw("    s_mov_b64 exec, 1")
    A.raw(f"    v_mov_b32 v{vt}, 0")
    A.raw(f"    v_mov_b32 v{vt+1}, 1")
    A.raw(f"    s_lshl_b32 s38, s{sgpr}, {FSH}")
    A.raw(f"    s_add_u32 s38, s38, {G.FLG}")
    A.raw(f"    buffer_store_dword v{vt+1}, v{vt}, s[4:7], s38 offen sc1")
    A.raw("    s_mov_b64 exec, -1")
    A.label(lab)

def k5_hreg(st, j):
    return 256 + 8 * st + 4 * j if st < 32 else 168 + 8 * (st - 32) + 4 * j
def k5_hl(B, st):
    ph = 9 * (st % 4) + ORD[st // 4]
    for j in range(2):
        B(f"s_add_u32 s30, s{20 if j == 0 else 12}, {(ph//4)*4096}")
        B(f"buffer_load_dwordx4 {r(k5_hreg(st, j), 4)}, v1, s[4:7], s30 offen offset:{(ph%4)*1024} sc1", tag=f"h{st}")

class guarded: n = 0
_gn = guarded
def k5_path(A, nh, qtile, AHEAD, setup):
    NO, NB = (5, 4) if nh == 0 else (4, 5)
    ACC, WR, R, PB = 32, 104, P.get('k5_r', 12), 200
    acc = lambda j, sl: ACC + 36 * j + 4 * sl
    hreg = k5_hreg
    items = [(0, st, sl) for st in range(36) for sl in range(7)] + [(1, st, sl) for st in range(36) for sl in (7, 8)]
    DIST = P.get("k5_dist", 9)
    M = Asm(); marks = {}
    def rd(i):
        ps, st, sl = items[i]
        if ps == 0:
            u = st // 4; first = (st % 4 == 0 and sl == 0)
            off = K5P[u % 5] + (st % 4) * 7168 + sl * 1024
        else:
            u = 9 + st // 12; first = (st % 12 == 0 and sl == 7)
            off = K5P[u % 5] + ((st // 4) % 3) * 8192 + (st % 4) * 2048 + (sl - 7) * 1024
        if first and u >= 2:
            M.wait(f"d{u}")
            if K45 and u == 2: M.wait("hout")
            M("s_barrier")
            if K45 and u == 2: flag_store(M, 26)
            marks[("B", u)] = len(M.ins)
        w = WR + 4 * (i % R)
        M(f"ds_read_b128 v[{w}:{w+3}], v{2 + (off >> 16)} offset:{off & 0xffff}", tag=f"wf{i}")
    for i in range(DIST): rd(i)
    WG_ = P.get('k5_wg', 3)
    assert DIST + 1 <= R and WG_ <= DIST
    NE = 20 if K45 else 24
    LA = P.get('k5_la', 4) if K45 else AHEAD
    CHK = NE - LA
    for i, (ps, st, sl) in enumerate(items):
        if sl in (0, 7):
            if (ps, st) == (0, CHK - P.get("k5_fl", 3)):
                M("buffer_load_dword v13, v14, s[4:7], s25 offen sc1", tag="fl")
            if ps == 0 and st % 4 == 0: M.stamp(f"s{st}")
            if (ps, st) == (0, CHK):
                flagchk(M, f"K5L{nh}", "fl", 13, 14, 25)
                M.stamp("sc")
            marks[("st", ps, st)] = len(M.ins)
        if (ps, st, sl) == (1, 0, 7): M.stamp(13)
        if i + DIST < len(items): rd(i + DIST)
        tags = []
        if i % WG_ == 0: tags.append(f"wf{min(i + WG_ - 1, len(items) - 1)}")
        if ps == 0 and sl == 0: tags.append(f"h{st}")
        if tags: M.wait(*tags)
        w = WR + 4 * (i % R)
        for j in range(2):
            a_ = acc(j, sl)
            c = "0" if st == 0 else f"v[{a_}:{a_+3}]"
            M(f"v_mfma_f32_16x16x32_bf16 v[{a_}:{a_+3}], v[{w}:{w+3}], {r(hreg(st, j), 4)}, {c}")
    S_ = Sched(M.ins)
    late = []
    if setup:
        gs = []; cur = []
        for k, x in enumerate(setup):
            cur.append(I(x.text))
            nxt = setup[k + 1].text if k + 1 < len(setup) else ""
            if (len(cur) >= 4 or x.text.startswith("v_")) and not nxt.startswith("s_cselect"):
                gs.append(cur); cur = []
        if cur: gs.append(cur)
        S_.release(marks[("st", 0, 1)], "va", gs)
    for st in range(AHEAD, 36):
        B = Asm(); k5_hl(B, st)
        rel = st - AHEAD if st < NE else max(st - AHEAD, CHK)
        if st >= NE and st - AHEAD < CHK: late.extend([B.ins[:2], B.ins[2:]])
        else: S_.release(marks[("st", 0, rel)], "vm", [B.ins[:2], B.ins[2:]], every=P.get("k5_e", 3), front=(st - AHEAD != CHK))
        if st - AHEAD == CHK - 1: S_.release(marks[("st", 0, CHK)], "vm", late, front=True)
    for u in range(5, 12):
        S_.release(marks[("B", u - 3)], "vm", k5_unit(u))
    def guarded(gs, k):
        out = []
        for i in range(0, len(gs), k):
            _gn.n += 1
            lab = f"QSK{_gn.n}"
            blk = [I("s_cmp_lg_u32 s40, 0"), I(f"s_cbranch_scc1 {lab}")]
            for g in gs[i:i+k]:
                for x in g:
                    if x.text.startswith("buffer_"): blk.append(I(" " + x.text.replace(" lds", " sc1 lds"), kind="raw"))
                    elif "m0" in x.text: blk += [I(" " + x.text, kind="raw"), I(" s_nop 0", kind="raw")]
                    else: blk.append(I(" " + x.text, kind="raw"))
            blk.append(I(lab + ":", kind="label"))
            out.append(blk)
        return out
    QK_ = P.get("k5_qk", 3)
    if QK_:
        S_.release(marks[("B", 10)], "vm", guarded(qtile(3), QK_), every=P.get("k5_qe", 8))
        S_.release(marks[("B", 11)], "vm", guarded(qtile(0), QK_))
    else:
        S_.release(marks[("B", 10)], "vm", qtile(3))
        S_.release(marks[("B", 11)], "vm", qtile(0))
    def pieces(n): return [(0, 2), (2, 2)] if n == 4 else [(0, 2), (2, 1), (3, 2)]
    def pstore(a0, n, sbase, sel, tag):
        B = Asm()
        for pi, (t0, k) in enumerate(pieces(n)):
            if pi not in sel: continue
            b = a0 + 4 * t0
            for i in range(2 * k): B(f"v_cvt_pk_bf16_f32 v{b+i}, v{b+2*i}, v{b+2*i+1}")
            if k == 2: B(f"buffer_store_dwordx4 v[{b}:{b+3}], v1, s[4:7], s{sbase} offen offset:{pi*1024} sc1", tag=tag)
            else: B(f"buffer_store_dwordx2 v[{b}:{b+1}], v1, s[4:7], s{sbase} offen offset:{pi*1024} sc1", tag=tag)
        return B.ins
    def pload(dst, k, tag):
        B = Asm()
        B(f"s_add_u32 s37, s21, {k*12288}")
        for pi, (t0, kk) in enumerate(pieces(NB)):
            d = dst + 4 * pi
            if kk == 2: B(f"buffer_load_dwordx4 v[{d}:{d+3}], v1, s[4:7], s37 offen offset:{pi*1024} sc1", tag=tag)
            else: B(f"buffer_load_dwordx2 v[{d}:{d+1}], v1, s[4:7], s37 offen offset:{pi*1024} sc1", tag=tag)
        return B.ins
    def pregs(dst):
        return [dst + 4 * pi + i for pi, (t0, kk) in enumerate(pieces(NB)) for i in range(2 * kk)]
    def check(regs):
        B = Asm()
        B(f"v_max3_u32 v30, v{regs[0]}, v{regs[1]}, v{regs[2]}")
        rest_ = regs[3:]
        while len(rest_) >= 2:
            B(f"v_max3_u32 v30, v30, v{rest_[0]}, v{rest_[1]}"); rest_ = rest_[2:]
        if rest_: B(f"v_max_u32 v30, v30, v{rest_[0]}")
        B("v_cmp_eq_u32 vcc, -1, v30")
        B("s_cmp_eq_u64 vcc, 0")
        return B.ins
    RES = 16
    B = Asm()
    for t in range(NB):
        so, im = (28, t * 1024) if t < 4 else (29, 0)
        B(f"buffer_load_dwordx2 v[{RES+2*t}:{RES+2*t+1}], v11, s[4:7], s{so} offen offset:{im} sc1", tag="res")
    S_.release(marks[("st", 0, 30)], "vm", groups_vm(B.ins))
    np_ = len(pieces(NB))
    allp = range(3)
    S_.release(marks[("st", 1, 2)], "va", groups_1(pstore(acc(0, 0), NO, 16, allp, "pa") + pstore(acc(1, 0), NO, 17, allp, "pa")
                                                  + pstore(acc(1, NO), NB, 18, range(np_ - 1), "pa")))
    out, rest = S_.run(gap=8, vm_cost=8)
    assert not rest, len(rest)
    check_tags(out)
    A.ins += out
    A.stamp(10)
    A.ins += pstore(acc(1, NO), NB, 18, [np_ - 1], "pb")
    A.ins += pload(PB, 0, "p0") + pload(PB + 12, 1, "p0") + pload(PB + 24, 2, "p2")
    A("s_barrier")
    X = WR
    A.wait("res")
    for t in range(NB):
        for j in range(2):
            A(f"v_lshlrev_b32 v{X+4*t+2*j}, 16, v{RES+2*t+j}")
            A(f"v_and_b32 v{X+4*t+2*j+1}, 0xffff0000, v{RES+2*t+j}")
    for i in range(4 * NB): A(f"v_add_f32 v{X+i}, v{X+i}, v{acc(0, NO)+i}")
    def addp(b):
        for i, rg in enumerate(pregs(b)):
            A(f"v_lshlrev_b32 v30, 16, v{rg}")
            A(f"v_and_b32 v31, 0xffff0000, v{rg}")
            A(f"v_add_f32 v{X+2*i}, v{X+2*i}, v30")
            A(f"v_add_f32 v{X+2*i+1}, v{X+2*i+1}, v31")
    def spin(lab, regs, loads, tag):
        A("s_mov_b32 s39, 0x20000")
        A.wait(tag)
        A.label(lab)
        A.ins += check(regs)
        A(f"s_cbranch_scc1 {lab}_OK")
        A.save(lab)
        A(f"s_sleep {P.get('k5_sleep', 1)}")
        A.ins += loads
        A("s_waitcnt vmcnt(0)")
        A("s_sub_u32 s39, s39, 1")
        A("s_cmp_lg_u32 s39, 0")
        A(f"s_cbranch_scc1 {lab}")
        A.label(f"{lab}_OK")
        A.restore(lab)
    spin(f"K5SA{nh}", pregs(PB) + pregs(PB + 12), pload(PB, 0, None) + pload(PB + 12, 1, None), "p0")
    addp(PB); addp(PB + 12)
    spin(f"K5SB{nh}", pregs(PB + 24), pload(PB + 24, 2, None), "p2")
    A.stamp(2)
    addp(PB + 24)
    for i in range(2 * NB):
        A(f"v_cvt_pk_bf16_f32 v{RES+i}, v{X+2*i}, v{X+2*i+1}")
    A.stamp(3)
    pfx = f"K5{nh}"
    A("s_cmp_lg_u32 s40, 0")
    A(f"s_cbranch_scc1 {pfx}_FINAL")
    A.save(pfx + "fin")
    t2_store(A, NB, X, RES)
    A("s_branch K5_DONE")
    A.save(pfx + "done")
    A.label(f"{pfx}_FINAL")
    A.restore(pfx + "fin")
    final_store(A, NB, RES)
    A("s_endpgm")

def k5_phase(A0, qtile, NMID):
    AHEAD = P.get("k5_ahead", 6)
    A = A0
    if not K45:
        flagchk(A, "K5E", "fe", 15, 14, 15)
        for st in range(AHEAD): k5_hl(A, st)
        A("s_sub_u32 s24, s13, 2048")
        A.wait("d0", "d1", "d2", "d3")
        signal(A, 24, "hout")
        A.stamp(8)
        for g in k5_unit(4): A.ins += g
    else:
        A("s_sub_u32 s26, s13, 2048")
        A = Asm()
    k1_decode(A, None)
    A(f"""
    s_lshr_b32 s32, s82, 1             ; mt_own
    s_and_b32 s33, s82, 1              ; nh
    s_lshl_b32 s34, s80, 2
    s_add_u32 s34, s34, s3
    s_lshl_b32 s27, s80, 2
    s_add_u32 s27, s27, s81            ; tile
    s_mul_i32 s21, s27, {4*36864}
    s_mul_i32 s35, s3, 3072
    s_add_u32 s21, s21, s35
    s_add_u32 s21, s21, {G.PART}
    {LO2(21)}
    s_mul_i32 s35, s32, 12288
    s_add_u32 s35, s35, s21
    s_xor_b32 s36, s82, 1
    s_mul_i32 s36, s36, 36864
    s_add_u32 s16, s35, s36
    s_xor_b32 s36, s82, 3
    s_mul_i32 s36, s36, 36864
    s_add_u32 s17, s35, s36
    s_xor_b32 s36, s82, 2
    s_mul_i32 s36, s36, 36864
    s_add_u32 s18, s21, s36
    s_add_u32 s18, s18, 24576
    s_mul_i32 s36, s82, 36864
    s_add_u32 s21, s21, s36
    s_mul_i32 s13, s81, 9
    s_lshl_b32 s35, s33, 2
    s_add_u32 s13, s13, s35            ; nt0
    v_and_b32 v11, 15, v0
    v_lshlrev_b32 v11, 4, v11
    v_bfe_u32 v28, v0, 5, 1
    v_lshlrev_b32 v28, 9, v28
    v_add_u32 v11, v11, v28
    v_bfe_u32 v28, v0, 4, 1
    v_lshlrev_b32 v28, 3, v28
    v_add_u32 v11, v11, v28
    s_mul_i32 s28, s34, 36
    s_add_u32 s28, s28, s13
    s_lshl_b32 s28, s28, 10
    s_lshl_b32 s29, s32, 8
    s_add_u32 s28, s28, s29
    s_add_u32 s28, s28, s42
    s_add_u32 s22, s28, {X2I*G.XSZ}
    s_add_u32 s23, s22, 4096
    s_add_u32 s28, s28, {G.XSZ}
    s_add_u32 s29, s28, 4096
    v_and_b32 v15, 15, v0
    v_mul_u32_u24 v29, 1152, v15
    v_lshlrev_b32 v15, 3, v15
    s_lshl_b32 s35, s34, 1
    s_add_u32 s35, s35, s32            ; rb16
    s_lshl_b32 s36, s35, 10
    s_lshl_b32 s37, s81, 1
    s_add_u32 s37, s37, s33
    s_lshl_b32 s37, s37, 7
    s_add_u32 s36, s36, s37
    s_add_u32 s36, s36, s43
    s_add_u32 s36, s36, {X2I*G.SSZ}
    v_bfe_u32 v28, v0, 4, 2
    v_lshlrev_b32 v28, 3, v28
    v_add_u32 v29, v29, v28
    s_mul_i32 s31, s35, 18432
    s_lshl_b32 s37, s13, 5
    s_add_u32 s31, s31, s37
    s_sub_u32 s25, s15, {2048 << FSH}
    """)
    setup = A.ins if K45 else []
    A = A0
    A.stamp(9)
    A("s_bitcmp1_b32 s82, 0")
    A("s_cbranch_scc1 K5_N1")
    A.save("k5n1")
    k5_path(A, 0, qtile, AHEAD, setup)
    A.label("K5_N1"); A.restore("k5n1")
    k5_path(A, 1, qtile, AHEAD, setup)
    A.label("K5_DONE")
    A.restore("K51done")
    A("s_lshl_b32 s24, s80, 2")
    A("s_add_u32 s24, s24, s81")
    A("s_lshl_b32 s24, s24, 2")
    A("s_add_u32 s24, s24, s82")
    A("s_lshl_b32 s24, s24, 2")
    A("s_add_u32 s24, s24, s41")
    A("s_add_u32 s24, s24, 2048")
    rest = qtile(1) + qtile(2)
    for g in rest[:NMID]: A.ins += g
    signal(A, 24, "out")
    A.stamp(11)
    if MEGA:
        A("s_mov_b32 s101, s41")
        A(f"s_mov_b32 s40, 1")
        A(f"s_mov_b32 s41, 8192")
        A(f"s_mov_b32 s42, {G.XF + X2I*G.XSZ}")
        A(f"s_mov_b32 s43, {G.ST + X2I*G.SSZ}")
        A(f"s_mov_b32 s100, {G.LBS}")
    else:
        A("s_cmp_ge_u32 s87, 15")
        A("s_cbranch_scc1 CH_END")
    for g in rest[NMID:]: A.ins += g

def k1_decode(A, endlab):
    if MEGA and (P.get("early", 0) or P.get("k1map", 0)):
        A("""
        s_and_b32 s86, s2, 7
        s_lshl_b32 s86, s86, 1
        s_bfe_u32 s27, s2, 0x10003
        s_add_u32 s86, s86, s27
        s_lshr_b32 s87, s2, 4
        """)
    else:
        A("""
        s_and_b32 s24, s2, 7
        s_lshr_b32 s25, s2, 3
        s_lshr_b32 s86, s24, 1
        s_lshl_b32 s86, s86, 2
        s_and_b32 s27, s25, 3
        s_add_u32 s86, s86, s27
        s_and_b32 s87, s24, 1
        s_lshl_b32 s87, s87, 3
        s_lshr_b32 s34, s25, 2
        s_add_u32 s87, s87, s34
        """)
    A(f"""
    s_lshl_b32 s78, s3, 10
    s_lshl_b32 s34, s87, 2
    s_mul_i32 s35, s87, 3
    s_add_u32 s35, s35, 9
    s_cmp_ge_u32 s87, 9
    s_cselect_b32 s34, s35, s34
    s_cmp_eq_u32 s87, 15
    s_cselect_b32 s34, 34, s34
    s_mul_i32 s76, s34, {G.T1S}
    s_add_u32 s76, s76, {G.WQ}
    s_add_u32 s77, s76, s78
    """)

def k1_main(A, NT, swapped, sc, epi=None):
    xreg = lambda j, ks: (256 + 4 * ks) if ks < 36 else 8
    t1 = T1(1, xreg, lambda t, j: 64 + 16 * t, 32, 8, lambda t: t, 2, swapped)
    def xl(B, ks):
        B(f"s_add_u32 s30, s23, {(ks//4)*4096}")
        B(f"buffer_load_dwordx4 {r(xreg(0, ks), 4)}, v1, s[4:7], s30 offen offset:{(ks%4)*1024}{sc}", tag=f"x{ks}")
    AHEAD = P.get("k1_ahead", 10)
    for ks in range(4): xl(A, ks)
    stats_load(A, 1, 29, 16, 12, sc)
    for ks in range(4, AHEAD): xl(A, ks)
    if not (MEGA and P.get("bf1", 0)): A("s_barrier")
    SC = Asm()
    SC.wait("st")
    stats_compute(SC, 16, 5, 6, 12)
    SC("v_cmp_gt_u32 vcc, 512, v1")
    build_xext(SC, 5, 8, 12)
    SC("v_rsq_f32 v6, v6")
    items = [(t, ks) for ks in range(37) for t in range(NT)]
    if epi: items = [(t, ks) for ks in range(37) for t in range(NT - 1)] + [(NT - 1, ks) for ks in range(37)]
    DIST = 6
    M = Asm(); marks = {}
    for i in range(DIST): t1.read(M, i, *items[i])
    for i, (t, ks) in enumerate(items):
        if t == 0: marks[ks] = len(M.ins)
        if (t, ks) == (NT - 1, 0): marks["last"] = len(M.ins)
        if i + DIST < len(items): t1.read(M, i + DIST, *items[i + DIST])
        M.wait(f"wf{i}", f"x{ks}")
        if i == 0: M.stamp(14)
        t1.mfmas(M, i, t, ks)
    S_ = Sched(M.ins)
    B = Asm()
    for ks in range(AHEAD, 36): xl(B, ks)
    S_.release(0, "vm", groups_vm(B.ins), every=min(P.get("k1_e0", 2.5), (NT - (1 if epi else 0)) * 0.8))
    S_.release(marks[3], "va", groups_1(SC.ins) + ([epi[0]] if epi else []))
    if epi: S_.release(marks["last"], "va", groups_1(epi[1]), skip=2)
    out, rest = S_.run(cap=24, vm_cost=8, gap=P.get("k1_gap", 28))
    assert epi or not rest
    check_tags(out)
    A.ins += out + rest
    A.stamp(15)

def k1_phase(A, L, xidx, do_poll, hook=None):
    sc = " sc1" if do_poll else ""
    A(f"""
    v_mov_b32 v2, v1
    v_add_u32 v3, 0x10000, v1
    v_add_u32 v4, 0x20000, v1
    s_lshl_b32 s26, s86, 2
    s_add_u32 s26, s26, s3             ; rb
    s_mov_b32 s27, s87
    s_mul_i32 s23, s26, 36864
    s_add_u32 s23, s23, s42
    s_add_u32 s23, s23, {xidx*G.XSZ}
    s_lshl_b32 s29, s26, 11
    s_add_u32 s29, s29, s43
    s_add_u32 s29, s29, {xidx*G.SSZ}
    s_lshr_b32 s31, s26, 3
    s_mul_i32 s31, s31, {G.KVG}
    s_add_u32 s31, s31, {G.KV}
    {LO(31)}
    s_lshr_b32 s24, s26, 1
    s_lshl_b32 s24, s24, 5
    s_add_u32 s24, s24, s41
    s_add_u32 s24, s24, 2048
    """)
    if do_poll:
        if SK:
            A("s_lshl_b32 s24, s86, 6")
            A(f"s_add_u32 s24, s24, s{101 if MEGA else 41}")
            A("s_add_u32 s24, s24, 2048")
        A.stamp(12)
        if MEGA and P.get("bf1", 0):
            A("s_waitcnt vmcnt(0)")
            A("s_barrier")
        poll(A, 24, 16 if SK else 8, True)
        A.wait("q0", "q1", "q2", "q3")
    if hook: hook(A)
    if MEGA:
        A("s_and_b32 s32, s27, 7")
        A("s_cmp_eq_u32 s27, 8")
        A(f"s_cbranch_scc1 {L}_EXT")
        A("s_cmp_eq_u32 s27, 15")
        A(f"s_cbranch_scc1 {L}_EXT")
        A.save(L + "ext")
    A(f"s_cmp_ge_u32 s27, 9")
    A(f"s_cbranch_scc1 {L}_V")
    A.save(L + "v")
    def pre():
        if not do_poll:
            pass
    OV = MEGA and do_poll and P.get("k1_ov", 1)
    if not OV: k1_main_w(A, 4, False, sc, do_poll)
    if not MEGA:
        A("s_cmp_eq_u32 s27, 8")
        A(f"s_cbranch_scc1 {L}_EXT")
        A.save(L + "ext")
    ST_ = " sc1" if MEGA else P.get("k1_st", "")
    def fin():
        if MEGA:
            A.stamp("kf" + L)
            A(f"s_branch {L}_JOIN")
        else: A("s_endpgm")
    E0 = Asm()
    E0(f"""
    s_and_b32 s32, s27, 3
    s_lshl_b32 s32, s32, 3
    s_lshl_b32 s33, s26, 10
    s_add_u32 s33, s33, {G.QM}
    {LO(33)}
    s_and_b32 s34, s26, 7
    s_lshl_b32 s34, s34, 10
    s_add_u32 s34, s34, s31
    s_cmp_lt_u32 s27, 4
    s_cselect_b32 s33, s33, s34
    s_mov_b32 s35, {G.KVH}
    s_cselect_b32 s35, 65536, s35
    s_mov_b32 s36, {hex(G.f32(QSCALE))}
    s_cselect_b32 s36, s36, 1.0
    s_mul_i32 s32, s32, s35
    s_add_u32 s33, s33, s32
    """)
    def etile(t):
        E = Asm(); acc = 64 + 16 * t
        for e in range(2):
            for i in range(8): E(f"v_mul_f32 v{acc+8*e+i}, v{acc+8*e+i}, v7")
            for i in range(4): E(f"v_cvt_pk_bf16_f32 v{128+8*t+4*e+i}, v{acc+8*e+2*i}, v{acc+8*e+2*i+1}")
            E(f"buffer_store_dwordx4 v[{128+8*t+4*e}:{128+8*t+4*e+3}], v1, s[4:7], s33 offen{ST_}")
            E("s_add_u32 s33, s33, s35")
        return E.ins
    if OV:
        A.extend(E0)
        k1_main_w(A, 4, False, sc, do_poll, ([I("v_mul_f32 v7, s36, v6")], etile(0) + etile(1) + etile(2)))
        A.ins += etile(3)
    else:
        A.extend(E0)
        A("v_mul_f32 v7, s36, v6")
        for t in range(4): A.ins += etile(t)
    fin()
    A.label(f"{L}_EXT")
    A.restore(L + "ext")
    if MEGA:
        k1_main_w(A, 2, False, sc, do_poll)
        A(f"""
        v_and_b32 v12, 31, v0
        v_bfe_u32 v13, v0, 5, 1
        v_lshlrev_b32 v13, 10, v13
        s_cmp_eq_u32 s27, 8
        s_cselect_b32 s32, 2, 4            ; m shift
        s_cselect_b32 s33, 7, 2            ; w shift
        s_mov_b32 s36, {hex(G.f32(QSCALE))}
        s_cselect_b32 s36, s36, 1.0
        s_mov_b32 s35, {G.KVH}
        s_cselect_b32 s35, 8192, s35
        s_lshl_b32 s34, s86, 9
        s_add_u32 s34, s34, {G.QE}
        s_add_u32 s34, s34, s100
        s_and_b32 s37, s86, 1
        s_lshl_b32 s37, s37, 9
        s_add_u32 s37, s37, s31
        s_add_u32 s37, s37, 8192
        s_cmp_eq_u32 s27, 8
        s_cselect_b32 s34, s34, s37
        s_lshl_b32 s33, s3, s33
        v_lshlrev_b32 v16, s32, v12
        v_add3_u32 v16, v16, v13, s33
        v_lshlrev_b32 v18, 4, v0
        v_lshrrev_b32 v13, 5, v0
        v_mul_lo_u32 v19, v13, s35
        v_lshlrev_b32 v21, 4, v12
        v_add_u32 v19, v19, v21
        s_lshl_b32 s35, s35, 3
        v_add_u32 v17, {2*G.T1S}, v16
        v_add_u32 v22, {2*G.T1S}, v18
        v_mul_f32 v6, s36, v6
        """)
        for t in range(2):
            acc = 64 + 16 * t
            for i in range(16): A(f"v_mul_f32 v{acc+i}, v{acc+i}, v6")
            for i in range(8): A(f"v_cvt_pk_bf16_f32 v{128+8*t+i}, v{acc+2*i}, v{acc+2*i+1}")
            for i in range(8):
                hd = 16 * t + 4 * (i >> 1) + (i & 1)
                A(f"ds_write_b32 v16, v{128+8*t+i} offset:{3*G.T1S - 65536 + hd*512}" if False else f"ds_write_b32 v17, v{128+8*t+i} offset:{hd*512}")
        A.waitall(vm=False)
        A("s_barrier")
        for k in range(4):
            A(f"ds_read_b128 v[{64+4*k}:{67+4*k}], v22 offset:{k*4096}", tag=f"er{k}")
        for k in range(4):
            A.wait(f"er{k}")
            A(f"buffer_store_dwordx4 v[{64+4*k}:{67+4*k}], v19, s[4:7], s34 offen sc1")
            A("s_add_u32 s34, s34, s35")
    else:
        A(f"""
        v_and_b32 v12, 31, v0
        v_bfe_u32 v13, v0, 5, 1
        v_lshlrev_b32 v14, 2, v12
        v_mul_u32_u24 v15, 16384, v13
        v_add_u32 v14, v14, v15
        v_lshlrev_b32 v15, 4, v12
        s_mov_b32 s32, {2*G.KVH}
        v_mul_lo_u32 v13, v13, s32
        v_add_u32 v15, v15, v13
        s_lshl_b32 s33, s26, 7
        s_add_u32 s33, s33, {G.QE}
        {LO(33)}
        s_bfe_u32 s34, s26, 0x10002
        s_lshl_b32 s34, s34, 9
        s_and_b32 s35, s26, 3
        s_lshl_b32 s35, s35, 2
        s_add_u32 s34, s34, s35
        s_add_u32 s34, s34, s31
        s_add_u32 s34, s34, 8192
        v_mul_f32 v7, {hex(G.f32(QSCALE))}, v6
        """)
        if MEGA:
            A(f"""
            v_bfe_u32 v13, v0, 5, 1
            v_lshlrev_b32 v13, 10, v13         ; h*2 heads*512
            s_lshl_b32 s35, s3, 7
            v_lshlrev_b32 v16, 2, v12
            v_add3_u32 v16, v16, v13, s35      ; Q lds addr
            s_lshl_b32 s35, s3, 2
            v_lshlrev_b32 v17, 4, v12
            v_add3_u32 v17, v17, v13, s35      ; K lds addr
            v_lshlrev_b32 v18, 4, v0
            v_lshrrev_b32 v13, 5, v0
            v_lshlrev_b32 v19, 13, v13
            v_lshlrev_b32 v21, 4, v12
            v_add_u32 v19, v19, v21
            s_mov_b32 s35, {G.KVH}
            v_mul_lo_u32 v20, v13, s35
            v_add_u32 v20, v20, v21
            s_lshl_b32 s35, s3, 7
            s_sub_u32 s33, s33, s35
            s_lshl_b32 s35, s3, 2
            s_sub_u32 s34, s34, s35
            """)
        for t in range(4):
            acc = 64 + 16 * t
            sc_ = 7 if t < 2 else 6
            e = t & 1
            for i in range(16): A(f"v_mul_f32 v{acc+i}, v{acc+i}, v{sc_}")
            for i in range(8): A(f"v_cvt_pk_bf16_f32 v{128+8*t+i}, v{acc+2*i}, v{acc+2*i+1}")
            for i in range(8):
                g, par = i >> 1, i & 1
                hd = 16 * e + 4 * g + par
                if MEGA:
                    if t == 0 and i == 0:
                        A("s_barrier")
                    if t < 2: A(f"ds_write_b32 v16, v{128+8*t+i} offset:{hd*512}")
                    else: A(f"ds_write_b32 v17, v{128+8*t+i} offset:{16384 + hd*512}")
                elif t < 2:
                    A(f"s_add_u32 s30, s33, {hd*8192}")
                    A(f"buffer_store_dword v{128+8*t+i}, v14, s[4:7], s30 offen")
                else:
                    A(f"s_add_u32 s30, s34, {hd*G.KVH}")
                    A(f"buffer_store_dword v{128+8*t+i}, v15, s[4:7], s30 offen")
        if MEGA:
            A.waitall(vm=False)
            A("s_barrier")
            for k in range(8):
                A(f"ds_read_b128 v[{64+4*k}:{67+4*k}], v18 offset:{k*4096}", tag=f"er{k}")
            for k in range(8):
                A.wait(f"er{k}")
                if k < 4:
                    A(f"s_add_u32 s30, s33, {k*8*8192}")
                    A(f"buffer_store_dwordx4 v[{64+4*k}:{67+4*k}], v19, s[4:7], s30 offen sc1")
                else:
                    A(f"s_add_u32 s30, s34, {(k-4)*8*G.KVH}")
                    A(f"buffer_store_dwordx4 v[{64+4*k}:{67+4*k}], v20, s[4:7], s30 offen sc1")
    fin()
    A.label(f"{L}_V")
    A.restore(L + "v")
    k1_main_w(A, 3, True, sc, do_poll)
    A(f"""
    v_and_b32 v12, 31, v0
    v_lshlrev_b32 v13, 2, v12
    s_lshl_b32 s32, s3, 7
    s_add_u32 s32, s32, {4*G.T1S}
    v_add_u32 v13, s32, v13
    ds_write_b32 v13, v6
    v_bfe_u32 v14, v0, 5, 1
    v_lshlrev_b32 v13, 4, v14
    v_add_u32 v13, s32, v13
    """)
    A.waitall(vm=False)
    for g in range(4):
        A(f"ds_read_b128 v[{16+4*g}:{19+4*g}], v13 offset:{g*32}")
    A(f"""
    s_sub_u32 s32, s27, 9
    s_mul_i32 s32, s32, 96
    v_add_u32 v12, s32, v12
    v_mul_u32_u24 v14, 304, v14
    s_and_b32 s33, s26, 7
    s_mul_i32 s33, s33, 1216
    s_add_u32 s33, s33, s31
    s_add_u32 s33, s33, 9216
    s_mov_b32 s34, {G.KVH}
    """)
    A.waitall(vm=False)
    for t in range(3):
        acc = 64 + 16 * t
        A(f"""
        v_mul_u32_u24 v13, 3641, v12
        v_lshrrev_b32 v13, 16, v13
        v_mul_u32_u24 v15, 18, v13
        v_sub_u32 v15, v12, v15
        v_mul_lo_u32 v13, v13, s34
        v_lshlrev_b32 v15, 4, v15
        v_add3_u32 v{7+t}, v13, v15, v14
        v_add_u32 v12, 32, v12
        """)
        for i in range(16): A(f"v_mul_f32 v{acc+i}, v{acc+i}, v{16+i}")
        for i in range(8): A(f"v_cvt_pk_bf16_f32 v{128+8*t+i}, v{acc+2*i}, v{acc+2*i+1}")
        for e in range(2):
            A(f"buffer_store_dwordx4 v[{128+8*t+4*e}:{128+8*t+4*e+3}], v{7+t}, s[4:7], s33 offen offset:{e*608}{ST_}")
    fin()

def k1_main_w(A, NT, swapped, sc, prefetched, epi=None):
    if prefetched:
        k1_main(A, NT, swapped, sc, epi)
    else:
        k1_main_stream(A, NT, swapped, epi)

def k1_main_stream(A, NT, swapped, epi=None):
    xreg = lambda j, ks: (256 + 4 * ks) if ks < 36 else 8
    t1 = T1(1, xreg, lambda t, j: 64 + 16 * t, 32, 8, lambda t: t, 2, swapped)
    def issue(B, c):
        for t in range(NT):
            if c < 9: dma(B, 77, t * G.T1S + c * 4096, 78, t * G.T1S + c * 4096, 1, f"c{c}", stmp=38)
            else: dma(B, 76, t * G.T1S + 36 * 1024, None, t * G.T1S + 36 * 1024, 1, f"c{c}", stmp=38)
        if c < 9 and not XFIRST:
            for q in range(4):
                B(f"s_add_u32 s30, s23, {c*4096}")
                B(f"buffer_load_dwordx4 {r(xreg(0, 4*c+q), 4)}, v1, s[4:7], s30 offen offset:{q*1024}", tag=f"x{4*c+q}")
    AHEAD = P.get("k1s_ahead", 4 if XFIRST else 3)
    issue(A, 0)
    if not XFIRST: stats_load(A, 1, 29, 16, 12, "")
    for c in range(1, AHEAD): issue(A, c)
    SC = A if XFIRST else Asm()
    SC.wait("st")
    stats_compute(SC, 16, 5, 6, 12)
    SC("v_cmp_gt_u32 vcc, 512, v1")
    build_xext(SC, 5, 8, 12)
    SC("v_rsq_f32 v6, v6")
    items = [(t, ks) for ks in range(37) for t in range(NT)]
    DIST = 6
    M = Asm(); marks = {}
    def pre_read(i):
        t, ks = items[i]
        if t == 0 and ks % 4 == 0:
            M.wait(f"c{ks//4}"); M("s_barrier")
        t1.read(M, i, t, ks)
    for i in range(DIST): pre_read(i)
    for i, (t, ks) in enumerate(items):
        if t == 0: marks[ks] = len(M.ins)
        if i + DIST < len(items): pre_read(i + DIST)
        M.wait(f"wf{i}", f"x{ks}")
        if i == 0: M.stamp(14)
        t1.mfmas(M, i, t, ks)
    S_ = Sched(M.ins)
    for c in range(AHEAD, 10):
        B = Asm(); issue(B, c)
        S_.release(marks[4 * (c - AHEAD)], "vm", groups_vm(B.ins), every=1)
    if not XFIRST: S_.release(marks[3], "va", groups_1(SC.ins))
    out, rest = S_.run(cap=24, vm_cost=16)
    assert not rest
    check_tags(out)
    A.ins += out
    A.stamp(15)

def gen_ks():
    name = "ks_kernel"
    A = G.begin(name)
    A("""
    s_load_dwordx16 s[64:79], s[0:1], 0
    s_load_dwordx4 s[80:83], s[0:1], 64
    s_cmp_ge_u32 s2, 256
    s_cbranch_scc1 KS_END
    """)
    G.wave_id(A, 3)
    A.waitall()
    G.srd(A, 4, 82, G.WS_USED)
    G.srd(A, 12, 80, 256)
    B = Asm()
    nj = G.k0_body(B)
    sec = ""
    for i in B.ins:
        if i.kind == "label": sec = i.text
        if i.text.startswith("buffer_store") and not sec.startswith("K0_wo") and "v[8:11]" not in i.text: i.text += " sc1"
    A.extend(B)
    A.fence()
    A.waitall()
    A.stamp(0)
    A(f"""
    s_cmp_ge_u32 s2, {nj}
    s_cbranch_scc1 KS_NOSIG
    s_barrier
    s_cmp_lg_u32 s3, 0
    s_cbranch_scc1 KS_NOSIG
    s_mov_b64 exec, 1
    v_mov_b32 v30, 0
    v_mov_b32 v31, 1
    buffer_atomic_add v31, v30, s[12:15], s19 offen
    s_mov_b64 exec, -1
    """)
    A.label("KS_NOSIG")
    A(f"""
    s_mov_b32 s42, {G.XF}
    s_mov_b32 s43, {G.ST}
    s_mov_b32 s41, 0
    """)
    k1_decode(A, "KS_END")
    A("""
    s_cmp_ge_u32 s87, 15
    s_cbranch_scc1 KS_END
    v_and_b32 v1, 63, v0
    v_lshlrev_b32 v1, 4, v1
    s_mov_b32 s24, 4
    s_cmp_eq_u32 s87, 8
    s_cselect_b32 s24, 16, s24
    s_cmp_ge_u32 s87, 9
    s_cselect_b32 s24, 3, s24
    s_add_u32 s25, s87, 16
    v_and_b32 v28, 1, v0
    v_cmp_eq_u32 vcc, 1, v28
    v_mov_b32 v30, s86
    v_mov_b32 v29, s25
    v_cndmask_b32 v30, v30, v29, vcc
    v_lshlrev_b32 v30, 2, v30
    v_mov_b32 v29, s24
    v_cndmask_b32 v29, 4, v29, vcc
    s_mov_b32 s39, 0x40000
    s_cmp_lg_u32 s3, 0
    s_cbranch_scc1 KS_GO
    """)
    A.label("KS_POLL")
    A(f"""
    buffer_load_dword v31, v30, s[12:15], 0 offen sc1
    s_waitcnt vmcnt(0)
    v_cmp_eq_u32 vcc, v29, v31
    s_nop 1
    s_cmp_eq_u64 vcc, -1
    s_cbranch_scc1 KS_GO
    s_sleep {P.get('ks_sleep', 12)}
    s_sub_u32 s39, s39, 1
    s_cmp_lg_u32 s39, 0
    s_cbranch_scc1 KS_POLL
    """)
    A.label("KS_GO")
    A("s_barrier")
    A.stamp(1)
    C = Asm()
    k1_phase(C, "K1S", 0, False)
    for i in C.ins:
        if i.text.startswith("buffer_load"):
            i.text = i.text[:-4] + " sc1 lds" if i.text.endswith(" lds") else i.text + " sc1"
    A.extend(C)
    A.label("KS_END")
    A("s_endpgm")
    G.end(A, name, 400, 256)
    return (name, 256, 256, LDS_BYTES)

def gen_k0():
    name = "k0_kernel"
    A = G.begin(name)
    A("""
    s_load_dwordx16 s[64:79], s[0:1], 0
    s_load_dwordx4 s[80:83], s[0:1], 64
    """)
    G.wave_id(A, 3)
    A.waitall()
    G.srd(A, 4, 82, G.WS_USED)
    if P.get("pf", 1):
        A("""
        s_lshr_b32 s29, s2, 3
        s_lshl_b32 s29, s29, 2
        s_add_u32 s29, s29, s3
        v_and_b32 v1, 63, v0
        v_lshlrev_b32 v1, 4, v1
        """)
        if MEGA: G.code_prefetch(A, "km_kernel", "CODE_END", 16, 29, 1, 124, nper=2, stride=72*1024)
        else: G.code_prefetch(A, "k1_kernel", "kca_kernel", 16, 29, 1, 124)
    B = Asm()
    nj = G.k0_body(B)
    for i in B.ins:
        if i.text.startswith("buffer_store_dwordx4") and "v[8:11]" not in i.text and P.get("k0_sc1", 0): i.text += " sc1"
    A.extend(B)
    A("s_endpgm")
    G.end(A, name, 128)
    return (name, nj, 256, 41984)

def gen_k1s():
    name = "k1_kernel"
    A = G.begin(name)
    A(f"""
    s_load_dwordx2 s[12:13], s[0:1], 72
    s_cmp_ge_u32 s2, 256
    s_cbranch_scc1 K1S_END
    s_mov_b32 s42, {G.XF}
    s_mov_b32 s43, {G.ST}
    s_mov_b32 s41, 0
    """)
    G.wave_id(A, 3)
    k1_decode(A, "K1S_END")
    A("""
    s_cmp_ge_u32 s87, 15
    s_cbranch_scc1 K1S_END
    v_and_b32 v1, 63, v0
    v_lshlrev_b32 v1, 4, v1
    """)
    A.waitall()
    G.srd(A, 4, 12, G.WS_USED)
    k1_phase(A, "K1S", 0, False)
    A.label("K1S_END")
    A("s_endpgm")
    G.end(A, name, 400, 256)
    return (name, 256, 256, LDS_BYTES)

def gen_chain():
    A = Asm()
    names = [("kca_kernel", 0), ("kcb_kernel", 1)]
    for i, (n, fl) in enumerate(names):
        A.raw(f".globl {n}\n.p2align 8\n.type {n},@function")
        A.label(n)
        A(f"s_mov_b32 s40, {fl}")
        A(f"s_mov_b32 s41, {fl*8192}")
        A(f"s_mov_b32 s42, {G.XF + 2*fl*G.XSZ}")
        A(f"s_mov_b32 s43, {G.ST + 2*fl*G.SSZ}")
        if i < len(names) - 1: A("s_branch CH_BODY")
    A.label("CH_BODY")
    A("""
    s_load_dwordx2 s[12:13], s[0:1], 72
    s_load_dwordx2 s[14:15], s[0:1], 56
    s_cmp_ge_u32 s2, 256
    s_cbranch_scc1 CH_END
    """)
    G.wave_id(A, 3)
    t2_decode(A)
    t2_setup(A, 18, G.OF, G.WO, 0, 1)
    k4_decode(A)
    A.waitall()
    G.srd(A, 4, 12, G.WS_USED)
    G.srd(A, 8, 14, G.S * G.D * 2)
    sl4 = lambda t: t
    NTAIL = P.get("t2_ntail", 16)
    A("s_cmp_lg_u32 s83, 0")
    A("s_cbranch_scc1 K3_N5")
    A.save("k3n5")
    wt = lambda: tile_dmas([0, 1, 2, 3], sl4, 77, 76, 78, lambda t: f"w{t}" if t < 3 else "t3")
    for NT, pfx in ((4, "K3A"), (5, "K3B")):
        if NT == 5:
            A.label("K3_N5"); A.restore("k3n5")
        X, RES, left = t2_main(A, NT, 18, pfx, 0, "", wt()[:NTAIL], None, 0)
        assert not left
        t2_store(A, NT, X, RES)
        if NT == 4: A("s_branch K3_DONE")
    A.label("K3_DONE")
    if P.get("st3"): A.stamp(14)
    A("s_lshl_b32 s24, s80, 3")
    A("s_add_u32 s24, s24, s81")
    A("s_lshl_b32 s24, s24, 2")
    A("s_add_u32 s24, s24, s41")
    NMID = P.get("t2_nmid", 4)
    assert NTAIL + NMID <= 20
    for g in wt()[NTAIL:NTAIL+NMID]: A.ins += g
    signal(A, 24, "out")
    A.stamp(1)
    for g in wt()[NTAIL+NMID:]: A.ins += g
    k4_phase(A, None)
    qt = lambda: tile_dmas([0, 1, 2, 3], sl4, 77, 76, 78, lambda t: f"q{t}")
    if SK:
        k5_phase(A, lambda t: tile_dmas([t], sl4, 77, 76, 78, lambda t: f"q{t}"), P.get("k5_nmid", 6))
    else:
        A("s_lshl_b32 s24, s85, 5")
        A("s_add_u32 s24, s24, s84")
        A("s_lshl_b32 s24, s24, 2")
        A("s_add_u32 s24, s24, s41")
        A("s_add_u32 s24, s24, 1024")
        t2_setup(A, 144, G.HF, G.W2, 1, 2)
        signal(A, 24, "hout")
        A.stamp(8)
        k1_decode(A, None)
        A("s_lshr_b32 s25, s80, 2")
        A("s_lshl_b32 s25, s25, 7")
        A("s_add_u32 s25, s25, s41")
        A("s_add_u32 s25, s25, 1024")
        WPRE = 5
        poll(A, 25, 32, True)
        A.stamp(9)
        A("s_cmp_lg_u32 s83, 0")
        A("s_cbranch_scc1 K5_N5")
        A.save("k5n5")
        qt = lambda: tile_dmas([0, 1, 2, 3], sl4, 77, 76, 78, lambda t: f"q{t}")
        for NT, pfx in ((4, "K5A"), (5, "K5B")):
            if NT == 5:
                A.label("K5_N5"); A.restore("k5n5")
            X, RES, left = t2_main(A, NT, 144, pfx, WPRE, " sc1", qt()[:NTAIL], None, None)
            assert not left
            A.stamp(10)
            A("s_cmp_lg_u32 s40, 0")
            A(f"s_cbranch_scc1 {pfx}_FINAL")
            A.save(pfx + "fin")
            t2_store(A, NT, X, RES)
            A("s_branch K5_DONE")
            A.save(pfx + "done")
            A.label(f"{pfx}_FINAL")
            A.restore(pfx + "fin")
            for t in range(NT):
                A(f"buffer_store_dwordx2 v[{RES+2*t}:{RES+2*t+1}], v29, s[8:11], s31 offen offset:{t*32}")
            A("s_endpgm")
        A.label("K5_DONE")
        A.restore("K5Bdone")
        A("s_lshl_b32 s24, s80, 3")
        A("s_add_u32 s24, s24, s81")
        A("s_lshl_b32 s24, s24, 2")
        A("s_add_u32 s24, s24, s41")
        A("s_add_u32 s24, s24, 2048")
        for g in qt()[NTAIL:NTAIL+NMID]: A.ins += g
        signal(A, 24, "out")
        A.stamp(11)
        A("s_cmp_ge_u32 s87, 15")
        A("s_cbranch_scc1 CH_END")
        for g in qt()[NTAIL+NMID:]: A.ins += g
    if P.get("pf", 1):
        A("s_lshr_b32 s29, s2, 3")
        A("s_lshl_b32 s29, s29, 2")
        A("s_add_u32 s29, s29, s3")
        G.code_prefetch(A, "k2_kernel", "CODE_END", 12, 29, 1, 248)
    k1_phase(A, "K1C", 2, True)
    A.label("CH_END")
    A("s_endpgm")
    text = finalize(A)
    first = True
    for n, fl in names:
        G.kernels.append((n, text if first else "", 512, 256, 96))
        first = False
    return [(n, 256, 256, LDS_BYTES) for n, fl in names]
```

```python
from asmlib import *
import gen as G
from chain import *
import att
SOLO = P.get("solo", 1)
EARLY = SOLO and P.get("early", 0)

def k1_join(A, L):
    A.label(f"{L}_JOIN")
    A.fence()
    if SOLO and L == "K1S":
        A("v_and_b32 v30, 7, v0")
        A(f"v_lshlrev_b32 v30, {2+FSH}, v30")
        A(f"s_mov_b32 s38, {G.FLG + ((7168 + (158 if EARLY else 182)*4) << FSH)}")
        spin_flags(A, "ZBRDY", 30, 31, 4, "s38", 8)
    A.waitall()
    A.stamp("kj" + L)
    A("""
    s_lshl_b32 s24, s87, 4
    s_add_u32 s24, s24, s86
    s_lshl_b32 s24, s24, 2
    s_add_u32 s24, s24, s41
    s_add_u32 s24, s24, 4096
    """)
    if P.get("q_atomic", 0):
        A("s_andn2_b32 s24, s24, 63")
    A("s_barrier")
    B = Asm(); flag_store(B, 24)
    for i in B.ins:
        if P.get("q_atomic", 0) and "buffer_store_dword" in i.text:
            i.text = i.text.replace("buffer_store_dword", "buffer_atomic_add").replace(" sc1", "")
    A.extend(B)
    if EARLY and L == "K1S":
        A(f"""
        s_cmp_lt_u32 s2, 128
        s_cbranch_scc1 KM_NOFW
        s_cmp_lg_u32 s3, 1
        s_cbranch_scc1 KM_NOFW
        s_sub_u32 s24, s2, 128
        s_sub_u32 s25, s2, 40
        s_cmp_lt_u32 s2, 168
        s_cselect_b32 s25, s24, s25
        v_mov_b32 v30, s24
        v_mov_b32 v31, s25
        v_and_b32 v29, 2, v0
        v_cmp_eq_u32 vcc, 2, v29
        v_cndmask_b32 v30, v30, v31, vcc
        v_lshlrev_b32 v30, 1, v30
        v_and_b32 v29, 1, v0
        v_add_u32 v30, v30, v29
        v_lshlrev_b32 v30, {2+FSH}, v30
        v_mov_b32 v31, 1
        s_mov_b32 s24, {G.FLG + (5120 << FSH)}
        s_mov_b64 exec, 15
        """)
        A.raw(" buffer_store_dword v31, v30, s[4:7], s24 offen sc1")
        A("s_mov_b64 exec, -1")
        A.label("KM_NOFW")

def wo_prefetch():
    B = Asm()
    for st in range(5):
        for t in range(5):
            B(f"s_add_u32 s30, s87, {t*18*1024 + st*4096}")
            B(f"buffer_load_dwordx4 {r(t2_buf(st, 4+t), 4)}, v1, s[4:7], s30 offen sc1", tag=f"l{st}")
    return groups_vm(B.ins)

def pre_att(A):
    t2_decode(A)
    k4_decode(A)
    A(f"""
    s_mul_i32 s87, s82, {18*1024}
    s_add_u32 s87, s87, {G.WO}
    s_add_u32 s87, s87, s78
    """)

def spin_flags(A, lab, vaddr, vdat, srd, soff, nl):
    R = A.raw
    R("    s_mov_b32 s39, 0x20000")
    R(f"    s_mov_b64 exec, {hex((1 << nl) - 1)}")
    R(f"{lab}:")
    R(f"    buffer_load_dword v{vdat}, v{vaddr}, s[{srd}:{srd+3}], {soff} offen sc1")
    R("    s_waitcnt vmcnt(0)")
    R(f"    v_cmp_ne_u32 vcc, 1, v{vdat}")
    R("    s_nop 1")
    R("    s_and_b64 exec, exec, vcc")
    R(f"    s_cbranch_scc0 {lab}_X")
    R("    s_sleep 4")
    R("    s_sub_u32 s39, s39, 1")
    R("    s_cmp_lg_u32 s39, 0")
    R(f"    s_cbranch_scc1 {lab}")
    R(f"{lab}_X:")
    R("    s_mov_b64 exec, -1")

def gen_mega():
    name = "km_kernel"
    A = G.begin(name)
    if SOLO:
        A("s_load_dwordx16 s[64:79], s[0:1], 0")
        A("s_load_dwordx4 s[80:83], s[0:1], 64")
    else:
        A("s_load_dwordx2 s[82:83], s[0:1], 72")
        A("s_load_dwordx2 s[78:79], s[0:1], 56")
    A(f"""
    s_cmp_lt_u32 s2, 256
    s_cbranch_scc1 KM_GO
    s_endpgm
    """)
    A.label("KM_GO")
    if P.get("perm"):
        A("s_and_b32 s3, s2, 7")
        A("s_lshl_b32 s3, s3, 5")
        A("s_lshr_b32 s2, s2, 3")
        A("s_or_b32 s2, s2, s3")
    A(f"""
    s_mov_b32 s40, 0
    s_mov_b32 s41, 0
    s_mov_b32 s42, {G.XF}
    s_mov_b32 s43, {G.ST}
    s_mov_b32 s100, 0
    s_mov_b32 s101, 0
    """)
    G.wave_id(A, 3)
    A.waitall()
    G.srd(A, 4, 82, G.WS_USED)
    if SOLO:
        G.srd(A, 16, 80, 256)
        A("s_mov_b32 s84, s78")
        A("s_mov_b32 s85, s79")
        if P.get("wqpf", 1):
            A("s_cmp_lt_u32 s2, 192")
            A("s_cbranch_scc1 KM_NOWQ")
            G.srd(A, 8, 66, G.D * 3 * G.D * 2)
            A("""
            s_sub_u32 s29, s2, 192
            s_lshl_b32 s29, s29, 15
            v_lshlrev_b32 v1, 4, v0
            """)
            for k in range(8):
                A(f"buffer_load_dwordx4 v[{200+4*k}:{203+4*k}], v1, s[8:11], s29 offen")
                A("s_add_u32 s29, s29, 4096")
            A.label("KM_NOWQ")
        B = Asm()
        nj = G.k0_body(B)
        for i in B.ins:
            if i.text.startswith("buffer_store"): i.text += " sc1"
            if i.text.startswith("s_") and " s19," in i.text: i.text = "s_nop 0"
        A.extend(B)
        A.fence()
        A.stamp("p0")
        if not EARLY:
            A("""
            s_cmp_lt_u32 s2, 152
            s_cbranch_scc1 KM_NOPF
            s_lshr_b32 s29, s2, 3
            s_sub_u32 s29, s29, 19
            s_lshl_b32 s29, s29, 2
            s_add_u32 s29, s29, s3
            v_and_b32 v1, 63, v0
            v_lshlrev_b32 v1, 4, v1
            """)
            G.code_prefetch(A, "ATB_BEGIN", "CODE_END", 12, 29, 1, 248, nper=3, stride=52*1024, back=True)
            A.label("KM_NOPF")
        else:
            A("s_cmp_ge_u32 s2, 168")
            A("s_cbranch_scc1 KM_SIDE")
        XID = P.get("xid", 1)
        if XID:
            A("""
            s_cmp_lg_u32 s3, 1
            s_cbranch_scc1 KM_NOTK
            s_getreg_b32 s26, hwreg(HW_REG_XCC_ID)
            s_and_b32 s26, s26, 7
            s_mov_b32 s27, 8
            v_mov_b32 v28, 0
            s_mov_b64 exec, 1
            """)
            A.label("KM_TK")
            A("""
            v_mov_b32 v29, 1
            s_lshl_b32 s28, s26, 2
            s_add_u32 s28, s28, 128
            buffer_atomic_add v29, v28, s[16:19], s28 offen sc0
            s_waitcnt vmcnt(0)
            v_readfirstlane_b32 s29, v29
            s_cmp_lt_u32 s29, 32
            s_cbranch_scc1 KM_TKOK
            s_add_u32 s26, s26, 1
            s_and_b32 s26, s26, 7
            s_sub_u32 s27, s27, 1
            s_cmp_lg_u32 s27, 0
            s_cbranch_scc1 KM_TK
            """)
            A.label("KM_TKOK")
            A(f"""
            s_lshl_b32 s29, s29, 3
            s_add_u32 s29, s29, s26
            s_and_b32 s29, s29, 255
            v_mov_b32 v29, s29
            v_mov_b32 v28, {LDS_BYTES - 16}
            ds_write_b32 v28, v29
            s_mov_b64 exec, -1
            """)
            A.label("KM_NOTK")
        A("v_and_b32 v30, 3, v0")
        A("v_lshlrev_b32 v30, 2, v30")
        spin_flags(A, "ZRDY", 30, 31, 16, "0", 4)
        A.waitall()
        if XID:
            A("s_barrier")
            A(f"v_mov_b32 v28, {LDS_BYTES - 16}")
            A("ds_read_b32 v29, v28")
            A(f"""
            s_cmp_ge_u32 s2, {nj - 1}
            s_cbranch_scc1 KM_NOSIG
            s_lshl_b32 s24, s2, 2
            s_add_u32 s24, s24, 7168
            """)
        else:
            A(f"""
            s_cmp_ge_u32 s2, {nj - 1}
            s_cbranch_scc1 KM_NOSIG
            s_barrier
            s_lshl_b32 s24, s2, 2
            s_add_u32 s24, s24, 7168
            """)
        flag_store(A, 24)
        A.label("KM_NOSIG")
        if XID:
            A.waitall(vm=False)
            A("v_readfirstlane_b32 s2, v29")
            A("s_and_b32 s2, s2, 255")
        if EARLY:
            A("s_cmp_lt_u32 s2, 128")
            A("s_cbranch_scc1 KM_K1")
            A.label("KM_SIDE")
            A.reset()
            A("v_and_b32 v1, 63, v0")
            A("v_lshlrev_b32 v1, 4, v1")
            def pf0(B):
                B("s_lshr_b32 s29, s2, 3")
                B("s_sub_u32 s29, s29, 21")
                B("s_lshl_b32 s29, s29, 2")
                B("s_add_u32 s29, s29, s3")
                G.code_prefetch(B, "SE_DONE", "CODE_END", 12, 29, 1, 248, nper=3, stride=44*1024)
            att.side_early(A, pf0)
            G.srd(A, 16, 80, 256)
            A("v_and_b32 v30, 3, v0")
            A("v_lshlrev_b32 v30, 2, v30")
            spin_flags(A, "ZRDY2", 30, 31, 16, "0", 4)
            A.waitall()
            A.stamp("p2")
            A.label("KM_K1")
        G.srd(A, 8, 84, G.S * G.D * 2)
    else:
        G.srd(A, 8, 78, G.S * G.D * 2)
    k1_decode(A, None)
    A("""
    v_and_b32 v1, 63, v0
    v_lshlrev_b32 v1, 4, v1
    """)
    if SOLO:
        A(f"""
        s_lshl_b32 s24, s87, 2
        s_add_u32 s24, s24, 64
        s_mov_b32 s25, 3
        s_mul_i32 s26, s87, 3
        s_add_u32 s26, s26, {112 - 27}
        s_cmp_ge_u32 s87, 9
        s_cselect_b32 s24, s26, s24
        s_cselect_b32 s25, 2, s25
        s_cmp_eq_u32 s87, 8
        s_cselect_b32 s25, 7, s25
        s_cmp_eq_u32 s87, 15
        s_cselect_b32 s24, 104, s24
        s_cselect_b32 s25, 7, s25
        v_and_b32 v30, 7, v0
        v_min_u32 v30, s25, v30
        v_add_u32 v30, s24, v30
        s_lshl_b32 s26, s86, 2
        s_add_u32 s26, s26, s3
        v_mov_b32 v31, s26
        v_and_b32 v29, 8, v0
        v_cmp_eq_u32 vcc, 8, v29
        v_cndmask_b32 v30, v30, v31, vcc
        v_lshlrev_b32 v30, {2+FSH}, v30
        s_mov_b32 s38, {G.FLG + (7168 << FSH)}
        """)
        if not XFIRST:
            spin_flags(A, "PRDY", 30, 31, 4, "s38", 9)
            A.stamp("p1")
    C = Asm()
    def hook(B):
        B("v_mov_b32 v32, v30")
        B(f"s_lshl_b32 s24, s26, {2+FSH}")
        B("v_mov_b32 v33, s24")
        B(f"s_mov_b32 s38, {G.FLG + (7168 << FSH)}")
        spin_flags(B, "XRDY", 33, 34, 4, "s38", 1)
        B.stamp("px")
        stats_load(B, 1, 29, 16, 12, "")
        for ks in range(36):
            B(f"s_add_u32 s30, s23, {(ks//4)*4096}")
            B(f"buffer_load_dwordx4 a[{4*ks}:{4*ks+3}], v1, s[4:7], s30 offen offset:{(ks%4)*1024}", tag=f"x{ks}")
        spin_flags(B, "PRDY", 32, 34, 4, "s38", 8)
        B.waitall()
        B.stamp("p1")
    k1_phase(C, "K1S", 0, False, hook if XFIRST else None)
    for i in C.ins:
        if SOLO and i.text.startswith("buffer_load") and "sc1" not in i.text and not i.text.endswith(" lds"): i.text += " sc1"
    A.extend(C)
    k1_join(A, "K1S")
    A.stamp("k1e")
    if EARLY: A.label("CH_ATT")
    pre_att(A)
    def pfc(B):
        B("s_lshr_b32 s29, s2, 3")
        B("s_lshl_b32 s29, s29, 2")
        B("s_add_u32 s29, s29, s3")
        G.code_prefetch(B, "K3_DONE", "K1C_JOIN", 12, 29, 1, 248)
    att.att_phase(A, "ATA", not EARLY, wo_prefetch, pfc if P.get("pf2", 1) else None)
    A.label("CH_K3")
    A.fence()
    sl4 = lambda t: t
    t2_setup(A, 18, G.OF, G.WO, 0, 1)
    A(f"""
    s_mul_i32 s24, s84, 9
    s_lshr_b32 s24, s24, 2
    s_lshr_b32 s25, s2, 6              ; cgp
    s_mul_i32 s25, s25, 9
    s_lshr_b32 s25, s25, 2
    s_and_b32 s26, s2, 3
    s_mul_i32 s26, s26, 18
    s_add_u32 s25, s25, s26
    s_add_u32 s25, s25, 144
    v_bfe_u32 v30, v0, 1, 2
    v_min_u32 v30, 2, v30              ; 0..2
    v_bfe_u32 v31, v0, 3, 1
    v_bfe_u32 v26, v0, 4, 1
    v_cmp_eq_u32 vcc, 1, v26
    v_mov_b32 v26, 72
    v_cndmask_b32 v26, v26, 9, vcc
    v_mul_u32_u24 v31, v31, v26
    v_add_u32 v30, v30, v31
    v_mov_b32 v31, s24
    v_mov_b32 v26, s25
    v_cndmask_b32 v31, v31, v26, vcc
    v_add_u32 v30, v30, v31
    v_lshlrev_b32 v30, 1, v30
    v_and_b32 v31, 1, v0
    v_add_u32 v30, v30, v31
    v_lshlrev_b32 v30, {2+FSH}, v30
    s_mov_b32 s25, {G.FLG + (5120 << FSH)}
    """)
    A("s_waitcnt vmcnt(0)")
    A("s_mov_b64 exec, 1")
    A("buffer_store_dword v99, v98, s[4:7], s86 offen sc1")
    A("s_mov_b64 exec, -1")
    A("v_mov_b32 v26, v30")
    A.raw(" buffer_load_dword v112, v26, s[4:7], s25 offen sc1")
    for t in range(5):
        so, im = (28, t * 1024) if t < 4 else (29, 0)
        A.raw(f" buffer_load_dwordx2 v[{16+2*t}:{17+2*t}], v11, s[4:7], s{so} offen offset:{im} sc1")
    A.stamp("ate")
    wt = lambda: tile_dmas([0, 1, 2, 3], sl4, 77, 76, 78, lambda t: f"w{t}" if t < 3 else "t3")
    NPRE = 0
    R2 = P.get("red2", 0)
    NTAIL = P.get("m_ntail", 22 if R2 else 16); NMID = P.get("m_nmid", 4)
    assert NPRE + NTAIL + NMID <= (26 if R2 else 20)
    A("s_lshl_b32 s24, s80, 7")
    A("s_add_u32 s24, s24, s41")
    A("s_add_u32 s24, s24, 16384")
    A("s_cmp_eq_u32 s3, 0")
    A("s_cbranch_scc1 K3_W0")
    A("s_waitcnt vmcnt(0)")
    A.label("K3_W0")
    poll(A, 24, 32, 0)
    A.reset()
    flagchk(A, "WRDY", "fw", 112, 26, 25)
    A.stamp("k3p")
    A("s_cmp_lg_u32 s83, 0")
    A("s_cbranch_scc1 K3_N5")
    A.save("k3n5")
    for NT, pfx in ((4, "K3A"), (5, "K3B")):
        if NT == 5:
            A.label("K3_N5"); A.restore("k3n5")
        X, RES, left = t2_main(A, NT, 18, pfx, 5, " sc1", wt()[NPRE:NPRE+NTAIL], "pre", None)
        t2_store(A, NT, X, RES)
        if NT == 4: A("s_branch K3_DONE")
    A.label("K3_DONE")
    A.stamp("t3")
    A("s_lshl_b32 s24, s80, 3")
    A("s_add_u32 s24, s24, s81")
    A("s_lshl_b32 s24, s24, 2")
    A("s_add_u32 s24, s24, s41")
    for g in wt()[NPRE+NTAIL:NPRE+NTAIL+NMID]: A.ins += g
    signal(A, 24, "out")
    A.stamp("k3e")
    if R2:
        for g in wt()[NPRE+NTAIL+NMID:26]: A.ins += g
        late = wt()[26:]
        for g in late: g[-1].tag = "l" + g[-1].tag
        k4_phase(A, late)
    else:
        for g in wt()[NPRE+NTAIL+NMID:]: A.ins += g
        k4_phase(A, None)
    k5_phase(A, lambda t: tile_dmas([t], sl4, 77, 76, 78, lambda t: f"q{t}"), P.get("k5_nmid", 6))
    if P.get("pf2", 1) and not EARLY:
        A("s_lshr_b32 s29, s2, 3")
        A("s_lshl_b32 s29, s29, 2")
        A("s_add_u32 s29, s29, s3")
        G.code_prefetch(A, "ATB_BEGIN", "ATB_END", 12, 29, 1, 248, back=True)
    k1_phase(A, "K1C", 0, True)
    if EARLY:
        k1_join(A, "K1C")
        A.stamp("k1e2")
        A("s_branch CH_ATT")
    else:
        A.label("K1C_JOIN")
        A("s_getpc_b64 s[24:25]")
        A.label("FARJ")
        A("s_sub_u32 s24, s24, FARJ-K1D_JOIN")
        A("s_subb_u32 s25, s25, 0")
        A("s_setpc_b64 s[24:25]")
        F = Asm()
        F.label("ATB_BEGIN")
        k1_join(F, "K1D")
        F.stamp("k1e2")
        pre_att(F)
        att.att_phase(F, "ATB", False, wo_prefetch)
        F("s_branch CH_K3")
        F.label("ATB_END")
        A.ins = F.ins + A.ins
    A.label("CH_END")
    A("s_endpgm")
    for i in A.ins:
        if i.text.endswith(" lds") and "sc1" not in i.text: i.text = i.text[:-4] + " sc1 lds"
    G.end(A, name, 512, 256, ns=102)
    return (name, 256, 256, LDS_BYTES)
```
